```python
import torch

def _softmax(x, axis=-1):
    return torch.softmax(x, dim=axis)
def _gelu(x):
    return torch.nn.functional.gelu(x, approximate="tanh")
def _silu(x):
    return torch.nn.functional.silu(x)
def _sigmoid(x):
    return torch.sigmoid(x)
def _layernorm(x, axis=-1, eps=1e-5):
    m = x.mean(dim=axis, keepdim=True)
    v = x.var(dim=axis, keepdim=True, unbiased=False)
    return (x - m) / torch.sqrt(v + eps)
def _scatter_add(tgt, idx, src, axis=0):
    return tgt.clone().index_add_(axis, idx, src)
def _segment_sum(src, seg, n):
    out = torch.zeros((n,) + src.shape[1:], dtype=src.dtype)
    return out.index_add_(0, seg, src)
def _pad(x, pw):
    flat = tuple(v for pair in reversed(pw) for v in pair)
    return torch.nn.functional.pad(x, flat)

kernel_name = 'parallel_sum__sliding_local_dilated__glu_gated_glu__prompt'

def setup_inputs():

    _w = (lambda a: (lambda t: t.to(torch.bfloat16) if t.is_floating_point() else t)(torch.as_tensor(a)))
    def _A_setup():
        B, S, D = 1, 2048, 1024
        return {
            "x": _w((lambda *s: torch.randn(*s, dtype=torch.bfloat16) * 0.05)(B, S, D)),
            "wqkv": _w((lambda *s: torch.randn(*s, dtype=torch.bfloat16) * 0.05)(D, 3 * D)),
            "wo": _w((lambda *s: torch.randn(*s, dtype=torch.bfloat16) * 0.05)(D, D)),
        }
    _A_in = _A_setup()

    def _B_setup():
        B, S, D, F = 1, 2048, 1024, 3584
        return {
            "x": _w((lambda *s: torch.randn(*s, dtype=torch.bfloat16) * 0.05)(B, S, D)),
            "w_gate": _w((lambda *s: torch.randn(*s, dtype=torch.bfloat16) * 0.05)(D, F)),
            "w_up": _w((lambda *s: torch.randn(*s, dtype=torch.bfloat16) * 0.05)(D, F)),
            "w_down": _w((lambda *s: torch.randn(*s, dtype=torch.bfloat16) * 0.05)(F, D)),
        }
    _B_in = _B_setup()

    return {
        "A_x": _A_in["x"],
        "A_wqkv": _A_in["wqkv"],
        "A_wo": _A_in["wo"],
        "B_x": _B_in["x"],
        "B_w_gate": _B_in["w_gate"],
        "B_w_up": _B_in["w_up"],
        "B_w_down": _B_in["w_down"],
    }

def reference(A_x, A_wqkv, A_wo, B_x, B_w_gate, B_w_up, B_w_down):
    def _A_ref(x, wqkv, wo):
        B, S, D = x.shape
        H = 32; Dh = D // H
        W, dil = 8, 2
        qkv = (lambda x, *d: x.permute(*d))((x @ wqkv).reshape(B, S, 3, H, Dh), 2, 0, 3, 1, 4)
        q, k, v = qkv[0], qkv[1], qkv[2]
        scale = Dh ** -0.5
        pos = torch.arange(S)
        off = torch.arange(W) * dil
        idx = pos[:, None] - off[None, :]
        mask = idx >= 0
        idx_c = torch.where(mask, idx, 0).reshape(-1)
        kg = k[:, :, idx_c, :].reshape(B, H, S, W, Dh)
        vg = v[:, :, idx_c, :].reshape(B, H, S, W, Dh)
        logits = torch.einsum("bhsd,bhswd->bhsw", q, kg) * scale
        logits = torch.where(mask[None, None, :, :], logits, -1e9)
        attn = _softmax(logits, axis=-1)
        o = torch.einsum("bhsw,bhswd->bhsd", attn, vg)
        return (lambda x, *d: x.permute(*d))(o, 0, 2, 1, 3).reshape(B, S, D) @ wo

    def _B_ref(x, w_gate, w_up, w_down):
        g = torch.einsum("bsd,df->bsf", x, w_gate)
        u = torch.einsum("bsd,df->bsf", x, w_up)
        h = _sigmoid(g) * u
        return torch.einsum("bsf,fd->bsd", h, w_down)

    x = A_x
    xn = _layernorm(x, axis=-1)
    return x + _A_ref(xn, A_wqkv, A_wo) + _B_ref(xn, B_w_gate, B_w_up, B_w_down)
```

```python
class A:
    def __init__(self):
        self.l = []
        self._lab = 0
    def __call__(self, s, *a):
        if a: s = s % a
        self.l.append("    " + s)
    def c(self, s):
        self.l.append("    ; " + s)
    def label(self, name):
        self.l.append(name + ":")
    def newlab(self, p="L"):
        self._lab += 1
        return "%s_%d" % (p, self._lab)
    def raw(self, s):
        self.l.append(s)
    def text(self):
        return "\n".join(self.l) + "\n"

def vr(b, n=1):
    return "v%d" % b if n == 1 else "v[%d:%d]" % (b, b + n - 1)
def ar(b, n=1):
    return "a%d" % b if n == 1 else "a[%d:%d]" % (b, b + n - 1)
def sr(b, n=1):
    return "s%d" % b if n == 1 else "s[%d:%d]" % (b, b + n - 1)

class R:
    def __init__(self, kind, base, n):
        self.kind, self.base, self.n = kind, base, n
    def __str__(self):
        return (vr if self.kind == 'v' else ar)(self.base, self.n)
    def sub(self, off, n=1):
        assert off + n <= self.n
        return R(self.kind, self.base + off, n)

def kernel_header(a, name):
    a.raw(".globl %s" % name)
    a.raw(".p2align 8")
    a.raw(".type %s,@function" % name)
    a.label(name)

def kernel_desc(name, vgpr, accum, sgpr=100):
    return """.amdhsa_kernel %s
  .amdhsa_next_free_vgpr %d
  .amdhsa_next_free_sgpr %d
  .amdhsa_accum_offset %d
  .amdhsa_group_segment_fixed_size 0
  .amdhsa_kernarg_size 80
  .amdhsa_user_sgpr_count 2
  .amdhsa_user_sgpr_kernarg_segment_ptr 1
  .amdhsa_system_sgpr_workgroup_id_x 1
.end_amdhsa_kernel
""" % (name, vgpr, sgpr, accum)

def make_srd(a, d, ptr, nbytes, off=0):
    if off:
        a("s_add_u32 s%d, s%d, 0x%x", d, ptr, off)
        a("s_addc_u32 s%d, s%d, 0", d + 1, ptr + 1)
    else:
        a("s_mov_b32 s%d, s%d", d, ptr)
        a("s_mov_b32 s%d, s%d", d + 1, ptr + 1)
    a("s_mov_b32 s%d, 0x%x", d + 2, nbytes)
    a("s_mov_b32 s%d, 0x00020000", d + 3)

WS_XN = 0
WS_ACT2 = 4 << 20
ACT2_STRIDE = 4608 * 2
WS_W2P = 24 << 20
WS_PART = 40 << 20
WS_FLAGS = 64 << 20
WS_DBG = 96 << 20

S_STAMP = 80
def stamp(a, opt, i):
    if not opt.get("prof"): return
    a("s_memrealtime s[%d:%d]", S_STAMP + 4 * i, S_STAMP + 4 * i + 1)
    a("s_memtime s[%d:%d]", S_STAMP + 4 * i + 2, S_STAMP + 4 * i + 3)
    if i or not opt.get("g1b"): a("s_waitcnt lgkmcnt(0)")
def stamp_store(a, opt, n, p_ws, s_wave, kidx, vt):
    if not opt.get("prof"): return
    a("s_load_dwordx2 s[76:77], s[0:1], 72")
    a("s_waitcnt lgkmcnt(0)")
    a("s_add_u32 s72, s76, 0x%x", WS_DBG + kidx * 0x40000)
    a("s_addc_u32 s73, s77, 0")
    a("s_mov_b32 s74, 0x40000")
    a("s_mov_b32 s75, 0x00020000")
    a("s_lshl_b32 s76, s2, 3")
    a("s_add_u32 s76, s76, s%d", s_wave)
    a("s_lshl_b32 s76, s76, 6")
    a("v_mov_b32 v%d, s76", vt)
    a("s_mov_b64 exec, 1")
    for i in range(n):
        a("v_mov_b32 v%d, s%d", vt + 2, S_STAMP + 4 * i)
        a("v_mov_b32 v%d, s%d", vt + 3, S_STAMP + 4 * i + 2)
        a("buffer_store_dwordx2 v[%d:%d], v%d, s[72:75], 0 offen offset:%d", vt + 2, vt + 3, vt, 8 * i)
        a("s_nop 1")
```

```python
from gen_common import *

XSLOT = 272 * 128
WBASE = 2 * XSLOT
WQKV_OFF = 0
WG_OFF = 6144
WU_OFF = 6144 + 7168 + 128
WSTAGE = 20736
EXCH = WBASE + 4 * WSTAGE
EX_HK = EXCH
EX_HV = EXCH + 1024
EX_K = EXCH + 2048
EX_V = EXCH + 4096
G1_LDS = EXCH + 5120

LOG2E = 1.4426950408889634
import struct
def f32(x):
    return "0x%08x" % struct.unpack("<I", struct.pack("<f", x))[0]

def gen_g1(a, name="g1_kernel", opt=None):
    opt = opt or {}
    NSTEP = 32
    S_XN = 4; S_ACT = 8
    S_WSRD = [12, 16, 20, 24, 28]
    S_WOFF = [32, 33, 34, 35, 36]
    S_WSTR = [37, 38, 39, 40, 41]
    S_WLDS = [42, 43, 44, 45, 46]
    S_XK = 47; S_XH = 48; S_W1024 = 49; S_WH = 50; S_LOOP = 51; S_T = 52; S_W = 53; S_WM = 54; S_WN = 55
    S_M0 = 56; S_J = 57; S_T2 = 58; S_T3 = 59
    P_QKV = 60; P_G = 62; P_U = 64; P_WS = 66
    S_MASKP = 68
    S_C0 = 70; S_C1 = 71; S_C2 = 72; S_C3 = 73
    S_ROW = [74, 75, 76, 77]
    V_XDMA = 1; V_WDMA = [2, 3, 4, 5, 6]; V_XR = [7, 8, 9, 10]
    V_GU = [11, 12]; V_QKV = [13, 14]; V_HX = [15, 16]; V_HW = [17, 18]
    V_T = 20
    def tile(idx):
        return R('v', 48 + 16 * idx, 16) if idx < 13 else R('a', 16 * (idx - 13), 16)
    def xfrag(st, mf): return R('a', 112 + st * 36 + mf * 4, 4)
    def wfrag(st, nf): return R('a', 112 + st * 36 + 16 + nf * 4, 4)
    HXF = R('a', 184, 4); HWF = R('a', 188, 4); HACC = R('a', 192, 4)

    kernel_header(a, name)
    done = a.newlab("L_g1_done"); fin = a.newlab("L_g1_fin")
    a("s_cmp_ge_u32 s2, 256")
    a("s_cbranch_scc1 %s", done)
    stamp(a, opt, 0)
    a("s_load_dwordx2 s[%d:%d], s[0:1], 8", P_QKV, P_QKV + 1)
    a("s_load_dwordx2 s[%d:%d], s[0:1], 32", P_G, P_G + 1)
    a("s_load_dwordx2 s[%d:%d], s[0:1], 40", P_U, P_U + 1)
    a("s_load_dwordx2 s[%d:%d], s[0:1], 72", P_WS, P_WS + 1)
    a("v_lshrrev_b32 v%d, 6, v0", V_T)
    a("v_and_b32 v0, 63, v0")
    a("s_nop 0")
    a("v_readfirstlane_b32 s%d, v%d", S_W, V_T)
    a("s_lshr_b32 s%d, s2, 5", S_M0)
    a("s_lshl_b32 s%d, s%d, 8", S_M0, S_M0)
    a("s_and_b32 s%d, s2, 7", S_J)
    a("s_lshl_b32 s%d, s%d, 2", S_J, S_J)
    a("s_bfe_u32 s%d, s2, 0x20003", S_T)
    a("s_add_u32 s%d, s%d, s%d", S_J, S_J, S_T)
    a("s_and_b32 s%d, s%d, 1", S_WM, S_W)
    a("s_lshr_b32 s%d, s%d, 1", S_WN, S_W)
    a("s_lshl_b32 s%d, s%d, 10", S_W1024, S_W)
    a("s_lshl_b32 s%d, s%d, 10", S_WH, S_WM)
    T0, T1, T2, T3 = V_T, V_T + 1, V_T + 2, V_T + 3
    a("v_lshrrev_b32 v%d, 4, v0", T0)
    a("s_lshl_b32 s%d, s%d, 2", S_T, S_WM)
    a("v_add_u32 v%d, s%d, v%d", T0, S_T, T0)
    a("v_and_b32 v%d, 7, v0", T1)
    a("v_xor_b32 v%d, v%d, v%d", T0, T0, T1)
    a("v_lshlrev_b32 v%d, 4, v%d", T0, T0)
    a("v_lshrrev_b32 v%d, 3, v0", T1)
    a("v_lshl_add_u32 v%d, v%d, 11, v%d", V_XDMA, T1, T0)
    a("s_lshl_b32 s%d, s%d, 3", S_T, S_W)
    a("s_add_u32 s%d, s%d, s%d", S_XK, S_M0, S_T)
    a("s_lshl_b32 s%d, s%d, 11", S_XK, S_XK)
    a("s_max_u32 s%d, s%d, 16", S_T, S_M0)
    a("s_sub_u32 s%d, s%d, 16", S_XH, S_T)
    a("s_lshl_b32 s%d, s%d, 3", S_T, S_WM)
    a("s_add_u32 s%d, s%d, s%d", S_XH, S_XH, S_T)
    a("s_lshl_b32 s%d, s%d, 11", S_XH, S_XH)
    def gu_off(dst, sjob):
        a("s_lshl_b32 s%d, s%d, 6", S_T2, sjob)
        a("v_add_u32 v%d, s%d, v0", T0, S_T2)
        a("v_mul_u32_u24 v%d, 4682, v%d", T1, T0)
        a("v_lshrrev_b32 v%d, 16, v%d", T1, T1)
        a("v_mul_u32_u24 v%d, 14, v%d", T2, T1)
        a("v_sub_u32 v%d, v%d, v%d", T2, T0, T2)
        a("v_mul_u32_u24 v%d, 7168, v%d", T1, T1)
        a("v_lshl_add_u32 v%d, v%d, 4, v%d", T1, T2, T1)
        a("s_mul_i32 s%d, s%d, 224", S_T2, S_J)
        a("v_add_u32 v%d, s%d, v%d", dst, S_T2, T1)
    def qkv_off(dst, sjob):
        a("s_lshl_b32 s%d, s%d, 6", S_T2, sjob)
        a("v_add_u32 v%d, s%d, v0", T0, S_T2)
        a("v_mul_u32_u24 v%d, 5462, v%d", T1, T0)
        a("v_lshrrev_b32 v%d, 16, v%d", T1, T1)
        a("v_mul_u32_u24 v%d, 12, v%d", T2, T1)
        a("v_sub_u32 v%d, v%d, v%d", T2, T0, T2)
        a("v_mul_u32_u24 v%d, 6144, v%d", T1, T1)
        a("v_lshrrev_b32 v%d, 2, v%d", T3, T2)
        a("v_lshl_add_u32 v%d, v%d, 11, v%d", T1, T3, T1)
        a("v_and_b32 v%d, 3, v%d", T2, T2)
        a("v_lshl_add_u32 v%d, v%d, 4, v%d", T1, T2, T1)
        a("s_lshl_b32 s%d, s%d, 6", S_T2, S_J)
        a("v_add_u32 v%d, s%d, v%d", dst, S_T2, T1)
    gu_off(V_WDMA[0], S_W)
    a("v_mov_b32 v%d, v%d", V_WDMA[1], V_WDMA[0])
    qkv_off(V_WDMA[4], S_W)
    a("s_waitcnt lgkmcnt(0)")
    make_srd(a, S_XN, P_WS, 2048 * 2048, WS_XN)
    make_srd(a, S_ACT, P_WS, 2048 * ACT2_STRIDE, WS_ACT2)
    make_srd(a, S_WSRD[0], P_G, 1024 * 7168)
    make_srd(a, S_WSRD[1], P_U, 1024 * 7168)
    make_srd(a, S_WSRD[4], P_QKV, 1024 * 6144)
    for i in range(5):
        a("s_mov_b32 s%d, 0", S_WOFF[i])
    a("s_mov_b32 s%d, %d", S_WSTR[0], 32 * 7168)
    a("s_mov_b32 s%d, %d", S_WSTR[1], 32 * 7168)
    a("s_mov_b32 s%d, %d", S_WSTR[4], 32 * 6144)
    a("s_add_u32 s%d, s%d, %d", S_WLDS[0], S_W1024, WBASE + WG_OFF)
    a("s_add_u32 s%d, s%d, %d", S_WLDS[1], S_W1024, WBASE + WU_OFF)
    a("s_add_u32 s%d, s%d, %d", S_WLDS[4], S_W1024, WBASE + WQKV_OFF)
    l_w3 = a.newlab("L_g1_w3"); l_w3e = a.newlab("L_g1_w3e")
    a("s_cmp_eq_u32 s%d, 3", S_W)
    a("s_cbranch_scc1 %s", l_w3)
    a("s_add_u32 s%d, s%d, 4", S_T3, S_W)
    gu_off(V_WDMA[2], S_T3)
    a("v_mov_b32 v%d, v%d", V_WDMA[3], V_WDMA[2])
    make_srd(a, S_WSRD[2], P_G, 1024 * 7168)
    make_srd(a, S_WSRD[3], P_U, 1024 * 7168)
    a("s_mov_b32 s%d, %d", S_WSTR[2], 32 * 7168)
    a("s_mov_b32 s%d, %d", S_WSTR[3], 32 * 7168)
    a("s_add_u32 s%d, s%d, %d", S_WLDS[2], S_W1024, WBASE + WG_OFF + 4096)
    a("s_add_u32 s%d, s%d, %d", S_WLDS[3], S_W1024, WBASE + WU_OFF + 4096)
    a("s_branch %s", l_w3e)
    a.label(l_w3)
    a("s_mov_b32 s%d, 4", S_T3)
    qkv_off(V_WDMA[2], S_T3)
    a("s_mov_b32 s%d, 5", S_T3)
    qkv_off(V_WDMA[3], S_T3)
    make_srd(a, S_WSRD[2], P_QKV, 1024 * 6144)
    make_srd(a, S_WSRD[3], P_QKV, 1024 * 6144)
    a("s_mov_b32 s%d, %d", S_WSTR[2], 32 * 6144)
    a("s_mov_b32 s%d, %d", S_WSTR[3], 32 * 6144)
    a("s_mov_b32 s%d, %d", S_WLDS[2], WBASE + WQKV_OFF + 4096)
    a("s_mov_b32 s%d, %d", S_WLDS[3], WBASE + WQKV_OFF + 5120)
    a.label(l_w3e)
    PFD = opt.get("pf_d", 0)
    S_PFSRD = 72; S_PFOFF = 78; S_PFSTR = 79; V_PF = 19; V_PFD = 47
    if opt.get("prof"): assert False or True
    if PFD:
        lq = a.newlab("L_pf_q"); le = a.newlab("L_pf_e")
        a("s_lshr_b32 s%d, s2, 3", S_T)
        a("s_and_b32 s%d, s2, 7", S_T2)
        a("s_cmp_ge_u32 s%d, 2", S_W)
        a("s_cbranch_scc1 %s", lq)
        a("v_min_u32 v%d, 27, v0", T0)
        a("v_mul_u32_u24 v%d, 9363, v%d", T1, T0)
        a("v_lshrrev_b32 v%d, 16, v%d", T1, T1)
        a("v_mul_u32_u24 v%d, 7, v%d", T2, T1)
        a("v_sub_u32 v%d, v%d, v%d", T2, T0, T2)
        a("v_lshlrev_b32 v%d, 5, v%d", T1, T1)
        a("v_add_u32 v%d, s%d, v%d", T1, S_T, T1)
        a("v_mul_u32_u24 v%d, 7168, v%d", T1, T1)
        a("v_lshl_add_u32 v%d, v%d, 7, v%d", T1, T2, T1)
        a("s_mul_i32 s%d, s%d, 896", S_T2, S_T2)
        a("v_add_u32 v%d, s%d, v%d", V_PF, S_T2, T1)
        a("s_cmp_eq_u32 s%d, 0", S_W)
        a("s_cselect_b32 s%d, s%d, s%d", S_PFSRD, P_G, P_U)
        a("s_cselect_b32 s%d, s%d, s%d", S_PFSRD + 1, P_G + 1, P_U + 1)
        a("s_mov_b32 s%d, 0x%x", S_PFSRD + 2, 1024 * 7168)
        a("s_mov_b32 s%d, 0x00020000", S_PFSRD + 3)
        a("s_mov_b32 s%d, %d", S_PFSTR, 128 * 7168)
        a("s_branch %s", le)
        a.label(lq)
        a("v_min_u32 v%d, 23, v0", T0)
        a("v_mul_u32_u24 v%d, 10923, v%d", T1, T0)
        a("v_lshrrev_b32 v%d, 16, v%d", T1, T1)
        a("v_mul_u32_u24 v%d, 6, v%d", T2, T1)
        a("v_sub_u32 v%d, v%d, v%d", T2, T0, T2)
        a("v_lshlrev_b32 v%d, 5, v%d", T1, T1)
        a("v_add_u32 v%d, s%d, v%d", T1, S_T, T1)
        a("v_mul_u32_u24 v%d, 6144, v%d", T1, T1)
        a("v_lshrrev_b32 v%d, 1, v%d", T3, T2)
        a("v_lshl_add_u32 v%d, v%d, 11, v%d", T1, T3, T1)
        a("v_and_b32 v%d, 1, v%d", T2, T2)
        a("v_lshl_add_u32 v%d, v%d, 7, v%d", T1, T2, T1)
        a("s_lshl_b32 s%d, s%d, 8", S_T2, S_T2)
        a("v_add_u32 v%d, s%d, v%d", V_PF, S_T2, T1)
        make_srd(a, S_PFSRD, P_QKV, 1024 * 6144)
        a("s_mov_b32 s%d, %d", S_PFSTR, 128 * 6144)
        a.label(le)
        a("s_mov_b32 s%d, s%d", S_PFOFF, S_PFSTR)
    def pf_job():
        return ["buffer_load_dword v%d, v%d, s[%d:%d], s%d offen%s" % (V_PFD, V_PF, S_PFSRD, S_PFSRD + 3, S_PFOFF, opt.get("pf_mod", "")),
                "s_add_u32 s%d, s%d, s%d" % (S_PFOFF, S_PFOFF, S_PFSTR)]

    def x_jobs(slot):
        jobs = []
        for i in range(8):
            jobs.append(["s_add_u32 m0, s%d, %d" % (S_W1024, slot * XSLOT + i * 4096),
                         "s_add_u32 s%d, s%d, %d" % (S_T, S_XK, i * 65536),
                         "buffer_load_dwordx4 v%d, s[%d:%d], s%d offen lds" % (V_XDMA, S_XN, S_XN + 3, S_T)])
        jobs.append(["s_add_u32 m0, s%d, %d" % (S_WH, slot * XSLOT + 32768),
                     "s_add_u32 s%d, s%d, 128" % (S_XK, S_XK),
                     "buffer_load_dwordx4 v%d, s[%d:%d], s%d offen lds" % (V_XDMA, S_XN, S_XN + 3, S_XH),
                     "s_add_u32 s%d, s%d, 128" % (S_XH, S_XH)])
        return jobs
    def w_jobs(stage):
        jobs = []
        for i in range(5):
            jobs.append(["s_add_u32 m0, s%d, %d" % (S_WLDS[i], stage * WSTAGE),
                         "s_nop 0",
                         "buffer_load_dwordx4 v%d, s[%d:%d], s%d offen%s lds" % (V_WDMA[i], S_WSRD[i], S_WSRD[i] + 3, S_WOFF[i], opt.get("wmod", "")),
                         "s_add_u32 s%d, s%d, s%d" % (S_WOFF[i], S_WOFF[i], S_WSTR[i])])
        return jobs
    if opt.get("skipx"):
        _xj = x_jobs
        def x_jobs(slot): return [[("s_nop 0" if t.startswith("buffer_load") else t) for t in jb] for jb in _xj(slot)]
    if opt.get("skipw") is not None:
        _wj = w_jobs
        sk = opt["skipw"]
        def w_jobs(stage): return [[("s_nop 0" if (t.startswith("buffer_load") and i in sk) else t) for t in jb] for i, jb in enumerate(_wj(stage))]
    q = []
    def emit_jobs_now(jobs, tag):
        for jb in jobs:
            for s in jb: a(s)
            q.append(tag)
    emit_jobs_now(x_jobs(0), ('X', 0))
    emit_jobs_now(w_jobs(0), ('W', 0))
    emit_jobs_now(w_jobs(1), ('W', 1))
    emit_jobs_now(x_jobs(1), ('X', 1))
    emit_jobs_now(w_jobs(2), ('W', 2))
    emit_jobs_now(w_jobs(3), ('W', 3))
    if PFD:
        for i in range(PFD // 128 - 1): emit_jobs_now([pf_job()], ('P', 0))

    if opt.get("loopskip"):
        _xj2 = x_jobs; _wj2 = w_jobs
        def x_jobs(slot): return [[("s_nop 0" if t.startswith("buffer_load") else t) for t in jb] for jb in _xj2(slot)]
        def w_jobs(stage): return [[("s_nop 0" if t.startswith("buffer_load") else t) for t in jb] for jb in _wj2(stage)]
    if opt.get("samek"):
        for i in range(5): a("s_mov_b32 s%d, 0", S_WSTR[i]); a("s_mov_b32 s%d, 0", S_WOFF[i])
        _xj3 = x_jobs
        def x_jobs(slot): return [[("s_nop 0" if t.endswith(", 128") else t) for t in jb] for jb in _xj3(slot)]
    a("v_and_b32 v%d, 31, v0", T0)
    a("s_lshl_b32 s%d, s%d, 7", S_T, S_WM)
    a("v_add_u32 v%d, s%d, v%d", T0, S_T, T0)
    a("v_lshlrev_b32 v%d, 7, v%d", T0, T0)
    a("v_bfe_u32 v%d, v0, 1, 3", T1)
    a("v_lshrrev_b32 v%d, 5, v0", T2)
    for kk4 in range(4):
        a("v_add_u32 v%d, %d, v%d", T3, kk4 * 2, T2)
        a("v_xor_b32 v%d, v%d, v%d", T3, T3, T1)
        a("v_lshl_add_u32 v%d, v%d, 4, v%d", V_XR[kk4], T3, T0)
    a("v_and_b32 v%d, 15, v0", T0)
    a("v_lshrrev_b32 v%d, 1, v%d", T1, T0)
    a("v_lshlrev_b32 v%d, 7, v%d", T0, T0)
    a("v_add_u32 v%d, 32768, v%d", T0, T0)
    a("v_lshrrev_b32 v%d, 4, v0", T2)
    a("v_xor_b32 v%d, v%d, v%d", T2, T2, T1)
    a("v_lshl_add_u32 v%d, v%d, 4, v%d", V_HX[0], T2, T0)
    a("v_xor_b32 v%d, 64, v%d", V_HX[1], V_HX[0])
    a("v_lshrrev_b32 v%d, 5, v0", T0)
    a("v_bfe_u32 v%d, v0, 2, 2", T1)
    a("v_lshl_add_u32 v%d, v%d, 3, v%d", T0, T0, T1)
    a("v_and_b32 v%d, 3, v0", T1)
    a("v_lshlrev_b32 v%d, 3, v%d", T1, T1)
    a("v_bfe_u32 v%d, v0, 4, 1", T2)
    a("v_mul_u32_u24 v%d, 224, v%d", T3, T0)
    a("v_add_u32 v%d, v%d, v%d", T3, T3, T1)
    a("v_mul_u32_u24 v%d, %d, v%d", V_GU[0], WU_OFF - WG_OFF, T2)
    a("v_add_u32 v%d, v%d, v%d", V_GU[0], V_GU[0], T3)
    a("v_add_u32 v%d, %d, v%d", V_GU[0], WBASE + WG_OFF, V_GU[0])
    a("v_add_u32 v%d, %d, v%d", V_GU[1], 2 * WSTAGE, V_GU[0])
    a("v_mul_u32_u24 v%d, 192, v%d", T3, T0)
    a("v_add_u32 v%d, v%d, v%d", T3, T3, T1)
    a("v_lshl_add_u32 v%d, v%d, 5, v%d", T3, T2, T3)
    a("v_add_u32 v%d, %d, v%d", V_QKV[0], WBASE + WQKV_OFF, T3)
    a("v_add_u32 v%d, %d, v%d", V_QKV[1], 2 * WSTAGE, V_QKV[0])
    a("v_lshrrev_b32 v%d, 4, v0", T0)
    a("v_bfe_u32 v%d, v0, 2, 2", T2)
    a("v_lshl_add_u32 v%d, v%d, 3, v%d", T0, T0, T2)
    a("v_mul_u32_u24 v%d, 192, v%d", T0, T0)
    a("v_add_u32 v%d, v%d, v%d", T0, T0, T1)
    a("s_lshl_b32 s%d, s%d, 6", S_T, S_WN)
    a("s_lshl_b32 s%d, s%d, 5", S_T2, S_WM)
    a("s_add_u32 s%d, s%d, s%d", S_T, S_T, S_T2)
    a("s_add_u32 s%d, s%d, %d", S_T, S_T, WBASE + WQKV_OFF + 64)
    a("v_add_u32 v%d, s%d, v%d", V_HW[0], S_T, T0)
    a("v_add_u32 v%d, %d, v%d", V_HW[1], 2 * WSTAGE, V_HW[0])

    def need_count(tags):
        last = max(i for i, t in enumerate(q) if t in tags)
        return len(q) - 1 - last

    def reads_for(wn, s, kk, st):
        out = []
        kk4 = (s & 1) * 2 + kk
        xs = (s >> 1) & 1
        stg = s & 3
        hi = stg >> 1; so = (stg & 1) * WSTAGE
        wr = []
        for nf in range(5):
            for r in range(2):
                dst = wfrag(st, nf).sub(2 * r, 2)
                if wn == 0 and nf < 3:
                    wr.append("ds_read_b64_tr_b16 %s, v%d offset:%d" % (dst, V_QKV[hi], so + (kk * 16 + r * 4) * 192 + nf * 64))
                else:
                    t = (nf - 3) if wn == 0 else (nf + 2)
                    wr.append("ds_read_b64_tr_b16 %s, v%d offset:%d" % (dst, V_GU[hi], so + (kk * 16 + r * 4) * 224 + t * 32))
        xr = ["ds_read_b128 %s, v%d offset:%d" % (xfrag(st, mf), V_XR[kk4], xs * XSLOT + mf * 4096) for mf in range(4)]
        out = [wr[0], wr[1], xr[0], xr[1], xr[2], xr[3]] + wr[2:]
        return out
    def halo_reads(s):
        xs = (s >> 1) & 1; stg = s & 3; hi = stg >> 1; so = (stg & 1) * WSTAGE
        return ["ds_read_b128 %s, v%d offset:%d" % (HXF, V_HX[s & 1], xs * XSLOT),
                "ds_read_b64_tr_b16 %s, v%d offset:%d" % (HWF.sub(0, 2), V_HW[hi], so),
                "ds_read_b64_tr_b16 %s, v%d offset:%d" % (HWF.sub(2, 2), V_HW[hi], so + 4 * 192)]
    def mfmas(wn, st, first):
        out = []
        order = [(nf, mf) for nf in range(5) for mf in range(4)]
        if opt.get("order") == "mf": order = [(nf, mf) for mf in range(4) for nf in range(5)]
        if opt.get("order") == "snake": order = [(nf, mf if nf % 2 == 0 else 3 - mf) for nf in range(5) for mf in range(4)]
        if opt.get("order") == "diag": order = [((i % 5), (i % 4)) for i in range(20)]
        if opt.get("fake16b"):
            for z in range(2):
                for nf, mf in order:
                    tt = tile(nf * 4 + mf).sub(st * 8 + z * 4, 4)
                    out.append("v_mfma_f32_16x16x32_bf16 %s, %s, %s, %s" % (tt, wfrag(st, nf), xfrag(st, mf), "0" if first else str(tt)))
            return out
        for nf, mf in order:
            if True:
                t = tile(nf * 4 + mf)
                c = "0" if first else str(t)
                if opt.get("swapab"):
                    out.append("v_mfma_f32_32x32x16_bf16 %s, %s, %s, %s" % (t, xfrag(st, mf), wfrag(st, nf), c)); continue
                if opt.get("fake16"):
                    h = st * 8
                    for z in range(2):
                        tt = t.sub(h + z * 4, 4)
                        out.append("v_mfma_f32_16x16x32_bf16 %s, %s, %s, %s" % (tt, wfrag(st, nf), xfrag(st, mf), "0" if first else str(tt)))
                    continue
                if opt.get("nomfma"):
                    out.append("s_nop 0"); continue
                if wn == 0 and nf == 2:
                    out.append("v_mfma_f32_32x32x16_bf16 %s, %s, %s, %s" % (t, xfrag(st, mf), wfrag(st, nf), c))
                else:
                    out.append("v_mfma_f32_32x32x16_bf16 %s, %s, %s, %s" % (t, wfrag(st, nf), xfrag(st, mf), c))
        return out
    def halo_mfma(wn, first):
        c = "0" if first else str(HACC)
        if wn == 0:
            return "v_mfma_f32_16x16x32_bf16 %s, %s, %s, %s" % (HACC, HWF, HXF, c)
        return "v_mfma_f32_16x16x32_bf16 %s, %s, %s, %s" % (HACC, HXF, HWF, c)

    RPG = opt.get("reads_per_gap", 2)
    def substep(wn, s, kk, pending, waitN=None, last=False, first=False, sim=True):
        st = kk
        ms = mfmas(wn, st, first)
        fill = [[] for _ in range(len(ms))]
        g = 0
        if kk == 1 and not last:
            pass
        nxt = None
        if kk == 0: nxt = (s, 1)
        elif not last: nxt = (s + 1, 0)
        rd = reads_for(wn, nxt[0], nxt[1], 1 - st) if nxt else []
        if kk == 0: rd = rd + halo_reads(s)
        a("s_waitcnt lgkmcnt(0)")
        gi = 0
        if kk == 1:
            if not last:
                fill[0] += ["WAITVM", "s_barrier"]
            fill[1 if not last else 0].append(halo_mfma(wn, False))
            gi = 1
        i = 0
        while i < len(rd):
            fill[gi] += rd[i:i + RPG]; i += RPG; gi += 1
        for k_, m in enumerate(ms):
            a(m)
            for f in fill[k_]:
                if f == "WAITVM":
                    a("s_waitcnt vmcnt(%d)" % waitN())
                else:
                    a(f)
            G = k_ + (0 if kk == 1 else len(ms))
            EV = opt.get("dma_every", 0)
            if EV:
                ok = pending and G >= 1 and (G - 1 - wn * opt.get("dma_off", EV // 2)) % EV == 0 and G - 1 - wn * opt.get("dma_off", EV // 2) >= 0
            else:
                ok = k_ >= gi and pending
            if ok:
                jb, tag = pending.pop(0)
                for x in jb: a(x)
                q.append(tag)

    def body(wn):
        nonlocal q
        q_save = list(q)
        a("s_waitcnt vmcnt(%d)", need_count([('X', 0), ('W', 0)]))
        a("s_barrier")
        stamp(a, opt, 1)
        for rdi in reads_for(wn, 0, 0, 0): a(rdi)
        substep(wn, 0, 0, [], first=True)
        def run_iter(s0, emit, last_iter, waits):
            for ds in range(4):
                s = s0 + ds
                pend = []
                if s & 1 and (s + 3) // 2 < NSTEP // 2:
                    t = (s + 3) // 2
                    pend += [(jb, ('X', t)) for jb in x_jobs(t & 1)]
                if s + 4 < NSTEP:
                    pend += [(jb, ('W', s + 4)) for jb in w_jobs((s + 4) & 3)]
                if PFD and ds == 0 and not last_iter:
                    pend += [(pf_job(), ('P', 0))]
                lastsub = (s == NSTEP - 1)
                def wN():
                    if waits is not None and emit: return waits[ds]
                    tags = [('W', s + 1)]
                    if (s + 1) % 2 == 0: tags.append(('X', (s + 1) // 2))
                    n = need_count(tags)
                    if waits is not None:
                        waits[ds] = min(waits.get(ds, 63), n)
                    return min(n, 63)
                substep(wn, s, 1, pend, waitN=wN, last=lastsub, sim=('first' if s == 0 else True))
                if not lastsub:
                    substep(wn, s + 1, 0, pend)
                assert not pend, "DMA jobs not drained"
        waits = {}
        saved_lines = a.l; q0 = list(q)
        a.l = []
        for it in range(NSTEP // 4 - 1):
            run_iter(it * 4, False, False, waits)
        q_after = list(q)
        a.l = saved_lines; q = q0
        for i in range(4): a("v_accvgpr_write_b32 %s, 0", HACC.sub(i))
        loop = a.newlab("L_g1_loop")
        a("s_mov_b32 s%d, %d", S_LOOP, NSTEP // 4 - 1)
        a.label(loop)
        run_iter(4, True, False, waits)
        a("s_sub_u32 s%d, s%d, 1", S_LOOP, S_LOOP)
        a("s_cmp_lg_u32 s%d, 0", S_LOOP)
        a("s_cbranch_scc1 %s", loop)
        q = q_after
        run_iter(NSTEP - 4, True, True, None)
        a.c("waits: %s" % waits)
        epilogue(wn)
        q = q_save

    def glu_tile(t, tmp, tcol, mf):
        if t.kind == 'a':
            for i in range(16): a("v_accvgpr_read_b32 v%d, %s", tmp + i, t.sub(i))
            b = tmp
        else:
            b = t.base
        for i in range(0, 8, 2):
            a("v_pk_mul_f32 v[%d:%d], v[%d:%d], s[%d:%d]", b + i, b + i + 1, b + i, b + i + 1, S_C0, S_C1)
        for i in range(8): a("v_exp_f32 v%d, v%d", b + i, b + i)
        for i in range(0, 8, 2):
            a("v_pk_add_f32 v[%d:%d], v[%d:%d], s[%d:%d]", b + i, b + i + 1, b + i, b + i + 1, S_C2, S_C3)
        for i in range(8): a("v_rcp_f32 v%d, v%d", b + i, b + i)
        for i in range(0, 8, 2):
            a("v_pk_mul_f32 v[%d:%d], v[%d:%d], v[%d:%d]", b + i, b + i + 1, b + i, b + i + 1, b + 8 + i, b + 9 + i)
        for i in range(4):
            a("v_cvt_pk_bf16_f32 v%d, v%d, v%d", b + 8 + i, b + 2 * i, b + 2 * i + 1)
        a("s_nop 1")
        a("v_permlane32_swap_b32 v%d, v%d", b + 8, b + 10)
        a("v_permlane32_swap_b32 v%d, v%d", b + 9, b + 11)
        a("buffer_store_dwordx4 v[%d:%d], v%d, s[%d:%d], s%d offen offset:%d", b + 8, b + 11, V_ST, S_ACT, S_ACT + 3, S_ROW[mf], 2048 + tcol * 32)

    V_ST = 1
    def epilogue(wn):
        a.c("---- epilogue wn=%d" % wn)
        stamp(a, opt, 2)
        a("s_nop 15")
        a("s_mov_b32 s%d, %s", S_C0, f32(-LOG2E)); a("s_mov_b32 s%d, %s", S_C1, f32(-LOG2E))
        a("s_mov_b32 s%d, 1.0", S_C2); a("s_mov_b32 s%d, 1.0", S_C3)
        a("v_and_b32 v%d, 31, v0", T0)
        a("v_mul_u32_u24 v%d, %d, v%d", T0, ACT2_STRIDE, T0)
        a("v_lshrrev_b32 v%d, 5, v0", T1)
        a("v_lshl_add_u32 v%d, v%d, 4, v%d", V_ST, T1, T0)
        a("s_lshl_b32 s%d, s%d, 7", S_T, S_WM)
        a("s_add_u32 s%d, s%d, s%d", S_T, S_T, S_M0)
        a("s_mul_i32 s%d, s%d, %d", S_T, S_T, ACT2_STRIDE)
        a("s_mul_i32 s%d, s%d, 224", S_T2, S_J)
        a("s_add_u32 s%d, s%d, s%d", S_ROW[0], S_T, S_T2)
        for mf in range(1, 4):
            a("s_add_u32 s%d, s%d, %d", S_ROW[mf], S_ROW[0], mf * 32 * ACT2_STRIDE)
        for i in range(4): a("v_accvgpr_read_b32 v%d, %s", V_T + 4 + i, HACC.sub(i))
        a("v_cvt_pk_bf16_f32 v%d, v%d, v%d", V_T + 8, V_T + 4, V_T + 5)
        a("v_cvt_pk_bf16_f32 v%d, v%d, v%d", V_T + 9, V_T + 6, V_T + 7)
        a("v_and_b32 v%d, 15, v0", T0)
        a("v_lshrrev_b32 v%d, 4, v0", T1)
        if wn == 0:
            a("v_lshlrev_b32 v%d, 6, v%d", T0, T0)
            a("v_lshl_add_u32 v%d, v%d, 3, v%d", T0, T1, T0)
            a("s_lshl_b32 s%d, s%d, 5", S_T, S_WM)
            a("v_add_u32 v%d, s%d, v%d", T0, S_T, T0)
            a("v_add_u32 v%d, %d, v%d", T0, EX_HK, T0)
        else:
            a("v_lshlrev_b32 v%d, 5, v%d", T0, T0)
            a("v_lshl_add_u32 v%d, v%d, 3, v%d", T0, T1, T0)
            a("s_lshl_b32 s%d, s%d, 9", S_T, S_WM)
            a("v_add_u32 v%d, s%d, v%d", T0, S_T, T0)
            a("v_add_u32 v%d, %d, v%d", T0, EX_HV, T0)
        a("ds_write_b64 v%d, v[%d:%d]", T0, V_T + 8, V_T + 9)
        if wn == 1:
            a("s_waitcnt lgkmcnt(0)")
            a("s_barrier")
            for nf in range(5):
                for mf in range(4):
                    glu_tile(tile(nf * 4 + mf), 24, nf + 2, mf)
            a("s_branch %s", fin)
            return
        for idx in range(12):
            b = tile(idx).base
            for p in range(8):
                a("v_cvt_pk_bf16_f32 v%d, v%d, v%d", b + p, b + 2 * p, b + 2 * p + 1)
        Q = lambda mf: tile(0 + mf).base
        K = lambda mf: tile(4 + mf).base
        V = lambda mf: tile(8 + mf).base
        lsk = a.newlab("L_g1_exw")
        a("v_lshlrev_b32 v%d, 4, v0", T2)
        a("s_cmp_lg_u32 s%d, 0", S_WM)
        a("s_cbranch_scc1 %s", lsk)
        a("v_add_u32 v%d, %d, v%d", T3, EX_K, T2)
        a("ds_write_b128 v%d, v[%d:%d]", T3, K(3), K(3) + 3)
        a("ds_write_b128 v%d, v[%d:%d] offset:1024", T3, K(3) + 4, K(3) + 7)
        a("ds_write_b128 v%d, v[%d:%d] offset:2048", T3, V(3) + 4, V(3) + 7)
        a.label(lsk)
        a("s_waitcnt lgkmcnt(0)")
        a("s_barrier")
        KP = Q(0) + 8; VP = Q(1) + 8
        l1 = a.newlab("L_g1_rd1"); l2 = a.newlab("L_g1_rd2")
        a("s_cmp_lg_u32 s%d, 0", S_WM)
        a("s_cbranch_scc1 %s", l1)
        a("v_and_b32 v%d, 15, v0", T0)
        a("v_lshlrev_b32 v%d, 6, v%d", T0, T0)
        a("v_lshrrev_b32 v%d, 5, v0", T1)
        a("v_lshl_add_u32 v%d, v%d, 3, v%d", T0, T1, T0)
        a("v_add_u32 v%d, %d, v%d", T0, EX_HK, T0)
        for g in range(4):
            a("ds_read_b64 v[%d:%d], v%d offset:%d", KP + 2 * g, KP + 2 * g + 1, T0, g * 16)
        a("v_and_b32 v%d, 31, v0", T0)
        a("v_lshlrev_b32 v%d, 5, v%d", T0, T0)
        a("v_lshl_add_u32 v%d, v%d, 3, v%d", T0, T1, T0)
        a("v_add_u32 v%d, %d, v%d", T0, EX_HV, T0)
        a("ds_read_b64 v[%d:%d], v%d", VP, VP + 1, T0)
        a("ds_read_b64 v[%d:%d], v%d offset:16", VP + 2, VP + 3, T0)
        a("s_branch %s", l2)
        a.label(l1)
        a("v_add_u32 v%d, %d, v%d", T3, EX_K, T2)
        a("ds_read_b128 v[%d:%d], v%d", KP, KP + 3, T3)
        a("ds_read_b128 v[%d:%d], v%d offset:1024", KP + 4, KP + 7, T3)
        a("ds_read_b128 v[%d:%d], v%d offset:2048", VP, VP + 3, T3)
        a.label(l2)
        BC = Q(2) + 8; BP = Q(3) + 8; BPF = Q(3) + 12
        LM = 19
        a("v_and_b32 v%d, 31, v0", T0)
        a("v_and_b32 v%d, 1, v0", T1)
        a("v_lshrrev_b32 v%d, 5, v0", T2)
        a("v_lshl_add_u32 v%d, v%d, 2, v%d", T2, T2, T1)
        a("v_sub_u32 v%d, v%d, v%d", T0, T0, T2)
        a("v_cmp_eq_u32 s[%d:%d], 1, v%d", S_MASKP, S_MASKP + 1, T1)
        a("v_mov_b32 v%d, 0xffff", T2)
        a("v_mov_b32 v%d, 0xffff0000", T3)
        a("v_cndmask_b32 v%d, v%d, v%d, s[%d:%d]", LM, T2, T3, S_MASKP, S_MASKP + 1)
        a("v_mov_b32 v%d, 0xff7fffff", T3)
        for g in range(4):
            for e in range(2):
                a("v_subrev_u32 v%d, %d, v%d", T1, 8 * g + 2 * e, T0)
                a("v_cmp_gt_u32 vcc, 15, v%d", T1)
                a("s_nop 1")
                a("v_cndmask_b32 v%d, v%d, 0, vcc", BC + 2 * g + e, T3)
        for g in range(2, 4):
            for e in range(2):
                a("v_add_u32 v%d, %d, v%d", T1, 32 - (8 * g + 2 * e), T0)
                a("v_cmp_gt_u32 vcc, 15, v%d", T1)
                a("s_nop 1")
                a("v_cndmask_b32 v%d, v%d, 0, vcc", BP + 2 * (g - 2) + e, T3)
        a("s_or_b32 s%d, s%d, s%d", S_T, S_M0, S_WM)
        a("s_cmp_eq_u32 s%d, 0", S_T)
        a("s_cselect_b64 vcc, -1, 0")
        for i in range(4):
            a("v_cndmask_b32 v%d, v%d, v%d, vcc", BPF + i, BP + i, T3)
        a("s_mov_b32 s%d, %s", S_T3, f32(LOG2E * 32 ** -0.5))
        a("s_mul_i32 s%d, s%d, %d", S_T2, S_J, 224 - 64)
        a("s_waitcnt lgkmcnt(0)")
        SC = 24
        SPa = R('a', 112, 16)
        Oa = R('a', 128, 16)
        CAND = 40
        for mf in range(4):
            kp = KP if mf == 0 else K(mf - 1)
            vp = VP if mf == 0 else V(mf - 1) + 4
            bp = BPF if mf == 0 else BP
            CP = V(mf) + 8
            PC = K(mf) + 8
            a("v_mfma_f32_32x32x16_bf16 v[%d:%d], v[%d:%d], v[%d:%d], 0", SC, SC + 15, K(mf), K(mf) + 3, Q(mf), Q(mf) + 3)
            a("v_mfma_f32_32x32x16_bf16 %s, v[%d:%d], v[%d:%d], 0", SPa, kp, kp + 3, Q(mf), Q(mf) + 3)
            a("v_mfma_f32_32x32x16_bf16 v[%d:%d], v[%d:%d], v[%d:%d], v[%d:%d]", SC, SC + 15, K(mf) + 4, K(mf) + 7, Q(mf) + 4, Q(mf) + 7, SC, SC + 15)
            a("v_mfma_f32_32x32x16_bf16 %s, v[%d:%d], v[%d:%d], %s", SPa, kp + 4, kp + 7, Q(mf) + 4, Q(mf) + 7, SPa)
            a("s_nop 15")
            for i in range(8):
                a("v_cndmask_b32 v%d, v%d, v%d, s[%d:%d]", CAND + i, SC + 2 * i, SC + 2 * i + 1, S_MASKP, S_MASKP + 1)
            for i in range(8):
                a("v_accvgpr_read_b32 v%d, %s", SC + i, SPa.sub(8 + i))
            for i in range(4):
                a("v_cndmask_b32 v%d, v%d, v%d, s[%d:%d]", CP + i, SC + 2 * i, SC + 2 * i + 1, S_MASKP, S_MASKP + 1)
            for i in range(8):
                a("v_fma_f32 v%d, v%d, s%d, v%d", CAND + i, CAND + i, S_T3, BC + i)
            for i in range(4):
                a("v_fma_f32 v%d, v%d, s%d, v%d", CP + i, CP + i, S_T3, bp + i)
            M = SC; M2 = SC + 1
            a("v_max3_f32 v%d, v%d, v%d, v%d", M, CAND, CAND + 1, CAND + 2)
            a("v_max3_f32 v%d, v%d, v%d, v%d", M2, CAND + 3, CAND + 4, CAND + 5)
            a("v_max3_f32 v%d, v%d, v%d, v%d", M, M, CAND + 6, CAND + 7)
            a("v_max3_f32 v%d, v%d, v%d, v%d", M2, M2, CP, CP + 1)
            a("v_max3_f32 v%d, v%d, v%d, v%d", M, M, CP + 2, CP + 3)
            a("v_max_f32 v%d, v%d, v%d", M, M, M2)
            a("v_mov_b32 v%d, v%d", M2, M)
            a("s_nop 1")
            a("v_permlane32_swap_b32 v%d, v%d", M, M2)
            a("v_max_f32 v%d, v%d, v%d", M, M, M2)
            regs = [CAND + i for i in range(8)] + [CP + i for i in range(4)]
            for r_ in regs: a("v_sub_f32 v%d, v%d, v%d", r_, r_, M)
            for r_ in regs: a("v_exp_f32 v%d, v%d", r_, r_)
            S1 = SC + 2; S2 = SC + 3
            a("v_add_f32 v%d, v%d, v%d", S1, regs[0], regs[1])
            a("v_add_f32 v%d, v%d, v%d", S2, regs[2], regs[3])
            for i in range(4, 12, 2):
                a("v_add_f32 v%d, v%d, v%d", S1, S1, regs[i])
                a("v_add_f32 v%d, v%d, v%d", S2, S2, regs[i + 1])
            a("v_add_f32 v%d, v%d, v%d", S1, S1, S2)
            a("v_mov_b32 v%d, v%d", S2, S1)
            a("s_nop 1")
            a("v_permlane32_swap_b32 v%d, v%d", S1, S2)
            a("v_add_f32 v%d, v%d, v%d", S1, S1, S2)
            a("v_rcp_f32 v%d, v%d", S1, S1)
            a("s_nop 0")
            for r_ in regs: a("v_mul_f32 v%d, v%d, v%d", r_, r_, S1)
            for i in range(8):
                a("v_cvt_pk_bf16_f32 v%d, v%d, v%d", PC + i, CAND + i, CAND + i)
            for i in range(4):
                a("v_cvt_pk_bf16_f32 v%d, v%d, v%d", CP + 4 + i, CP + i, CP + i)
            for i in range(8):
                a("v_and_b32 v%d, v%d, v%d", PC + i, PC + i, LM)
            for i in range(4):
                a("v_and_b32 v%d, v%d, v%d", CP + 4 + i, CP + 4 + i, LM)
            a("s_nop 1")
            a("v_mfma_f32_32x32x16_bf16 v[%d:%d], v[%d:%d], v[%d:%d], 0", SC, SC + 15, V(mf), V(mf) + 3, PC, PC + 3)
            a("v_mfma_f32_32x32x16_bf16 v[%d:%d], v[%d:%d], v[%d:%d], v[%d:%d]", SC, SC + 15, V(mf) + 4, V(mf) + 7, PC + 4, PC + 7, SC, SC + 15)
            a("v_mfma_f32_32x32x16_bf16 v[%d:%d], v[%d:%d], v[%d:%d], v[%d:%d]", SC, SC + 15, vp, vp + 3, CP + 4, CP + 7, SC, SC + 15)
            a("s_nop 15")
            for i in range(8):
                a("v_cvt_pk_bf16_f32 v%d, v%d, v%d", CAND + i, SC + 2 * i, SC + 2 * i + 1)
            a("s_sub_u32 s%d, s%d, s%d", S_T, S_ROW[mf], S_T2)
            a("s_nop 0")
            a("v_permlane32_swap_b32 v%d, v%d", CAND + 0, CAND + 2)
            a("v_permlane32_swap_b32 v%d, v%d", CAND + 1, CAND + 3)
            a("v_permlane32_swap_b32 v%d, v%d", CAND + 4, CAND + 6)
            a("v_permlane32_swap_b32 v%d, v%d", CAND + 5, CAND + 7)
            a("buffer_store_dwordx4 v[%d:%d], v%d, s[%d:%d], s%d offen", CAND, CAND + 3, V_ST, S_ACT, S_ACT + 3, S_T)
            a("buffer_store_dwordx4 v[%d:%d], v%d, s[%d:%d], s%d offen offset:32", CAND + 4, CAND + 7, V_ST, S_ACT, S_ACT + 3, S_T)
            a("s_nop 1")
        for nf in range(3, 5):
            for mf in range(4):
                glu_tile(tile(nf * 4 + mf), 24, nf - 3, mf)
        a("s_branch %s", fin)

    l_wn1 = a.newlab("L_g1_wn1")
    a("s_cmp_lg_u32 s%d, 0", S_WN)
    a("s_cbranch_scc1 %s", l_wn1)
    body(0)
    a.label(l_wn1)
    body(1)
    a.label(fin)
    stamp(a, opt, 3)
    if opt.get("prof"):
        a("s_waitcnt vmcnt(0)")
    stamp(a, opt, 4)
    stamp_store(a, opt, 5, P_WS, S_W, 1, 20)
    a.label(done)
    a("s_endpgm")
    return kernel_desc(name, 512, 256, 100)
```

```python
from gen_common import *

G2_LDS = 131072
ASLOT = 16384
WB = 65536

def gen_g2(a, name="g2_kernel", opt=None):
    opt = opt or {}
    M = opt.get("g2_m", 16)
    K1 = (72 - M) // 2
    NS = K1 + M
    assert (K1 - 4) % 4 == 0 and (M - 8) % 4 == 0 and K1 >= 20
    S_A = 4; S_W = 8; S_X = 12; S_O = 16; S_P = 20; S_F = 24
    S_AROW = [28, 29, 30, 31]
    S_AK = 32; S_WK = 33; S_WV = 34; S_WM = 35; S_WN = 36; S_KS = 37; S_MT = 38; S_NT = 39
    S_T = 40; S_T2 = 41; S_LOOP = 42; S_W1024 = 43; S_D16 = 44; S_DJA = 45; S_DJW = 46
    S_PSEND = 47; S_PRECV = 48; S_FSEND = 49; S_FRECV = 50; S_OK = 51; S_XROW = 52
    P_X = 54; P_WO = 56; P_WD = 58; P_OUT = 60; P_WS = 62
    V_ADMA = 1; V_WDMA = 2; V_AR = [3, 4]; V_WR = [5, 6, 7, 8]; V_L16 = 9; V_XO = 10; V_FL = 11; V_ONE = 12; V_ZERO = 13
    T0, T1, T2, T3 = 14, 15, 16, 17
    XL = 20
    def keep(mf, nf): return R('v', 40 + (mf * 4 + nf) * 4, 4)
    def send(mf, nf): return R('v', 72 + (mf * 4 + nf) * 4, 4)
    def afrag(st, i): return R('v', 104 + st * 32 + i * 4, 4)
    def wfrag(st, nf): return R('v', 104 + st * 32 + 16 + nf * 4, 4)
    RECV = 168

    kernel_header(a, name)
    done = a.newlab("L_g2_done")
    a("s_cmp_ge_u32 s2, 256")
    a("s_cbranch_scc1 %s", done)
    stamp(a, opt, 0)
    a("s_load_dwordx2 s[%d:%d], s[0:1], 0", P_X, P_X + 1)
    a("s_load_dwordx2 s[%d:%d], s[0:1], 16", P_WO, P_WO + 1)
    a("s_load_dwordx2 s[%d:%d], s[0:1], 48", P_WD, P_WD + 1)
    a("s_load_dwordx2 s[%d:%d], s[0:1], 56", P_OUT, P_OUT + 1)
    a("s_load_dwordx2 s[%d:%d], s[0:1], 72", P_WS, P_WS + 1)
    a("v_lshrrev_b32 v%d, 6, v0", T0)
    a("v_and_b32 v0, 63, v0")
    a("s_nop 0")
    a("v_readfirstlane_b32 s%d, v%d", S_WV, T0)
    a("s_and_b32 s%d, s2, 1", S_KS)
    if opt.get("g2_map", "4x8") == "4x8":
        a("s_bfe_u32 s%d, s2, 0x20001", S_MT)
        a("s_lshl_b32 s%d, s%d, 2", S_MT, S_MT)
        a("s_lshr_b32 s%d, s2, 6", S_T)
        a("s_add_u32 s%d, s%d, s%d", S_MT, S_MT, S_T)
        a("s_bfe_u32 s%d, s2, 0x30003", S_NT)
    else:
        a("s_bfe_u32 s%d, s2, 0x10001", S_MT)
        a("s_lshl_b32 s%d, s%d, 3", S_MT, S_MT)
        a("s_lshr_b32 s%d, s2, 5", S_T)
        a("s_add_u32 s%d, s%d, s%d", S_MT, S_MT, S_T)
        a("s_bfe_u32 s%d, s2, 0x10002", S_NT)
        a("s_lshl_b32 s%d, s%d, 2", S_NT, S_NT)
        a("s_bfe_u32 s%d, s2, 0x20003", S_T)
        a("s_add_u32 s%d, s%d, s%d", S_NT, S_NT, S_T)
    a("s_and_b32 s%d, s%d, 1", S_WM, S_WV)
    a("s_lshr_b32 s%d, s%d, 1", S_WN, S_WV)
    a("s_lshl_b32 s%d, s%d, 10", S_W1024, S_WV)
    a("v_lshrrev_b32 v%d, 4, v0", T0)
    a("s_lshl_b32 s%d, s%d, 2", S_T, S_WM)
    a("v_add_u32 v%d, s%d, v%d", T0, S_T, T0)
    a("v_and_b32 v%d, 7, v0", T1)
    a("v_xor_b32 v%d, v%d, v%d", T0, T0, T1)
    a("v_lshlrev_b32 v%d, 4, v%d", T0, T0)
    a("v_lshrrev_b32 v%d, 3, v0", T1)
    a("v_mul_u32_u24 v%d, %d, v%d", T1, ACT2_STRIDE, T1)
    a("v_add_u32 v%d, v%d, v%d", V_ADMA, T1, T0)
    a("v_lshrrev_b32 v%d, 4, v0", T0)
    a("s_lshl_b32 s%d, s%d, 2", S_T, S_WN)
    a("v_or_b32 v%d, s%d, v%d", T1, S_T, T0)
    a("v_lshlrev_b32 v%d, 1, v%d", T1, T1)
    a("v_and_b32 v%d, 15, v0", T2)
    a("v_xor_b32 v%d, v%d, v%d", T1, T1, T2)
    a("v_lshlrev_b32 v%d, 4, v%d", T1, T1)
    a("v_lshl_add_u32 v%d, v%d, 11, v%d", V_WDMA, T0, T1)
    a("s_lshl_b32 s%d, s%d, 7", S_T, S_MT)
    a("s_lshl_b32 s%d, s%d, 6", S_T2, S_KS)
    a("s_add_u32 s%d, s%d, s%d", S_XROW, S_T, S_T2)
    a("s_xor_b32 s%d, s%d, 64", S_T2, S_XROW)
    a("s_lshl_b32 s%d, s%d, 3", S_T, S_WV)
    a("s_add_u32 s%d, s%d, s%d", S_AROW[0], S_XROW, S_T)
    a("s_mul_i32 s%d, s%d, %d", S_AROW[0], S_AROW[0], ACT2_STRIDE)
    a("s_add_u32 s%d, s%d, %d", S_AROW[1], S_AROW[0], 32 * ACT2_STRIDE)
    a("s_add_u32 s%d, s%d, s%d", S_AROW[2], S_T2, S_T)
    a("s_mul_i32 s%d, s%d, %d", S_AROW[2], S_AROW[2], ACT2_STRIDE)
    a("s_add_u32 s%d, s%d, %d", S_AROW[3], S_AROW[2], 32 * ACT2_STRIDE)
    a("s_mul_i32 s%d, s%d, %d", S_AK, S_KS, (K1 + M) * 128)
    a("s_mul_i32 s%d, s%d, %d", S_WK, S_KS, ((K1 + M) * 64 - 1024) * 2048)
    a("s_lshl_b32 s%d, s%d, 13", S_T, S_WV)
    a("s_add_u32 s%d, s%d, s%d", S_WK, S_WK, S_T)
    a("s_lshl_b32 s%d, s%d, 8", S_T, S_NT)
    a("s_add_u32 s%d, s%d, s%d", S_WK, S_WK, S_T)
    a("s_cmp_eq_u32 s%d, 0", S_KS)
    a("s_cselect_b32 s%d, 0x%x, 0", S_D16, (-1024 * 2048) & 0xffffffff)
    a("s_cselect_b32 s%d, 0, 0x%x", S_DJA, ((K1 - 72) * 128) & 0xffffffff)
    a("s_cselect_b32 s%d, 0, 0x%x", S_DJW, ((K1 - 72) * 64 * 2048) & 0xffffffff)
    a("s_waitcnt lgkmcnt(0)")
    make_srd(a, S_A, P_WS, 2048 * ACT2_STRIDE, WS_ACT2)
    a("s_cmp_eq_u32 s%d, 0", S_KS)
    a("s_cselect_b32 s%d, s%d, s%d", S_W, P_WO, P_WD)
    a("s_cselect_b32 s%d, s%d, s%d", S_W + 1, P_WO + 1, P_WD + 1)
    a("s_mov_b32 s%d, 0x%x", S_W + 2, 3584 * 2048)
    a("s_cselect_b32 s%d, 0x%x, s%d", S_W + 2, 1024 * 2048, S_W + 2)
    a("s_mov_b32 s%d, 0x00020000", S_W + 3)
    make_srd(a, S_X, P_X, 2048 * 2048)

    q = []
    def a_jobs(slot, full):
        jobs = []
        for i in range(4 if full else 2):
            jobs.append(["s_add_u32 m0, s%d, %d" % (S_W1024, slot * ASLOT + i * 4096),
                         "s_add_u32 s%d, s%d, s%d" % (S_T, S_AK, S_AROW[i]),
                         "buffer_load_dwordx4 v%d, s[%d:%d], s%d offen lds" % (V_ADMA, S_A, S_A + 3, S_T)])
        jobs[-1].append("s_add_u32 s%d, s%d, 128" % (S_AK, S_AK))
        return jobs
    def w_jobs(slot):
        jobs = []
        for i in range(4):
            jobs.append(["s_add_u32 m0, s%d, %d" % (S_W1024, WB + slot * ASLOT + i * 4096),
                         "s_add_u32 s%d, s%d, %d" % (S_T, S_WK, i * 32768),
                         "buffer_load_dwordx4 v%d, s[%d:%d], s%d offen%s lds" % (V_WDMA, S_W, S_W + 3, S_T, opt.get("g2_wmod", ""))])
        jobs[-1].append("s_add_u32 s%d, s%d, %d" % (S_WK, S_WK, 64 * 2048))
        return jobs
    def block_jobs(b):
        aj = a_jobs(b & 3, b < K1); wj = w_jobs(b & 3)
        out = []
        for i in range(4):
            out.append(wj[i])
            if i < len(aj): out.append(aj[i])
        return [(j, ('B', b)) for j in out]
    def emit_now(jobs):
        for jb, tag in jobs:
            for s in jb: a(s)
            q.append(tag)
    emit_now(block_jobs(0))
    a("v_and_b32 v%d, 15, v0", T0)
    a("v_lshrrev_b32 v%d, 4, v0", T1)
    a("v_lshlrev_b32 v%d, 11, v%d", T0, T0)
    a("v_lshl_add_u32 v%d, v%d, 3, v%d", T2, T1, T0)
    a("s_lshl_b32 s%d, s%d, 5", S_T, S_WM)
    a("s_add_u32 s%d, s%d, s%d", S_XROW, S_XROW, S_T)
    a("s_lshl_b32 s%d, s%d, 11", S_XROW, S_XROW)
    a("s_lshl_b32 s%d, s%d, 8", S_T, S_NT)
    a("s_add_u32 s%d, s%d, s%d", S_XROW, S_XROW, S_T)
    a("s_lshl_b32 s%d, s%d, 7", S_T, S_WN)
    a("s_add_u32 s%d, s%d, s%d", S_XROW, S_XROW, S_T)
    a("s_add_u32 s%d, s%d, %d", S_T2, S_XROW, 16 * 2048)
    for mf in range(2):
        for nf in range(4):
            d = XL + (mf * 4 + nf) * 2
            a("buffer_load_dwordx2 v[%d:%d], v%d, s[%d:%d], s%d offen offset:%d", d, d + 1, T2, S_X, S_X + 3, S_XROW if mf == 0 else S_T2, nf * 32)
            q.append(('X', 0))
    for b in range(1, 4): emit_now(block_jobs(b))
    a("v_and_b32 v%d, 1, v%d", T2, T1)
    a("v_lshl_add_u32 v%d, v%d, 5, v%d", T2, T2, T0)
    a("v_lshrrev_b32 v%d, 1, v%d", T3, T1)
    a("v_lshl_add_u32 v%d, v%d, 4, v%d", V_XO, T3, T2)
    make_srd(a, S_O, P_OUT, 2048 * 2048)
    make_srd(a, S_P, P_WS, 256 * 32768, WS_PART)
    make_srd(a, S_F, P_WS, 4096, WS_FLAGS)
    a("s_lshl_b32 s%d, s%d, 3", S_T, S_MT)
    a("s_add_u32 s%d, s%d, s%d", S_T, S_T, S_NT)
    a("s_lshl_b32 s%d, s%d, 1", S_T, S_T)
    a("s_add_u32 s%d, s%d, s%d", S_T, S_T, S_KS)
    a("s_lshl_b32 s%d, s%d, 2", S_T, S_T)
    a("s_add_u32 s%d, s%d, s%d", S_T, S_T, S_WV)
    a("s_xor_b32 s%d, s%d, 4", S_T2, S_T)
    a("s_lshl_b32 s%d, s%d, 13", S_PRECV, S_T)
    a("s_lshl_b32 s%d, s%d, 13", S_PSEND, S_T2)
    a("s_lshl_b32 s%d, s%d, 2", S_FRECV, S_T)
    a("s_lshl_b32 s%d, s%d, 2", S_FSEND, S_T2)
    a("v_lshlrev_b32 v%d, 4, v0", V_L16)
    a("v_mov_b32 v%d, 1", V_ONE)
    a("v_mov_b32 v%d, 0", V_ZERO)
    a("v_and_b32 v%d, 15, v0", T0)
    a("v_lshrrev_b32 v%d, 1, v%d", T2, T0)
    a("s_lshl_b32 s%d, s%d, 5", S_T, S_WM)
    a("v_add_u32 v%d, s%d, v%d", T0, S_T, T0)
    a("v_lshlrev_b32 v%d, 7, v%d", T0, T0)
    a("v_xor_b32 v%d, v%d, v%d", T2, T2, T1)
    a("v_lshl_add_u32 v%d, v%d, 4, v%d", V_AR[0], T2, T0)
    a("v_xor_b32 v%d, 64, v%d", V_AR[1], V_AR[0])
    a("v_bfe_u32 v%d, v0, 2, 2", T0)
    a("v_lshl_add_u32 v%d, v%d, 3, v%d", T2, T1, T0)
    a("v_lshlrev_b32 v%d, 8, v%d", T2, T2)
    a("v_and_b32 v%d, 3, v0", T3)
    a("v_lshl_add_u32 v%d, v%d, 3, v%d", T2, T3, T2)
    a("v_add_u32 v%d, %d, v%d", T2, WB, T2)
    a("v_and_b32 v%d, 1, v%d", T3, T1)
    a("v_lshl_or_b32 v%d, v%d, 2, v%d", T0, T3, T0)
    a("s_lshl_b32 s%d, s%d, 2", S_T, S_WN)
    a("v_xor_b32 v%d, s%d, v%d", T0, S_T, T0)
    for nf in range(4):
        a("v_xor_b32 v%d, %d, v%d", T3, nf, T0)
        a("v_lshl_add_u32 v%d, v%d, 5, v%d", V_WR[nf], T3, T2)
    for mf in range(2):
        for nf in range(4):
            for i in range(4): a("v_mov_b32 %s, 0", send(mf, nf).sub(i))

    def need_count(tags):
        last = max(i for i, t in enumerate(q) if t in tags)
        return len(q) - 1 - last
    a("s_waitcnt vmcnt(%d)", need_count([('X', 0)]))
    a("s_mov_b32 s%d, 0xffff0000", S_T)
    for mf in range(2):
        for nf in range(4):
            d = XL + (mf * 4 + nf) * 2; t = keep(mf, nf)
            a("v_lshlrev_b32 %s, 16, v%d", t.sub(0), d)
            a("v_and_b32 %s, s%d, v%d", t.sub(1), S_T, d)
            a("v_lshlrev_b32 %s, 16, v%d", t.sub(2), d + 1)
            a("v_and_b32 %s, s%d, v%d", t.sub(3), S_T, d + 1)

    def reads_for(c, kk, st):
        slot = c & 3; full = c < K1
        wr = []
        for nf in range(4):
            for r in range(2):
                wr.append("ds_read_b64_tr_b16 %s, v%d offset:%d" % (wfrag(st, nf).sub(2 * r, 2), V_WR[nf], slot * ASLOT + kk * 8192 + r * 1024))
        ar_ = ["ds_read_b128 %s, v%d offset:%d" % (afrag(st, i), V_AR[kk], slot * ASLOT + (i >> 1) * 8192 + (i & 1) * 2048) for i in range(4 if full else 2)]
        return [wr[0], wr[1]] + ar_ + wr[2:]
    def mfmas(c, st):
        na = 4 if c < K1 else 2
        out = []
        for nf in range(4):
            idx = list(range(na))
            if nf & 1: idx = idx[::-1]
            for i in idx:
                t = keep(i, nf) if i < 2 else send(i - 2, nf)
                out.append("v_mfma_f32_16x16x32_bf16 %s, %s, %s, %s" % (t, wfrag(st, nf), afrag(st, i), t))
        return out

    def substep(c, kk, pending, waitN=None, last=False, extra=None, post_barrier=None):
        ms = mfmas(c, kk)
        n = len(ms)
        fill = [[] for _ in range(n)]
        nxt = (c, 1) if kk == 0 else (None if last else (c + 1, 0))
        rd = reads_for(nxt[0], nxt[1], 1 - kk) if nxt else []
        a("s_waitcnt lgkmcnt(0)")
        gi = 0
        if kk == 1 and not last:
            fill[0] += ["WAITVM", "s_barrier"] + (post_barrier or [])
        rpg = opt.get("g2_rpg", 2) if n == 16 else 2
        i = 0
        while i < len(rd):
            fill[gi] += rd[i:i + rpg]; i += rpg; gi += 1
        if extra:
            for g_, ins in extra: fill[g_] += ins
        npend = len(pending) if kk == 0 else (len(pending) + 1) // 2
        slots = [min(n - 1, 1 + (j * n) // max(npend, 1)) for j in range(npend)]
        for k_, m in enumerate(ms):
            a(m)
            for f in fill[k_]:
                if f == "WAITVM": a("s_waitcnt vmcnt(%d)" % waitN())
                elif isinstance(f, tuple):
                    a(f[0]); q.append(f[1])
                else: a(f)
            while slots and slots[0] == k_:
                slots.pop(0)
                jb, tag = pending.pop(0)
                for x in jb: a(x)
                q.append(tag)

    FLAG_AT = K1 + opt.get("g2_flag_at", 1)
    def run_step(c, waits=None, key=None, emit=True, ev16=False):
        pend = block_jobs(c + 4) if c + 4 < NS else []
        pb = []
        if c + 4 == K1:
            pb += ["s_add_u32 s%d, s%d, s%d" % (S_AK, S_AK, S_DJA), "s_add_u32 s%d, s%d, s%d" % (S_WK, S_WK, S_DJW)]
        if ev16:
            pb += ["s_cmp_eq_u32 s%d, %d" % (S_LOOP, (K1 - 4) // 4 - 3),
                   "s_cselect_b32 s%d, s%d, s%d" % (S_W, P_WD, S_W),
                   "s_cselect_b32 s%d, s%d, s%d" % (S_W + 1, P_WD + 1, S_W + 1),
                   "s_cselect_b32 s%d, 0x%x, s%d" % (S_W + 2, 3584 * 2048, S_W + 2),
                   "s_cselect_b32 s%d, s%d, 0" % (S_T2, S_D16),
                   "s_add_u32 s%d, s%d, s%d" % (S_WK, S_WK, S_T2)]
        last = (c == NS - 1)
        def wN():
            if waits is not None and emit: return waits[key]
            tags = [('B', c + 1)]
            if c == FLAG_AT: tags.append(('S', 0))
            n = min(63, need_count(tags))
            if waits is not None: waits[key] = min(waits.get(key, 63), n)
            return n
        if c == FLAG_AT:
            pb += [("buffer_store_dword v%d, v%d, s[%d:%d], s%d offen sc1" % (V_ONE, V_ZERO, S_F, S_F + 3, S_FSEND), ('F', 0))]
        ex1 = None
        if c == NS - 4:
            ex1 = [(2, [("buffer_load_dword v%d, v%d, s[%d:%d], s%d offen sc1" % (V_FL, V_ZERO, S_F, S_F + 3, S_FRECV), ('FL', 0))])]
        substep(c, 1, pend, waitN=wN, last=last, post_barrier=pb, extra=ex1)
        if last: return
        ex0 = None
        if c + 1 == K1:
            ex0 = []
            for t in range(8):
                s_ = send(t >> 2, t & 3)
                ex0.append((min(7, 2 + t), [("buffer_store_dwordx4 %s, v%d, s[%d:%d], s%d offen offset:%d sc1" % (s_, V_L16, S_P, S_P + 3, S_PSEND, (t & 3) * 1024), ('S', 0))]
                            + (["s_add_u32 s%d, s%d, 4096" % (S_PSEND, S_PSEND)] if t == 3 else [])))
        if c + 1 == NS - 2:
            ex0 = [(1, ["s_waitcnt vmcnt(%d)" % need_count([('FL', 0)]), "v_readfirstlane_b32 s%d, v%d" % (S_OK, V_FL)])]
            ex0.append((2, ["s_add_u32 s%d, s%d, 4096" % (S_T2, S_PRECV)]))
            for t in range(8):
                ex0.append((min(7, 2 + t), [("buffer_load_dwordx4 v[%d:%d], v%d, s[%d:%d], s%d offen offset:%d sc1" % (RECV + 4 * t, RECV + 4 * t + 3, V_L16, S_P, S_P + 3, S_PRECV if t < 4 else S_T2, (t & 3) * 1024), ('R', 0))]))
        substep(c + 1, 0, pend, extra=ex0)
        assert not pend

    a("s_waitcnt vmcnt(%d)", need_count([('B', 0)]))
    a("s_barrier")
    stamp(a, opt, 1)
    for r_ in reads_for(0, 0, 0): a(r_)
    substep(0, 0, [])
    def loop_section(c0, c1, ev16):
        nonlocal q
        nit = (c1 - c0) // 4
        if nit == 0: return
        waits = {}
        saved = a.l; q0 = list(q); a.l = []
        for c in range(c0, c1): run_step(c, waits, (c - c0) & 3, emit=False)
        q_after = list(q); a.l = saved; q = q0
        lab = a.newlab("L_g2_loop")
        a("s_mov_b32 s%d, %d", S_LOOP, nit)
        a.label(lab)
        for ds in range(4): run_step(c0 + ds, waits, ds, emit=True, ev16=(ev16 and ds == 0))
        a("s_sub_u32 s%d, s%d, 1", S_LOOP, S_LOOP)
        a("s_cmp_lg_u32 s%d, 0", S_LOOP)
        a("s_cbranch_scc1 %s", lab)
        a.c("waits %s" % waits)
        q = q_after
    loop_section(0, K1 - 4, True)
    for c in range(K1 - 4, K1 + 4): run_step(c)
    stamp(a, opt, 2)
    loop_section(K1 + 4, NS - 4, False)
    for c in range(NS - 4, NS): run_step(c)
    stamp(a, opt, 3)
    lok = a.newlab("L_g2_ok"); lsp = a.newlab("L_g2_spin")
    a("s_cmp_lg_u32 s%d, 0", S_OK)
    a("s_cbranch_scc1 %s", lok)
    a.label(lsp)
    a("s_sleep 2")
    a("buffer_load_dword v%d, v%d, s[%d:%d], s%d offen sc1", V_FL, V_ZERO, S_F, S_F + 3, S_FRECV)
    a("s_waitcnt vmcnt(0)")
    a("v_readfirstlane_b32 s%d, v%d", S_OK, V_FL)
    a("s_cmp_eq_u32 s%d, 0", S_OK)
    a("s_cbranch_scc1 %s", lsp)
    for t in range(8):
        a("buffer_load_dwordx4 v[%d:%d], v%d, s[%d:%d], s%d offen offset:%d sc1", RECV + 4 * t, RECV + 4 * t + 3, V_L16, S_P, S_P + 3, S_PRECV if t < 4 else S_T2, (t & 3) * 1024)
    a.label(lok)
    a("s_add_u32 s%d, s%d, %d", S_T2, S_XROW, 16 * 2048)
    a("s_waitcnt vmcnt(0)")
    a("s_nop 4")
    for mf in range(2):
        for p in range(2):
            pk = XL + (mf * 2 + p) * 4
            for z in range(2):
                nf = 2 * p + z; t = keep(mf, nf); rb = RECV + (mf * 4 + nf) * 4
                a("v_pk_add_f32 v[%d:%d], v[%d:%d], v[%d:%d]", t.base, t.base + 1, t.base, t.base + 1, rb, rb + 1)
                a("v_pk_add_f32 v[%d:%d], v[%d:%d], v[%d:%d]", t.base + 2, t.base + 3, t.base + 2, t.base + 3, rb + 2, rb + 3)
                a("v_cvt_pk_bf16_f32 v%d, v%d, v%d", pk + 2 * z, t.base, t.base + 1)
                a("v_cvt_pk_bf16_f32 v%d, v%d, v%d", pk + 2 * z + 1, t.base + 2, t.base + 3)
            a("s_nop 1")
            a("v_permlane16_swap_b32 v%d, v%d", pk, pk + 2)
            a("v_permlane16_swap_b32 v%d, v%d", pk + 1, pk + 3)
            a("buffer_store_dwordx4 v[%d:%d], v%d, s[%d:%d], s%d offen offset:%d", pk, pk + 3, V_XO, S_O, S_O + 3, S_XROW if mf == 0 else S_T2, p * 64)
    if opt.get("prof"):
        a("s_waitcnt vmcnt(0)")
    stamp(a, opt, 4)
    stamp_store(a, opt, 5, P_WS, S_WV, 2, 20)
    a.label(done)
    a("s_endpgm")
    return kernel_desc(name, 256, 256, 100)
```

```python
from gen_common import *

def gen_ln(a, name="ln_kernel"):
    kernel_header(a, name)
    done = a.newlab("L_ln_done")
    a("s_cmp_ge_u32 s2, 256")
    a("s_cbranch_scc1 %s", done)
    a("s_load_dwordx2 s[4:5], s[0:1], 0")
    a("s_load_dwordx2 s[6:7], s[0:1], 72")
    a("v_lshrrev_b32 v1, 6, v0")
    a("v_and_b32 v2, 63, v0")
    a("s_lshl_b32 s3, s2, 3")
    a("v_add_u32 v1, s3, v1")
    a("v_lshlrev_b32 v1, 11, v1")
    a("v_lshl_add_u32 v1, v2, 4, v1")
    a("s_waitcnt lgkmcnt(0)")
    make_srd(a, 8, 4, 2048 * 2048)
    make_srd(a, 12, 6, 2048 * 2048, WS_XN)
    make_srd(a, 16, 6, 4096, WS_FLAGS)
    a("s_lshl_b32 s3, s2, 4")
    a("v_lshlrev_b32 v3, 2, v0")
    a("v_mov_b32 v12, 0")
    a("v_cmp_gt_u32 vcc, 4, v0")
    a("s_and_saveexec_b64 s[20:21], vcc")
    a("buffer_store_dword v12, v3, s[16:19], s3 offen")
    a("s_mov_b64 exec, s[20:21]")
    a("buffer_load_dwordx4 v[4:7], v1, s[8:11], 0 offen")
    a("buffer_load_dwordx4 v[8:11], v1, s[8:11], 0 offen offset:1024")
    a("s_mov_b32 s16, 0xffff0000")
    a("s_waitcnt vmcnt(0)")
    for i in range(8):
        a("v_lshlrev_b32 v%d, 16, v%d", 16 + 2 * i, 4 + i)
        a("v_and_b32 v%d, s16, v%d", 17 + 2 * i, 4 + i)
    def reduce16(dst, src0):
        for i in range(8):
            a("v_add_f32 v%d, v%d, v%d", 32 + i, src0 + 2 * i, src0 + 2 * i + 1)
        for i in range(4):
            a("v_add_f32 v%d, v%d, v%d", 32 + i, 32 + 2 * i, 33 + 2 * i)
        a("v_add_f32 v32, v32, v33")
        a("v_add_f32 v34, v34, v35")
        a("v_add_f32 v%d, v32, v34", dst)
    def wave_allreduce(v, t):
        a("s_nop 1")
        a("v_add_f32_dpp v%d, v%d, v%d quad_perm:[1,0,3,2] row_mask:0xf bank_mask:0xf", v, v, v)
        a("s_nop 1")
        a("v_add_f32_dpp v%d, v%d, v%d quad_perm:[2,3,0,1] row_mask:0xf bank_mask:0xf", v, v, v)
        a("s_nop 1")
        a("v_add_f32_dpp v%d, v%d, v%d row_half_mirror row_mask:0xf bank_mask:0xf", v, v, v)
        a("s_nop 1")
        a("v_add_f32_dpp v%d, v%d, v%d row_mirror row_mask:0xf bank_mask:0xf", v, v, v)
        a("v_mov_b32 v%d, v%d", t, v)
        a("s_nop 1")
        a("v_permlane16_swap_b32 v%d, v%d", v, t)
        a("v_add_f32 v%d, v%d, v%d", v, v, t)
        a("v_mov_b32 v%d, v%d", t, v)
        a("s_nop 1")
        a("v_permlane32_swap_b32 v%d, v%d", v, t)
        a("v_add_f32 v%d, v%d, v%d", v, v, t)
    reduce16(40, 16)
    wave_allreduce(40, 41)
    a("v_mul_f32 v40, 0x3a800000, v40")
    for i in range(16):
        a("v_sub_f32 v%d, v%d, v40", 48 + i, 16 + i)
    for i in range(16):
        a("v_mul_f32 v%d, v%d, v%d", 48 + i, 48 + i, 48 + i)
    reduce16(42, 48)
    wave_allreduce(42, 41)
    a("v_mul_f32 v42, 0x3a800000, v42")
    a("v_cvt_pk_bf16_f32 v43, v40, v42")
    a("v_lshlrev_b32 v40, 16, v43")
    a("v_and_b32 v42, s16, v43")
    a("v_add_f32 v42, 0x3727c5ac, v42")
    a("v_cvt_pk_bf16_f32 v42, v42, v42")
    a("v_and_b32 v42, s16, v42")
    a("v_sqrt_f32 v42, v42")
    a("s_nop 0")
    a("v_cvt_pk_bf16_f32 v42, v42, v42")
    a("v_and_b32 v42, s16, v42")
    a("v_rcp_f32 v44, v42")
    for i in range(16):
        a("v_sub_f32 v%d, v%d, v40", 16 + i, 16 + i)
    for i in range(8):
        a("v_cvt_pk_bf16_f32 v%d, v%d, v%d", 4 + i, 16 + 2 * i, 17 + 2 * i)
    for i in range(8):
        a("v_lshlrev_b32 v%d, 16, v%d", 16 + 2 * i, 4 + i)
        a("v_and_b32 v%d, s16, v%d", 17 + 2 * i, 4 + i)
    for i in range(16):
        a("v_mul_f32 v%d, v%d, v44", 48 + i, 16 + i)
    for i in range(16):
        a("v_fma_f32 v%d, -v%d, v42, v%d", 16 + i, 48 + i, 16 + i)
    for i in range(16):
        a("v_fma_f32 v%d, v%d, v44, v%d", 48 + i, 16 + i, 48 + i)
    for i in range(8):
        a("v_cvt_pk_bf16_f32 v%d, v%d, v%d", 4 + i, 48 + 2 * i, 49 + 2 * i)
    a("buffer_store_dwordx4 v[4:7], v1, s[12:15], 0 offen")
    a("buffer_store_dwordx4 v[8:11], v1, s[12:15], 0 offen offset:1024")
    a.label(done)
    a("s_endpgm")
    return kernel_desc(name, 64, 64, 24)
```

```python
import sys, json
from gen_common import *
from gen_ln import gen_ln
from gen_g1 import gen_g1, G1_LDS

def build(path, opt):
    a = A()
    hdr = open("parallel_sum__sliding_local_dilated__glu_gated_glu__prompt.s.ref").read().split("\n")
    hdr = [l for l in hdr if l.startswith(";") and "@launch" not in l and "Override" not in l and "grid=ceil" not in l]
    launches = []
    descs = []
    body = A()
    if opt.get("ln", 1):
        launches.append("; @launch kernel=ln_kernel grid=(256,1,1) block=(512,1,1) lds=0")
        descs.append(gen_ln(body))
    if opt.get("g1", 1):
        launches.append("; @launch kernel=g1_kernel grid=(256,1,1) block=(256,1,1) lds=%d" % G1_LDS)
        descs.append(gen_g1(body, opt=opt))
    if opt.get("g2", 0):
        from gen_g2 import gen_g2, G2_LDS
        launches.append("; @launch kernel=g2_kernel grid=(256,1,1) block=(%d,1,1) lds=%d" % (512 if opt.get("g2_ld") else 256, G2_LDS))
        descs.append(gen_g2(body, opt=opt))
    out = "\n".join(hdr + launches) + "\n"
    out += '.amdgcn_target "amdgcn-amd-amdhsa--gfx950"\n.text\n'
    out += body.text()
    out += '.section .rodata,"a"\n'
    for d in descs:
        out += ".p2align 6\n" + d
    open(path, "w").write(out)

if __name__ == "__main__":
    path = sys.argv[1]
    opt = json.loads(sys.argv[2]) if len(sys.argv) > 2 else {}
    build(path, opt)
```

```python
from gen_common import *

XSLOT = 272 * 128
WBASE = 2 * XSLOT
WQKV_OFF = 0
WG_OFF = 6144
WU_OFF = 6144 + 7168 + 128
WSTAGE = 20736
EXCH = WBASE + 4 * WSTAGE
EX_HK = EXCH
EX_HV = EXCH + 1024
EX_K = EXCH + 2048
EX_V = EXCH + 4096
G1_LDS = EXCH + 5120

LOG2E = 1.4426950408889634
import struct
def f32(x):
    return "0x%08x" % struct.unpack("<I", struct.pack("<f", x))[0]

def gen_g1(a, name="g1_kernel", opt=None):
    opt = opt or {}
    NSTEP = 32
    S_XN = 4; S_ACT = 8
    S_WSRD = [12, 16, 20, 24, 28]
    S_WOFF = [32, 33, 34, 35, 36]
    S_WSTR = [37, 38, 39, 40, 41]
    S_WLDS = [42, 43, 44, 45, 46]
    S_XK = 47; S_XH = 48; S_W1024 = 49; S_WH = 50; S_LOOP = 51; S_T = 52; S_W = 53; S_WM = 54; S_WN = 55
    S_M0 = 56; S_J = 57; S_T2 = 58; S_T3 = 59
    P_QKV = 60; P_G = 62; P_U = 64; P_WS = 66
    S_MASKP = 68
    S_C0 = 70; S_C1 = 71; S_C2 = 72; S_C3 = 73
    S_ROW = [74, 75, 76, 77]
    V_XDMA = 1; V_WDMA = [2, 3, 4, 5, 6]; V_XR = [7, 8, 9, 10]
    V_GU = [11, 12]; V_QKV = [13, 14]; V_HX = [15, 16]; V_HW = [17, 18]
    V_T = 20
    def tile(idx):
        return R('v', 48 + 16 * idx, 16) if idx < 13 else R('a', 16 * (idx - 13), 16)
    def xfrag(st, mf): return R('a', 112 + st * 36 + mf * 4, 4)
    def wfrag(st, nf): return R('a', 112 + st * 36 + 16 + nf * 4, 4)
    HXF = R('a', 184, 4); HWF = R('a', 188, 4); HACC = R('a', 192, 4)

    kernel_header(a, name)
    done = a.newlab("L_g1_done"); fin = a.newlab("L_g1_fin")
    a("s_cmp_ge_u32 s2, 256")
    a("s_cbranch_scc1 %s", done)
    stamp(a, opt, 0)
    a("s_load_dwordx2 s[%d:%d], s[0:1], 8", P_QKV, P_QKV + 1)
    a("s_load_dwordx2 s[%d:%d], s[0:1], 32", P_G, P_G + 1)
    a("s_load_dwordx2 s[%d:%d], s[0:1], 40", P_U, P_U + 1)
    a("s_load_dwordx2 s[%d:%d], s[0:1], 72", P_WS, P_WS + 1)
    a("v_lshrrev_b32 v%d, 6, v0", V_T)
    a("v_and_b32 v0, 63, v0")
    a("s_nop 0")
    a("v_readfirstlane_b32 s%d, v%d", S_W, V_T)
    a("s_lshr_b32 s%d, s2, 5", S_M0)
    a("s_lshl_b32 s%d, s%d, 8", S_M0, S_M0)
    a("s_and_b32 s%d, s2, 7", S_J)
    a("s_lshl_b32 s%d, s%d, 2", S_J, S_J)
    a("s_bfe_u32 s%d, s2, 0x20003", S_T)
    a("s_add_u32 s%d, s%d, s%d", S_J, S_J, S_T)
    a("s_and_b32 s%d, s%d, 1", S_WM, S_W)
    a("s_lshr_b32 s%d, s%d, 1", S_WN, S_W)
    a("s_lshl_b32 s%d, s%d, 10", S_W1024, S_W)
    a("s_lshl_b32 s%d, s%d, 10", S_WH, S_WM)
    T0, T1, T2, T3 = V_T, V_T + 1, V_T + 2, V_T + 3
    a("v_lshrrev_b32 v%d, 4, v0", T0)
    a("s_lshl_b32 s%d, s%d, 2", S_T, S_WM)
    a("v_add_u32 v%d, s%d, v%d", T0, S_T, T0)
    a("v_and_b32 v%d, 7, v0", T1)
    a("v_xor_b32 v%d, v%d, v%d", T0, T0, T1)
    a("v_lshlrev_b32 v%d, 4, v%d", T0, T0)
    a("v_lshrrev_b32 v%d, 3, v0", T1)
    a("v_lshl_add_u32 v%d, v%d, 11, v%d", V_XDMA, T1, T0)
    a("s_lshl_b32 s%d, s%d, 3", S_T, S_W)
    a("s_add_u32 s%d, s%d, s%d", S_XK, S_M0, S_T)
    a("s_lshl_b32 s%d, s%d, 11", S_XK, S_XK)
    a("s_max_u32 s%d, s%d, 16", S_T, S_M0)
    a("s_sub_u32 s%d, s%d, 16", S_XH, S_T)
    a("s_lshl_b32 s%d, s%d, 3", S_T, S_WM)
    a("s_add_u32 s%d, s%d, s%d", S_XH, S_XH, S_T)
    a("s_lshl_b32 s%d, s%d, 11", S_XH, S_XH)
    def gu_off(dst, sjob):
        a("s_lshl_b32 s%d, s%d, 6", S_T2, sjob)
        a("v_add_u32 v%d, s%d, v0", T0, S_T2)
        a("v_mul_u32_u24 v%d, 4682, v%d", T1, T0)
        a("v_lshrrev_b32 v%d, 16, v%d", T1, T1)
        a("v_mul_u32_u24 v%d, 14, v%d", T2, T1)
        a("v_sub_u32 v%d, v%d, v%d", T2, T0, T2)
        a("v_mul_u32_u24 v%d, 7168, v%d", T1, T1)
        a("v_lshl_add_u32 v%d, v%d, 4, v%d", T1, T2, T1)
        a("s_mul_i32 s%d, s%d, 224", S_T2, S_J)
        a("v_add_u32 v%d, s%d, v%d", dst, S_T2, T1)
    def qkv_off(dst, sjob):
        a("s_lshl_b32 s%d, s%d, 6", S_T2, sjob)
        a("v_add_u32 v%d, s%d, v0", T0, S_T2)
        a("v_mul_u32_u24 v%d, 5462, v%d", T1, T0)
        a("v_lshrrev_b32 v%d, 16, v%d", T1, T1)
        a("v_mul_u32_u24 v%d, 12, v%d", T2, T1)
        a("v_sub_u32 v%d, v%d, v%d", T2, T0, T2)
        a("v_mul_u32_u24 v%d, 6144, v%d", T1, T1)
        a("v_lshrrev_b32 v%d, 2, v%d", T3, T2)
        a("v_lshl_add_u32 v%d, v%d, 11, v%d", T1, T3, T1)
        a("v_and_b32 v%d, 3, v%d", T2, T2)
        a("v_lshl_add_u32 v%d, v%d, 4, v%d", T1, T2, T1)
        a("s_lshl_b32 s%d, s%d, 6", S_T2, S_J)
        a("v_add_u32 v%d, s%d, v%d", dst, S_T2, T1)
    gu_off(V_WDMA[0], S_W)
    a("v_mov_b32 v%d, v%d", V_WDMA[1], V_WDMA[0])
    qkv_off(V_WDMA[4], S_W)
    a("s_waitcnt lgkmcnt(0)")
    make_srd(a, S_XN, P_WS, 2048 * 2048, WS_XN)
    make_srd(a, S_ACT, P_WS, 2048 * ACT2_STRIDE, WS_ACT2)
    make_srd(a, S_WSRD[0], P_G, 1024 * 7168)
    make_srd(a, S_WSRD[1], P_U, 1024 * 7168)
    make_srd(a, S_WSRD[4], P_QKV, 1024 * 6144)
    for i in range(5):
        a("s_mov_b32 s%d, 0", S_WOFF[i])
    a("s_mov_b32 s%d, %d", S_WSTR[0], 32 * 7168)
    a("s_mov_b32 s%d, %d", S_WSTR[1], 32 * 7168)
    a("s_mov_b32 s%d, %d", S_WSTR[4], 32 * 6144)
    a("s_add_u32 s%d, s%d, %d", S_WLDS[0], S_W1024, WBASE + WG_OFF)
    a("s_add_u32 s%d, s%d, %d", S_WLDS[1], S_W1024, WBASE + WU_OFF)
    a("s_add_u32 s%d, s%d, %d", S_WLDS[4], S_W1024, WBASE + WQKV_OFF)
    l_w3 = a.newlab("L_g1_w3"); l_w3e = a.newlab("L_g1_w3e")
    a("s_cmp_eq_u32 s%d, 3", S_W)
    a("s_cbranch_scc1 %s", l_w3)
    a("s_add_u32 s%d, s%d, 4", S_T3, S_W)
    gu_off(V_WDMA[2], S_T3)
    a("v_mov_b32 v%d, v%d", V_WDMA[3], V_WDMA[2])
    make_srd(a, S_WSRD[2], P_G, 1024 * 7168)
    make_srd(a, S_WSRD[3], P_U, 1024 * 7168)
    a("s_mov_b32 s%d, %d", S_WSTR[2], 32 * 7168)
    a("s_mov_b32 s%d, %d", S_WSTR[3], 32 * 7168)
    a("s_add_u32 s%d, s%d, %d", S_WLDS[2], S_W1024, WBASE + WG_OFF + 4096)
    a("s_add_u32 s%d, s%d, %d", S_WLDS[3], S_W1024, WBASE + WU_OFF + 4096)
    a("s_branch %s", l_w3e)
    a.label(l_w3)
    a("s_mov_b32 s%d, 4", S_T3)
    qkv_off(V_WDMA[2], S_T3)
    a("s_mov_b32 s%d, 5", S_T3)
    qkv_off(V_WDMA[3], S_T3)
    make_srd(a, S_WSRD[2], P_QKV, 1024 * 6144)
    make_srd(a, S_WSRD[3], P_QKV, 1024 * 6144)
    a("s_mov_b32 s%d, %d", S_WSTR[2], 32 * 6144)
    a("s_mov_b32 s%d, %d", S_WSTR[3], 32 * 6144)
    a("s_mov_b32 s%d, %d", S_WLDS[2], WBASE + WQKV_OFF + 4096)
    a("s_mov_b32 s%d, %d", S_WLDS[3], WBASE + WQKV_OFF + 5120)
    a.label(l_w3e)
    PFD = opt.get("pf_d", 0)
    S_PFSRD = 72; S_PFOFF = 78; S_PFSTR = 79; V_PF = 19; V_PFD = 47
    if opt.get("prof"): assert False or True
    if PFD:
        lq = a.newlab("L_pf_q"); le = a.newlab("L_pf_e")
        a("s_lshr_b32 s%d, s2, 3", S_T)
        a("s_and_b32 s%d, s2, 7", S_T2)
        a("s_cmp_ge_u32 s%d, 2", S_W)
        a("s_cbranch_scc1 %s", lq)
        a("v_min_u32 v%d, 27, v0", T0)
        a("v_mul_u32_u24 v%d, 9363, v%d", T1, T0)
        a("v_lshrrev_b32 v%d, 16, v%d", T1, T1)
        a("v_mul_u32_u24 v%d, 7, v%d", T2, T1)
        a("v_sub_u32 v%d, v%d, v%d", T2, T0, T2)
        a("v_lshlrev_b32 v%d, 5, v%d", T1, T1)
        a("v_add_u32 v%d, s%d, v%d", T1, S_T, T1)
        a("v_mul_u32_u24 v%d, 7168, v%d", T1, T1)
        a("v_lshl_add_u32 v%d, v%d, 7, v%d", T1, T2, T1)
        a("s_mul_i32 s%d, s%d, 896", S_T2, S_T2)
        a("v_add_u32 v%d, s%d, v%d", V_PF, S_T2, T1)
        a("s_cmp_eq_u32 s%d, 0", S_W)
        a("s_cselect_b32 s%d, s%d, s%d", S_PFSRD, P_G, P_U)
        a("s_cselect_b32 s%d, s%d, s%d", S_PFSRD + 1, P_G + 1, P_U + 1)
        a("s_mov_b32 s%d, 0x%x", S_PFSRD + 2, 1024 * 7168)
        a("s_mov_b32 s%d, 0x00020000", S_PFSRD + 3)
        a("s_mov_b32 s%d, %d", S_PFSTR, 128 * 7168)
        a("s_branch %s", le)
        a.label(lq)
        a("v_min_u32 v%d, 23, v0", T0)
        a("v_mul_u32_u24 v%d, 10923, v%d", T1, T0)
        a("v_lshrrev_b32 v%d, 16, v%d", T1, T1)
        a("v_mul_u32_u24 v%d, 6, v%d", T2, T1)
        a("v_sub_u32 v%d, v%d, v%d", T2, T0, T2)
        a("v_lshlrev_b32 v%d, 5, v%d", T1, T1)
        a("v_add_u32 v%d, s%d, v%d", T1, S_T, T1)
        a("v_mul_u32_u24 v%d, 6144, v%d", T1, T1)
        a("v_lshrrev_b32 v%d, 1, v%d", T3, T2)
        a("v_lshl_add_u32 v%d, v%d, 11, v%d", T1, T3, T1)
        a("v_and_b32 v%d, 1, v%d", T2, T2)
        a("v_lshl_add_u32 v%d, v%d, 7, v%d", T1, T2, T1)
        a("s_lshl_b32 s%d, s%d, 8", S_T2, S_T2)
        a("v_add_u32 v%d, s%d, v%d", V_PF, S_T2, T1)
        make_srd(a, S_PFSRD, P_QKV, 1024 * 6144)
        a("s_mov_b32 s%d, %d", S_PFSTR, 128 * 6144)
        a.label(le)
        a("s_mov_b32 s%d, s%d", S_PFOFF, S_PFSTR)
        if opt.get("pf_w2"):
            l3 = a.newlab("L_pf_3")
            a("s_cmp_lg_u32 s%d, 3", S_W)
            a("s_cbranch_scc1 %s", l3)
            a("s_load_dwordx2 s[%d:%d], s[0:1], 16", S_PFSRD, S_PFSRD + 1)
            a("s_load_dwordx2 s[%d:%d], s[0:1], 48", S_C0, S_C0 + 1)
            a("v_lshlrev_b32 v%d, 7, v0", V_PF)
            a("s_lshl_b32 s%d, s2, 13", S_PFOFF)
            a("s_mov_b32 s%d, 0x%x", S_PFSRD + 2, 1024 * 2048)
            a("s_waitcnt lgkmcnt(0)")
            a("buffer_load_dword v%d, v%d, s[%d:%d], s%d offen", V_PFD, V_PF, S_PFSRD, S_PFSRD + 3, S_PFOFF)
            a("v_min_u32 v%d, %d, v%d", V_PF, 31 * 128, V_PF)
            a("s_mov_b32 s%d, s%d", S_PFSRD, S_C0)
            a("s_mov_b32 s%d, s%d", S_PFSRD + 1, S_C0 + 1)
            a("s_mov_b32 s%d, 0x%x", S_PFSRD + 2, 3584 * 2048)
            a("s_mul_i32 s%d, s2, 28672", S_PFOFF)
            a("s_mov_b32 s%d, 4096", S_PFSTR)
            a.label(l3)
    def pf_job():
        return ["buffer_load_dword v%d, v%d, s[%d:%d], s%d offen%s" % (V_PFD, V_PF, S_PFSRD, S_PFSRD + 3, S_PFOFF, opt.get("pf_mod", "")),
                "s_add_u32 s%d, s%d, s%d" % (S_PFOFF, S_PFOFF, S_PFSTR)]

    def x_jobs(slot):
        jobs = []
        for i in range(8):
            jobs.append(["s_add_u32 m0, s%d, %d" % (S_W1024, slot * XSLOT + i * 4096),
                         "s_add_u32 s%d, s%d, %d" % (S_T, S_XK, i * 65536),
                         "buffer_load_dwordx4 v%d, s[%d:%d], s%d offen lds" % (V_XDMA, S_XN, S_XN + 3, S_T)])
        jobs.append(["s_add_u32 m0, s%d, %d" % (S_WH, slot * XSLOT + 32768),
                     "s_add_u32 s%d, s%d, 128" % (S_XK, S_XK),
                     "buffer_load_dwordx4 v%d, s[%d:%d], s%d offen lds" % (V_XDMA, S_XN, S_XN + 3, S_XH),
                     "s_add_u32 s%d, s%d, 128" % (S_XH, S_XH)])
        return jobs
    def w_jobs(stage):
        jobs = []
        for i in range(5):
            jobs.append(["s_add_u32 m0, s%d, %d" % (S_WLDS[i], stage * WSTAGE),
                         "s_nop 0",
                         "buffer_load_dwordx4 v%d, s[%d:%d], s%d offen%s lds" % (V_WDMA[i], S_WSRD[i], S_WSRD[i] + 3, S_WOFF[i], opt.get("wmod", "")),
                         "s_add_u32 s%d, s%d, s%d" % (S_WOFF[i], S_WOFF[i], S_WSTR[i])])
        return jobs
    if opt.get("skipx"):
        _xj = x_jobs
        def x_jobs(slot): return [[("s_nop 0" if t.startswith("buffer_load") else t) for t in jb] for jb in _xj(slot)]
    if opt.get("skipw") is not None:
        _wj = w_jobs
        sk = opt["skipw"]
        def w_jobs(stage): return [[("s_nop 0" if (t.startswith("buffer_load") and i in sk) else t) for t in jb] for i, jb in enumerate(_wj(stage))]
    q = []
    def emit_jobs_now(jobs, tag):
        for jb in jobs:
            for s in jb: a(s)
            q.append(tag)
    emit_jobs_now(x_jobs(0), ('X', 0))
    emit_jobs_now(w_jobs(0), ('W', 0))
    emit_jobs_now(w_jobs(1), ('W', 1))
    emit_jobs_now(x_jobs(1), ('X', 1))
    emit_jobs_now(w_jobs(2), ('W', 2))
    emit_jobs_now(w_jobs(3), ('W', 3))
    if PFD:
        for i in range(PFD // 128 - 1): emit_jobs_now([pf_job()], ('P', 0))

    if opt.get("loopskip"):
        _xj2 = x_jobs; _wj2 = w_jobs
        def x_jobs(slot): return [[("s_nop 0" if t.startswith("buffer_load") else t) for t in jb] for jb in _xj2(slot)]
        def w_jobs(stage): return [[("s_nop 0" if t.startswith("buffer_load") else t) for t in jb] for jb in _wj2(stage)]
    if opt.get("samek"):
        for i in range(5): a("s_mov_b32 s%d, 0", S_WSTR[i]); a("s_mov_b32 s%d, 0", S_WOFF[i])
        _xj3 = x_jobs
        def x_jobs(slot): return [[("s_nop 0" if t.endswith(", 128") else t) for t in jb] for jb in _xj3(slot)]
    a("v_and_b32 v%d, 31, v0", T0)
    a("s_lshl_b32 s%d, s%d, 7", S_T, S_WM)
    a("v_add_u32 v%d, s%d, v%d", T0, S_T, T0)
    a("v_lshlrev_b32 v%d, 7, v%d", T0, T0)
    a("v_bfe_u32 v%d, v0, 1, 3", T1)
    a("v_lshrrev_b32 v%d, 5, v0", T2)
    for kk4 in range(4):
        a("v_add_u32 v%d, %d, v%d", T3, kk4 * 2, T2)
        a("v_xor_b32 v%d, v%d, v%d", T3, T3, T1)
        a("v_lshl_add_u32 v%d, v%d, 4, v%d", V_XR[kk4], T3, T0)
    a("v_and_b32 v%d, 15, v0", T0)
    a("v_lshrrev_b32 v%d, 1, v%d", T1, T0)
    a("v_lshlrev_b32 v%d, 7, v%d", T0, T0)
    a("v_add_u32 v%d, 32768, v%d", T0, T0)
    a("v_lshrrev_b32 v%d, 4, v0", T2)
    a("v_xor_b32 v%d, v%d, v%d", T2, T2, T1)
    a("v_lshl_add_u32 v%d, v%d, 4, v%d", V_HX[0], T2, T0)
    a("v_xor_b32 v%d, 64, v%d", V_HX[1], V_HX[0])
    a("v_lshrrev_b32 v%d, 5, v0", T0)
    a("v_bfe_u32 v%d, v0, 2, 2", T1)
    a("v_lshl_add_u32 v%d, v%d, 3, v%d", T0, T0, T1)
    a("v_and_b32 v%d, 3, v0", T1)
    a("v_lshlrev_b32 v%d, 3, v%d", T1, T1)
    a("v_bfe_u32 v%d, v0, 4, 1", T2)
    a("v_mul_u32_u24 v%d, 224, v%d", T3, T0)
    a("v_add_u32 v%d, v%d, v%d", T3, T3, T1)
    a("v_mul_u32_u24 v%d, %d, v%d", V_GU[0], WU_OFF - WG_OFF, T2)
    a("v_add_u32 v%d, v%d, v%d", V_GU[0], V_GU[0], T3)
    a("v_add_u32 v%d, %d, v%d", V_GU[0], WBASE + WG_OFF, V_GU[0])
    a("v_add_u32 v%d, %d, v%d", V_GU[1], 2 * WSTAGE, V_GU[0])
    a("v_mul_u32_u24 v%d, 192, v%d", T3, T0)
    a("v_add_u32 v%d, v%d, v%d", T3, T3, T1)
    a("v_lshl_add_u32 v%d, v%d, 5, v%d", T3, T2, T3)
    a("v_add_u32 v%d, %d, v%d", V_QKV[0], WBASE + WQKV_OFF, T3)
    a("v_add_u32 v%d, %d, v%d", V_QKV[1], 2 * WSTAGE, V_QKV[0])
    a("v_lshrrev_b32 v%d, 4, v0", T0)
    a("v_bfe_u32 v%d, v0, 2, 2", T2)
    a("v_lshl_add_u32 v%d, v%d, 3, v%d", T0, T0, T2)
    a("v_mul_u32_u24 v%d, 192, v%d", T0, T0)
    a("v_add_u32 v%d, v%d, v%d", T0, T0, T1)
    a("s_lshl_b32 s%d, s%d, 6", S_T, S_WN)
    a("s_lshl_b32 s%d, s%d, 5", S_T2, S_WM)
    a("s_add_u32 s%d, s%d, s%d", S_T, S_T, S_T2)
    a("s_add_u32 s%d, s%d, %d", S_T, S_T, WBASE + WQKV_OFF + 64)
    a("v_add_u32 v%d, s%d, v%d", V_HW[0], S_T, T0)
    a("v_add_u32 v%d, %d, v%d", V_HW[1], 2 * WSTAGE, V_HW[0])

    def need_count(tags):
        last = max(i for i, t in enumerate(q) if t in tags)
        return len(q) - 1 - last

    def reads_for(wn, s, kk, st):
        out = []
        kk4 = (s & 1) * 2 + kk
        xs = (s >> 1) & 1
        stg = s & 3
        hi = stg >> 1; so = (stg & 1) * WSTAGE
        wr = []
        for nf in range(5):
            for r in range(2):
                dst = wfrag(st, nf).sub(2 * r, 2)
                if wn == 0 and nf < 3:
                    wr.append("ds_read_b64_tr_b16 %s, v%d offset:%d" % (dst, V_QKV[hi], so + (kk * 16 + r * 4) * 192 + nf * 64))
                else:
                    t = (nf - 3) if wn == 0 else (nf + 2)
                    wr.append("ds_read_b64_tr_b16 %s, v%d offset:%d" % (dst, V_GU[hi], so + (kk * 16 + r * 4) * 224 + t * 32))
        xr = ["ds_read_b128 %s, v%d offset:%d" % (xfrag(st, mf), V_XR[kk4], xs * XSLOT + mf * 4096) for mf in range(4)]
        out = [wr[0], wr[1], xr[0], xr[1], xr[2], xr[3]] + wr[2:]
        return out
    def halo_reads(s):
        xs = (s >> 1) & 1; stg = s & 3; hi = stg >> 1; so = (stg & 1) * WSTAGE
        return ["ds_read_b128 %s, v%d offset:%d" % (HXF, V_HX[s & 1], xs * XSLOT),
                "ds_read_b64_tr_b16 %s, v%d offset:%d" % (HWF.sub(0, 2), V_HW[hi], so),
                "ds_read_b64_tr_b16 %s, v%d offset:%d" % (HWF.sub(2, 2), V_HW[hi], so + 4 * 192)]
    def mfmas(wn, st, first):
        out = []
        order = [(nf, mf) for nf in range(5) for mf in range(4)]
        if opt.get("order") == "mf": order = [(nf, mf) for mf in range(4) for nf in range(5)]
        if opt.get("order") == "snake": order = [(nf, mf if nf % 2 == 0 else 3 - mf) for nf in range(5) for mf in range(4)]
        if opt.get("order") == "diag": order = [((i % 5), (i % 4)) for i in range(20)]
        if opt.get("fake16b"):
            for z in range(2):
                for nf, mf in order:
                    tt = tile(nf * 4 + mf).sub(st * 8 + z * 4, 4)
                    out.append("v_mfma_f32_16x16x32_bf16 %s, %s, %s, %s" % (tt, wfrag(st, nf), xfrag(st, mf), "0" if first else str(tt)))
            return out
        for nf, mf in order:
            if True:
                t = tile(nf * 4 + mf)
                c = "0" if first else str(t)
                if opt.get("swapab"):
                    out.append("v_mfma_f32_32x32x16_bf16 %s, %s, %s, %s" % (t, xfrag(st, mf), wfrag(st, nf), c)); continue
                if opt.get("fake16"):
                    h = st * 8
                    for z in range(2):
                        tt = t.sub(h + z * 4, 4)
                        out.append("v_mfma_f32_16x16x32_bf16 %s, %s, %s, %s" % (tt, wfrag(st, nf), xfrag(st, mf), "0" if first else str(tt)))
                    continue
                if opt.get("nomfma"):
                    out.append("s_nop 0"); continue
                if wn == 0 and nf == 2:
                    out.append("v_mfma_f32_32x32x16_bf16 %s, %s, %s, %s" % (t, xfrag(st, mf), wfrag(st, nf), c))
                else:
                    out.append("v_mfma_f32_32x32x16_bf16 %s, %s, %s, %s" % (t, wfrag(st, nf), xfrag(st, mf), c))
        return out
    def halo_mfma(wn, first):
        c = "0" if first else str(HACC)
        if wn == 0:
            return "v_mfma_f32_16x16x32_bf16 %s, %s, %s, %s" % (HACC, HWF, HXF, c)
        return "v_mfma_f32_16x16x32_bf16 %s, %s, %s, %s" % (HACC, HXF, HWF, c)

    RPG = opt.get("reads_per_gap", 2)
    def substep(wn, s, kk, pending, waitN=None, last=False, first=False, sim=True):
        st = kk
        ms = mfmas(wn, st, first)
        fill = [[] for _ in range(len(ms))]
        g = 0
        if kk == 1 and not last:
            pass
        nxt = None
        if kk == 0: nxt = (s, 1)
        elif not last: nxt = (s + 1, 0)
        rd = reads_for(wn, nxt[0], nxt[1], 1 - st) if nxt else []
        if kk == 0: rd = rd + halo_reads(s)
        if opt.get("noreads") and not first: rd = rd[:opt["noreads"] - 1]
        a("s_waitcnt lgkmcnt(0)")
        gi = 0
        if kk == 1:
            if not last:
                fill[0] += ["WAITVM", "s_barrier"]
            fill[1 if not last else 0].append(halo_mfma(wn, False))
            gi = 1
        i = 0
        while i < len(rd):
            fill[gi] += rd[i:i + RPG]; i += RPG; gi += 1
        ND = opt.get("ndot", 0)
        if ND and first:
            for z in range(4): a("ds_read_b128 v[%d:%d], v%d offset:%d", 24 + 4 * z, 27 + 4 * z, V_XR[z], 4096 * z)
            a("s_waitcnt lgkmcnt(0)")
        for k_, m in enumerate(ms):
            a(m)
            if ND and (k_ * ND) // len(ms) != ((k_ + 1) * ND) // len(ms):
                zz = (k_ * ND) // len(ms)
                if opt.get("dotop") == "fma":
                    a("v_fma_f32 v%d, v%d, v%d, v%d", 40 + zz % 6, 24 + zz % 16, 24 + (zz * 7 + 3) % 16, 40 + zz % 6)
                else:
                    a("v_dot2c_f32_bf16 v%d, v%d, v%d", 40 + zz % 6, 24 + zz % 16, 24 + zz % 16)
            for f in fill[k_]:
                if f == "WAITVM":
                    a("s_waitcnt vmcnt(%d)" % waitN())
                else:
                    a(f)
            G = k_ + (0 if kk == 1 else len(ms))
            EV = opt.get("dma_every", 0)
            if EV:
                ok = pending and G >= 1 and (G - 1 - wn * opt.get("dma_off", EV // 2)) % EV == 0 and G - 1 - wn * opt.get("dma_off", EV // 2) >= 0
            else:
                ok = k_ >= gi and pending
            if ok:
                jb, tag = pending.pop(0)
                for x in jb: a(x)
                q.append(tag)

    def body(wn):
        nonlocal q
        q_save = list(q)
        a("s_waitcnt vmcnt(%d)", need_count([('X', 0), ('W', 0)]))
        a("s_barrier")
        stamp(a, opt, 1)
        for rdi in reads_for(wn, 0, 0, 0): a(rdi)
        substep(wn, 0, 0, [], first=True)
        def run_iter(s0, emit, last_iter, waits):
            for ds in range(4):
                s = s0 + ds
                pend = []
                if s & 1 and (s + 3) // 2 < NSTEP // 2:
                    t = (s + 3) // 2
                    pend += [(jb, ('X', t)) for jb in x_jobs(t & 1)]
                if s + 4 < NSTEP:
                    pend += [(jb, ('W', s + 4)) for jb in w_jobs((s + 4) & 3)]
                if PFD and ds == 0 and not last_iter:
                    pend += [(pf_job(), ('P', 0))]
                lastsub = (s == NSTEP - 1)
                def wN():
                    if waits is not None and emit: return waits[ds]
                    tags = [('W', s + 1)]
                    if (s + 1) % 2 == 0: tags.append(('X', (s + 1) // 2))
                    n = need_count(tags)
                    if waits is not None:
                        waits[ds] = min(waits.get(ds, 63), n)
                    return min(n, 63)
                substep(wn, s, 1, pend, waitN=wN, last=lastsub, sim=('first' if s == 0 else True))
                if not lastsub:
                    substep(wn, s + 1, 0, pend)
                assert not pend, "DMA jobs not drained"
        waits = {}
        saved_lines = a.l; q0 = list(q)
        a.l = []
        for it in range(NSTEP // 4 - 1):
            run_iter(it * 4, False, False, waits)
        q_after = list(q)
        a.l = saved_lines; q = q0
        for i in range(4): a("v_accvgpr_write_b32 %s, 0", HACC.sub(i))
        loop = a.newlab("L_g1_loop")
        a("s_mov_b32 s%d, %d", S_LOOP, NSTEP // 4 - 1)
        a.label(loop)
        run_iter(4, True, False, waits)
        a("s_sub_u32 s%d, s%d, 1", S_LOOP, S_LOOP)
        a("s_cmp_lg_u32 s%d, 0", S_LOOP)
        a("s_cbranch_scc1 %s", loop)
        q = q_after
        run_iter(NSTEP - 4, True, True, None)
        a.c("waits: %s" % waits)
        epilogue(wn)
        q = q_save

    def glu_tile(t, tmp, tcol, mf):
        if t.kind == 'a':
            for i in range(16): a("v_accvgpr_read_b32 v%d, %s", tmp + i, t.sub(i))
            b = tmp
        else:
            b = t.base
        for i in range(0, 8, 2):
            a("v_pk_mul_f32 v[%d:%d], v[%d:%d], s[%d:%d]", b + i, b + i + 1, b + i, b + i + 1, S_C0, S_C1)
        for i in range(8): a("v_exp_f32 v%d, v%d", b + i, b + i)
        for i in range(0, 8, 2):
            a("v_pk_add_f32 v[%d:%d], v[%d:%d], s[%d:%d]", b + i, b + i + 1, b + i, b + i + 1, S_C2, S_C3)
        for i in range(8): a("v_rcp_f32 v%d, v%d", b + i, b + i)
        for i in range(0, 8, 2):
            a("v_pk_mul_f32 v[%d:%d], v[%d:%d], v[%d:%d]", b + i, b + i + 1, b + i, b + i + 1, b + 8 + i, b + 9 + i)
        for i in range(4):
            a("v_cvt_pk_bf16_f32 v%d, v%d, v%d", b + 8 + i, b + 2 * i, b + 2 * i + 1)
        a("s_nop 1")
        a("v_permlane32_swap_b32 v%d, v%d", b + 8, b + 10)
        a("v_permlane32_swap_b32 v%d, v%d", b + 9, b + 11)
        a("buffer_store_dwordx4 v[%d:%d], v%d, s[%d:%d], s%d offen offset:%d%s", b + 8, b + 11, V_ST, S_ACT, S_ACT + 3, S_ROW[mf], 2048 + tcol * 32, opt.get("stmod", ""))

    V_ST = 1
    def epilogue(wn):
        a.c("---- epilogue wn=%d" % wn)
        stamp(a, opt, 2)
        a("s_nop 15")
        a("s_mov_b32 s%d, %s", S_C0, f32(-LOG2E)); a("s_mov_b32 s%d, %s", S_C1, f32(-LOG2E))
        a("s_mov_b32 s%d, 1.0", S_C2); a("s_mov_b32 s%d, 1.0", S_C3)
        a("v_and_b32 v%d, 31, v0", T0)
        a("v_mul_u32_u24 v%d, %d, v%d", T0, ACT2_STRIDE, T0)
        a("v_lshrrev_b32 v%d, 5, v0", T1)
        a("v_lshl_add_u32 v%d, v%d, 4, v%d", V_ST, T1, T0)
        a("s_lshl_b32 s%d, s%d, 7", S_T, S_WM)
        a("s_add_u32 s%d, s%d, s%d", S_T, S_T, S_M0)
        a("s_mul_i32 s%d, s%d, %d", S_T, S_T, ACT2_STRIDE)
        a("s_mul_i32 s%d, s%d, 224", S_T2, S_J)
        a("s_add_u32 s%d, s%d, s%d", S_ROW[0], S_T, S_T2)
        for mf in range(1, 4):
            a("s_add_u32 s%d, s%d, %d", S_ROW[mf], S_ROW[0], mf * 32 * ACT2_STRIDE)
        for i in range(4): a("v_accvgpr_read_b32 v%d, %s", V_T + 4 + i, HACC.sub(i))
        a("v_cvt_pk_bf16_f32 v%d, v%d, v%d", V_T + 8, V_T + 4, V_T + 5)
        a("v_cvt_pk_bf16_f32 v%d, v%d, v%d", V_T + 9, V_T + 6, V_T + 7)
        a("v_and_b32 v%d, 15, v0", T0)
        a("v_lshrrev_b32 v%d, 4, v0", T1)
        if wn == 0:
            a("v_lshlrev_b32 v%d, 6, v%d", T0, T0)
            a("v_lshl_add_u32 v%d, v%d, 3, v%d", T0, T1, T0)
            a("s_lshl_b32 s%d, s%d, 5", S_T, S_WM)
            a("v_add_u32 v%d, s%d, v%d", T0, S_T, T0)
            a("v_add_u32 v%d, %d, v%d", T0, EX_HK, T0)
        else:
            a("v_lshlrev_b32 v%d, 5, v%d", T0, T0)
            a("v_lshl_add_u32 v%d, v%d, 3, v%d", T0, T1, T0)
            a("s_lshl_b32 s%d, s%d, 9", S_T, S_WM)
            a("v_add_u32 v%d, s%d, v%d", T0, S_T, T0)
            a("v_add_u32 v%d, %d, v%d", T0, EX_HV, T0)
        a("ds_write_b64 v%d, v[%d:%d]", T0, V_T + 8, V_T + 9)
        if wn == 1:
            a("s_waitcnt lgkmcnt(0)")
            a("s_barrier")
            for nf in range(5):
                for mf in range(4):
                    glu_tile(tile(nf * 4 + mf), 24, nf + 2, mf)
            a("s_branch %s", fin)
            return
        for idx in range(12):
            b = tile(idx).base
            for p in range(8):
                a("v_cvt_pk_bf16_f32 v%d, v%d, v%d", b + p, b + 2 * p, b + 2 * p + 1)
        Q = lambda mf: tile(0 + mf).base
        K = lambda mf: tile(4 + mf).base
        V = lambda mf: tile(8 + mf).base
        lsk = a.newlab("L_g1_exw")
        a("v_lshlrev_b32 v%d, 4, v0", T2)
        a("s_cmp_lg_u32 s%d, 0", S_WM)
        a("s_cbranch_scc1 %s", lsk)
        a("v_add_u32 v%d, %d, v%d", T3, EX_K, T2)
        a("ds_write_b128 v%d, v[%d:%d]", T3, K(3), K(3) + 3)
        a("ds_write_b128 v%d, v[%d:%d] offset:1024", T3, K(3) + 4, K(3) + 7)
        a("ds_write_b128 v%d, v[%d:%d] offset:2048", T3, V(3) + 4, V(3) + 7)
        a.label(lsk)
        a("s_waitcnt lgkmcnt(0)")
        a("s_barrier")
        KP = Q(0) + 8; VP = Q(1) + 8
        l1 = a.newlab("L_g1_rd1"); l2 = a.newlab("L_g1_rd2")
        a("s_cmp_lg_u32 s%d, 0", S_WM)
        a("s_cbranch_scc1 %s", l1)
        a("v_and_b32 v%d, 15, v0", T0)
        a("v_lshlrev_b32 v%d, 6, v%d", T0, T0)
        a("v_lshrrev_b32 v%d, 5, v0", T1)
        a("v_lshl_add_u32 v%d, v%d, 3, v%d", T0, T1, T0)
        a("v_add_u32 v%d, %d, v%d", T0, EX_HK, T0)
        for g in range(4):
            a("ds_read_b64 v[%d:%d], v%d offset:%d", KP + 2 * g, KP + 2 * g + 1, T0, g * 16)
        a("v_and_b32 v%d, 31, v0", T0)
        a("v_lshlrev_b32 v%d, 5, v%d", T0, T0)
        a("v_lshl_add_u32 v%d, v%d, 3, v%d", T0, T1, T0)
        a("v_add_u32 v%d, %d, v%d", T0, EX_HV, T0)
        a("ds_read_b64 v[%d:%d], v%d", VP, VP + 1, T0)
        a("ds_read_b64 v[%d:%d], v%d offset:16", VP + 2, VP + 3, T0)
        a("s_branch %s", l2)
        a.label(l1)
        a("v_add_u32 v%d, %d, v%d", T3, EX_K, T2)
        a("ds_read_b128 v[%d:%d], v%d", KP, KP + 3, T3)
        a("ds_read_b128 v[%d:%d], v%d offset:1024", KP + 4, KP + 7, T3)
        a("ds_read_b128 v[%d:%d], v%d offset:2048", VP, VP + 3, T3)
        a.label(l2)
        BC = Q(2) + 8; BP = Q(3) + 8; BPF = Q(3) + 12
        LM = 19
        a("v_and_b32 v%d, 31, v0", T0)
        a("v_and_b32 v%d, 1, v0", T1)
        a("v_lshrrev_b32 v%d, 5, v0", T2)
        a("v_lshl_add_u32 v%d, v%d, 2, v%d", T2, T2, T1)
        a("v_sub_u32 v%d, v%d, v%d", T0, T0, T2)
        a("v_cmp_eq_u32 s[%d:%d], 1, v%d", S_MASKP, S_MASKP + 1, T1)
        a("v_mov_b32 v%d, 0xffff", T2)
        a("v_mov_b32 v%d, 0xffff0000", T3)
        a("v_cndmask_b32 v%d, v%d, v%d, s[%d:%d]", LM, T2, T3, S_MASKP, S_MASKP + 1)
        a("v_mov_b32 v%d, 0xff7fffff", T3)
        for g in range(4):
            for e in range(2):
                a("v_subrev_u32 v%d, %d, v%d", T1, 8 * g + 2 * e, T0)
                a("v_cmp_gt_u32 vcc, 15, v%d", T1)
                a("s_nop 1")
                a("v_cndmask_b32 v%d, v%d, 0, vcc", BC + 2 * g + e, T3)
        for g in range(2, 4):
            for e in range(2):
                a("v_add_u32 v%d, %d, v%d", T1, 32 - (8 * g + 2 * e), T0)
                a("v_cmp_gt_u32 vcc, 15, v%d", T1)
                a("s_nop 1")
                a("v_cndmask_b32 v%d, v%d, 0, vcc", BP + 2 * (g - 2) + e, T3)
        a("s_or_b32 s%d, s%d, s%d", S_T, S_M0, S_WM)
        a("s_cmp_eq_u32 s%d, 0", S_T)
        a("s_cselect_b64 vcc, -1, 0")
        for i in range(4):
            a("v_cndmask_b32 v%d, v%d, v%d, vcc", BPF + i, BP + i, T3)
        a("s_mov_b32 s%d, %s", S_T3, f32(LOG2E * 32 ** -0.5))
        a("s_mul_i32 s%d, s%d, %d", S_T2, S_J, 224 - 64)
        a("s_waitcnt lgkmcnt(0)")
        SC = 24
        SPa = R('a', 112, 16)
        Oa = R('a', 128, 16)
        CAND = 40
        for mf in range(4):
            kp = KP if mf == 0 else K(mf - 1)
            vp = VP if mf == 0 else V(mf - 1) + 4
            bp = BPF if mf == 0 else BP
            CP = V(mf) + 8
            PC = K(mf) + 8
            a("v_mfma_f32_32x32x16_bf16 v[%d:%d], v[%d:%d], v[%d:%d], 0", SC, SC + 15, K(mf), K(mf) + 3, Q(mf), Q(mf) + 3)
            a("v_mfma_f32_32x32x16_bf16 %s, v[%d:%d], v[%d:%d], 0", SPa, kp, kp + 3, Q(mf), Q(mf) + 3)
            a("v_mfma_f32_32x32x16_bf16 v[%d:%d], v[%d:%d], v[%d:%d], v[%d:%d]", SC, SC + 15, K(mf) + 4, K(mf) + 7, Q(mf) + 4, Q(mf) + 7, SC, SC + 15)
            a("v_mfma_f32_32x32x16_bf16 %s, v[%d:%d], v[%d:%d], %s", SPa, kp + 4, kp + 7, Q(mf) + 4, Q(mf) + 7, SPa)
            a("s_nop 15")
            for i in range(8):
                a("v_cndmask_b32 v%d, v%d, v%d, s[%d:%d]", CAND + i, SC + 2 * i, SC + 2 * i + 1, S_MASKP, S_MASKP + 1)
            for i in range(8):
                a("v_accvgpr_read_b32 v%d, %s", SC + i, SPa.sub(8 + i))
            for i in range(4):
                a("v_cndmask_b32 v%d, v%d, v%d, s[%d:%d]", CP + i, SC + 2 * i, SC + 2 * i + 1, S_MASKP, S_MASKP + 1)
            for i in range(8):
                a("v_fma_f32 v%d, v%d, s%d, v%d", CAND + i, CAND + i, S_T3, BC + i)
            for i in range(4):
                a("v_fma_f32 v%d, v%d, s%d, v%d", CP + i, CP + i, S_T3, bp + i)
            M = SC; M2 = SC + 1
            a("v_max3_f32 v%d, v%d, v%d, v%d", M, CAND, CAND + 1, CAND + 2)
            a("v_max3_f32 v%d, v%d, v%d, v%d", M2, CAND + 3, CAND + 4, CAND + 5)
            a("v_max3_f32 v%d, v%d, v%d, v%d", M, M, CAND + 6, CAND + 7)
            a("v_max3_f32 v%d, v%d, v%d, v%d", M2, M2, CP, CP + 1)
            a("v_max3_f32 v%d, v%d, v%d, v%d", M, M, CP + 2, CP + 3)
            a("v_max_f32 v%d, v%d, v%d", M, M, M2)
            a("v_mov_b32 v%d, v%d", M2, M)
            a("s_nop 1")
            a("v_permlane32_swap_b32 v%d, v%d", M, M2)
            a("v_max_f32 v%d, v%d, v%d", M, M, M2)
            regs = [CAND + i for i in range(8)] + [CP + i for i in range(4)]
            for r_ in regs: a("v_sub_f32 v%d, v%d, v%d", r_, r_, M)
            for r_ in regs: a("v_exp_f32 v%d, v%d", r_, r_)
            S1 = SC + 2; S2 = SC + 3
            a("v_add_f32 v%d, v%d, v%d", S1, regs[0], regs[1])
            a("v_add_f32 v%d, v%d, v%d", S2, regs[2], regs[3])
            for i in range(4, 12, 2):
                a("v_add_f32 v%d, v%d, v%d", S1, S1, regs[i])
                a("v_add_f32 v%d, v%d, v%d", S2, S2, regs[i + 1])
            a("v_add_f32 v%d, v%d, v%d", S1, S1, S2)
            a("v_mov_b32 v%d, v%d", S2, S1)
            a("s_nop 1")
            a("v_permlane32_swap_b32 v%d, v%d", S1, S2)
            a("v_add_f32 v%d, v%d, v%d", S1, S1, S2)
            a("v_rcp_f32 v%d, v%d", S1, S1)
            a("s_nop 0")
            for r_ in regs: a("v_mul_f32 v%d, v%d, v%d", r_, r_, S1)
            for i in range(8):
                a("v_cvt_pk_bf16_f32 v%d, v%d, v%d", PC + i, CAND + i, CAND + i)
            for i in range(4):
                a("v_cvt_pk_bf16_f32 v%d, v%d, v%d", CP + 4 + i, CP + i, CP + i)
            for i in range(8):
                a("v_and_b32 v%d, v%d, v%d", PC + i, PC + i, LM)
            for i in range(4):
                a("v_and_b32 v%d, v%d, v%d", CP + 4 + i, CP + 4 + i, LM)
            a("s_nop 1")
            a("v_mfma_f32_32x32x16_bf16 v[%d:%d], v[%d:%d], v[%d:%d], 0", SC, SC + 15, V(mf), V(mf) + 3, PC, PC + 3)
            a("v_mfma_f32_32x32x16_bf16 v[%d:%d], v[%d:%d], v[%d:%d], v[%d:%d]", SC, SC + 15, V(mf) + 4, V(mf) + 7, PC + 4, PC + 7, SC, SC + 15)
            a("v_mfma_f32_32x32x16_bf16 v[%d:%d], v[%d:%d], v[%d:%d], v[%d:%d]", SC, SC + 15, vp, vp + 3, CP + 4, CP + 7, SC, SC + 15)
            a("s_nop 15")
            for i in range(8):
                a("v_cvt_pk_bf16_f32 v%d, v%d, v%d", CAND + i, SC + 2 * i, SC + 2 * i + 1)
            a("s_sub_u32 s%d, s%d, s%d", S_T, S_ROW[mf], S_T2)
            a("s_nop 0")
            a("v_permlane32_swap_b32 v%d, v%d", CAND + 0, CAND + 2)
            a("v_permlane32_swap_b32 v%d, v%d", CAND + 1, CAND + 3)
            a("v_permlane32_swap_b32 v%d, v%d", CAND + 4, CAND + 6)
            a("v_permlane32_swap_b32 v%d, v%d", CAND + 5, CAND + 7)
            a("buffer_store_dwordx4 v[%d:%d], v%d, s[%d:%d], s%d offen%s", CAND, CAND + 3, V_ST, S_ACT, S_ACT + 3, S_T, opt.get("stmod", ""))
            a("buffer_store_dwordx4 v[%d:%d], v%d, s[%d:%d], s%d offen offset:32%s", CAND + 4, CAND + 7, V_ST, S_ACT, S_ACT + 3, S_T, opt.get("stmod", ""))
            a("s_nop 1")
        for nf in range(3, 5):
            for mf in range(4):
                glu_tile(tile(nf * 4 + mf), 24, nf - 3, mf)
        a("s_branch %s", fin)

    l_wn1 = a.newlab("L_g1_wn1")
    a("s_cmp_lg_u32 s%d, 0", S_WN)
    a("s_cbranch_scc1 %s", l_wn1)
    body(0)
    a.label(l_wn1)
    body(1)
    a.label(fin)
    stamp(a, opt, 3)
    if opt.get("prof"):
        a("s_waitcnt vmcnt(0)")
    stamp(a, opt, 4)
    stamp_store(a, opt, 5, P_WS, S_W, 1, 20)
    a.label(done)
    a("s_endpgm")
    return kernel_desc(name, 512, 256, 100)
```

```python
from gen_common import *

G2_LDS = 131072
ASLOT = 16384
WB = 65536

def gen_g2(a, name="g2_kernel", opt=None):
    opt = opt or {}
    M = opt.get("g2_m", 16)
    K1 = (72 - M) // 2
    NS = K1 + M
    LA = opt.get("g2_la", 4)
    assert (K1 - 4) % 4 == 0 and (M - 8) % 4 == 0 and K1 >= 20
    S_A = 4; S_W = 8; S_X = 12; S_O = 16; S_P = 20; S_F = 24
    S_AROW = [28, 29, 30, 31]
    S_AK = 32; S_WK = 33; S_WV = 34; S_WM = 35; S_WN = 36; S_KS = 37; S_MT = 38; S_NT = 39
    S_T = 40; S_T2 = 41; S_LOOP = 42; S_W1024 = 43; S_D16 = 44; S_DJA = 45; S_DJW = 46
    S_PSEND = 47; S_PRECV = 48; S_FSEND = 49; S_FRECV = 50; S_OK = 51; S_XROW = 52
    P_X = 54; P_WO = 56; P_WD = 58; P_OUT = 60; P_WS = 62
    V_ADMA = 1; V_WDMA = 2; V_AR = [3, 4]; V_WR = [5, 6, 7, 8]; V_L16 = 9; V_XO = 10; V_FL = 11; V_ONE = 12; V_ZERO = 13
    T0, T1, T2, T3 = 14, 15, 16, 17
    XL = 20
    def keep(mf, nf): return R('v', 40 + (mf * 4 + nf) * 4, 4)
    def send(mf, nf): return R('v', 72 + (mf * 4 + nf) * 4, 4)
    def afrag(st, i): return R('v', 104 + st * 32 + i * 4, 4)
    def wfrag(st, nf): return R('v', 104 + st * 32 + 16 + nf * 4, 4)
    RECV = 168

    kernel_header(a, name)
    done = a.newlab("L_g2_done")
    a("s_cmp_ge_u32 s2, 256")
    a("s_cbranch_scc1 %s", done)
    stamp(a, opt, 0)
    a("s_load_dwordx2 s[%d:%d], s[0:1], 0", P_X, P_X + 1)
    a("s_load_dwordx2 s[%d:%d], s[0:1], 16", P_WO, P_WO + 1)
    a("s_load_dwordx2 s[%d:%d], s[0:1], 48", P_WD, P_WD + 1)
    a("s_load_dwordx2 s[%d:%d], s[0:1], 56", P_OUT, P_OUT + 1)
    a("s_load_dwordx2 s[%d:%d], s[0:1], 72", P_WS, P_WS + 1)
    a("v_lshrrev_b32 v%d, 6, v0", T0)
    a("v_and_b32 v0, 63, v0")
    a("s_nop 0")
    a("v_readfirstlane_b32 s%d, v%d", S_WV, T0)
    LD = opt.get("g2_ld", 0)
    S_ROLE = 53
    if LD:
        a("s_lshr_b32 s%d, s%d, 2", S_ROLE, S_WV)
        a("s_and_b32 s%d, s%d, 3", S_WV, S_WV)
    a("s_and_b32 s%d, s2, 1", S_KS)
    if opt.get("g2_map", "4x8") == "4x8":
        a("s_bfe_u32 s%d, s2, 0x20001", S_MT)
        a("s_lshl_b32 s%d, s%d, 2", S_MT, S_MT)
        a("s_lshr_b32 s%d, s2, 6", S_T)
        a("s_add_u32 s%d, s%d, s%d", S_MT, S_MT, S_T)
        a("s_bfe_u32 s%d, s2, 0x30003", S_NT)
    else:
        a("s_bfe_u32 s%d, s2, 0x10001", S_MT)
        a("s_lshl_b32 s%d, s%d, 3", S_MT, S_MT)
        a("s_lshr_b32 s%d, s2, 5", S_T)
        a("s_add_u32 s%d, s%d, s%d", S_MT, S_MT, S_T)
        a("s_bfe_u32 s%d, s2, 0x10002", S_NT)
        a("s_lshl_b32 s%d, s%d, 2", S_NT, S_NT)
        a("s_bfe_u32 s%d, s2, 0x20003", S_T)
        a("s_add_u32 s%d, s%d, s%d", S_NT, S_NT, S_T)
    a("s_and_b32 s%d, s%d, 1", S_WM, S_WV)
    a("s_lshr_b32 s%d, s%d, 1", S_WN, S_WV)
    a("s_lshl_b32 s%d, s%d, 10", S_W1024, S_WV)
    a("v_lshrrev_b32 v%d, 4, v0", T0)
    a("s_lshl_b32 s%d, s%d, 2", S_T, S_WM)
    a("v_add_u32 v%d, s%d, v%d", T0, S_T, T0)
    a("v_and_b32 v%d, 7, v0", T1)
    a("v_xor_b32 v%d, v%d, v%d", T0, T0, T1)
    a("v_lshlrev_b32 v%d, 4, v%d", T0, T0)
    a("v_lshrrev_b32 v%d, 3, v0", T1)
    a("v_mul_u32_u24 v%d, %d, v%d", T1, ACT2_STRIDE, T1)
    a("v_add_u32 v%d, v%d, v%d", V_ADMA, T1, T0)
    a("v_lshrrev_b32 v%d, 4, v0", T0)
    a("s_lshl_b32 s%d, s%d, 2", S_T, S_WN)
    a("v_or_b32 v%d, s%d, v%d", T1, S_T, T0)
    a("v_lshlrev_b32 v%d, 1, v%d", T1, T1)
    a("v_and_b32 v%d, 15, v0", T2)
    a("v_xor_b32 v%d, v%d, v%d", T1, T1, T2)
    a("v_lshlrev_b32 v%d, 4, v%d", T1, T1)
    a("v_lshl_add_u32 v%d, v%d, 11, v%d", V_WDMA, T0, T1)
    a("s_lshl_b32 s%d, s%d, 7", S_T, S_MT)
    a("s_lshl_b32 s%d, s%d, 6", S_T2, S_KS)
    a("s_add_u32 s%d, s%d, s%d", S_XROW, S_T, S_T2)
    a("s_xor_b32 s%d, s%d, 64", S_T2, S_XROW)
    a("s_lshl_b32 s%d, s%d, 3", S_T, S_WV)
    a("s_add_u32 s%d, s%d, s%d", S_AROW[0], S_XROW, S_T)
    a("s_mul_i32 s%d, s%d, %d", S_AROW[0], S_AROW[0], ACT2_STRIDE)
    a("s_add_u32 s%d, s%d, %d", S_AROW[1], S_AROW[0], 32 * ACT2_STRIDE)
    a("s_add_u32 s%d, s%d, s%d", S_AROW[2], S_T2, S_T)
    a("s_mul_i32 s%d, s%d, %d", S_AROW[2], S_AROW[2], ACT2_STRIDE)
    a("s_add_u32 s%d, s%d, %d", S_AROW[3], S_AROW[2], 32 * ACT2_STRIDE)
    a("s_mul_i32 s%d, s%d, %d", S_AK, S_KS, (K1 + M) * 128)
    a("s_mul_i32 s%d, s%d, %d", S_WK, S_KS, ((K1 + M) * 64 - 1024) * 2048)
    a("s_lshl_b32 s%d, s%d, 13", S_T, S_WV)
    a("s_add_u32 s%d, s%d, s%d", S_WK, S_WK, S_T)
    a("s_lshl_b32 s%d, s%d, 8", S_T, S_NT)
    a("s_add_u32 s%d, s%d, s%d", S_WK, S_WK, S_T)
    a("s_cmp_eq_u32 s%d, 0", S_KS)
    a("s_cselect_b32 s%d, 0x%x, 0", S_D16, (-1024 * 2048) & 0xffffffff)
    a("s_cselect_b32 s%d, 0, 0x%x", S_DJA, ((K1 - 72) * 128) & 0xffffffff)
    a("s_cselect_b32 s%d, 0, 0x%x", S_DJW, ((K1 - 72) * 64 * 2048) & 0xffffffff)
    a("s_waitcnt lgkmcnt(0)")
    make_srd(a, S_A, P_WS, 2048 * ACT2_STRIDE, WS_ACT2)
    a("s_cmp_eq_u32 s%d, 0", S_KS)
    a("s_cselect_b32 s%d, s%d, s%d", S_W, P_WO, P_WD)
    a("s_cselect_b32 s%d, s%d, s%d", S_W + 1, P_WO + 1, P_WD + 1)
    a("s_mov_b32 s%d, 0x%x", S_W + 2, 3584 * 2048)
    a("s_cselect_b32 s%d, 0x%x, s%d", S_W + 2, 1024 * 2048, S_W + 2)
    a("s_mov_b32 s%d, 0x00020000", S_W + 3)
    make_srd(a, S_X, P_X, 2048 * 2048)

    q = []
    def a_jobs(slot, full):
        jobs = []
        for i in range(4 if full else 2):
            jobs.append(["s_add_u32 m0, s%d, %d" % (S_W1024, slot * ASLOT + i * 4096),
                         "s_add_u32 s%d, s%d, s%d" % (S_T, S_AK, S_AROW[i]),
                         "buffer_load_dwordx4 v%d, s[%d:%d], s%d offen lds" % (V_ADMA, S_A, S_A + 3, S_T)])
        if not opt.get("g2_samea"): jobs[-1].append("s_add_u32 s%d, s%d, 128" % (S_AK, S_AK))
        return jobs
    def w_jobs(slot):
        jobs = []
        for i in range(4):
            jobs.append(["s_add_u32 m0, s%d, %d" % (S_W1024, WB + slot * ASLOT + i * 4096),
                         "s_add_u32 s%d, s%d, %d" % (S_T, S_WK, i * 32768),
                         "buffer_load_dwordx4 v%d, s[%d:%d], s%d offen%s lds" % (V_WDMA, S_W, S_W + 3, S_T, opt.get("g2_wmod", ""))])
        if not opt.get("g2_samew"): jobs[-1].append("s_add_u32 s%d, s%d, %d" % (S_WK, S_WK, 64 * 2048))
        return jobs
    def block_jobs(b):
        aj = a_jobs(b & 3, b < K1); wj = w_jobs(b & 3)
        out = []
        for i in range(4):
            out.append(wj[i])
            if i < len(aj): out.append(aj[i])
        return [(j, ('B', b)) for j in out]
    def emit_now(jobs):
        for jb, tag in jobs:
            for s in jb: a(s)
            q.append(tag)
    def need_count(tags):
        last = max(i for i, t in enumerate(q) if t in tags)
        return len(q) - 1 - last
    if LD:
        lcons = a.newlab("L_g2_cons")
        a("s_cmp_eq_u32 s%d, 0", S_ROLE)
        a("s_cbranch_scc1 %s", lcons)
        for b in range(0, LA): emit_now(block_jobs(b))
        a("s_waitcnt vmcnt(%d)", need_count([('B', 0)]))
        a("s_barrier")
        def ld_step(c, ev16=False, wait=None):
            a("s_waitcnt vmcnt(%d)", need_count([('B', c + 1)]) if wait is None else wait)
            a("s_barrier")
            if c + LA == K1:
                a("s_add_u32 s%d, s%d, s%d" % (S_AK, S_AK, S_DJA)); a("s_add_u32 s%d, s%d, s%d" % (S_WK, S_WK, S_DJW))
            if ev16:
                for t_ in ["s_cmp_eq_u32 s%d, %d" % (S_LOOP, (K1 - 4) // 4 - (16 - LA) // 4),
                   "s_cselect_b32 s%d, s%d, s%d" % (S_W, P_WD, S_W),
                   "s_cselect_b32 s%d, s%d, s%d" % (S_W + 1, P_WD + 1, S_W + 1),
                   "s_cselect_b32 s%d, 0x%x, s%d" % (S_W + 2, 3584 * 2048, S_W + 2),
                   "s_cselect_b32 s%d, s%d, 0" % (S_T2, S_D16),
                   "s_add_u32 s%d, s%d, s%d" % (S_WK, S_WK, S_T2)]: a(t_)
            if c + LA < NS: emit_now(block_jobs(c + LA))
        def ld_loop(c0, c1, ev16):
            nonlocal q
            nit = (c1 - c0) // 4
            if nit == 0: return
            lab = a.newlab("L_g2_ldloop")
            a("s_mov_b32 s%d, %d", S_LOOP, nit)
            a.label(lab)
            for ds in range(4): ld_step(c0 + ds, ev16 and ds == (16 - LA) % 4)
            a("s_sub_u32 s%d, s%d, 1", S_LOOP, S_LOOP)
            a("s_cmp_lg_u32 s%d, 0", S_LOOP)
            a("s_cbranch_scc1 %s", lab)
            saved = a.l; a.l = []
            for c in range(c0 + 4, c1): ld_step(c)
            a.l = saved
        ld_loop(0, K1 - 4, True)
        for c in range(K1 - 4, K1 + 4): ld_step(c)
        ld_loop(K1 + 4, NS - 4, False)
        for c in range(NS - 4, NS - 1): ld_step(c)
        a("s_endpgm")
        a.label(lcons)
        q = []
        if opt.get("g2_prio"): a("s_setprio %d", opt["g2_prio"])
        def block_jobs(b): return []
    emit_now(block_jobs(0))
    a("v_and_b32 v%d, 15, v0", T0)
    a("v_lshrrev_b32 v%d, 4, v0", T1)
    a("v_lshlrev_b32 v%d, 11, v%d", T0, T0)
    a("v_lshl_add_u32 v%d, v%d, 3, v%d", T2, T1, T0)
    a("s_lshl_b32 s%d, s%d, 5", S_T, S_WM)
    a("s_add_u32 s%d, s%d, s%d", S_XROW, S_XROW, S_T)
    a("s_lshl_b32 s%d, s%d, 11", S_XROW, S_XROW)
    a("s_lshl_b32 s%d, s%d, 8", S_T, S_NT)
    a("s_add_u32 s%d, s%d, s%d", S_XROW, S_XROW, S_T)
    a("s_lshl_b32 s%d, s%d, 7", S_T, S_WN)
    a("s_add_u32 s%d, s%d, s%d", S_XROW, S_XROW, S_T)
    a("s_add_u32 s%d, s%d, %d", S_T2, S_XROW, 16 * 2048)
    for mf in range(2):
        for nf in range(4):
            d = XL + (mf * 4 + nf) * 2
            a("buffer_load_dwordx2 v[%d:%d], v%d, s[%d:%d], s%d offen offset:%d", d, d + 1, T2, S_X, S_X + 3, S_XROW if mf == 0 else S_T2, nf * 32)
            q.append(('X', 0))
    for b in range(1, LA): emit_now(block_jobs(b))
    a("v_and_b32 v%d, 1, v%d", T2, T1)
    a("v_lshl_add_u32 v%d, v%d, 5, v%d", T2, T2, T0)
    a("v_lshrrev_b32 v%d, 1, v%d", T3, T1)
    a("v_lshl_add_u32 v%d, v%d, 4, v%d", V_XO, T3, T2)
    make_srd(a, S_O, P_OUT, 2048 * 2048)
    make_srd(a, S_P, P_WS, 256 * 32768, WS_PART)
    make_srd(a, S_F, P_WS, 4096, WS_FLAGS)
    a("s_lshl_b32 s%d, s%d, 3", S_T, S_MT)
    a("s_add_u32 s%d, s%d, s%d", S_T, S_T, S_NT)
    a("s_lshl_b32 s%d, s%d, 1", S_T, S_T)
    a("s_add_u32 s%d, s%d, s%d", S_T, S_T, S_KS)
    a("s_lshl_b32 s%d, s%d, 2", S_T, S_T)
    a("s_add_u32 s%d, s%d, s%d", S_T, S_T, S_WV)
    a("s_xor_b32 s%d, s%d, 4", S_T2, S_T)
    a("s_lshl_b32 s%d, s%d, 13", S_PRECV, S_T)
    a("s_lshl_b32 s%d, s%d, 13", S_PSEND, S_T2)
    a("s_lshl_b32 s%d, s%d, 2", S_FRECV, S_T)
    a("s_lshl_b32 s%d, s%d, 2", S_FSEND, S_T2)
    a("v_lshlrev_b32 v%d, 4, v0", V_L16)
    a("v_mov_b32 v%d, 1", V_ONE)
    a("v_mov_b32 v%d, 0", V_ZERO)
    a("v_and_b32 v%d, 15, v0", T0)
    a("v_lshrrev_b32 v%d, 1, v%d", T2, T0)
    a("s_lshl_b32 s%d, s%d, 5", S_T, S_WM)
    a("v_add_u32 v%d, s%d, v%d", T0, S_T, T0)
    a("v_lshlrev_b32 v%d, 7, v%d", T0, T0)
    a("v_xor_b32 v%d, v%d, v%d", T2, T2, T1)
    a("v_lshl_add_u32 v%d, v%d, 4, v%d", V_AR[0], T2, T0)
    a("v_xor_b32 v%d, 64, v%d", V_AR[1], V_AR[0])
    a("v_bfe_u32 v%d, v0, 2, 2", T0)
    a("v_lshl_add_u32 v%d, v%d, 3, v%d", T2, T1, T0)
    a("v_lshlrev_b32 v%d, 8, v%d", T2, T2)
    a("v_and_b32 v%d, 3, v0", T3)
    a("v_lshl_add_u32 v%d, v%d, 3, v%d", T2, T3, T2)
    a("v_add_u32 v%d, %d, v%d", T2, WB, T2)
    a("v_and_b32 v%d, 1, v%d", T3, T1)
    a("v_lshl_or_b32 v%d, v%d, 2, v%d", T0, T3, T0)
    a("s_lshl_b32 s%d, s%d, 2", S_T, S_WN)
    a("v_xor_b32 v%d, s%d, v%d", T0, S_T, T0)
    for nf in range(4):
        a("v_xor_b32 v%d, %d, v%d", T3, nf, T0)
        a("v_lshl_add_u32 v%d, v%d, 5, v%d", V_WR[nf], T3, T2)
    for mf in range(2):
        for nf in range(4):
            for i in range(4): a("v_mov_b32 %s, 0", send(mf, nf).sub(i))

    a("s_waitcnt vmcnt(%d)", need_count([('X', 0)]))
    a("s_mov_b32 s%d, 0xffff0000", S_T)
    for mf in range(2):
        for nf in range(4):
            d = XL + (mf * 4 + nf) * 2; t = keep(mf, nf)
            a("v_lshlrev_b32 %s, 16, v%d", t.sub(0), d)
            a("v_and_b32 %s, s%d, v%d", t.sub(1), S_T, d)
            a("v_lshlrev_b32 %s, 16, v%d", t.sub(2), d + 1)
            a("v_and_b32 %s, s%d, v%d", t.sub(3), S_T, d + 1)

    def reads_for(c, kk, st):
        slot = c & 3; full = c < K1
        wr = []
        for nf in range(4):
            for r in range(2):
                wr.append("ds_read_b64_tr_b16 %s, v%d offset:%d" % (wfrag(st, nf).sub(2 * r, 2), V_WR[nf], slot * ASLOT + kk * 8192 + r * 1024))
        ar_ = ["ds_read_b128 %s, v%d offset:%d" % (afrag(st, i), V_AR[kk], slot * ASLOT + (i >> 1) * 8192 + (i & 1) * 2048) for i in range(4 if full else 2)]
        return [wr[0], wr[1]] + ar_ + wr[2:]
    def mfmas(c, st):
        na = 4 if c < K1 else 2
        out = []
        for nf in range(4):
            idx = list(range(na))
            if nf & 1: idx = idx[::-1]
            for i in idx:
                t = keep(i, nf) if i < 2 else send(i - 2, nf)
                out.append("s_nop 0" if opt.get("g2_nomfma") else "v_mfma_f32_16x16x32_bf16 %s, %s, %s, %s" % (t, wfrag(st, nf), afrag(st, i), t))
        return out

    def substep(c, kk, pending, waitN=None, last=False, extra=None, post_barrier=None):
        ms = mfmas(c, kk)
        n = len(ms)
        fill = [[] for _ in range(n)]
        nxt = (c, 1) if kk == 0 else (None if last else (c + 1, 0))
        rd = reads_for(nxt[0], nxt[1], 1 - kk) if nxt else []
        a("s_waitcnt lgkmcnt(0)")
        gi = 0
        if kk == 1 and not last:
            fill[0] += ["WAITVM", "s_barrier"] + (post_barrier or [])
        rpg = opt.get("g2_rpg", 2) if n == 16 else 2
        i = 0
        while i < len(rd):
            fill[gi] += rd[i:i + rpg]; i += rpg; gi += 1
        if extra:
            for g_, ins in extra: fill[g_] += ins
        npend = len(pending) if kk == 0 else (len(pending) + 1) // 2
        slots = [min(n - 1, 1 + (j * n) // max(npend, 1)) for j in range(npend)]
        for k_, m in enumerate(ms):
            a(m)
            for f in fill[k_]:
                if f == "WAITVM":
                    wn_ = waitN()
                    if wn_ is not None: a("s_waitcnt vmcnt(%d)" % wn_)
                elif isinstance(f, tuple):
                    a(f[0]); q.append(f[1])
                else: a(f)
            while slots and slots[0] == k_:
                slots.pop(0)
                jb, tag = pending.pop(0)
                for x in jb: a(x)
                q.append(tag)

    FLAG_AT = K1 + opt.get("g2_flag_at", 1)
    def run_step(c, waits=None, key=None, emit=True, ev16=False):
        pend = block_jobs(c + LA) if c + LA < NS else []
        pb = []
        if c + LA == K1 and not opt.get("g2_samea") and not LD:
            pb += ["s_add_u32 s%d, s%d, s%d" % (S_AK, S_AK, S_DJA), "s_add_u32 s%d, s%d, s%d" % (S_WK, S_WK, S_DJW)]
        if ev16 and not opt.get("g2_samew") and not LD:
            pb += ["s_cmp_eq_u32 s%d, %d" % (S_LOOP, (K1 - 4) // 4 - (16 - LA) // 4),
                   "s_cselect_b32 s%d, s%d, s%d" % (S_W, P_WD, S_W),
                   "s_cselect_b32 s%d, s%d, s%d" % (S_W + 1, P_WD + 1, S_W + 1),
                   "s_cselect_b32 s%d, 0x%x, s%d" % (S_W + 2, 3584 * 2048, S_W + 2),
                   "s_cselect_b32 s%d, s%d, 0" % (S_T2, S_D16),
                   "s_add_u32 s%d, s%d, s%d" % (S_WK, S_WK, S_T2)]
        last = (c == NS - 1)
        def wN():
            if LD: return need_count([('S', 0)]) if c == FLAG_AT else None
            if waits is not None and emit: return waits[key]
            tags = [('B', c + 1)]
            if c == FLAG_AT: tags.append(('S', 0))
            n = min(63, need_count(tags))
            if waits is not None: waits[key] = min(waits.get(key, 63), n)
            return n
        if c == FLAG_AT:
            pb += [("buffer_store_dword v%d, v%d, s[%d:%d], s%d offen sc1" % (V_ONE, V_ZERO, S_F, S_F + 3, S_FSEND), ('F', 0))]
        ex1 = None
        if c == NS - 4:
            ex1 = [(2, [("buffer_load_dword v%d, v%d, s[%d:%d], s%d offen sc1" % (V_FL, V_ZERO, S_F, S_F + 3, S_FRECV), ('FL', 0))])]
        substep(c, 1, pend, waitN=wN, last=last, post_barrier=pb, extra=ex1)
        if last: return
        ex0 = None
        if c + 1 == K1:
            ex0 = []
            for t in range(8):
                s_ = send(t >> 2, t & 3)
                ex0.append((min(7, 2 + t), [("buffer_store_dwordx4 %s, v%d, s[%d:%d], s%d offen offset:%d sc1" % (s_, V_L16, S_P, S_P + 3, S_PSEND, (t & 3) * 1024), ('S', 0))]
                            + (["s_add_u32 s%d, s%d, 4096" % (S_PSEND, S_PSEND)] if t == 3 else [])))
        if c + 1 == NS - 2:
            ex0 = [(1, ["s_waitcnt vmcnt(%d)" % need_count([('FL', 0)]), "v_readfirstlane_b32 s%d, v%d" % (S_OK, V_FL)])]
            ex0.append((2, ["s_add_u32 s%d, s%d, 4096" % (S_T2, S_PRECV)]))
            for t in range(8):
                ex0.append((min(7, 2 + t), [("buffer_load_dwordx4 v[%d:%d], v%d, s[%d:%d], s%d offen offset:%d sc1" % (RECV + 4 * t, RECV + 4 * t + 3, V_L16, S_P, S_P + 3, S_PRECV if t < 4 else S_T2, (t & 3) * 1024), ('R', 0))]))
        substep(c + 1, 0, pend, extra=ex0)
        assert not pend

    if not LD: a("s_waitcnt vmcnt(%d)", need_count([('B', 0)]))
    a("s_barrier")
    stamp(a, opt, 1)
    for r_ in reads_for(0, 0, 0): a(r_)
    substep(0, 0, [])
    def loop_section(c0, c1, ev16):
        nonlocal q
        nit = (c1 - c0) // 4
        if nit == 0: return
        waits = {}
        saved = a.l; q0 = list(q); a.l = []
        for c in range(c0, c1): run_step(c, waits, (c - c0) & 3, emit=False)
        q_after = list(q); a.l = saved; q = q0
        lab = a.newlab("L_g2_loop")
        a("s_mov_b32 s%d, %d", S_LOOP, nit)
        a.label(lab)
        for ds in range(4): run_step(c0 + ds, waits, ds, emit=True, ev16=(ev16 and ds == (16 - LA) % 4))
        a("s_sub_u32 s%d, s%d, 1", S_LOOP, S_LOOP)
        a("s_cmp_lg_u32 s%d, 0", S_LOOP)
        a("s_cbranch_scc1 %s", lab)
        a.c("waits %s" % waits)
        q = q_after
    loop_section(0, K1 - 4, True)
    for c in range(K1 - 4, K1 + 4): run_step(c)
    stamp(a, opt, 2)
    loop_section(K1 + 4, NS - 4, False)
    for c in range(NS - 4, NS): run_step(c)
    stamp(a, opt, 3)
    lok = a.newlab("L_g2_ok"); lsp = a.newlab("L_g2_spin")
    a("s_cmp_lg_u32 s%d, 0", S_OK)
    a("s_cbranch_scc1 %s", lok)
    a.label(lsp)
    a("s_sleep 2")
    a("buffer_load_dword v%d, v%d, s[%d:%d], s%d offen sc1", V_FL, V_ZERO, S_F, S_F + 3, S_FRECV)
    a("s_waitcnt vmcnt(0)")
    a("v_readfirstlane_b32 s%d, v%d", S_OK, V_FL)
    a("s_cmp_eq_u32 s%d, 0", S_OK)
    a("s_cbranch_scc1 %s", lsp)
    for t in range(8):
        a("buffer_load_dwordx4 v[%d:%d], v%d, s[%d:%d], s%d offen offset:%d sc1", RECV + 4 * t, RECV + 4 * t + 3, V_L16, S_P, S_P + 3, S_PRECV if t < 4 else S_T2, (t & 3) * 1024)
    a.label(lok)
    a("s_add_u32 s%d, s%d, %d", S_T2, S_XROW, 16 * 2048)
    a("s_waitcnt vmcnt(0)")
    a("s_nop 4")
    for mf in range(2):
        for p in range(2):
            pk = XL + (mf * 2 + p) * 4
            for z in range(2):
                nf = 2 * p + z; t = keep(mf, nf); rb = RECV + (mf * 4 + nf) * 4
                a("v_pk_add_f32 v[%d:%d], v[%d:%d], v[%d:%d]", t.base, t.base + 1, t.base, t.base + 1, rb, rb + 1)
                a("v_pk_add_f32 v[%d:%d], v[%d:%d], v[%d:%d]", t.base + 2, t.base + 3, t.base + 2, t.base + 3, rb + 2, rb + 3)
                a("v_cvt_pk_bf16_f32 v%d, v%d, v%d", pk + 2 * z, t.base, t.base + 1)
                a("v_cvt_pk_bf16_f32 v%d, v%d, v%d", pk + 2 * z + 1, t.base + 2, t.base + 3)
            a("s_nop 1")
            a("v_permlane16_swap_b32 v%d, v%d", pk, pk + 2)
            a("v_permlane16_swap_b32 v%d, v%d", pk + 1, pk + 3)
            a("buffer_store_dwordx4 v[%d:%d], v%d, s[%d:%d], s%d offen offset:%d", pk, pk + 3, V_XO, S_O, S_O + 3, S_XROW if mf == 0 else S_T2, p * 64)
    if opt.get("prof"):
        a("s_waitcnt vmcnt(0)")
    stamp(a, opt, 4)
    stamp_store(a, opt, 5, P_WS, S_WV, 2, 20)
    a.label(done)
    a("s_endpgm")
    return kernel_desc(name, 256, 256, 100)
```

```python
from gen_common import *
import hazard, struct

XROWS = 273
XSLOT = XROWS * 128
WBASE = 2 * XSLOT
WSTAGE = 20480
WG_OFF, WU_OFF, WQ_OFF = 0, 7168, 14336
SCR = WBASE + 4 * WSTAGE
L_CS = SCR
L_KV = SCR + 1280
L_RT = SCR + 5376
G1B_LDS = SCR + 5376 + 2560
WS_STATS = 0
LOG2E = 1.4426950408889634
def f32(x): return "0x%08x" % struct.unpack("<I", struct.pack("<f", x))[0]

def zipl(*ls):
    out = []
    n = max(len(l) for l in ls)
    for i in range(n):
        for l in ls:
            if i < len(l): out.append(l[i])
    return out

def spread(main, extra, lo=0.0, hi=0.7):
    n = len(main); k = len(extra)
    if k == 0: return list(main)
    pos = [int(n * lo + (n * (hi - lo)) * i / k) for i in range(k)]
    out = []; j = 0
    for i, m in enumerate(main):
        while j < k and pos[j] <= i:
            out.append(extra[j]); j += 1
        out.append(m)
    out += extra[j:]
    return out

def gen_g1b(a0, name="g1_kernel", opt=None):
    opt = opt or {}
    a = A(); a._lab = a0._lab + 1000
    NSTEP = 32
    ACT_KB = opt.get("akb", 131072)
    ACT_BYTES = 144 * ACT_KB
    KROT = opt.get("krot", 0)
    LA = opt.get("la", 3)
    BAR = opt.get("bar", 4)
    DE = opt.get("de", 5)
    DST = opt.get("dst", [0, 0, 0, 0])
    PK = opt.get("pk", 1)
    STM = opt.get("stmod", " sc1")
    NOCS = opt.get("nocs", 0)
    assert BAR <= 10 - LA
    S_X, S_G, S_U, S_Q, S_ACT, S_ST, S_DBG, S_PF = 4, 8, 12, 16, 20, 24, 28, 32
    S_XK, S_XH, S_GOFF, S_QOFF, S_T, S_T2, S_T3, S_W, S_M0, S_J, S_LOOP = 36, 37, 38, 39, 40, 41, 42, 43, 44, 45, 46
    S_PFOFF, S_PFSTR, S_OK, S_C0, S_C1, S_STO, S_AB, S_ODD, S_MT = 47, 48, 49, 50, 51, 52, 53, 58, 59
    S_K1 = 54; S_K2 = 55; S_MSK = 56
    S_RC = 56; S_RP = 57; S_ROT = 3
    P_X, P_Q, P_G, P_U, P_WS, P_DBG, P_WO, P_WD = 60, 62, 64, 66, 68, 70, 72, 74
    V_XDMA = 1; V_WDMA = [2, 3, 4, 5]; V_XR = [6, 7]; V_HX = [8, 9]; V_WRD = list(range(10, 18)); V_PF = 18; V_PFD = 19
    ST = 20
    CSR = 40
    CST = 50
    T0, T1, T2, T3, T4, T5 = 74, 75, 76, 77, 78, 79
    TV = 80
    def XF(st, mf): return R('a', 148 + st * 32 + mf * 4, 4)
    def WR(i): return R('a', 212 + (i & 3) * 4, 4)
    def HX(st): return R('a', 228 + st * 4, 4)
    def HACC(i): return R('a', 236 + i * 4, 4)

    STP = opt.get("stp", ["pro", "loop", "epi"])
    def nst(nm):
        if nm in STP: stamp(a, opt, 1 + STP.index(nm))
    kernel_header(a, name)
    done = a.newlab("L_g1_done"); fin = a.newlab("L_g1_fin")
    a("s_cmp_ge_u32 s2, 256")
    a("s_cbranch_scc1 %s", done)
    a("s_load_dwordx4 s[%d:%d], s[0:1], 0", P_X, P_X + 3)
    a("s_load_dwordx4 s[%d:%d], s[0:1], 32", P_G, P_G + 3)
    a("s_load_dwordx2 s[%d:%d], s[0:1], 72", P_WS, P_WS + 1)
    a("s_load_dwordx2 s[%d:%d], s[0:1], 64", P_DBG, P_DBG + 1)
    a("s_load_dwordx2 s[%d:%d], s[0:1], 16", P_WO, P_WO + 1)
    a("s_load_dwordx2 s[%d:%d], s[0:1], 48", P_WD, P_WD + 1)
    stamp(a, opt, 0)
    a("v_lshrrev_b32 v%d, 6, v0", T0)
    a("v_and_b32 v0, 63, v0")
    a("v_readfirstlane_b32 s%d, v%d", S_W, T0)
    a("s_lshr_b32 s%d, s2, 5", S_MT)
    a("s_lshl_b32 s%d, s%d, 8", S_M0, S_MT)
    a("s_and_b32 s%d, s2, 7", S_J)
    a("s_lshl_b32 s%d, s%d, 2", S_J, S_J)
    a("s_bfe_u32 s%d, s2, 0x20003", S_T)
    a("s_add_u32 s%d, s%d, s%d", S_J, S_J, S_T)
    a("s_and_b32 s%d, s%d, 1", S_ODD, S_J)
    a("s_mul_i32 s%d, s%d, 224", S_GOFF, S_J)
    a("s_lshl_b32 s%d, s%d, 6", S_QOFF, S_J)
    if KROT:
        a("s_and_b32 s%d, s2, 7", S_ROT)
        if KROT > 1: a("s_and_b32 s%d, s%d, %d", S_ROT, S_ROT, (8 - KROT) & 7)
        a("s_mul_i32 s%d, s%d, %d", S_T, S_ROT, 128 * 7168)
        a("s_add_u32 s%d, s%d, s%d", S_GOFF, S_GOFF, S_T)
        a("s_mul_i32 s%d, s%d, %d", S_T, S_ROT, 128 * 6144)
        a("s_add_u32 s%d, s%d, s%d", S_QOFF, S_QOFF, S_T)
        a("s_sub_u32 s%d, 8, s%d", S_RC, S_ROT)
        a("s_sub_u32 s%d, %d, s%d", S_RP, 8 - opt.get("pf_c0", 1), S_ROT)
    a("v_lshlrev_b32 v%d, 4, v0", T5)
    labs = [a.newlab("L_g1_w") for _ in range(4)]
    for w in range(1, 4):
        a("s_cmp_eq_u32 s%d, %d", S_W, w)
        a("s_cbranch_scc1 %s", labs[w])

    def variant(w):
        wm, wn = w & 1, w >> 1
        tiles = {}
        if wn == 0:
            VPB = [TV, TV + 34]
            for f in range(2):
                for mf in range(8): tiles[(4 + f, mf)] = R('v', VPB[f] + 2 + 4 * mf, 4)
            order = [(nf, mf) for nf in (2, 3, 0, 1) for mf in range(8)] + [(nf, mf) for mf in range(8) for nf in (6, 7, 8, 9)]
            nv = TV + 68
        else:
            order = [(nf, mf) for g in ((0, 1, 2, 3), (4, 5, 6, 7)) for mf in range(8) for nf in g] + [(nf, mf) for mf in range(8) for nf in (8, 9)]
            nv = TV
        na = 0
        for t in order:
            if nv + 4 <= 256:
                tiles[t] = R('v', nv, 4); nv += 4
            else:
                tiles[t] = R('a', na, 4); na += 4
        assert na <= 148, na
        hset = {0: [2, 3, 4, 5, 0], 1: [1, 6, 7, 8, 9], 2: [0, 2, 4, 6, 8], 3: [1, 3, 5, 7, 9]}[w]
        if NOCS: hset = hset[:NOCS - 1] if w else hset[:4]
        def isV(nf): return wn == 0 and nf in (4, 5)
        def mm(d, wf, xf, c, nf):
            if isV(nf): return "v_mfma_f32_16x16x32_bf16 %s, %s, %s, %s" % (d, xf, wf, c)
            return "v_mfma_f32_16x16x32_bf16 %s, %s, %s, %s" % (d, wf, xf, c)

        a.label(labs[w])
        q = []
        a("v_lshrrev_b32 v%d, 4, v0", T0)
        if wm: a("v_add_u32 v%d, 4, v%d", T0, T0)
        a("v_and_b32 v%d, 7, v0", T1)
        a("v_xor_b32 v%d, v%d, v%d", T0, T0, T1)
        a("v_lshlrev_b32 v%d, 4, v%d", T0, T0)
        a("v_lshrrev_b32 v%d, 3, v0", T1)
        a("v_lshl_add_u32 v%d, v%d, 11, v%d", V_XDMA, T1, T0)
        a("s_add_u32 s%d, s%d, %d", S_XK, S_M0, 8 * w)
        a("s_lshl_b32 s%d, s%d, 11", S_XK, S_XK)
        a("s_max_u32 s%d, s%d, 16", S_T, S_M0)
        a("s_sub_u32 s%d, s%d, %d", S_XH, S_T, 16 - 8 * wm)
        a("s_lshl_b32 s%d, s%d, 11", S_XH, S_XH)
        if KROT:
            a("s_lshl_b32 s%d, s%d, 8", S_T, S_ROT)
            a("s_add_u32 s%d, s%d, s%d", S_XK, S_XK, S_T)
            a("s_add_u32 s%d, s%d, s%d", S_XH, S_XH, S_T)
        a("s_lshl_b32 s%d, s%d, 3", S_T2, S_J)
        a("s_add_u32 s%d, s%d, s%d", S_T2, S_T2, S_M0)
        a("s_add_u32 s%d, s%d, %d", S_T2, S_T2, 2 * w)
        a("s_lshl_b32 s%d, s%d, 11", S_T3, S_T2)
        wjobs = [("G", w), ("U", w), ("Q", w)] + ([("G", 4 + w), ("U", 4 + w)] if w < 3 else [("Q", 4), ("Q", 5)])
        wreg = {}
        def gu_off(dst, job):
            a("v_add_u32 v%d, %d, v0", T0, job * 64)
            a("v_mul_u32_u24 v%d, 4682, v%d", T1, T0)
            a("v_lshrrev_b32 v%d, 16, v%d", T1, T1)
            a("v_mul_u32_u24 v%d, 14, v%d", T2, T1)
            a("v_sub_u32 v%d, v%d, v%d", T2, T0, T2)
            a("v_bfe_u32 v%d, v%d, 3, 1", T3, T1)
            a("v_lshlrev_b32 v%d, 2, v%d", T3, T3)
            a("v_xor_b32 v%d, v%d, v%d", T1, T1, T3)
            a("v_mul_u32_u24 v%d, 7168, v%d", T1, T1)
            a("v_lshl_add_u32 v%d, v%d, 4, v%d", dst, T2, T1)
        def q_off(dst, job):
            a("v_add_u32 v%d, %d, v0", T0, job * 64)
            a("v_mul_u32_u24 v%d, 5462, v%d", T1, T0)
            a("v_lshrrev_b32 v%d, 16, v%d", T1, T1)
            a("v_mul_u32_u24 v%d, 12, v%d", T2, T1)
            a("v_sub_u32 v%d, v%d, v%d", T2, T0, T2)
            a("v_bfe_u32 v%d, v%d, 3, 1", T3, T1)
            a("v_lshlrev_b32 v%d, 1, v%d", T3, T3)
            a("v_xor_b32 v%d, v%d, v%d", T2, T2, T3)
            a("v_mul_u32_u24 v%d, 6144, v%d", T1, T1)
            a("v_lshrrev_b32 v%d, 2, v%d", T3, T2)
            a("v_lshl_add_u32 v%d, v%d, 11, v%d", T1, T3, T1)
            a("v_and_b32 v%d, 3, v%d", T2, T2)
            a("v_lshl_add_u32 v%d, v%d, 4, v%d", dst, T2, T1)
        nreg = 0
        late = []
        for kind, job in wjobs:
            key = ("GU" if kind != "Q" else "Q", job)
            if key not in wreg:
                wreg[key] = V_WDMA[nreg]; nreg += 1
                late.append((key, wreg[key]))
        for key, dst in late:
            (gu_off if key[0] == "GU" else q_off)(dst, key[1])
        a("s_waitcnt lgkmcnt(0)")
        make_srd(a, S_X, P_X, 2048 * 2048)
        make_srd(a, S_G, P_G, 1024 * 7168)
        make_srd(a, S_U, P_U, 1024 * 7168)
        make_srd(a, S_Q, P_Q, 1024 * 6144)
        def x_jobs(t):
            slot = t & 1
            jobs = []
            for i in range(8):
                jobs.append((["s_mov_b32 m0, %d" % (slot * XSLOT + (w + 4 * i) * 1024),
                              "s_add_u32 s%d, s%d, %d" % (S_T, S_XK, i * 65536)],
                             ["buffer_load_dwordx4 v%d, s[%d:%d], s%d offen lds" % (V_XDMA, S_X, S_X + 3, S_T)]))
            jobs[-1][1].append("s_add_u32 s%d, s%d, 128" % (S_XK, S_XK))
            if wn == slot:
                jobs.append((["s_mov_b32 m0, %d" % (slot * XSLOT + 32768 + wm * 1024)],
                             ["buffer_load_dwordx4 v%d, s[%d:%d], s%d offen lds" % (V_XDMA, S_X, S_X + 3, S_XH)]))
            jobs[-1][1].append("s_add_u32 s%d, s%d, 128" % (S_XH, S_XH))
            return [(j, ('X', t)) for j in jobs]
        def w_jobs(s):
            stage = s & 3
            jobs = []
            for kind, job in wjobs:
                srd = {"G": S_G, "U": S_U, "Q": S_Q}[kind]; off = {"G": WG_OFF, "U": WU_OFF, "Q": WQ_OFF}[kind]
                vo = wreg[("GU" if kind != "Q" else "Q", job)]
                jobs.append((["s_mov_b32 m0, %d" % (WBASE + stage * WSTAGE + off + job * 1024)],
                             ["buffer_load_dwordx4 v%d, s[%d:%d], s%d offen lds" % (vo, srd, srd + 3, S_QOFF if kind == "Q" else S_GOFF)]))
            jobs[-1][1].append("s_add_u32 s%d, s%d, %d" % (S_GOFF, S_GOFF, 32 * 7168))
            jobs[-1][1].append("s_add_u32 s%d, s%d, %d" % (S_QOFF, S_QOFF, 32 * 6144))
            return [(j, ('W', s)) for j in jobs]
        def emit_now(jobs):
            for (pre, main), tag in jobs:
                for s_ in pre + main: a(s_)
                q.append(tag)
        def need_count(tags):
            idx = [i for i, t in enumerate(q) if t in tags]
            if not idx: return 63
            return len(q) - 1 - max(idx)
        PSPLIT = opt.get("pro_split", 0); S_AT = opt.get("s_at", -1); WO_AT = opt.get("wo_at", -1)
        PF_C0 = opt.get("pf_c0", 1); PF_PRO = opt.get("pf_pro", 2); PF_X = opt.get("pf_x", [])
        PRO_A = opt.get("pro_a", 2)
        pro_list = [w_jobs(0), x_jobs(0), w_jobs(1), x_jobs(1), w_jobs(2)]
        for l_ in pro_list[:PRO_A]: emit_now(l_)
        SA = ST; SB = ST + 8
        def s_loads():
            for i in range(4):
                a("buffer_load_dwordx4 v[%d:%d], v%d, s[%d:%d], s%d offen offset:%d", SA + 4 * i, SA + 4 * i + 3, T5, S_X, S_X + 3, S_T3, 1024 * i)
                q.append(('S', 0))
        def wo_pf():
            if w != 3 or not PFD: return
            a("v_lshlrev_b32 v%d, 7, v0", ST + 50)
            a("s_lshl_b32 s%d, s2, 13", S_T)
            a("buffer_load_dword v%d, v%d, s[76:79], s%d offen", V_PFD, ST + 50, S_T); q.append(('P', 0))
        def pro2():
            for l_ in pro_list[PRO_A:]: emit_now(l_)
            if S_AT < 0: s_loads()
        def pro3():
            if WO_AT < 0: wo_pf()
            if PFD and w < 3:
                for i in range(PF_PRO): emit_now([pf_job()])
        if PSPLIT == 0: pro2()
        PFD = opt.get("pf_d", 384)
        if PFD:
            a("s_lshr_b32 s%d, s2, 3", S_T)
            a("s_and_b32 s%d, s2, 7", S_K1)
            if w < 2:
                a("v_min_u32 v%d, 27, v0", T0)
                a("v_mul_u32_u24 v%d, 9363, v%d", T1, T0)
                a("v_lshrrev_b32 v%d, 16, v%d", T1, T1)
                a("v_mul_u32_u24 v%d, 7, v%d", T2, T1)
                a("v_sub_u32 v%d, v%d, v%d", T2, T0, T2)
                a("v_lshlrev_b32 v%d, 5, v%d", T1, T1)
                a("v_add_u32 v%d, s%d, v%d", T1, S_T, T1)
                a("v_mul_u32_u24 v%d, 7168, v%d", T1, T1)
                a("v_lshl_add_u32 v%d, v%d, 7, v%d", V_PF, T2, T1)
                make_srd(a, S_PF, P_G if w == 0 else P_U, 1024 * 7168)
                a("s_mul_i32 s%d, s%d, 896", S_PFOFF, S_K1)
                a("s_add_u32 s%d, s%d, %d", S_PFOFF, S_PFOFF, PF_C0 * 128 * 7168)
                if KROT:
                    a("s_mul_i32 s%d, s%d, %d", S_T, S_ROT, 128 * 7168)
                    a("s_add_u32 s%d, s%d, s%d", S_PFOFF, S_PFOFF, S_T)
                a("s_mov_b32 s%d, %d", S_PFSTR, 128 * 7168)
            elif w == 2:
                a("v_min_u32 v%d, 23, v0", T0)
                a("v_mul_u32_u24 v%d, 10923, v%d", T1, T0)
                a("v_lshrrev_b32 v%d, 16, v%d", T1, T1)
                a("v_mul_u32_u24 v%d, 6, v%d", T2, T1)
                a("v_sub_u32 v%d, v%d, v%d", T2, T0, T2)
                a("v_lshlrev_b32 v%d, 5, v%d", T1, T1)
                a("v_add_u32 v%d, s%d, v%d", T1, S_T, T1)
                a("v_mul_u32_u24 v%d, 6144, v%d", T1, T1)
                a("v_lshrrev_b32 v%d, 1, v%d", T3, T2)
                a("v_lshl_add_u32 v%d, v%d, 11, v%d", T1, T3, T1)
                a("v_and_b32 v%d, 1, v%d", T2, T2)
                a("v_lshl_add_u32 v%d, v%d, 7, v%d", V_PF, T2, T1)
                make_srd(a, S_PF, P_Q, 1024 * 6144)
                a("s_lshl_b32 s%d, s%d, 8", S_PFOFF, S_K1)
                a("s_add_u32 s%d, s%d, %d", S_PFOFF, S_PFOFF, PF_C0 * 128 * 6144)
                if KROT:
                    a("s_mul_i32 s%d, s%d, %d", S_T, S_ROT, 128 * 6144)
                    a("s_add_u32 s%d, s%d, s%d", S_PFOFF, S_PFOFF, S_T)
                a("s_mov_b32 s%d, %d", S_PFSTR, 128 * 6144)
            else:
                make_srd(a, 76, P_WO, 1024 * 2048)
                a("v_lshlrev_b32 v%d, 7, v0", V_PF)
                a("v_min_u32 v%d, %d, v%d", V_PF, 31 * 128, V_PF)
                make_srd(a, S_PF, P_WD, 3584 * 2048)
                a("s_mul_i32 s%d, s2, 28672", S_PFOFF)
                a("s_mov_b32 s%d, 4096", S_PFSTR)
        def pf_job():
            pre = []
            if KROT and w < 3:
                pre = ["s_cmp_ge_u32 s%d, %d" % (S_PFOFF, 1024 * (7168 if w < 2 else 6144)),
                       "s_cselect_b32 s%d, %d, 0" % (S_T, 1024 * (7168 if w < 2 else 6144)),
                       "s_sub_u32 s%d, s%d, s%d" % (S_PFOFF, S_PFOFF, S_T)]
            return ((pre, ["buffer_load_dword v%d, v%d, s[%d:%d], s%d offen" % (V_PFD, V_PF, S_PF, S_PF + 3, S_PFOFF),
                          "s_add_u32 s%d, s%d, s%d" % (S_PFOFF, S_PFOFF, S_PFSTR)]), ('P', 0))
        if PSPLIT == 0: pro3()
        make_srd(a, S_ACT, P_WS, ACT_BYTES, WS_ACT2)
        make_srd(a, S_ST, P_WS, 2048 * 8, WS_STATS)
        make_srd(a, S_DBG, P_DBG, 256)
        a("v_and_b32 v%d, 15, v0", T0)
        a("v_lshrrev_b32 v%d, 4, v0", T1)
        a("v_lshrrev_b32 v%d, 1, v%d", T2, T0)
        a("v_xor_b32 v%d, v%d, v%d", T2, T2, T1)
        a("v_lshlrev_b32 v%d, 4, v%d", T2, T2)
        a("v_lshl_add_u32 v%d, v%d, 7, v%d", T3, T0, T2)
        a("v_add_u32 v%d, %d, v%d", V_XR[0], wm * 16384, T3)
        a("v_xor_b32 v%d, 64, v%d", V_XR[1], V_XR[0])
        a("v_add_u32 v%d, 32768, v%d", V_HX[0], T3)
        a("v_add_u32 v%d, %d, v%d", T4, 32768 + 2048, T3)
        a("v_cmp_eq_u32 vcc, 0, v%d", T0)
        a("v_cndmask_b32 v%d, v%d, v%d, vcc", V_HX[0], V_HX[0], T4)
        a("v_xor_b32 v%d, 64, v%d", V_HX[1], V_HX[0])
        a("v_lshrrev_b32 v%d, 2, v%d", T2, T0)
        a("v_lshl_add_u32 v%d, v%d, 3, v%d", T2, T1, T2)
        a("v_and_b32 v%d, 3, v0", T3)
        a("v_lshlrev_b32 v%d, 3, v%d", T3, T3)
        a("v_and_b32 v%d, 1, v%d", T1, T1)
        a("v_lshl_add_u32 v%d, v%d, 2, v%d", T4, T1, T2)
        a("v_mul_u32_u24 v%d, 224, v%d", V_WRD[0], T4)
        a("v_xor_b32 v%d, 4, v%d", T4, T4)
        a("v_mul_u32_u24 v%d, 224, v%d", V_WRD[1], T4)
        a("s_lshl_b32 s%d, s%d, 5", S_T, S_ODD)
        a("s_add_u32 s%d, s%d, %d", S_T, S_T, WBASE)
        if wn == 1:
            a("s_mul_i32 s%d, s%d, 192", S_K1, S_ODD)
            a("s_sub_u32 s%d, %d, s%d", S_K1, WBASE + 192, S_K1)
            for h in range(2):
                a("v_add3_u32 v%d, v%d, v%d, s%d", V_WRD[2 + h], V_WRD[h], T3, S_K1)
        else:
            a("v_mul_u32_u24 v%d, 192, v%d", T4, T2)
            a("v_lshl_add_u32 v%d, v%d, 5, v%d", T4, T1, T4)
            a("v_add_u32 v%d, v%d, v%d", T4, T4, T3)
            a("v_add_u32 v%d, %d, v%d", V_WRD[2], WBASE, T4)
            a("v_xor_b32 v%d, 32, v%d", T4, T4)
            a("v_add_u32 v%d, %d, v%d", V_WRD[3], WBASE, T4)
        for h in range(2):
            a("v_add3_u32 v%d, v%d, v%d, s%d", V_WRD[h], V_WRD[h], T3, S_T)
        for i in range(4):
            a("v_add_u32 v%d, %d, v%d", V_WRD[4 + i], 2 * WSTAGE, V_WRD[i])
        if w == 0:
            a("v_mov_b32 v%d, 0x3f803f80", T0)
            a("v_lshlrev_b32 v%d, 2, v0", T1)
            a("v_and_b32 v%d, 127, v%d", T1, T1)
            a("ds_write_b32 v%d, v%d offset:%d", T1, T0, 272 * 128)
            a("v_add_u32 v%d, %d, v%d", T1, XSLOT, T1)
            a("ds_write_b32 v%d, v%d offset:%d", T1, T0, 272 * 128)
        if w == 1:
            make_srd(a, S_PF if not PFD else 76, P_WS, 4096, WS_FLAGS)
            sf = S_PF if not PFD else 76
            a("s_lshl_b32 s%d, s2, 4", S_T)
            for i in range(4): a("v_mov_b32 v%d, 0", T0 + i)
            a("s_mov_b64 exec, 1")
            a("buffer_store_dwordx4 v[%d:%d], v%d, s[%d:%d], s%d offen", T0, T3, T0, sf, sf + 3, S_T); q.append(('Z', 0))
            a("s_mov_b64 exec, -1")
        a("s_mov_b32 s%d, 0xffff0000", S_K1)
        a("v_mov_b32 v%d, 0", T4)
        a("s_lshl_b32 s%d, s%d, 3", S_T2, S_T2)
        def stat_row(b, onm, osd):
            L = []
            X = ST + 16; Y = ST + 32; Z = ST + 48
            for i in range(8):
                L.append("v_lshlrev_b32 v%d, 16, v%d" % (X + 2 * i, b + i))
                L.append("v_and_b32 v%d, s%d, v%d" % (X + 2 * i + 1, S_K1, b + i))
            def red(src, dst):
                for i in range(8): L.append("v_add_f32 v%d, v%d, v%d" % (b + i, src + 2 * i, src + 2 * i + 1))
                for i in range(4): L.append("v_add_f32 v%d, v%d, v%d" % (b + i, b + 2 * i, b + 2 * i + 1))
                L.append("v_add_f32 v%d, v%d, v%d" % (b, b, b + 1))
                L.append("v_add_f32 v%d, v%d, v%d" % (b + 2, b + 2, b + 3))
                L.append("v_add_f32 v%d, v%d, v%d" % (dst, b, b + 2))
                for m_ in ("quad_perm:[1,0,3,2]", "quad_perm:[2,3,0,1]", "row_half_mirror", "row_mirror"):
                    L.append("v_add_f32_dpp v%d, v%d, v%d %s row_mask:0xf bank_mask:0xf" % (dst, dst, dst, m_))
                for sw in ("16", "32"):
                    L.append("v_mov_b32 v%d, v%d" % (b, dst))
                    L.append("v_permlane%s_swap_b32 v%d, v%d" % (sw, dst, b))
                    L.append("v_add_f32 v%d, v%d, v%d" % (dst, dst, b))
                L.append("v_mul_f32 v%d, 0x3a800000, v%d" % (dst, dst))
            red(X, Z)
            for i in range(16): L.append("v_sub_f32 v%d, v%d, v%d" % (Y + i, X + i, Z))
            for i in range(16): L.append("v_mul_f32 v%d, v%d, v%d" % (Y + i, Y + i, Y + i))
            red(Y, Z + 1)
            L.append("v_cvt_pk_bf16_f32 v%d, v%d, v%d" % (onm, Z, Z))
            L.append("v_xor_b32 v%d, 0x80008000, v%d" % (onm, onm))
            L.append("v_cvt_pk_bf16_f32 v%d, v%d, v%d" % (Z + 1, Z + 1, Z + 1))
            L.append("v_and_b32 v%d, s%d, v%d" % (Z + 1, S_K1, Z + 1))
            L.append("v_add_f32 v%d, 0x3727c5ac, v%d" % (Z + 1, Z + 1))
            L.append("v_cvt_pk_bf16_f32 v%d, v%d, v%d" % (Z + 1, Z + 1, Z + 1))
            L.append("v_and_b32 v%d, s%d, v%d" % (Z + 1, S_K1, Z + 1))
            L.append("v_sqrt_f32 v%d, v%d" % (Z + 1, Z + 1))
            L.append("v_cvt_pk_bf16_f32 v%d, v%d, v%d" % (Z + 1, Z + 1, Z + 1))
            L.append("v_and_b32 v%d, s%d, v%d" % (osd, S_K1, Z + 1))
            return L
        SS0 = opt.get("ss0", 2)
        side = {0: [], 1: [], 2: [], 3: [], 28: ["v_mov_b32 v%d, 0" % r_ for r_ in range(ST, CST + 24)]}
        if S_AT >= 0: side[S_AT].append("SLOAD")
        if WO_AT >= 0: side[WO_AT].append("WOPF")
        for s_ in PF_X: side[s_].append("PFJ")
        if SS0 < 3:
            side[SS0] += ["WAITS"] + stat_row(SA, T0, T1); side[SS0 + 1] += stat_row(SB, T2, T3) + ["SSTORE"]
        else:
            side[3] += ["WAITS"] + stat_row(SA, T0, T1) + stat_row(SB, T2, T3) + ["SSTORE"]
        def side_emit(x_):
            if x_ == "WAITS": a("s_waitcnt vmcnt(%d)", need_count([('S', 0)]))
            elif x_ == "SLOAD": s_loads()
            elif x_ == "WOPF": wo_pf()
            elif x_ == "PFJ":
                if PFD and w < 3: emit_now([pf_job()])
            elif x_ == "SSTORE":
                a("s_mov_b64 exec, 1")
                a("buffer_store_dwordx4 v[%d:%d], v%d, s[%d:%d], s%d offen sc1", T0, T3, T4, S_ST, S_ST + 3, S_T2); q.append(('SS', 0))
                a("s_mov_b64 exec, -1")
            else: a(x_)
        a("s_lshl_b32 s%d, s%d, 2", S_C1, S_MT)
        a("s_max_u32 s%d, s%d, 4", S_C0, S_C1)
        a("s_sub_u32 s%d, s%d, 4", S_C0, S_C0)
        a("s_mov_b32 s%d, 0", S_OK)

        lq = []
        def lds(instr, tag):
            if opt.get("nolds") and tag[1] > 0 and (opt["nolds"] == 1 or (opt["nolds"] == 2) == (tag[0] == 'W')): return
            a(instr); lq.append(tag)
        def lwait(tags):
            idx = [i for i, t in enumerate(lq) if t in tags]
            if not idx: return
            n = len(lq) - 1 - max(idx)
            a("s_waitcnt lgkmcnt(%d)", min(n, 15))
            del lq[:len(lq) - min(n, 15)]
        def w_reads(s, nf):
            stage = s & 3; hi = (stage >> 1) * 4; so = (stage & 1) * WSTAGE
            dst = WR(10 * s + nf)
            out = []
            for h in range(2):
                if wn == 0 and nf < 6:
                    ad = V_WRD[hi + 2 + (nf & 1)]; off = so + WQ_OFF + h * 768 + (nf >> 1) * 64
                else:
                    k = nf - 6 if wn == 0 else nf
                    slot = (k >> 1) + (0 if wn == 0 else 2); isu = k & 1
                    if slot == 6: ad = V_WRD[hi + 2 + h]; off = so + isu * WU_OFF
                    else: ad = V_WRD[hi + h]; off = so + isu * WU_OFF + slot * 32
                out.append(("ds_read_b64_tr_b16 %s, v%d offset:%d" % (dst.sub(2 * h, 2), ad, off), ('W', s, nf)))
            return out
        def x_reads(s):
            xs = (s >> 1) & 1; kk = s & 1
            out = [("ds_read_b128 %s, v%d offset:%d" % (XF(s & 1, mf), V_XR[kk], xs * XSLOT + mf * 2048), ('X', s, mf)) for mf in range(8)]
            out.append(("ds_read_b128 %s, v%d offset:%d" % (HX(s & 1), V_HX[kk], xs * XSLOT), ('H', s)))
            return out
        pend = []
        gapc = [0, 0]
        def step(s, waits=None, emit=True, hooks=None):
            last = s == NSTEP - 1
            ms = []
            for nf in range(10):
                mfs = range(8) if nf % 2 == 0 else range(7, -1, -1)
                grp = [(nf, mf) for mf in mfs]
                if nf in hset: grp.insert(4, (nf, -1))
                ms += grp
            xr = x_reads(s + 1) if not last else []
            first_of = {}
            for i, (nf, mf) in enumerate(ms): first_of.setdefault(nf, i)
            x0 = first_of[BAR] + 2 if (s & 1) else first_of[opt.get("xr_even", 2)] + 2
            xend = len(ms) - opt.get("xr_tail", 10)
            xpos = [x0 + ((xend - x0) * i) // len(xr) for i in range(len(xr))] if xr else []
            sd_ = list(side.get(s, [])) if (emit and (s < 4 or s >= NSTEP - 4)) else []
            s_hi = 66 if s == 28 else len(ms) - 2
            spos = [2 + ((s_hi - 2) * i) // len(sd_) for i in range(len(sd_))] if sd_ else []
            for i, (nf, mf) in enumerate(ms):
                post = []
                if i == first_of[nf] and nf == BAR and not last:
                    tags = [('W', s + 1)]
                    if (s + 1) % 2 == 0: tags.append(('X', (s + 1) // 2))
                    n = min(63, need_count(tags))
                    if waits is not None:
                        if emit: n = waits[s & 3]
                        else: waits[s & 3] = min(waits.get(s & 3, 63), n)
                    if not opt.get("nodma") and not opt.get("nowait"): a("s_waitcnt vmcnt(%d)", n)
                    if not opt.get("nobar"): a("s_barrier")
                    assert not pend, "DMA jobs not drained"
                    if (s & 1) and (s + 3) // 2 < NSTEP // 2: pend.extend(x_jobs((s + 3) // 2))
                    if s + 3 < NSTEP: pend.extend(w_jobs(s + 3))
                    if PFD and (s & 3) == 0 and s < NSTEP - 4: pend.append(pf_job())
                    if KROT and (s & 3) == 1 and s < NSTEP - 4:
                        a("s_sub_u32 s%d, s%d, 1", S_RC, S_RC)
                        a("s_cmp_eq_u32 s%d, 0", S_RC)
                        a("s_cselect_b32 s%d, %d, 0", S_K2, 1024 * 7168)
                        a("s_cselect_b32 s%d, %d, 0", S_STO, 1024 * 6144)
                        a("s_cselect_b32 s%d, 2048, 0", S_T)
                        a("s_sub_u32 s%d, s%d, s%d", S_GOFF, S_GOFF, S_K2)
                        a("s_sub_u32 s%d, s%d, s%d", S_QOFF, S_QOFF, S_STO)
                        a("s_sub_u32 s%d, s%d, s%d", S_XK, S_XK, S_T)
                        a("s_sub_u32 s%d, s%d, s%d", S_XH, S_XH, S_T)
                    gapc[0] = 0; gapc[1] = s & 1
                    if hooks and 'bar' in hooks: hooks['bar']()
                job = None
                de = DE
                g0_ = 1 + DST[w]
                if isinstance(DE, list): de = DE[0] if gapc[1] else DE[1]
                if pend and gapc[0] >= g0_ and (gapc[0] - g0_) % de == 0:
                    job = pend.pop(0)
                    for x_ in job[0][0]: a(x_)
                gapc[0] += 1
                lwait([('W', s, nf), ('X', s, mf) if mf >= 0 else ('H', s)])
                wf = WR(10 * s + nf)
                if mf >= 0:
                    t = tiles[(nf, mf)]
                    a(mm(t, wf, XF(s & 1, mf), t if s else "0", nf))
                else:
                    t = HACC(hset.index(nf))
                    a(mm(t, wf, HX(s & 1), t if s else "0", nf))
                if job:
                    for x_ in job[0][1]:
                        if opt.get("nodma") and x_.startswith("buffer_load"): continue
                        if opt.get("dma_only") and x_.startswith("buffer_load") and job[1][0] not in opt["dma_only"]: continue
                        a(x_)
                    q.append(job[1])
                k = i - first_of[nf]
                if k < 2:
                    s2_, nf2 = (s, nf + LA) if nf + LA < 10 else (s + 1, nf + LA - 10)
                    if s2_ < NSTEP:
                        ins, tag = w_reads(s2_, nf2)[k]
                        lds(ins, tag)
                while xpos and xpos[0] <= i:
                    xpos.pop(0); ins, tag = xr.pop(0); lds(ins, tag)
                while spos and spos[0] <= i:
                    spos.pop(0); side_emit(sd_.pop(0))
                if hooks and i in hooks: hooks[i]()

        if PSPLIT == 1: pro2(); pro3()
        a("s_waitcnt vmcnt(%d)", need_count([('X', 0), ('W', 0)]))
        a("s_waitcnt lgkmcnt(0)")
        a("s_barrier")
        nst("pro")
        if PSPLIT == 2: pro2(); pro3()
        for nf in range(LA):
            for ins, tag in w_reads(0, nf): lds(ins, tag)
            if nf == 0:
                for ins, tag in x_reads(0): lds(ins, tag)
        a("s_waitcnt lgkmcnt(0)"); del lq[:]
        waits = {}
        saved = a.l; q0 = list(q); a.l = []
        for s in range(NSTEP - 4): step(s, waits, emit=False)
        q_after = list(q); lq_after = list(lq); pend_after = list(pend); gap_after = list(gapc)
        a.l = saved; q[:] = q0; del lq[:]; del pend[:]; gapc[:] = [0, 0]
        head = []
        peel = True
        def signal():
            a("v_mov_b32 v%d, 1", T0)
            a("v_mov_b32 v%d, 0", T1)
            a("s_mov_b64 exec, 1")
            a("buffer_atomic_add v%d, v%d, s[%d:%d], s%d offen sc1", T0, T1, S_DBG, S_DBG + 3, S_C1); q.append(('A', 0))
            a("s_mov_b64 exec, -1")
        nit = NSTEP // 4 - 1
        if peel:
            for s in range(4):
                step(s, waits, emit=True)
                nst("s%d" % s)
            nit -= 1
        loop = a.newlab("L_g1_loop")
        a("s_mov_b32 s%d, %d", S_LOOP, nit)
        lq_in = [(t[0], t[1] - 4) + tuple(t[2:]) for t in lq]
        a.label(loop)
        def sig_cond():
            l_ = a.newlab("L_g1_sig")
            a("s_cmp_lg_u32 s%d, %d", S_LOOP, nit)
            a("s_cbranch_scc1 %s", l_)
            signal()
            a.label(l_)
        for s in range(4, 8):
            step(s, waits, emit=True, hooks=({'bar': sig_cond} if (w == 0 and s == 7) else None))
        lq_out = [(t[0], t[1] - 8) + tuple(t[2:]) for t in lq]
        if peel: assert lq_in == lq_out, (lq_in, lq_out)
        else:
            a("s_waitcnt lgkmcnt(0)"); del lq[:]
        a("s_sub_u32 s%d, s%d, 1", S_LOOP, S_LOOP)
        a("s_cmp_lg_u32 s%d, 0", S_LOOP)
        a("s_cbranch_scc1 %s", loop)
        a.c("waits %s" % waits)
        q[:] = q_after; pend[:] = pend_after; gapc[:] = gap_after
        lq[:] = lq_after if peel else []
        nb = 9 if wn == 0 else 8
        def poll():
            a("v_mov_b32 v%d, 0", T2)
            a("buffer_load_dword v%d, v%d, s[%d:%d], s%d offen sc1", T0, T2, S_DBG, S_DBG + 3, S_C0); q.append(('C', 0))
            a("buffer_load_dword v%d, v%d, s[%d:%d], s%d offen sc1", T1, T2, S_DBG, S_DBG + 3, S_C1); q.append(('C', 0))
        def check():
            a("s_waitcnt vmcnt(%d)", need_count([('C', 0)]))
            a("v_min_u32 v%d, v%d, v%d", T0, T0, T1)
            a("v_readfirstlane_b32 s%d, v%d", S_OK, T0)
        def st_loads():
            a("v_and_b32 v%d, 15, v0", T2)
            a("v_lshlrev_b32 v%d, 3, v%d", T2, T2)
            a("s_add_u32 s%d, s%d, %d", S_STO, S_M0, 128 * wm)
            a("s_lshl_b32 s%d, s%d, 3", S_STO, S_STO)
            for b in range(nb):
                bb = b - 1 if wn == 0 else b
                if bb < 0:
                    a("s_max_u32 s%d, s%d, 128", S_K2, S_STO)
                    a("s_sub_u32 s%d, s%d, 128", S_K2, S_K2)
                    a("buffer_load_dwordx2 v[%d:%d], v%d, s[%d:%d], s%d offen sc1", ST + 2 * b, ST + 2 * b + 1, T2, S_ST, S_ST + 3, S_K2)
                else:
                    a("buffer_load_dwordx2 v[%d:%d], v%d, s[%d:%d], s%d offen offset:%d sc1", ST + 2 * b, ST + 2 * b + 1, T2, S_ST, S_ST + 3, S_STO, bb * 128)
                q.append(('R', 0))
        def check_and_load():
            check(); st_loads()
        nst("s27")
        step(28, hooks={70: poll}); step(29, hooks={60: check_and_load}); step(30); step(31)
        assert not pend
        nst("loop")
        lok = a.newlab("L_g1_ok"); lsp = a.newlab("L_g1_spin")
        a("s_cmp_ge_u32 s%d, 32", S_OK)
        a("s_cbranch_scc1 %s", lok)
        a.label(lsp)
        a("s_sleep 4")
        poll()
        a("s_waitcnt vmcnt(0)")
        a("v_min_u32 v%d, v%d, v%d", T0, T0, T1)
        a("s_nop 1")
        a("v_readfirstlane_b32 s%d, v%d", S_OK, T0)
        a("s_nop 1")
        a("s_cmp_lt_u32 s%d, 32", S_OK)
        a("s_cbranch_scc1 %s", lsp)
        st_loads()
        a.label(lok)
        a("s_nop 7")
        RR = 1
        CG = 10
        V_L16 = 18; V_SGL = 19
        boff = 1 if wn == 0 else 0
        def stt(mf): return "v[%d:%d]" % (ST + 2 * (mf + boff), ST + 2 * (mf + boff) + 3)
        def SD(mf): return ST + 2 * (mf + boff) + 1
        def cst(i): return "v[%d:%d]" % (CST + 4 * i, CST + 4 * i + 3)
        a("v_lshrrev_b32 v%d, 4, v0", T0)
        a("v_lshlrev_b32 v%d, 4, v%d", T0, T0)
        a("v_add_u32 v%d, %d, v%d", T0, L_CS, T0)
        a("v_lshlrev_b32 v%d, 2, v0", T1)
        a("v_add_u32 v%d, %d, v%d", T1, L_CS, T1)
        a("v_lshlrev_b32 v%d, 4, v0", V_L16)
        a("s_mov_b32 s%d, 0x00010001", S_MSK); a("s_mov_b32 s%d, 0x00010001", S_MSK + 1)
        a("s_mov_b64 exec, s[%d:%d]", S_MSK, S_MSK + 1)
        for i, nf in enumerate(hset):
            if not isV(nf): a("ds_write_b128 v%d, %s offset:%d", T0, HACC(i), (wn * 10 + nf) * 64)
        a("s_mov_b64 exec, 0xffff")
        for i, nf in enumerate(hset):
            if isV(nf): a("ds_write_b32 v%d, %s offset:%d", T1, HACC(i).sub(0), (wn * 10 + nf) * 64)
        a("s_mov_b64 exec, -1")
        if w == 0:
            a("v_add_u32 v%d, %d, v%d", T2, L_KV, V_L16)
            for i in range(4): a("ds_write_b128 v%d, %s offset:%d", T2, tiles[(2 + i, 7)], i * 1024)
        a("s_waitcnt vmcnt(0)")
        for b in range(nb): a("v_rcp_f32 v%d, v%d", RR + b, ST + 2 * b + 1)
        if wn == 0:
            a("v_and_b32 v%d, 15, v0", T3)
            a("v_lshlrev_b32 v%d, 2, v%d", T3, T3)
            a("v_add_u32 v%d, %d, v%d", T3, L_RT + w * 640, T3)
            for b in range(nb): a("ds_write_b32 v%d, v%d offset:%d", T3, RR + b, b * 64)
        for mf in range(8): a("v_mul_f32 v%d, %s, v%d", CG + mf, f32(-LOG2E), RR + mf + boff)
        a("s_lshl_b32 s%d, s%d, 14", S_AB, S_MT)
        if wm: a("s_add_u32 s%d, s%d, 8192", S_AB, S_AB)
        a("s_lshr_b32 s%d, s%d, 1", S_T, S_J)
        a("s_mul_i32 s%d, s%d, 7", S_T, S_T)
        a("s_add_u32 s%d, s%d, 32", S_T, S_T)
        a("s_lshl_b32 s%d, s%d, 2", S_T2, S_ODD)
        a("s_add_u32 s%d, s%d, s%d", S_T2, S_T2, S_T)
        a("s_mul_i32 s%d, s%d, %d", S_K1, S_T2, ACT_KB)
        a("s_add_u32 s%d, s%d, s%d", S_K1, S_K1, S_AB)
        a("s_add_u32 s%d, s%d, 3", S_T, S_T)
        a("s_mul_i32 s%d, s%d, %d", S_K2, S_T, ACT_KB)
        a("s_add_u32 s%d, s%d, s%d", S_K2, S_K2, S_AB)
        a("s_lshl_b32 s%d, s%d, 9", S_T, S_ODD)
        a("s_add_u32 s%d, s%d, s%d", S_K2, S_K2, S_T)
        a("s_mul_i32 s%d, s%d, %d", S_T, S_J, ACT_KB)
        a("s_add_u32 s%d, s%d, s%d", S_AB, S_AB, S_T)
        a("v_lshrrev_b32 v%d, 5, v0", T2)
        a("v_lshl_add_u32 v%d, v%d, 9, v%d", V_SGL, T2, V_L16)
        a("s_waitcnt lgkmcnt(0)")
        nst("e0")
        a("s_barrier")
        nst("e1")
        a("s_mov_b64 exec, 0xffff")
        for nf in range(10): a("ds_read_b32 v%d, v%d offset:%d", CSR + nf, T1, (wn * 10 + nf) * 64)
        a("s_mov_b64 exec, -1")
        if w == 1:
            a("v_add_u32 v%d, %d, v%d", T2, L_KV, V_L16)
            for i in range(4): a("ds_read_b128 %s, v%d offset:%d", HACC(i), T2, i * 1024)
        a("s_mov_b32 s%d, 0xffff0000", S_T3)
        a("s_waitcnt lgkmcnt(0)")
        for nf in range(0, 10, 2):
            for z in range(2): a("v_cvt_pk_bf16_f32 v%d, v%d, v%d", T2 + z, CSR + nf + z, CSR + nf + z)
            for z in range(2): a("v_and_b32 v%d, s%d, v%d", T2 + z, S_T3, T2 + z)
            for z in range(2): a("v_sub_f32 v%d, v%d, v%d", T2 + z, CSR + nf + z, T2 + z)
            for z in range(2): a("v_cvt_pk_bf16_f32 v%d, v%d, v%d", CSR + nf + z, CSR + nf + z, T2 + z)
        def corr(t, nf, mf, ci):
            if isV(nf): return "v_mfma_f32_16x16x32_bf16 %s, %s, %s, %s" % (t, stt(mf), cst(ci), t)
            return "v_mfma_f32_16x16x32_bf16 %s, %s, %s, %s" % (t, cst(ci), stt(mf), t)
        def fetch(t, tmp, L):
            if t.kind == 'v': return t.base
            for i in range(4): L.append("v_accvgpr_read_b32 v%d, %s" % (tmp + i, t.sub(i)))
            return tmp
        def mul4(L, d, s_, m):
            if PK:
                mb = m & ~1; sel = m & 1
                for i in (0, 2):
                    L.append("v_pk_mul_f32 v[%d:%d], v[%d:%d], v[%d:%d] op_sel:[0,%d] op_sel_hi:[1,%d]" % (d + i, d + i + 1, s_ + i, s_ + i + 1, mb, mb + 1, sel, sel))
            else:
                for i in range(4): L.append("v_mul_f32 v%d, v%d, v%d" % (d + i, s_ + i, m))
        def mul44(L, d, s_, m):
            if PK:
                for i in (0, 2):
                    L.append("v_pk_mul_f32 v[%d:%d], v[%d:%d], v[%d:%d]" % (d + i, d + i + 1, s_ + i, s_ + i + 1, m + i, m + i + 1))
            else:
                for i in range(4): L.append("v_mul_f32 v%d, v%d, v%d" % (d + i, s_ + i, m + i))
        def glu_half(g, u, mf, o):
            L = []
            mul4(L, g, g, CG + mf)
            for i in range(4): L.append("v_exp_f32 v%d, v%d" % (g + i, g + i))
            sd = SD(mf)
            if PK:
                for i in (0, 2):
                    L.append("v_pk_fma_f32 v[%d:%d], v[%d:%d], v[%d:%d], v[%d:%d] op_sel:[0,1,1] op_sel_hi:[1,1,1]" % (g + i, g + i + 1, g + i, g + i + 1, sd - 1, sd, sd - 1, sd))
            else:
                for i in range(4): L.append("v_fma_f32 v%d, v%d, v%d, v%d" % (g + i, g + i, sd, sd))
            for i in range(4): L.append("v_rcp_f32 v%d, v%d" % (g + i, g + i))
            mul44(L, u, u, g)
            return L
        def glu_group(grp, tmp, sbase, soff, vaddr):
            F = []
            (ga, ua, ma), (gb, ub, mb) = grp
            ra = fetch(ga, tmp, F); rua = fetch(ua, tmp + 4, F); rb = fetch(gb, tmp + 8, F); rub = fetch(ub, tmp + 12, F)
            L = F + zipl(glu_half(ra, rua, ma, 0), glu_half(rb, rub, mb, 0))
            L.append("s_add_u32 s%d, s%d, %d" % (S_T, sbase, soff))
            L.append("v_cvt_pk_bf16_f32 v%d, v%d, v%d" % (ra, rua, rua + 1))
            L.append("v_cvt_pk_bf16_f32 v%d, v%d, v%d" % (ra + 2, rub, rub + 1))
            L.append("v_cvt_pk_bf16_f32 v%d, v%d, v%d" % (ra + 1, rua + 2, rua + 3))
            L.append("v_cvt_pk_bf16_f32 v%d, v%d, v%d" % (ra + 3, rub + 2, rub + 3))
            L.append("v_permlane32_swap_b32 v%d, v%d" % (ra, ra + 2))
            L.append("v_permlane32_swap_b32 v%d, v%d" % (ra + 1, ra + 3))
            L.append("buffer_store_dwordx4 v[%d:%d], v%d, s[%d:%d], s%d offen%s" % (ra, ra + 3, vaddr, S_ACT, S_ACT + 3, S_T, STM))
            return L
        def run_groups(groups):
            for x_ in groups[0][0] + groups[0][1]: a(x_)
            for k, (pre, cl, vl) in enumerate(groups):
                nxt = (groups[k + 1][0] + groups[k + 1][1]) if k + 1 < len(groups) else []
                for x_ in spread(vl, nxt, 0.05, 0.6): a(x_)
        def glu_groups(pairs, tmps):
            G = []
            for (na_, nb_, sbase, kboff) in pairs:
                if nb_ is not None:
                    for mf in range(8):
                        pre = []
                        if mf == 0:
                            pre = ["v_mov_b32 v%d, v%d" % (CST + 4 * i, CSR + nf) for i, nf in enumerate((na_, na_ + 1, nb_, nb_ + 1))]
                        cl = [corr(tiles[(nf, mf)], nf, mf, i) for i, nf in enumerate((na_, na_ + 1, nb_, nb_ + 1))]
                        vl = glu_group([(tiles[(na_, mf)], tiles[(na_ + 1, mf)], mf), (tiles[(nb_, mf)], tiles[(nb_ + 1, mf)], mf)],
                                       tmps[len(G) & 1], sbase, kboff + mf * 1024, V_L16)
                        G.append((pre, cl, vl))
                else:
                    for mf in range(0, 8, 2):
                        pre = []
                        if mf == 0:
                            pre = ["v_mov_b32 v%d, v%d" % (CST + 4 * i, CSR + nf) for i, nf in enumerate((na_, na_ + 1))]
                        cl = [corr(tiles[(na_ + z, mf + y)], na_ + z, mf + y, z) for y in range(2) for z in range(2)]
                        vl = glu_group([(tiles[(na_, mf)], tiles[(na_ + 1, mf)], mf), (tiles[(na_, mf + 1)], tiles[(na_ + 1, mf + 1)], mf + 1)],
                                       tmps[len(G) & 1], sbase, kboff + mf * 1024, V_SGL)
                        G.append((pre, cl, vl))
            return G
        if wn == 1:
            run_groups(glu_groups([(0, 2, S_K1, 1 * ACT_KB), (4, 6, S_K1, 2 * ACT_KB), (8, None, S_K2, 0)], [TV, TV + 16]))
            a("s_branch %s", fin)
            return
        a("v_lshrrev_b32 v%d, 4, v0", T3)
        a("v_lshlrev_b32 v%d, 4, v%d", T3, T3)
        a("v_add_u32 v%d, %d, v%d", T3, L_RT + w * 640, T3)
        RV = [CSR + 0, CSR + 0]
        prevK = [HACC(0), HACC(1)]; prevV = [HACC(2), HACC(3)]
        return_tiles = None
        conv(a, w, wm, tiles, VPB, prevK, prevV, locals())

    def conv(a, w, wm, tiles, VPB, prevK, prevV, env):
        (corr, fetch, mul4, mul44, run_groups, glu_groups, stt, cst, SD, RR, CG, V_L16, V_SGL) = [env[k] for k in
            ("corr", "fetch", "mul4", "mul44", "run_groups", "glu_groups", "stt", "cst", "SD", "RR", "CG", "V_L16", "V_SGL")]
        FT = 10
        RVB = [14, 74]
        a("v_mov_b32 v%d, v%d", T5, T3)
        RA = T5
        KP = CST + 0
        for i in range(6): a("v_mov_b32 v%d, v%d", CST + 4 * i, CSR + i)
        KPK = CSR
        RQ = CSR + 4
        groups = []
        for b in range(-1, 8):
            pre = ["ds_read_b128 v[%d:%d], v%d offset:%d" % (RVB[(b + 1) & 1], RVB[(b + 1) & 1] + 3, RA, (b + 1) * 64)]
            tl = {}
            for nf in range(6):
                if b < 0:
                    if nf >= 2: tl[nf] = (prevK + prevV)[nf - 2]
                else: tl[nf] = tiles[(nf, b)]
            cl = [corr(t, nf, b, nf) for nf, t in tl.items()]
            L = []
            r_ = RR + b + 1
            if b >= 0:
                L.append("v_mul_f32 v%d, %s, v%d" % (RQ, f32(LOG2E * 32 ** -0.5), r_))
            for base_nf, mreg in ((2, r_), (0, RQ)):
                if base_nf not in tl: continue
                dst = KPK if b < 0 else tl[base_nf].base
                for f in range(2):
                    s_ = fetch(tl[base_nf + f], FT, L)
                    mul4(L, s_, s_, mreg)
                    L.append("v_cvt_pk_bf16_f32 v%d, v%d, v%d" % (dst + 2 * f, s_, s_ + 1))
                    L.append("v_cvt_pk_bf16_f32 v%d, v%d, v%d" % (dst + 2 * f + 1, s_ + 2, s_ + 3))
            L.append("s_waitcnt lgkmcnt(%d)" % (1 if b < 7 else 0))
            for f in range(2):
                s_ = fetch(tl[4 + f], FT, L)
                mul44(L, s_, s_, RVB[(b + 1) & 1])
                dst = VPB[f] + 2 * (b + 1)
                L.append("v_cvt_pk_bf16_f32 v%d, v%d, v%d" % (dst, s_, s_ + 1))
                L.append("v_cvt_pk_bf16_f32 v%d, v%d, v%d" % (dst + 1, s_ + 2, s_ + 3))
            groups.append((pre, cl, L))
        for x_ in groups[0][0] + groups[0][1]: a(x_)
        for k, (pre, cl, vl) in enumerate(groups):
            if k + 1 < len(groups):
                for x_ in groups[k + 1][0]: a(x_)
                for x_ in spread(vl, groups[k + 1][1], 0.05, 0.6): a(x_)
            else:
                for x_ in vl: a(x_)
        nst("e2")
        K1 = [tiles[(3, mf)].base for mf in range(8)]
        BP, BC, BPF = K1[0], K1[1], K1[2]
        a("v_and_b32 v%d, 15, v0", T0)
        a("v_lshrrev_b32 v%d, 4, v0", T1)
        a("v_lshlrev_b32 v%d, 2, v%d", T1, T1)
        a("v_sub_u32 v%d, v%d, v%d", T0, T0, T1)
        a("v_mov_b32 v%d, %s", T3, f32(-1e30))
        a("s_mov_b32 s%d, 0x80000001", S_T3)
        a("s_brev_b32 s%d, 1", S_T2)
        for i in range(4):
            a("v_subrev_u32 v%d, %d, v%d", T1, i, T0)
            a("v_and_b32 v%d, s%d, v%d", T1, S_T3, T1)
            a("v_cmp_eq_u32 vcc, 0, v%d", T1)
            a("v_cndmask_b32 v%d, v%d, 0, vcc", BC + i, T3)
            a("v_cmp_eq_u32 vcc, s%d, v%d", S_T2, T1)
            a("v_cndmask_b32 v%d, v%d, 0, vcc", BP + i, T3)
        if wm == 0:
            a("s_cmp_eq_u32 s%d, 0", S_M0)
            a("s_cselect_b64 vcc, -1, 0")
            for i in range(4): a("v_cndmask_b32 v%d, v%d, v%d, vcc", BPF + i, BP + i, T3)
        else: BPF = BP
        sets = [(VPB[0] + 18, K1[3], K1[4]), (VPB[1] + 18, K1[5], K1[6])]
        def attn(b):
            base, P, M = sets[b & 1]
            SP, SC, O0, O1 = base, base + 4, base + 8, base + 12
            Tm = M + 1; Sm = M + 2; S2 = M + 3
            Qb = tiles[(0, b)].base; Kb = tiles[(2, b)].base; Kp = KPK if b == 0 else tiles[(2, b - 1)].base
            bp = BPF if b == 0 else BP
            L = []
            L.append("v_mfma_f32_16x16x32_bf16 v[%d:%d], v[%d:%d], v[%d:%d], v[%d:%d]" % (SP, SP + 3, Kp, Kp + 3, Qb, Qb + 3, bp, bp + 3))
            L.append("v_mfma_f32_16x16x32_bf16 v[%d:%d], v[%d:%d], v[%d:%d], v[%d:%d]" % (SC, SC + 3, Kb, Kb + 3, Qb, Qb + 3, BC, BC + 3))
            L += ["NOP"] * 4
            L.append("v_max3_f32 v%d, v%d, v%d, v%d" % (M, SP, SP + 1, SP + 2))
            L.append("v_max3_f32 v%d, v%d, v%d, v%d" % (Tm, SP + 3, SC, SC + 1))
            L.append("v_max3_f32 v%d, v%d, v%d, v%d" % (M, M, SC + 2, SC + 3))
            L.append("v_max_f32 v%d, v%d, v%d" % (M, M, Tm))
            for sw in ("16", "32"):
                L.append("v_mov_b32 v%d, v%d" % (Tm, M))
                L.append("v_permlane%s_swap_b32 v%d, v%d" % (sw, M, Tm))
                L.append("v_max_f32 v%d, v%d, v%d" % (M, M, Tm))
            for i in range(8): L.append("v_sub_f32 v%d, v%d, v%d" % (SP + i, SP + i, M))
            for i in range(8): L.append("v_exp_f32 v%d, v%d" % (SP + i, SP + i))
            for i in range(4): L.append("v_cvt_pk_bf16_f32 v%d, v%d, v%d" % (P + i, SP + 2 * i, SP + 2 * i + 1))
            L.append("v_add_f32 v%d, v%d, v%d" % (Sm, SP, SP + 1))
            L.append("v_add_f32 v%d, v%d, v%d" % (S2, SP + 2, SP + 3))
            for f, O in enumerate((O0, O1)):
                vb = VPB[f] + 2 * b
                L.append("v_mfma_f32_16x16x32_bf16 v[%d:%d], v[%d:%d], v[%d:%d], 0" % (O, O + 3, vb, vb + 3, P, P + 3))
            L.append("v_add_f32 v%d, v%d, v%d" % (Sm, Sm, SP + 4))
            L.append("v_add_f32 v%d, v%d, v%d" % (S2, S2, SP + 5))
            L.append("v_add_f32 v%d, v%d, v%d" % (Sm, Sm, SP + 6))
            L.append("v_add_f32 v%d, v%d, v%d" % (S2, S2, SP + 7))
            L.append("v_add_f32 v%d, v%d, v%d" % (Sm, Sm, S2))
            for sw in ("16", "32"):
                L.append("v_mov_b32 v%d, v%d" % (Tm, Sm))
                L.append("v_permlane%s_swap_b32 v%d, v%d" % (sw, Sm, Tm))
                L.append("v_add_f32 v%d, v%d, v%d" % (Sm, Sm, Tm))
            L.append("v_rcp_f32 v%d, v%d" % (Sm, Sm))
            mul4(L, O0, O0, Sm); mul4(L, O1, O1, Sm)
            st_ = S_T if b & 1 else S_T2
            L.append("s_add_u32 s%d, s%d, %d" % (st_, S_AB, b * 1024))
            L.append("v_cvt_pk_bf16_f32 v%d, v%d, v%d" % (SP, O0, O0 + 1))
            L.append("v_cvt_pk_bf16_f32 v%d, v%d, v%d" % (SP + 2, O1, O1 + 1))
            L.append("v_cvt_pk_bf16_f32 v%d, v%d, v%d" % (SP + 1, O0 + 2, O0 + 3))
            L.append("v_cvt_pk_bf16_f32 v%d, v%d, v%d" % (SP + 3, O1 + 2, O1 + 3))
            L.append("v_permlane32_swap_b32 v%d, v%d" % (SP, SP + 2))
            L.append("v_permlane32_swap_b32 v%d, v%d" % (SP + 1, SP + 3))
            L.append("buffer_store_dwordx4 v[%d:%d], v%d, s[%d:%d], s%d offen%s" % (SP, SP + 3, V_L16, S_ACT, S_ACT + 3, st_, STM))
            return L
        SAa = sum((attn(b) for b in range(0, 8, 2)), [])
        SBb = sum((attn(b) for b in range(1, 8, 2)), [])
        sh = len(attn(0)) // 2
        for x_ in zipl(SAa + ["NOP"] * sh, ["NOP"] * sh + SBb):
            if x_ != "NOP": a(x_)
        nst("e3")
        for mf in range(8): a("v_mul_f32 v%d, %s, v%d", CG + mf, f32(-LOG2E), RR + mf + 1)
        run_groups(glu_groups([(6, 8, S_K1, 0)], [TV, TV + 16]))
        a("s_branch %s", fin)

    for w in range(4):
        variant(w)
        a("s_nop 7"); a("s_nop 7")
    a.label(fin)
    nst("epi")
    if opt.get("prof"):
        a("s_waitcnt vmcnt(0)")
    stamp(a, opt, 4)
    stamp_store(a, opt, 5, P_WS, S_W, 1, 20)
    a.label(done)
    a("s_endpgm")
    lines, added = hazard.fix(a.l)
    a0.l += lines
    a0._lab = a._lab
    return kernel_desc(name, 512, 256, 100)
```

```python
from gen_common import *

G2_LDS = 131072
ASLOT = 16384
WB = 65536

def gen_g2(a, name="g2_kernel", opt=None):
    opt = opt or {}
    M = opt.get("g2_m", 16)
    K1 = (72 - M) // 2
    NS = K1 + M
    LA = opt.get("g2_la", 4)
    assert (K1 - 4) % 4 == 0 and (M - 8) % 4 == 0 and K1 >= 20
    S_A = 4; S_W = 8; S_X = 12; S_O = 16; S_P = 20; S_F = 24
    S_AROW = [28, 29, 30, 31]
    S_AK = 32; S_WK = 33; S_WV = 34; S_WM = 35; S_WN = 36; S_KS = 37; S_MT = 38; S_NT = 39
    S_T = 40; S_T2 = 41; S_LOOP = 42; S_W1024 = 43; S_D16 = 44; S_DJA = 45; S_DJW = 46
    S_PSEND = 47; S_PRECV = 48; S_FSEND = 49; S_FRECV = 50; S_OK = 51; S_XROW = 52
    P_X = 54; P_WO = 56; P_WD = 58; P_OUT = 60; P_WS = 62
    V_ADMA = 1; V_WDMA = 2; V_AR = [3, 4]; V_WR = [5, 6, 7, 8]; V_L16 = 9; V_XO = 10; V_FL = 11; V_ONE = 12; V_ZERO = 13
    T0, T1, T2, T3 = 14, 15, 16, 17
    XL = 20
    def keep(mf, nf): return R('v', 40 + (mf * 4 + nf) * 4, 4)
    def send(mf, nf): return R('v', 72 + (mf * 4 + nf) * 4, 4)
    def afrag(st, i): return R('v', 104 + st * 32 + i * 4, 4)
    def wfrag(st, nf): return R('v', 104 + st * 32 + 16 + nf * 4, 4)
    RECV = 168

    kernel_header(a, name)
    done = a.newlab("L_g2_done")
    a("s_cmp_ge_u32 s2, 256")
    a("s_cbranch_scc1 %s", done)
    stamp(a, opt, 0)
    a("s_load_dwordx2 s[%d:%d], s[0:1], 0", P_X, P_X + 1)
    a("s_load_dwordx2 s[%d:%d], s[0:1], 16", P_WO, P_WO + 1)
    a("s_load_dwordx2 s[%d:%d], s[0:1], 48", P_WD, P_WD + 1)
    a("s_load_dwordx2 s[%d:%d], s[0:1], 56", P_OUT, P_OUT + 1)
    a("s_load_dwordx2 s[%d:%d], s[0:1], 72", P_WS, P_WS + 1)
    a("v_lshrrev_b32 v%d, 6, v0", T0)
    a("v_and_b32 v0, 63, v0")
    a("s_nop 0")
    a("v_readfirstlane_b32 s%d, v%d", S_WV, T0)
    LD = opt.get("g2_ld", 0)
    S_ROLE = 53
    if LD:
        a("s_lshr_b32 s%d, s%d, 2", S_ROLE, S_WV)
        a("s_and_b32 s%d, s%d, 3", S_WV, S_WV)
    a("s_and_b32 s%d, s2, 1", S_KS)
    if opt.get("g2_map", "4x8") == "4x8":
        a("s_bfe_u32 s%d, s2, 0x20001", S_MT)
        a("s_lshl_b32 s%d, s%d, 2", S_MT, S_MT)
        a("s_lshr_b32 s%d, s2, 6", S_T)
        a("s_add_u32 s%d, s%d, s%d", S_MT, S_MT, S_T)
        a("s_bfe_u32 s%d, s2, 0x30003", S_NT)
    else:
        a("s_bfe_u32 s%d, s2, 0x10001", S_MT)
        a("s_lshl_b32 s%d, s%d, 3", S_MT, S_MT)
        a("s_lshr_b32 s%d, s2, 5", S_T)
        a("s_add_u32 s%d, s%d, s%d", S_MT, S_MT, S_T)
        a("s_bfe_u32 s%d, s2, 0x10002", S_NT)
        a("s_lshl_b32 s%d, s%d, 2", S_NT, S_NT)
        a("s_bfe_u32 s%d, s2, 0x20003", S_T)
        a("s_add_u32 s%d, s%d, s%d", S_NT, S_NT, S_T)
    a("s_and_b32 s%d, s%d, 1", S_WM, S_WV)
    a("s_lshr_b32 s%d, s%d, 1", S_WN, S_WV)
    a("s_lshl_b32 s%d, s%d, 10", S_W1024, S_WV)
    PKD = opt.get("g1b", 0)
    AKB = opt.get("akb", 131072)
    ASTEP = 2 * AKB if PKD else 128
    if PKD:
        a("v_lshlrev_b32 v%d, 4, v0", V_ADMA)
    else:
        a("v_lshrrev_b32 v%d, 4, v0", T0)
        a("s_lshl_b32 s%d, s%d, 2", S_T, S_WM)
        a("v_add_u32 v%d, s%d, v%d", T0, S_T, T0)
        a("v_and_b32 v%d, 7, v0", T1)
        a("v_xor_b32 v%d, v%d, v%d", T0, T0, T1)
        a("v_lshlrev_b32 v%d, 4, v%d", T0, T0)
        a("v_lshrrev_b32 v%d, 3, v0", T1)
        a("v_mul_u32_u24 v%d, %d, v%d", T1, ACT2_STRIDE, T1)
        a("v_add_u32 v%d, v%d, v%d", V_ADMA, T1, T0)
    a("v_lshrrev_b32 v%d, 4, v0", T0)
    a("s_lshl_b32 s%d, s%d, 2", S_T, S_WM if PKD else S_WN)
    a("v_or_b32 v%d, s%d, v%d", T1, S_T, T0)
    a("v_lshlrev_b32 v%d, 1, v%d", T1, T1)
    a("v_and_b32 v%d, 15, v0", T2)
    a("v_xor_b32 v%d, v%d, v%d", T1, T1, T2)
    a("v_lshlrev_b32 v%d, 4, v%d", T1, T1)
    a("v_lshl_add_u32 v%d, v%d, 11, v%d", V_WDMA, T0, T1)
    a("s_lshl_b32 s%d, s%d, 7", S_T, S_MT)
    a("s_lshl_b32 s%d, s%d, 6", S_T2, S_KS)
    a("s_add_u32 s%d, s%d, s%d", S_XROW, S_T, S_T2)
    a("s_xor_b32 s%d, s%d, 64", S_T2, S_XROW)
    if PKD:
        a("s_lshl_b32 s%d, s%d, 6", S_AROW[0], S_XROW)
        a("s_add_u32 s%d, s%d, s%d", S_AROW[0], S_AROW[0], S_W1024)
        a("s_add_u32 s%d, s%d, %d", S_AROW[1], S_AROW[0], AKB)
        a("s_lshl_b32 s%d, s%d, 6", S_AROW[2], S_T2)
        a("s_add_u32 s%d, s%d, s%d", S_AROW[2], S_AROW[2], S_W1024)
        a("s_add_u32 s%d, s%d, %d", S_AROW[3], S_AROW[2], AKB)
    else:
        a("s_lshl_b32 s%d, s%d, 3", S_T, S_WV)
        a("s_add_u32 s%d, s%d, s%d", S_AROW[0], S_XROW, S_T)
        a("s_mul_i32 s%d, s%d, %d", S_AROW[0], S_AROW[0], ACT2_STRIDE)
        a("s_add_u32 s%d, s%d, %d", S_AROW[1], S_AROW[0], 32 * ACT2_STRIDE)
        a("s_add_u32 s%d, s%d, s%d", S_AROW[2], S_T2, S_T)
        a("s_mul_i32 s%d, s%d, %d", S_AROW[2], S_AROW[2], ACT2_STRIDE)
        a("s_add_u32 s%d, s%d, %d", S_AROW[3], S_AROW[2], 32 * ACT2_STRIDE)
    a("s_mul_i32 s%d, s%d, %d", S_AK, S_KS, (K1 + M) * ASTEP)
    a("s_mul_i32 s%d, s%d, %d", S_WK, S_KS, ((K1 + M) * 64 - 1024) * 2048)
    a("s_lshl_b32 s%d, s%d, 13", S_T, S_WV)
    a("s_add_u32 s%d, s%d, s%d", S_WK, S_WK, S_T)
    a("s_lshl_b32 s%d, s%d, 8", S_T, S_NT)
    a("s_add_u32 s%d, s%d, s%d", S_WK, S_WK, S_T)
    a("s_cmp_eq_u32 s%d, 0", S_KS)
    a("s_cselect_b32 s%d, 0x%x, 0", S_D16, (-1024 * 2048) & 0xffffffff)
    a("s_cselect_b32 s%d, 0, 0x%x", S_DJA, ((K1 - 72) * ASTEP) & 0xffffffff)
    a("s_cselect_b32 s%d, 0, 0x%x", S_DJW, ((K1 - 72) * 64 * 2048) & 0xffffffff)
    a("s_waitcnt lgkmcnt(0)")
    make_srd(a, S_A, P_WS, 144 * AKB if PKD else 2048 * ACT2_STRIDE, WS_ACT2)
    a("s_cmp_eq_u32 s%d, 0", S_KS)
    a("s_cselect_b32 s%d, s%d, s%d", S_W, P_WO, P_WD)
    a("s_cselect_b32 s%d, s%d, s%d", S_W + 1, P_WO + 1, P_WD + 1)
    a("s_mov_b32 s%d, 0x%x", S_W + 2, 3584 * 2048)
    a("s_cselect_b32 s%d, 0x%x, s%d", S_W + 2, 1024 * 2048, S_W + 2)
    a("s_mov_b32 s%d, 0x00020000", S_W + 3)
    make_srd(a, S_X, P_X, 2048 * 2048)

    q = []
    def a_jobs(slot, full):
        jobs = []
        for i in range(4 if full else 2):
            jobs.append(["s_add_u32 m0, s%d, %d" % (S_W1024, slot * ASLOT + i * 4096),
                         "s_add_u32 s%d, s%d, s%d" % (S_T, S_AK, S_AROW[i]),
                         "buffer_load_dwordx4 v%d, s[%d:%d], s%d offen lds" % (V_ADMA, S_A, S_A + 3, S_T)])
        if not opt.get("g2_samea"): jobs[-1].append("s_add_u32 s%d, s%d, %d" % (S_AK, S_AK, ASTEP))
        return jobs
    def w_jobs(slot):
        jobs = []
        for i in range(4):
            jobs.append(["s_add_u32 m0, s%d, %d" % (S_W1024, WB + slot * ASLOT + i * 4096),
                         "s_add_u32 s%d, s%d, %d" % (S_T, S_WK, i * 32768),
                         "buffer_load_dwordx4 v%d, s[%d:%d], s%d offen%s lds" % (V_WDMA, S_W, S_W + 3, S_T, opt.get("g2_wmod", ""))])
        if not opt.get("g2_samew"): jobs[-1].append("s_add_u32 s%d, s%d, %d" % (S_WK, S_WK, 64 * 2048))
        return jobs
    def block_jobs(b):
        aj = a_jobs(b & 3, b < K1); wj = w_jobs(b & 3)
        out = []
        for i in range(4):
            out.append(wj[i])
            if i < len(aj): out.append(aj[i])
        return [(j, ('B', b)) for j in out]
    def emit_now(jobs):
        for jb, tag in jobs:
            for s in jb: a(s)
            q.append(tag)
    def need_count(tags):
        last = max(i for i, t in enumerate(q) if t in tags)
        return len(q) - 1 - last
    if LD:
        lcons = a.newlab("L_g2_cons")
        a("s_cmp_eq_u32 s%d, 0", S_ROLE)
        a("s_cbranch_scc1 %s", lcons)
        for b in range(0, LA): emit_now(block_jobs(b))
        a("s_waitcnt vmcnt(%d)", need_count([('B', 0)]))
        a("s_barrier")
        def ld_step(c, ev16=False, wait=None):
            a("s_waitcnt vmcnt(%d)", need_count([('B', c + 1)]) if wait is None else wait)
            a("s_barrier")
            if c + LA == K1:
                a("s_add_u32 s%d, s%d, s%d" % (S_AK, S_AK, S_DJA)); a("s_add_u32 s%d, s%d, s%d" % (S_WK, S_WK, S_DJW))
            if ev16:
                for t_ in ["s_cmp_eq_u32 s%d, %d" % (S_LOOP, (K1 - 4) // 4 - (16 - LA) // 4),
                   "s_cselect_b32 s%d, s%d, s%d" % (S_W, P_WD, S_W),
                   "s_cselect_b32 s%d, s%d, s%d" % (S_W + 1, P_WD + 1, S_W + 1),
                   "s_cselect_b32 s%d, 0x%x, s%d" % (S_W + 2, 3584 * 2048, S_W + 2),
                   "s_cselect_b32 s%d, s%d, 0" % (S_T2, S_D16),
                   "s_add_u32 s%d, s%d, s%d" % (S_WK, S_WK, S_T2)]: a(t_)
            if c + LA < NS: emit_now(block_jobs(c + LA))
        def ld_loop(c0, c1, ev16):
            nonlocal q
            nit = (c1 - c0) // 4
            if nit == 0: return
            lab = a.newlab("L_g2_ldloop")
            a("s_mov_b32 s%d, %d", S_LOOP, nit)
            a.label(lab)
            for ds in range(4): ld_step(c0 + ds, ev16 and ds == (16 - LA) % 4)
            a("s_sub_u32 s%d, s%d, 1", S_LOOP, S_LOOP)
            a("s_cmp_lg_u32 s%d, 0", S_LOOP)
            a("s_cbranch_scc1 %s", lab)
            saved = a.l; a.l = []
            for c in range(c0 + 4, c1): ld_step(c)
            a.l = saved
        ld_loop(0, K1 - 4, True)
        for c in range(K1 - 4, K1 + 4): ld_step(c)
        ld_loop(K1 + 4, NS - 4, False)
        for c in range(NS - 4, NS - 1): ld_step(c)
        a("s_endpgm")
        a.label(lcons)
        q = []
        if opt.get("g2_prio"): a("s_setprio %d", opt["g2_prio"])
        def block_jobs(b): return []
    emit_now(block_jobs(0))
    a("v_and_b32 v%d, 15, v0", T0)
    a("v_lshrrev_b32 v%d, 4, v0", T1)
    a("v_lshlrev_b32 v%d, 11, v%d", T0, T0)
    a("v_lshl_add_u32 v%d, v%d, 3, v%d", T2, T1, T0)
    a("s_lshl_b32 s%d, s%d, 5", S_T, S_WM)
    a("s_add_u32 s%d, s%d, s%d", S_XROW, S_XROW, S_T)
    a("s_lshl_b32 s%d, s%d, 11", S_XROW, S_XROW)
    a("s_lshl_b32 s%d, s%d, 8", S_T, S_NT)
    a("s_add_u32 s%d, s%d, s%d", S_XROW, S_XROW, S_T)
    a("s_lshl_b32 s%d, s%d, 7", S_T, S_WN)
    a("s_add_u32 s%d, s%d, s%d", S_XROW, S_XROW, S_T)
    a("s_add_u32 s%d, s%d, %d", S_T2, S_XROW, 16 * 2048)
    for mf in range(2):
        for nf in range(4):
            d = XL + (mf * 4 + nf) * 2
            a("buffer_load_dwordx2 v[%d:%d], v%d, s[%d:%d], s%d offen offset:%d", d, d + 1, T2, S_X, S_X + 3, S_XROW if mf == 0 else S_T2, nf * 32)
            q.append(('X', 0))
    for b in range(1, LA): emit_now(block_jobs(b))
    a("v_and_b32 v%d, 1, v%d", T2, T1)
    a("v_lshl_add_u32 v%d, v%d, 5, v%d", T2, T2, T0)
    a("v_lshrrev_b32 v%d, 1, v%d", T3, T1)
    a("v_lshl_add_u32 v%d, v%d, 4, v%d", V_XO, T3, T2)
    make_srd(a, S_O, P_OUT, 2048 * 2048)
    make_srd(a, S_P, P_WS, 256 * 32768, WS_PART)
    make_srd(a, S_F, P_WS, 4096, WS_FLAGS)
    a("s_lshl_b32 s%d, s%d, 3", S_T, S_MT)
    a("s_add_u32 s%d, s%d, s%d", S_T, S_T, S_NT)
    a("s_lshl_b32 s%d, s%d, 1", S_T, S_T)
    a("s_add_u32 s%d, s%d, s%d", S_T, S_T, S_KS)
    a("s_lshl_b32 s%d, s%d, 2", S_T, S_T)
    a("s_add_u32 s%d, s%d, s%d", S_T, S_T, S_WV)
    a("s_xor_b32 s%d, s%d, 4", S_T2, S_T)
    a("s_lshl_b32 s%d, s%d, 13", S_PRECV, S_T)
    a("s_lshl_b32 s%d, s%d, 13", S_PSEND, S_T2)
    a("s_lshl_b32 s%d, s%d, 2", S_FRECV, S_T)
    a("s_lshl_b32 s%d, s%d, 2", S_FSEND, S_T2)
    a("v_lshlrev_b32 v%d, 4, v0", V_L16)
    a("v_mov_b32 v%d, 1", V_ONE)
    a("v_mov_b32 v%d, 0", V_ZERO)
    a("v_and_b32 v%d, 15, v0", T0)
    a("v_lshrrev_b32 v%d, 1, v%d", T2, T0)
    a("s_lshl_b32 s%d, s%d, 5", S_T, S_WM)
    a("v_add_u32 v%d, s%d, v%d", T0, S_T, T0)
    a("v_lshlrev_b32 v%d, 7, v%d", T0, T0)
    a("v_xor_b32 v%d, v%d, v%d", T2, T2, T1)
    a("v_lshl_add_u32 v%d, v%d, 4, v%d", V_AR[0], T2, T0)
    a("v_xor_b32 v%d, 64, v%d", V_AR[1], V_AR[0])
    if PKD:
        a("s_lshl_b32 s%d, s%d, 11", S_T, S_WM)
        a("v_add_u32 v%d, s%d, v%d", V_AR[0], S_T, V_L16)
        a("v_add_u32 v%d, 4096, v%d", V_AR[1], V_AR[0])
    a("v_bfe_u32 v%d, v0, 2, 2", T0)
    a("v_lshl_add_u32 v%d, v%d, 3, v%d", T2, T1, T0)
    if PKD:
        a("v_and_b32 v%d, 1, v%d", T3, T1)
        a("v_lshlrev_b32 v%d, 2, v%d", T3, T3)
        a("v_sub_u32 v%d, v%d, v%d", T2, T2, T3)
    a("v_lshlrev_b32 v%d, 8, v%d", T2, T2)
    a("v_and_b32 v%d, 3, v0", T3)
    a("v_lshl_add_u32 v%d, v%d, 3, v%d", T2, T3, T2)
    a("v_add_u32 v%d, %d, v%d", T2, WB, T2)
    a("v_and_b32 v%d, 1, v%d", T3, T1)
    a("v_lshl_or_b32 v%d, v%d, 2, v%d", T0, T3, T0)
    a("s_lshl_b32 s%d, s%d, 2", S_T, S_WN)
    a("v_xor_b32 v%d, s%d, v%d", T0, S_T, T0)
    for nf in range(4):
        a("v_xor_b32 v%d, %d, v%d", T3, nf, T0)
        a("v_lshl_add_u32 v%d, v%d, 5, v%d", V_WR[nf], T3, T2)
    for mf in range(2):
        for nf in range(4):
            for i in range(4): a("v_mov_b32 %s, 0", send(mf, nf).sub(i))

    a("s_waitcnt vmcnt(%d)", need_count([('X', 0)]))
    a("s_mov_b32 s%d, 0xffff0000", S_T)
    for mf in range(2):
        for nf in range(4):
            d = XL + (mf * 4 + nf) * 2; t = keep(mf, nf)
            a("v_lshlrev_b32 %s, 16, v%d", t.sub(0), d)
            a("v_and_b32 %s, s%d, v%d", t.sub(1), S_T, d)
            a("v_lshlrev_b32 %s, 16, v%d", t.sub(2), d + 1)
            a("v_and_b32 %s, s%d, v%d", t.sub(3), S_T, d + 1)

    def reads_for(c, kk, st):
        slot = c & 3; full = c < K1
        wr = []
        for nf in range(4):
            for r in range(2):
                wr.append("ds_read_b64_tr_b16 %s, v%d offset:%d" % (wfrag(st, nf).sub(2 * r, 2), V_WR[nf], slot * ASLOT + kk * 8192 + r * (2048 if PKD else 1024)))
        ar_ = ["ds_read_b128 %s, v%d offset:%d" % (afrag(st, i), V_AR[kk], slot * ASLOT + (i >> 1) * 8192 + (i & 1) * (1024 if PKD else 2048)) for i in range(4 if full else 2)]
        return [wr[0], wr[1]] + ar_ + wr[2:]
    def mfmas(c, st):
        na = 4 if c < K1 else 2
        out = []
        for nf in range(4):
            idx = list(range(na))
            if nf & 1: idx = idx[::-1]
            for i in idx:
                t = keep(i, nf) if i < 2 else send(i - 2, nf)
                out.append("s_nop 0" if opt.get("g2_nomfma") else "v_mfma_f32_16x16x32_bf16 %s, %s, %s, %s" % (t, wfrag(st, nf), afrag(st, i), t))
        return out

    def substep(c, kk, pending, waitN=None, last=False, extra=None, post_barrier=None):
        ms = mfmas(c, kk)
        n = len(ms)
        fill = [[] for _ in range(n)]
        nxt = (c, 1) if kk == 0 else (None if last else (c + 1, 0))
        rd = reads_for(nxt[0], nxt[1], 1 - kk) if nxt else []
        a("s_waitcnt lgkmcnt(0)")
        gi = 0
        if kk == 1 and not last:
            fill[0] += ["WAITVM", "s_barrier"] + (post_barrier or [])
        rpg = opt.get("g2_rpg", 2) if n == 16 else 2
        i = 0
        while i < len(rd):
            fill[gi] += rd[i:i + rpg]; i += rpg; gi += 1
        if extra:
            for g_, ins in extra: fill[g_] += ins
        npend = len(pending) if kk == 0 else (len(pending) + 1) // 2
        slots = [min(n - 1, 1 + (j * n) // max(npend, 1)) for j in range(npend)]
        for k_, m in enumerate(ms):
            a(m)
            for f in fill[k_]:
                if f == "WAITVM":
                    wn_ = waitN()
                    if wn_ is not None: a("s_waitcnt vmcnt(%d)" % wn_)
                elif isinstance(f, tuple):
                    a(f[0]); q.append(f[1])
                else: a(f)
            while slots and slots[0] == k_:
                slots.pop(0)
                jb, tag = pending.pop(0)
                for x in jb: a(x)
                q.append(tag)

    FLAG_AT = K1 + opt.get("g2_flag_at", 1)
    def run_step(c, waits=None, key=None, emit=True, ev16=False):
        pend = block_jobs(c + LA) if c + LA < NS else []
        pb = []
        if c + LA == K1 and not opt.get("g2_samea") and not LD:
            pb += ["s_add_u32 s%d, s%d, s%d" % (S_AK, S_AK, S_DJA), "s_add_u32 s%d, s%d, s%d" % (S_WK, S_WK, S_DJW)]
        if ev16 and not opt.get("g2_samew") and not LD:
            pb += ["s_cmp_eq_u32 s%d, %d" % (S_LOOP, (K1 - 4) // 4 - (16 - LA) // 4),
                   "s_cselect_b32 s%d, s%d, s%d" % (S_W, P_WD, S_W),
                   "s_cselect_b32 s%d, s%d, s%d" % (S_W + 1, P_WD + 1, S_W + 1),
                   "s_cselect_b32 s%d, 0x%x, s%d" % (S_W + 2, 3584 * 2048, S_W + 2),
                   "s_cselect_b32 s%d, s%d, 0" % (S_T2, S_D16),
                   "s_add_u32 s%d, s%d, s%d" % (S_WK, S_WK, S_T2)]
        last = (c == NS - 1)
        def wN():
            if LD: return need_count([('S', 0)]) if c == FLAG_AT else None
            if waits is not None and emit: return waits[key]
            tags = [('B', c + 1)]
            if c == FLAG_AT: tags.append(('S', 0))
            n = min(63, need_count(tags))
            if waits is not None: waits[key] = min(waits.get(key, 63), n)
            return n
        if c == FLAG_AT:
            pb += [("buffer_store_dword v%d, v%d, s[%d:%d], s%d offen sc1" % (V_ONE, V_ZERO, S_F, S_F + 3, S_FSEND), ('F', 0))]
        ex1 = None
        if c == NS - 4:
            ex1 = [(2, [("buffer_load_dword v%d, v%d, s[%d:%d], s%d offen sc1" % (V_FL, V_ZERO, S_F, S_F + 3, S_FRECV), ('FL', 0))])]
        substep(c, 1, pend, waitN=wN, last=last, post_barrier=pb, extra=ex1)
        if last: return
        ex0 = None
        if c + 1 == K1:
            ex0 = []
            for t in range(8):
                s_ = send(t >> 2, t & 3)
                ex0.append((min(7, 2 + t), [("buffer_store_dwordx4 %s, v%d, s[%d:%d], s%d offen offset:%d sc1" % (s_, V_L16, S_P, S_P + 3, S_PSEND, (t & 3) * 1024), ('S', 0))]
                            + (["s_add_u32 s%d, s%d, 4096" % (S_PSEND, S_PSEND)] if t == 3 else [])))
        if c + 1 == NS - 2:
            ex0 = [(1, ["s_waitcnt vmcnt(%d)" % need_count([('FL', 0)]), "v_readfirstlane_b32 s%d, v%d" % (S_OK, V_FL)])]
            ex0.append((2, ["s_add_u32 s%d, s%d, 4096" % (S_T2, S_PRECV)]))
            for t in range(8):
                ex0.append((min(7, 2 + t), [("buffer_load_dwordx4 v[%d:%d], v%d, s[%d:%d], s%d offen offset:%d sc1" % (RECV + 4 * t, RECV + 4 * t + 3, V_L16, S_P, S_P + 3, S_PRECV if t < 4 else S_T2, (t & 3) * 1024), ('R', 0))]))
        substep(c + 1, 0, pend, extra=ex0)
        assert not pend

    if not LD: a("s_waitcnt vmcnt(%d)", need_count([('B', 0)]))
    a("s_barrier")
    stamp(a, opt, 1)
    for r_ in reads_for(0, 0, 0): a(r_)
    substep(0, 0, [])
    def loop_section(c0, c1, ev16):
        nonlocal q
        nit = (c1 - c0) // 4
        if nit == 0: return
        waits = {}
        saved = a.l; q0 = list(q); a.l = []
        for c in range(c0, c1): run_step(c, waits, (c - c0) & 3, emit=False)
        q_after = list(q); a.l = saved; q = q0
        lab = a.newlab("L_g2_loop")
        a("s_mov_b32 s%d, %d", S_LOOP, nit)
        a.label(lab)
        for ds in range(4): run_step(c0 + ds, waits, ds, emit=True, ev16=(ev16 and ds == (16 - LA) % 4))
        a("s_sub_u32 s%d, s%d, 1", S_LOOP, S_LOOP)
        a("s_cmp_lg_u32 s%d, 0", S_LOOP)
        a("s_cbranch_scc1 %s", lab)
        a.c("waits %s" % waits)
        q = q_after
    loop_section(0, K1 - 4, True)
    for c in range(K1 - 4, K1 + 4): run_step(c)
    stamp(a, opt, 2)
    loop_section(K1 + 4, NS - 4, False)
    for c in range(NS - 4, NS): run_step(c)
    stamp(a, opt, 3)
    lok = a.newlab("L_g2_ok"); lsp = a.newlab("L_g2_spin")
    a("s_cmp_lg_u32 s%d, 0", S_OK)
    a("s_cbranch_scc1 %s", lok)
    a.label(lsp)
    a("s_sleep 2")
    a("buffer_load_dword v%d, v%d, s[%d:%d], s%d offen sc1", V_FL, V_ZERO, S_F, S_F + 3, S_FRECV)
    a("s_waitcnt vmcnt(0)")
    a("v_readfirstlane_b32 s%d, v%d", S_OK, V_FL)
    a("s_cmp_eq_u32 s%d, 0", S_OK)
    a("s_cbranch_scc1 %s", lsp)
    for t in range(8):
        a("buffer_load_dwordx4 v[%d:%d], v%d, s[%d:%d], s%d offen offset:%d sc1", RECV + 4 * t, RECV + 4 * t + 3, V_L16, S_P, S_P + 3, S_PRECV if t < 4 else S_T2, (t & 3) * 1024)
    a.label(lok)
    a("s_add_u32 s%d, s%d, %d", S_T2, S_XROW, 16 * 2048)
    a("s_waitcnt vmcnt(0)")
    a("s_nop 4")
    for mf in range(2):
        for p in range(2):
            pk = XL + (mf * 2 + p) * 4
            for z in range(2):
                nf = 2 * p + z; t = keep(mf, nf); rb = RECV + (mf * 4 + nf) * 4
                a("v_pk_add_f32 v[%d:%d], v[%d:%d], v[%d:%d]", t.base, t.base + 1, t.base, t.base + 1, rb, rb + 1)
                a("v_pk_add_f32 v[%d:%d], v[%d:%d], v[%d:%d]", t.base + 2, t.base + 3, t.base + 2, t.base + 3, rb + 2, rb + 3)
                a("v_cvt_pk_bf16_f32 v%d, v%d, v%d", pk + 2 * z, t.base, t.base + 1)
                a("v_cvt_pk_bf16_f32 v%d, v%d, v%d", pk + 2 * z + 1, t.base + 2, t.base + 3)
            a("s_nop 1")
            a("v_permlane16_swap_b32 v%d, v%d", pk, pk + 2)
            a("v_permlane16_swap_b32 v%d, v%d", pk + 1, pk + 3)
            a("buffer_store_dwordx4 v[%d:%d], v%d, s[%d:%d], s%d offen offset:%d", pk, pk + 3, V_XO, S_O, S_O + 3, S_XROW if mf == 0 else S_T2, p * 64)
    if opt.get("prof"):
        a("s_waitcnt vmcnt(0)")
    stamp(a, opt, 4)
    stamp_store(a, opt, 5, P_WS, S_WV, 2, 20)
    a.label(done)
    a("s_endpgm")
    return kernel_desc(name, 256, 256, 100)
```

```python
from gen_common import *

def gen_ln(a, name="ln_kernel", opt=None):
    opt = opt or {}
    kernel_header(a, name)
    done = a.newlab("L_ln_done")
    a("s_cmp_ge_u32 s2, 256")
    a("s_cbranch_scc1 %s", done)
    stamp(a, opt, 0)
    a("s_load_dwordx2 s[4:5], s[0:1], 0")
    a("s_load_dwordx2 s[6:7], s[0:1], 72")
    a("v_lshrrev_b32 v1, 6, v0")
    a("v_and_b32 v2, 63, v0")
    a("s_lshl_b32 s3, s2, 3")
    a("v_add_u32 v1, s3, v1")
    a("v_lshlrev_b32 v1, 11, v1")
    a("v_lshl_add_u32 v1, v2, 4, v1")
    a("s_waitcnt lgkmcnt(0)")
    make_srd(a, 8, 4, 2048 * 2048)
    make_srd(a, 12, 6, 2048 * 2048, WS_XN)
    make_srd(a, 16, 6, 4096, WS_FLAGS)
    a("s_lshl_b32 s3, s2, 4")
    a("v_lshlrev_b32 v3, 2, v0")
    a("v_mov_b32 v12, 0")
    a("v_cmp_gt_u32 vcc, 4, v0")
    a("s_and_saveexec_b64 s[20:21], vcc")
    a("buffer_store_dword v12, v3, s[16:19], s3 offen")
    a("s_mov_b64 exec, s[20:21]")
    a("buffer_load_dwordx4 v[4:7], v1, s[8:11], 0 offen")
    a("buffer_load_dwordx4 v[8:11], v1, s[8:11], 0 offen offset:1024")
    a("s_mov_b32 s16, 0xffff0000")
    a("s_waitcnt vmcnt(0)")
    for i in range(8):
        a("v_lshlrev_b32 v%d, 16, v%d", 16 + 2 * i, 4 + i)
        a("v_and_b32 v%d, s16, v%d", 17 + 2 * i, 4 + i)
    def reduce16(dst, src0):
        for i in range(8):
            a("v_add_f32 v%d, v%d, v%d", 32 + i, src0 + 2 * i, src0 + 2 * i + 1)
        for i in range(4):
            a("v_add_f32 v%d, v%d, v%d", 32 + i, 32 + 2 * i, 33 + 2 * i)
        a("v_add_f32 v32, v32, v33")
        a("v_add_f32 v34, v34, v35")
        a("v_add_f32 v%d, v32, v34", dst)
    def wave_allreduce(v, t):
        a("s_nop 1")
        a("v_add_f32_dpp v%d, v%d, v%d quad_perm:[1,0,3,2] row_mask:0xf bank_mask:0xf", v, v, v)
        a("s_nop 1")
        a("v_add_f32_dpp v%d, v%d, v%d quad_perm:[2,3,0,1] row_mask:0xf bank_mask:0xf", v, v, v)
        a("s_nop 1")
        a("v_add_f32_dpp v%d, v%d, v%d row_half_mirror row_mask:0xf bank_mask:0xf", v, v, v)
        a("s_nop 1")
        a("v_add_f32_dpp v%d, v%d, v%d row_mirror row_mask:0xf bank_mask:0xf", v, v, v)
        a("v_mov_b32 v%d, v%d", t, v)
        a("s_nop 1")
        a("v_permlane16_swap_b32 v%d, v%d", v, t)
        a("v_add_f32 v%d, v%d, v%d", v, v, t)
        a("v_mov_b32 v%d, v%d", t, v)
        a("s_nop 1")
        a("v_permlane32_swap_b32 v%d, v%d", v, t)
        a("v_add_f32 v%d, v%d, v%d", v, v, t)
    reduce16(40, 16)
    wave_allreduce(40, 41)
    a("v_mul_f32 v40, 0x3a800000, v40")
    for i in range(16):
        a("v_sub_f32 v%d, v%d, v40", 48 + i, 16 + i)
    for i in range(16):
        a("v_mul_f32 v%d, v%d, v%d", 48 + i, 48 + i, 48 + i)
    reduce16(42, 48)
    wave_allreduce(42, 41)
    a("v_mul_f32 v42, 0x3a800000, v42")
    a("v_cvt_pk_bf16_f32 v43, v40, v42")
    a("v_lshlrev_b32 v40, 16, v43")
    a("v_and_b32 v42, s16, v43")
    a("v_add_f32 v42, 0x3727c5ac, v42")
    a("v_cvt_pk_bf16_f32 v42, v42, v42")
    a("v_and_b32 v42, s16, v42")
    a("v_sqrt_f32 v42, v42")
    a("s_nop 0")
    a("v_cvt_pk_bf16_f32 v42, v42, v42")
    a("v_and_b32 v42, s16, v42")
    a("v_rcp_f32 v44, v42")
    for i in range(16):
        a("v_sub_f32 v%d, v%d, v40", 16 + i, 16 + i)
    for i in range(8):
        a("v_cvt_pk_bf16_f32 v%d, v%d, v%d", 4 + i, 16 + 2 * i, 17 + 2 * i)
    for i in range(8):
        a("v_lshlrev_b32 v%d, 16, v%d", 16 + 2 * i, 4 + i)
        a("v_and_b32 v%d, s16, v%d", 17 + 2 * i, 4 + i)
    for i in range(16):
        a("v_mul_f32 v%d, v%d, v44", 48 + i, 16 + i)
    for i in range(16):
        a("v_fma_f32 v%d, -v%d, v42, v%d", 16 + i, 48 + i, 16 + i)
    for i in range(16):
        a("v_fma_f32 v%d, v%d, v44, v%d", 48 + i, 16 + i, 48 + i)
    for i in range(8):
        a("v_cvt_pk_bf16_f32 v%d, v%d, v%d", 4 + i, 48 + 2 * i, 49 + 2 * i)
    a("buffer_store_dwordx4 v[4:7], v1, s[12:15], 0 offen")
    a("buffer_store_dwordx4 v[8:11], v1, s[12:15], 0 offen offset:1024")
    stamp(a, opt, 1)
    if opt.get("prof"):
        a("s_waitcnt vmcnt(0)")
        a("v_lshrrev_b32 v20, 6, v0")
        a("s_nop 1")
        a("v_readfirstlane_b32 s30, v20")
    stamp(a, opt, 2)
    stamp_store(a, opt, 3, 6, 30, 0, 20)
    a.label(done)
    a("s_endpgm")
    return kernel_desc(name, 64, 64, 100 if opt.get("prof") else 24)
```

```python
import re

_REG = re.compile(r'\b([vas])(?:(\d+)|\[(\d+):(\d+)\])')
TRANS = ("v_exp_f32", "v_log_f32", "v_rcp_f32", "v_rsq_f32", "v_sqrt_f32", "v_sin_f32", "v_cos_f32")

def regs_of(tok):
    out = set()
    tok = tok.strip()
    if tok.lstrip('-|').startswith("vcc"):
        return {('s', 106), ('s', 107)}
    if tok == "exec":
        return {('s', 126), ('s', 127)}
    if tok == "m0":
        return {('s', 124)}
    for m in _REG.finditer(tok):
        k = m.group(1)
        if m.group(2) is not None:
            out.add((k, int(m.group(2))))
        else:
            for i in range(int(m.group(3)), int(m.group(4)) + 1):
                out.add((k, i))
    return out

class I:
    pass

def parse(line):
    s = line.strip()
    if not s or s.startswith(";") or s.startswith(".") or s.endswith(":"):
        return None
    s = s.split(";")[0].strip()
    parts = s.split(None, 1)
    op = parts[0]
    rest = parts[1] if len(parts) > 1 else ""
    rest_ = re.sub(r'\b(op_sel|op_sel_hi|neg_lo|neg_hi|quad_perm):\[[^\]]*\]', '', rest)
    ops = [o.strip() for o in rest_.split(",")]
    ops = [o.split()[0] if o else o for o in ops]
    i = I(); i.op = op; i.w = set(); i.r = set(); i.text = s
    i.kind = "other"; i.ws = 1; i.srcc = set(); i.ab = set(); i.dpp = ("_dpp" in op) or ("row_" in rest) or ("quad_perm" in rest)
    i.wide = False; i.lds_dma = False
    if op == "s_nop":
        i.kind = "salu"; i.ws = int(ops[0]) + 1
    elif op.startswith("s_"):
        i.kind = "salu"
        if op.startswith(("s_cmp", "s_cbranch", "s_branch", "s_waitcnt", "s_barrier", "s_endpgm", "s_sleep", "s_setprio")):
            for o in ops: i.r |= regs_of(o)
        else:
            i.w = regs_of(ops[0])
            for o in ops[1:]: i.r |= regs_of(o)
    elif op.startswith("v_mfma"):
        i.kind = "mfma"; i.w = regs_of(ops[0]); i.ab = regs_of(ops[1]) | regs_of(ops[2]); i.srcc = regs_of(ops[3]); i.r = i.ab | i.srcc
        i.passes = 8 if "32x32" in op else 4
    elif op.startswith("v_permlane") and "swap" in op:
        i.kind = "valu"; i.perm = True
        i.w = regs_of(ops[0]) | regs_of(ops[1]); i.r = set(i.w)
    elif op.startswith("v_swap"):
        i.kind = "valu"; i.w = regs_of(ops[0]) | regs_of(ops[1]); i.r = set(i.w)
    elif op.startswith("v_"):
        i.kind = "valu"
        i.w = regs_of(ops[0])
        for o in ops[1:]: i.r |= regs_of(o)
        if op.startswith(("v_fmac", "v_dot2c", "v_mac")): i.r |= i.w
        if op.startswith("v_cndmask") and len(ops) == 3: i.r |= regs_of("vcc")
    elif op.startswith(("buffer_store", "global_store", "ds_write", "buffer_atomic", "global_atomic")):
        i.kind = "mem"
        for o in ops: i.r |= regs_of(o)
        if op.startswith(("buffer_store", "global_store")) and ("x4" in op or "x3" in op):
            i.wide = True; i.data = regs_of(ops[0] if op.startswith("buffer") else ops[1])
    elif op.startswith(("buffer_load", "global_load", "ds_read")):
        i.kind = "mem"
        if re.search(r'\blds\b', rest):
            i.lds_dma = True
            for o in ops: i.r |= regs_of(o)
            i.r |= regs_of("m0")
        else:
            i.w = regs_of(ops[0])
            for o in ops[1:]: i.r |= regs_of(o)
    else:
        raise ValueError("hazard: unknown instruction " + s)
    i.trans = op in TRANS or op.replace("_e32", "").replace("_e64", "") in TRANS
    i.perm = op.startswith("v_permlane")
    i.rfl = op.startswith(("v_readfirstlane", "v_readlane"))
    return i

def vg(s): return {x for x in s if x[0] in "va"}
def sg(s): return {x for x in s if x[0] == "s"}

def need(p, c):
    n = 0
    if p.kind == "valu":
        pw = vg(p.w)
        if c.kind == "mfma" and pw & c.r: n = max(n, 2)
        if c.kind == "valu" and (c.perm or c.dpp) and pw & c.r: n = max(n, 2)
        if c.kind == "valu" and c.rfl and pw & c.r: n = max(n, 1)
        if p.trans and pw & c.r and c.kind in ("valu", "mem", "mfma"): n = max(n, 1)
        ps = sg(p.w)
        if ps:
            if c.kind == "valu" and ps & c.r: n = max(n, 2)
            if c.kind == "mem" and ps & c.r: n = max(n, 5)
            if c.kind == "salu" and ps & c.r: n = max(n, 1)
    if p.kind == "mfma":
        big = p.passes == 8
        if c.kind == "mfma":
            if p.w & c.ab: n = max(n, 12 if big else 8)
            if p.w & c.srcc and not (p.w == c.srcc and p.passes == c.passes): n = max(n, 10 if big else 6)
            if p.w & c.w and not (p.w == c.w and p.w == c.srcc): n = max(n, 12 if big else 8)
        elif c.kind in ("valu", "mem"):
            if p.w & (c.r | c.w): n = max(n, 12 if big else 8)
            if c.kind == "valu" and p.srcc & c.w: n = max(n, 7 if big else 3)
            if c.kind == "mem" and p.srcc & c.w: n = max(n, 7 if big else 3)
    if p.kind == "mem" and p.wide:
        if c.kind in ("valu", "mfma") and p.data & c.w: n = max(n, 2)
        if c.kind == "mem" and p.data & c.w: n = max(n, 1)
    if p.kind == "salu" and ('s', 124) in p.w and c.lds_dma: n = max(n, 1)
    return n

def fix(lines, window=14):
    out = []
    hist = []
    pos = 0
    added = 0
    for ln in lines:
        i = parse(ln)
        if i is None:
            out.append(ln); continue
        req = 0
        for p, pp in hist:
            d = pos - pp - 1 if p.op != "s_nop" else 99
            d = pos - (pp + 1)
            nn = need(p, i)
            if nn > d: req = max(req, nn - d)
        if i.kind == "mfma" and hist and hist[-1][0].op.startswith("v_pk_"): req = max(req, 2)
        if req:
            out.append("    s_nop %d" % (req - 1)); pos += req; added += 1
        out.append(ln)
        hist.append((i, pos + i.ws - 1))
        pos += i.ws
        hist = [(p, pp) for p, pp in hist if pos - pp <= window]
    return out, added
```

```python
import sys, json
from gen_common import *
from gen_ln import gen_ln
from gen_g1 import gen_g1, G1_LDS

def build(path, opt):
    a = A()
    hdr = open("parallel_sum__sliding_local_dilated__glu_gated_glu__prompt.s.ref").read().split("\n")
    hdr = [l for l in hdr if l.startswith(";") and "@launch" not in l and "Override" not in l and "grid=ceil" not in l]
    launches = []
    descs = []
    body = A()
    if opt.get("g1b"):
        from gen_g1b import gen_g1b, G1B_LDS
        launches.append("; @launch kernel=g1_kernel grid=(256,1,1) block=(256,1,1) lds=%d" % G1B_LDS)
        descs.append(gen_g1b(body, opt=opt))
    if opt.get("ln", 1) and not opt.get("g1b"):
        launches.append("; @launch kernel=ln_kernel grid=(256,1,1) block=(512,1,1) lds=0")
        descs.append(gen_ln(body, opt=opt))
    if opt.get("g1", 1) and not opt.get("g1b"):
        launches.append("; @launch kernel=g1_kernel grid=(256,1,1) block=(256,1,1) lds=%d" % G1_LDS)
        descs.append(gen_g1(body, opt=opt))
    if opt.get("g2", 0):
        from gen_g2 import gen_g2, G2_LDS
        launches.append("; @launch kernel=g2_kernel grid=(256,1,1) block=(%d,1,1) lds=%d" % (512 if opt.get("g2_ld") else 256, G2_LDS))
        descs.append(gen_g2(body, opt=opt))
    out = "\n".join(hdr + launches) + "\n"
    out += '.amdgcn_target "amdgcn-amd-amdhsa--gfx950"\n.text\n'
    out += body.text()
    out += '.section .rodata,"a"\n'
    for d in descs:
        out += ".p2align 6\n" + d
    open(path, "w").write(out)

if __name__ == "__main__":
    path = sys.argv[1]
    opt = json.loads(sys.argv[2]) if len(sys.argv) > 2 else {}
    build(path, opt)
```

```python
from gen_common import *
import hazard, struct

XROWS = 273
XSLOT = XROWS * 128
WBASE = 2 * XSLOT
WSTAGE = 20480
WG_OFF, WU_OFF, WQ_OFF = 0, 7168, 14336
SCR = WBASE + 4 * WSTAGE
L_CS = SCR
L_KV = SCR + 1280
L_RT = SCR + 5376
L_STG = SCR + 5376 + 2560
G1B_LDS = L_STG + 4096
WS_STATS = 0
LOG2E = 1.4426950408889634
def f32(x): return "0x%08x" % struct.unpack("<I", struct.pack("<f", x))[0]

def zipl(*ls):
    out = []
    n = max(len(l) for l in ls)
    for i in range(n):
        for l in ls:
            if i < len(l): out.append(l[i])
    return out

def spread(main, extra, lo=0.0, hi=0.7):
    n = len(main); k = len(extra)
    if k == 0: return list(main)
    pos = [int(n * lo + (n * (hi - lo)) * i / k) for i in range(k)]
    out = []; j = 0
    for i, m in enumerate(main):
        while j < k and pos[j] <= i:
            out.append(extra[j]); j += 1
        out.append(m)
    out += extra[j:]
    return out

def gen_g1b(a0, name="g1_kernel", opt=None):
    opt = opt or {}
    a = A(); a._lab = a0._lab + 1000
    NSTEP = 32
    LA = opt.get("la", 3)
    BAR = opt.get("bar", 4)
    ACT_KB = opt.get("akb", 131072)
    ACT_BYTES = 144 * ACT_KB
    KROT = opt.get("krot", 0)
    FS = opt.get("fs")
    FSL = opt.get("fs_lead", 5)
    if FS: BAR = FS[1]
    V_FS, V_FA, V_FR, V_FD = 54, 58, 62, 66
    L_FLG = L_RT + 1280
    W2P = opt.get("w2p", 0)
    S_CS, S_CD, S_CSO, S_CDO = 60, 64, 68, 69
    DE = opt.get("de", 5)
    DST = opt.get("dst", [0, 0, 0, 0])
    PK = opt.get("pk", 1)
    STM = opt.get("stmod", " sc1")
    NOCS = opt.get("nocs", 0)
    assert BAR <= 10 - LA
    S_X, S_G, S_U, S_Q, S_ACT, S_ST, S_DBG, S_PF = 4, 8, 12, 16, 20, 24, 28, 32
    S_XK, S_XH, S_GOFF, S_QOFF, S_T, S_T2, S_T3, S_W, S_M0, S_J, S_LOOP = 36, 37, 38, 39, 40, 41, 42, 43, 44, 45, 46
    S_PFOFF, S_PFSTR, S_OK, S_C0, S_C1, S_STO, S_AB, S_ODD, S_MT = 47, 48, 49, 50, 51, 52, 53, 58, 59
    S_K1 = 54; S_K2 = 55; S_MSK = 56
    S_RC = 56; S_RP = 57; S_ROT = 3
    P_X, P_Q, P_G, P_U, P_WS, P_DBG, P_WO, P_WD = 60, 62, 64, 66, 68, 70, 72, 74
    V_XDMA = 1; V_WDMA = [2, 3, 4, 5]; V_XR = [6, 7]; V_HX = [8, 9]; V_WRD = list(range(10, 18)); V_PF = 18; V_PFD = 19
    ST = 20
    CSR = 40
    CST = 50
    T0, T1, T2, T3, T4, T5 = 74, 75, 76, 77, 78, 79
    TV = 80
    def XF(st, mf): return R('a', 148 + st * 32 + mf * 4, 4)
    def WR(i): return R('a', 212 + (i & 3) * 4, 4)
    def HX(st): return R('a', 228 + st * 4, 4)
    def HACC(i): return R('a', 236 + i * 4, 4)

    STP = opt.get("stp", ["pro", "loop", "epi"])
    def nst(nm):
        if nm in STP: stamp(a, opt, 1 + STP.index(nm))
    kernel_header(a, name)
    done = a.newlab("L_g1_done"); fin = a.newlab("L_g1_fin")
    a("s_cmp_ge_u32 s2, 256")
    a("s_cbranch_scc1 %s", done)
    a("s_load_dwordx4 s[%d:%d], s[0:1], 0", P_X, P_X + 3)
    a("s_load_dwordx4 s[%d:%d], s[0:1], 32", P_G, P_G + 3)
    a("s_load_dwordx2 s[%d:%d], s[0:1], 72", P_WS, P_WS + 1)
    a("s_load_dwordx2 s[%d:%d], s[0:1], 64", P_DBG, P_DBG + 1)
    a("s_load_dwordx2 s[%d:%d], s[0:1], 16", P_WO, P_WO + 1)
    a("s_load_dwordx2 s[%d:%d], s[0:1], 48", P_WD, P_WD + 1)
    stamp(a, opt, 0)
    a("v_lshrrev_b32 v%d, 6, v0", T0)
    a("v_and_b32 v0, 63, v0")
    a("v_readfirstlane_b32 s%d, v%d", S_W, T0)
    a("s_lshr_b32 s%d, s2, 5", S_MT)
    a("s_lshl_b32 s%d, s%d, 8", S_M0, S_MT)
    a("s_and_b32 s%d, s2, 7", S_J)
    a("s_lshl_b32 s%d, s%d, 2", S_J, S_J)
    a("s_bfe_u32 s%d, s2, 0x20003", S_T)
    a("s_add_u32 s%d, s%d, s%d", S_J, S_J, S_T)
    a("s_and_b32 s%d, s%d, 1", S_ODD, S_J)
    a("s_mul_i32 s%d, s%d, 224", S_GOFF, S_J)
    a("s_lshl_b32 s%d, s%d, 6", S_QOFF, S_J)
    if KROT:
        a("s_and_b32 s%d, s2, 7", S_ROT)
        if KROT > 1: a("s_and_b32 s%d, s%d, %d", S_ROT, S_ROT, (8 - KROT) & 7)
        a("s_mul_i32 s%d, s%d, %d", S_T, S_ROT, 128 * 7168)
        a("s_add_u32 s%d, s%d, s%d", S_GOFF, S_GOFF, S_T)
        a("s_mul_i32 s%d, s%d, %d", S_T, S_ROT, 128 * 6144)
        a("s_add_u32 s%d, s%d, s%d", S_QOFF, S_QOFF, S_T)
        a("s_sub_u32 s%d, 8, s%d", S_RC, S_ROT)
        a("s_sub_u32 s%d, %d, s%d", S_RP, 8 - opt.get("pf_c0", 1), S_ROT)
    a("v_lshlrev_b32 v%d, 4, v0", T5)
    CPF = opt.get("cpf", 0)
    def code_pf(sb, vt, vd, st):
        l_ = a.newlab("L_g1_pc")
        a("s_getpc_b64 s[%d:%d]", sb, sb + 1)
        a.label(l_)
        a("s_sub_u32 s%d, s%d, %s-%s", sb, sb, l_, name)
        a("s_subb_u32 s%d, s%d, 0", sb + 1, sb + 1)
        a("s_lshr_b32 s%d, s2, 3", st)
        a("s_mul_i32 s%d, s%d, ((L_code_end-%s+4095)>>12)<<7", st, st, name)
        a("v_min_u32 v%d, ((L_code_end-%s+4095)>>12)-1, v0", vt, name)
        a("v_lshl_add_u32 v%d, v%d, 7, s%d", vt, vt, st)
        a("v_min_u32 v%d, L_code_end-%s-4, v%d", vt, name, vt)
        a("global_load_dword v%d, v%d, s[%d:%d]", vd, vt, sb, sb + 1)
    if CPF & 4: code_pf(76, T0, V_PFD, S_T)
    labs = [a.newlab("L_g1_w") for _ in range(4)]
    for w in range(1, 4):
        a("s_cmp_eq_u32 s%d, %d", S_W, w)
        a("s_cbranch_scc1 %s", labs[w])

    SPINS = []
    def variant(w):
        wm, wn = w & 1, w >> 1
        tiles = {}
        if wn == 0:
            VPB = [TV, TV + 34]
            for f in range(2):
                for mf in range(8): tiles[(4 + f, mf)] = R('v', VPB[f] + 2 + 4 * mf, 4)
            order = [(nf, mf) for nf in (2, 3, 0, 1) for mf in range(8)] + [(nf, mf) for mf in range(8) for nf in (6, 7, 8, 9)]
            nv = TV + 68
        else:
            order = [(nf, mf) for g in ((0, 1, 2, 3), (4, 5, 6, 7)) for mf in range(8) for nf in g] + [(nf, mf) for mf in range(8) for nf in (8, 9)]
            nv = TV
        na = 0
        for t in order:
            if nv + 4 <= 256:
                tiles[t] = R('v', nv, 4); nv += 4
            else:
                tiles[t] = R('a', na, 4); na += 4
        assert na <= 148, na
        hset = {0: [2, 3, 4, 5, 0], 1: [1, 6, 7, 8, 9], 2: [0, 2, 4, 6, 8], 3: [1, 3, 5, 7, 9]}[w]
        if NOCS: hset = hset[:NOCS - 1] if w else hset[:4]
        def isV(nf): return wn == 0 and nf in (4, 5)
        def mm(d, wf, xf, c, nf):
            if isV(nf): return "v_mfma_f32_16x16x32_bf16 %s, %s, %s, %s" % (d, xf, wf, c)
            return "v_mfma_f32_16x16x32_bf16 %s, %s, %s, %s" % (d, wf, xf, c)

        a.label(labs[w])
        q = []
        if CPF & 1 and w == 2:
            code_pf(76, T0, V_PFD, S_T); q.append(('P', 0))
        if CPF & 4: q.append(('P', 0))
        a("v_lshrrev_b32 v%d, 4, v0", T0)
        if wm: a("v_add_u32 v%d, 4, v%d", T0, T0)
        a("v_and_b32 v%d, 7, v0", T1)
        a("v_xor_b32 v%d, v%d, v%d", T0, T0, T1)
        a("v_lshlrev_b32 v%d, 4, v%d", T0, T0)
        a("v_lshrrev_b32 v%d, 3, v0", T1)
        a("v_lshl_add_u32 v%d, v%d, 11, v%d", V_XDMA, T1, T0)
        a("s_add_u32 s%d, s%d, %d", S_XK, S_M0, 8 * w)
        a("s_lshl_b32 s%d, s%d, 11", S_XK, S_XK)
        a("s_max_u32 s%d, s%d, 16", S_T, S_M0)
        a("s_sub_u32 s%d, s%d, %d", S_XH, S_T, 16 - 8 * wm)
        a("s_lshl_b32 s%d, s%d, 11", S_XH, S_XH)
        if KROT:
            a("s_lshl_b32 s%d, s%d, 8", S_T, S_ROT)
            a("s_add_u32 s%d, s%d, s%d", S_XK, S_XK, S_T)
            a("s_add_u32 s%d, s%d, s%d", S_XH, S_XH, S_T)
        a("s_lshl_b32 s%d, s%d, 3", S_T2, S_J)
        a("s_add_u32 s%d, s%d, s%d", S_T2, S_T2, S_M0)
        a("s_add_u32 s%d, s%d, %d", S_T2, S_T2, 2 * w)
        a("s_lshl_b32 s%d, s%d, 11", S_T3, S_T2)
        wjobs = [("G", w), ("U", w), ("Q", w)] + ([("G", 4 + w), ("U", 4 + w)] if w < 3 else [("Q", 4), ("Q", 5)])
        wreg = {}
        def gu_off(dst, job):
            a("v_add_u32 v%d, %d, v0", T0, job * 64)
            a("v_mul_u32_u24 v%d, 4682, v%d", T1, T0)
            a("v_lshrrev_b32 v%d, 16, v%d", T1, T1)
            a("v_mul_u32_u24 v%d, 14, v%d", T2, T1)
            a("v_sub_u32 v%d, v%d, v%d", T2, T0, T2)
            a("v_bfe_u32 v%d, v%d, 3, 1", T3, T1)
            a("v_lshlrev_b32 v%d, 2, v%d", T3, T3)
            a("v_xor_b32 v%d, v%d, v%d", T1, T1, T3)
            a("v_mul_u32_u24 v%d, 7168, v%d", T1, T1)
            a("v_lshl_add_u32 v%d, v%d, 4, v%d", dst, T2, T1)
        def q_off(dst, job):
            a("v_add_u32 v%d, %d, v0", T0, job * 64)
            a("v_mul_u32_u24 v%d, 5462, v%d", T1, T0)
            a("v_lshrrev_b32 v%d, 16, v%d", T1, T1)
            a("v_mul_u32_u24 v%d, 12, v%d", T2, T1)
            a("v_sub_u32 v%d, v%d, v%d", T2, T0, T2)
            a("v_bfe_u32 v%d, v%d, 3, 1", T3, T1)
            a("v_lshlrev_b32 v%d, 1, v%d", T3, T3)
            a("v_xor_b32 v%d, v%d, v%d", T2, T2, T3)
            a("v_mul_u32_u24 v%d, 6144, v%d", T1, T1)
            a("v_lshrrev_b32 v%d, 2, v%d", T3, T2)
            a("v_lshl_add_u32 v%d, v%d, 11, v%d", T1, T3, T1)
            a("v_and_b32 v%d, 3, v%d", T2, T2)
            a("v_lshl_add_u32 v%d, v%d, 4, v%d", dst, T2, T1)
        nreg = 0
        late = []
        for kind, job in wjobs:
            key = ("GU" if kind != "Q" else "Q", job)
            if key not in wreg:
                wreg[key] = V_WDMA[nreg]; nreg += 1
                late.append((key, wreg[key]))
        for key, dst in late:
            (gu_off if key[0] == "GU" else q_off)(dst, key[1])
        a("s_waitcnt lgkmcnt(0)")
        make_srd(a, S_X, P_X, 2048 * 2048)
        make_srd(a, S_G, P_G, 1024 * 7168)
        make_srd(a, S_U, P_U, 1024 * 7168)
        make_srd(a, S_Q, P_Q, 1024 * 6144)
        def x_jobs(t):
            slot = t & 1
            jobs = []
            for i in range(8):
                jobs.append((["s_mov_b32 m0, %d" % (slot * XSLOT + (w + 4 * i) * 1024),
                              "s_add_u32 s%d, s%d, %d" % (S_T, S_XK, i * 65536)],
                             ["buffer_load_dwordx4 v%d, s[%d:%d], s%d offen%s lds" % (V_XDMA, S_X, S_X + 3, S_T, " nt" if t < opt.get("nt_x", 0) else "")]))
            jobs[-1][1].append("s_add_u32 s%d, s%d, 128" % (S_XK, S_XK))
            if wn == slot:
                jobs.append((["s_mov_b32 m0, %d" % (slot * XSLOT + 32768 + wm * 1024)],
                             ["buffer_load_dwordx4 v%d, s[%d:%d], s%d offen lds" % (V_XDMA, S_X, S_X + 3, S_XH)]))
            jobs[-1][1].append("s_add_u32 s%d, s%d, 128" % (S_XH, S_XH))
            return [(j, ('X', t)) for j in jobs]
        def w_jobs(s):
            stage = s & 3
            jobs = []
            for kind, job in wjobs:
                srd = {"G": S_G, "U": S_U, "Q": S_Q}[kind]; off = {"G": WG_OFF, "U": WU_OFF, "Q": WQ_OFF}[kind]
                vo = wreg[("GU" if kind != "Q" else "Q", job)]
                jobs.append((["s_mov_b32 m0, %d" % (WBASE + stage * WSTAGE + off + job * 1024)],
                             ["buffer_load_dwordx4 v%d, s[%d:%d], s%d offen%s lds" % (vo, srd, srd + 3, S_QOFF if kind == "Q" else S_GOFF, " nt" if s < opt.get("nt_w", 0) else "")]))
            jobs[-1][1].append("s_add_u32 s%d, s%d, %d" % (S_GOFF, S_GOFF, 32 * 7168))
            jobs[-1][1].append("s_add_u32 s%d, s%d, %d" % (S_QOFF, S_QOFF, 32 * 6144))
            return [(j, ('W', s)) for j in jobs]
        def emit_now(jobs):
            for (pre, main), tag in jobs:
                for s_ in pre + main: a(s_)
                q.append(tag)
        def need_count(tags):
            idx = [i for i, t in enumerate(q) if t in tags]
            if not idx: return 63
            return len(q) - 1 - max(idx)
        PSPLIT = opt.get("pro_split", 0); S_AT = opt.get("s_at", -1); WO_AT = opt.get("wo_at", -1)
        PF_C0 = opt.get("pf_c0", 1); PF_PRO = opt.get("pf_pro", 2); PF_X = opt.get("pf_x", [])
        PRO_A = opt.get("pro_a", 2)
        pro_list = [w_jobs(0), x_jobs(0), w_jobs(1), x_jobs(1), w_jobs(2)]
        for l_ in pro_list[:PRO_A]: emit_now(l_)
        SA = ST; SB = ST + 8
        def s_loads():
            for i in range(4):
                a("buffer_load_dwordx4 v[%d:%d], v%d, s[%d:%d], s%d offen offset:%d", SA + 4 * i, SA + 4 * i + 3, T5, S_X, S_X + 3, S_T3, 1024 * i)
                q.append(('S', 0))
        def wo_pf():
            if w != 3 or not PFD or W2P: return
            a("v_lshlrev_b32 v%d, 7, v0", ST + 50)
            a("s_lshl_b32 s%d, s2, 13", S_T)
            a("buffer_load_dword v%d, v%d, s[76:79], s%d offen", V_PFD, ST + 50, S_T); q.append(('P', 0))
        def pro2():
            for l_ in pro_list[PRO_A:]: emit_now(l_)
            if S_AT < 0: s_loads()
        def pro3():
            if WO_AT < 0: wo_pf()
            if PFD and w < 3:
                for i in range(PF_PRO): emit_now([pf_job()])
        if PSPLIT == 0: pro2()
        PFD = opt.get("pf_d", 384)
        if PFD:
            a("s_lshr_b32 s%d, s2, 3", S_T)
            a("s_and_b32 s%d, s2, 7", S_K1)
            if w < 2:
                a("v_min_u32 v%d, 27, v0", T0)
                a("v_mul_u32_u24 v%d, 9363, v%d", T1, T0)
                a("v_lshrrev_b32 v%d, 16, v%d", T1, T1)
                a("v_mul_u32_u24 v%d, 7, v%d", T2, T1)
                a("v_sub_u32 v%d, v%d, v%d", T2, T0, T2)
                a("v_lshlrev_b32 v%d, 5, v%d", T1, T1)
                a("v_add_u32 v%d, s%d, v%d", T1, S_T, T1)
                a("v_mul_u32_u24 v%d, 7168, v%d", T1, T1)
                a("v_lshl_add_u32 v%d, v%d, 7, v%d", V_PF, T2, T1)
                make_srd(a, S_PF, P_G if w == 0 else P_U, 1024 * 7168)
                a("s_mul_i32 s%d, s%d, 896", S_PFOFF, S_K1)
                a("s_add_u32 s%d, s%d, %d", S_PFOFF, S_PFOFF, PF_C0 * 128 * 7168)
                if KROT:
                    a("s_mul_i32 s%d, s%d, %d", S_T, S_ROT, 128 * 7168)
                    a("s_add_u32 s%d, s%d, s%d", S_PFOFF, S_PFOFF, S_T)
                a("s_mov_b32 s%d, %d", S_PFSTR, 128 * 7168)
            elif w == 2:
                a("v_min_u32 v%d, 23, v0", T0)
                a("v_mul_u32_u24 v%d, 10923, v%d", T1, T0)
                a("v_lshrrev_b32 v%d, 16, v%d", T1, T1)
                a("v_mul_u32_u24 v%d, 6, v%d", T2, T1)
                a("v_sub_u32 v%d, v%d, v%d", T2, T0, T2)
                a("v_lshlrev_b32 v%d, 5, v%d", T1, T1)
                a("v_add_u32 v%d, s%d, v%d", T1, S_T, T1)
                a("v_mul_u32_u24 v%d, 6144, v%d", T1, T1)
                a("v_lshrrev_b32 v%d, 1, v%d", T3, T2)
                a("v_lshl_add_u32 v%d, v%d, 11, v%d", T1, T3, T1)
                a("v_and_b32 v%d, 1, v%d", T2, T2)
                a("v_lshl_add_u32 v%d, v%d, 7, v%d", V_PF, T2, T1)
                make_srd(a, S_PF, P_Q, 1024 * 6144)
                a("s_lshl_b32 s%d, s%d, 8", S_PFOFF, S_K1)
                a("s_add_u32 s%d, s%d, %d", S_PFOFF, S_PFOFF, PF_C0 * 128 * 6144)
                if KROT:
                    a("s_mul_i32 s%d, s%d, %d", S_T, S_ROT, 128 * 6144)
                    a("s_add_u32 s%d, s%d, s%d", S_PFOFF, S_PFOFF, S_T)
                a("s_mov_b32 s%d, %d", S_PFSTR, 128 * 6144)
            else:
                make_srd(a, 76, P_WO, 1024 * 2048)
                a("v_lshlrev_b32 v%d, 7, v0", V_PF)
                a("v_min_u32 v%d, %d, v%d", V_PF, 31 * 128, V_PF)
                make_srd(a, S_PF, P_WD, 3584 * 2048)
                a("s_mul_i32 s%d, s2, 28672", S_PFOFF)
                a("s_mov_b32 s%d, 4096", S_PFSTR)
        def pf_job():
            pre = []
            if KROT and w < 3:
                pre = ["s_cmp_ge_u32 s%d, %d" % (S_PFOFF, 1024 * (7168 if w < 2 else 6144)),
                       "s_cselect_b32 s%d, %d, 0" % (S_T, 1024 * (7168 if w < 2 else 6144)),
                       "s_sub_u32 s%d, s%d, s%d" % (S_PFOFF, S_PFOFF, S_T)]
            return ((pre, ["buffer_load_dword v%d, v%d, s[%d:%d], s%d offen%s" % (V_PFD, V_PF, S_PF, S_PF + 3, S_PFOFF, " nt" if opt.get("nt_pf") else ""),
                          "s_add_u32 s%d, s%d, s%d" % (S_PFOFF, S_PFOFF, S_PFSTR)]), ('P', 0))
        if PSPLIT == 0: pro3()
        make_srd(a, S_ACT, P_WS, ACT_BYTES, WS_ACT2)
        make_srd(a, S_ST, P_WS, 2048 * 8, WS_STATS)
        make_srd(a, S_DBG, P_DBG, 256)
        a("v_and_b32 v%d, 15, v0", T0)
        a("v_lshrrev_b32 v%d, 4, v0", T1)
        a("v_lshrrev_b32 v%d, 1, v%d", T2, T0)
        a("v_xor_b32 v%d, v%d, v%d", T2, T2, T1)
        a("v_lshlrev_b32 v%d, 4, v%d", T2, T2)
        a("v_lshl_add_u32 v%d, v%d, 7, v%d", T3, T0, T2)
        a("v_add_u32 v%d, %d, v%d", V_XR[0], wm * 16384, T3)
        a("v_xor_b32 v%d, 64, v%d", V_XR[1], V_XR[0])
        a("v_add_u32 v%d, 32768, v%d", V_HX[0], T3)
        a("v_add_u32 v%d, %d, v%d", T4, 32768 + 2048, T3)
        a("v_cmp_eq_u32 vcc, 0, v%d", T0)
        a("v_cndmask_b32 v%d, v%d, v%d, vcc", V_HX[0], V_HX[0], T4)
        a("v_xor_b32 v%d, 64, v%d", V_HX[1], V_HX[0])
        a("v_lshrrev_b32 v%d, 2, v%d", T2, T0)
        a("v_lshl_add_u32 v%d, v%d, 3, v%d", T2, T1, T2)
        a("v_and_b32 v%d, 3, v0", T3)
        a("v_lshlrev_b32 v%d, 3, v%d", T3, T3)
        a("v_and_b32 v%d, 1, v%d", T1, T1)
        a("v_lshl_add_u32 v%d, v%d, 2, v%d", T4, T1, T2)
        a("v_mul_u32_u24 v%d, 224, v%d", V_WRD[0], T4)
        a("v_xor_b32 v%d, 4, v%d", T4, T4)
        a("v_mul_u32_u24 v%d, 224, v%d", V_WRD[1], T4)
        a("s_lshl_b32 s%d, s%d, 5", S_T, S_ODD)
        a("s_add_u32 s%d, s%d, %d", S_T, S_T, WBASE)
        if wn == 1:
            a("s_mul_i32 s%d, s%d, 192", S_K1, S_ODD)
            a("s_sub_u32 s%d, %d, s%d", S_K1, WBASE + 192, S_K1)
            for h in range(2):
                a("v_add3_u32 v%d, v%d, v%d, s%d", V_WRD[2 + h], V_WRD[h], T3, S_K1)
        else:
            a("v_mul_u32_u24 v%d, 192, v%d", T4, T2)
            a("v_lshl_add_u32 v%d, v%d, 5, v%d", T4, T1, T4)
            a("v_add_u32 v%d, v%d, v%d", T4, T4, T3)
            a("v_add_u32 v%d, %d, v%d", V_WRD[2], WBASE, T4)
            a("v_xor_b32 v%d, 32, v%d", T4, T4)
            a("v_add_u32 v%d, %d, v%d", V_WRD[3], WBASE, T4)
        for h in range(2):
            a("v_add3_u32 v%d, v%d, v%d, s%d", V_WRD[h], V_WRD[h], T3, S_T)
        for i in range(4):
            a("v_add_u32 v%d, %d, v%d", V_WRD[4 + i], 2 * WSTAGE, V_WRD[i])
        if w == 0:
            a("v_mov_b32 v%d, 0x3f803f80", T0)
            a("v_lshlrev_b32 v%d, 2, v0", T1)
            a("v_and_b32 v%d, 127, v%d", T1, T1)
            a("ds_write_b32 v%d, v%d offset:%d", T1, T0, 272 * 128)
            a("v_add_u32 v%d, %d, v%d", T1, XSLOT, T1)
            a("ds_write_b32 v%d, v%d offset:%d", T1, T0, 272 * 128)
        if w == 1:
            make_srd(a, S_PF if not PFD else 76, P_WS, 4096, WS_FLAGS)
            sf = S_PF if not PFD else 76
            a("s_lshl_b32 s%d, s2, 4", S_T)
            for i in range(4): a("v_mov_b32 v%d, 0", T0 + i)
            a("s_mov_b64 exec, 1")
            a("buffer_store_dwordx4 v[%d:%d], v%d, s[%d:%d], s%d offen", T0, T3, T0, sf, sf + 3, S_T); q.append(('Z', 0))
            a("s_mov_b64 exec, -1")
        a("s_mov_b32 s%d, 0xffff0000", S_K1)
        RD = ST + 50
        spins = SPINS
        if FS:
            a("v_mov_b32 v%d, 0", V_FS)
            a("v_mov_b32 v%d, %d", V_FA, L_FLG + 4 * w)
            a("v_and_b32 v%d, 3, v0", V_FR)
            a("v_lshlrev_b32 v%d, 2, v%d", V_FR, V_FR)
            a("v_add_u32 v%d, %d, v%d", V_FR, L_FLG, V_FR)
            a("ds_write_b32 v%d, v%d", V_FA, V_FS)
        V_CSRC = V_PF if w == 3 else V_WDMA[3]; V_CRD = T4; V_CST = T5
        if W2P:
            make_srd(a, S_CS, P_WO, 1024 * 2048)
            make_srd(a, S_CD, P_WS, 4608 * 2048, WS_W2P)
            a("s_lshr_b32 s%d, s2, 4", S_T)
            a("s_lshl_b32 s%d, s%d, 16", S_T, S_T)
            a("s_and_b32 s%d, s2, 15", S_CDO)
            a("s_lshl_b32 s%d, s%d, 7", S_CSO, S_CDO)
            a("s_lshl_b32 s%d, s%d, 12", S_CDO, S_CDO)
            a("s_add_u32 s%d, s%d, s%d", S_CSO, S_CSO, S_T)
            a("s_add_u32 s%d, s%d, s%d", S_CDO, S_CDO, S_T)
            a("s_add_u32 s%d, s%d, %d", S_CSO, S_CSO, [0, 4, 16, 20][w] * 2048)
            a("s_add_u32 s%d, s%d, %d", S_CDO, S_CDO, w * 256)
            a("v_lshrrev_b32 v%d, 3, v0", RD)
            a("v_lshrrev_b32 v%d, 5, v0", RD + 1)
            a("v_lshl_add_u32 v%d, v%d, 2, v%d", RD, RD + 1, RD)
            a("v_and_b32 v%d, 7, v0", RD + 1)
            a("v_lshlrev_b32 v%d, 4, v%d", RD + 1, RD + 1)
            a("v_lshl_add_u32 v%d, v%d, 11, v%d", V_CSRC, RD, RD + 1)
            a("v_bfe_u32 v%d, v0, 2, 2", RD)
            a("v_lshlrev_b32 v%d, 7, v%d", RD, RD)
            a("v_lshrrev_b32 v%d, 4, v0", RD + 1)
            a("v_lshl_add_u32 v%d, v%d, 5, v%d", RD, RD + 1, RD)
            a("v_and_b32 v%d, 3, v0", RD + 1)
            a("v_lshl_add_u32 v%d, v%d, 3, v%d", RD, RD + 1, RD)
            a("v_add_u32 v%d, %d, v%d", V_CRD, L_KV + w * 1024, RD)
        def r_job(s, area):
            post = ["s_add_u32 s%d, s%d, 0x100000" % (S_CSO, S_CSO)]
            if area == 0:
                post = ["s_sub_u32 s%d, s%d, 0x100000" % (S_CSO, S_CSO), "s_mov_b32 s%d, s%d" % (S_CS, P_WD), "s_mov_b32 s%d, s%d" % (S_CS + 1, P_WD + 1),
                        "s_mov_b32 s%d, 0x%x" % (S_CS + 2, 3584 * 2048)]
            return ((["s_mov_b32 m0, %d" % ((L_STG if area else L_KV) + w * 1024)],
                     ["buffer_load_dwordx4 v%d, s[%d:%d], s%d offen%s lds" % (V_CSRC, S_CS, S_CS + 3, S_CSO, " nt" if opt.get("nt_r") else "")] + post), ('R', s + 1 - area))
        def r_read(s, area):
            o = (L_STG - L_KV) if area else 0
            lds("ds_read_b64_tr_b16 v[%d:%d], v%d offset:%d" % (RD, RD + 1, V_CRD, o), ('R', s, 0))
            lds("ds_read_b64_tr_b16 v[%d:%d], v%d offset:%d" % (RD + 2, RD + 3, V_CRD, o + 512), ('R', s, 0))
        def r_store(s):
            lwait([('R', s, 0)])
            a("buffer_store_dwordx4 v[%d:%d], v%d, s[%d:%d], s%d offen sc1", RD, RD + 3, V_CST, S_CD, S_CD + 3, S_CDO); q.append(('RS', 0))
            a("s_add_u32 s%d, s%d, 0x100000", S_CDO, S_CDO)
        a("s_lshl_b32 s%d, s%d, 3", S_T2, S_T2)
        def stat_row(b, onm, osd):
            L = []
            X = ST + 16; Y = X; Z = ST + 48
            for i in range(8):
                L.append("v_lshlrev_b32 v%d, 16, v%d" % (X + 2 * i, b + i))
                L.append("v_and_b32 v%d, s%d, v%d" % (X + 2 * i + 1, S_K1, b + i))
            def red(src, dst):
                for i in range(8): L.append("v_add_f32 v%d, v%d, v%d" % (b + i, src + 2 * i, src + 2 * i + 1))
                for i in range(4): L.append("v_add_f32 v%d, v%d, v%d" % (b + i, b + 2 * i, b + 2 * i + 1))
                L.append("v_add_f32 v%d, v%d, v%d" % (b, b, b + 1))
                L.append("v_add_f32 v%d, v%d, v%d" % (b + 2, b + 2, b + 3))
                L.append("v_add_f32 v%d, v%d, v%d" % (dst, b, b + 2))
                for m_ in ("quad_perm:[1,0,3,2]", "quad_perm:[2,3,0,1]", "row_half_mirror", "row_mirror"):
                    L.append("v_add_f32_dpp v%d, v%d, v%d %s row_mask:0xf bank_mask:0xf" % (dst, dst, dst, m_))
                for sw in ("16", "32"):
                    L.append("v_mov_b32 v%d, v%d" % (b, dst))
                    L.append("v_permlane%s_swap_b32 v%d, v%d" % (sw, dst, b))
                    L.append("v_add_f32 v%d, v%d, v%d" % (dst, dst, b))
                L.append("v_mul_f32 v%d, 0x3a800000, v%d" % (dst, dst))
            red(X, Z)
            for i in range(16): L.append("v_sub_f32 v%d, v%d, v%d" % (Y + i, X + i, Z))
            for i in range(16): L.append("v_mul_f32 v%d, v%d, v%d" % (Y + i, Y + i, Y + i))
            red(Y, Z + 1)
            L.append("v_cvt_pk_bf16_f32 v%d, v%d, v%d" % (onm, Z, Z))
            L.append("v_xor_b32 v%d, 0x80008000, v%d" % (onm, onm))
            L.append("v_cvt_pk_bf16_f32 v%d, v%d, v%d" % (Z + 1, Z + 1, Z + 1))
            L.append("v_and_b32 v%d, s%d, v%d" % (Z + 1, S_K1, Z + 1))
            L.append("v_add_f32 v%d, 0x3727c5ac, v%d" % (Z + 1, Z + 1))
            L.append("v_cvt_pk_bf16_f32 v%d, v%d, v%d" % (Z + 1, Z + 1, Z + 1))
            L.append("v_and_b32 v%d, s%d, v%d" % (Z + 1, S_K1, Z + 1))
            L.append("v_sqrt_f32 v%d, v%d" % (Z + 1, Z + 1))
            L.append("v_cvt_pk_bf16_f32 v%d, v%d, v%d" % (Z + 1, Z + 1, Z + 1))
            L.append("v_and_b32 v%d, s%d, v%d" % (osd, S_K1, Z + 1))
            return L
        SS0 = opt.get("ss0", 2)
        side = {0: [], 1: [], 2: [], 3: [], 28: ["v_mov_b32 v%d, 0" % r_ for r_ in range(ST, CST + 24) if not (W2P and RD <= r_ < RD + 4) and not (FS and r_ in (V_FS, V_FA, V_FR, V_FD))]}
        if W2P:
            assert S_AT < 2
            side[2] += ["v_lshrrev_b32 v%d, 4, v0" % RD, "v_lshlrev_b32 v%d, 10, v%d" % (RD, RD), "v_and_b32 v%d, 15, v0" % (RD + 1),
                        "v_lshl_add_u32 v%d, v%d, 4, v%d" % (V_CST, RD + 1, RD)]
        if CPF & 2 and w == 2: side[28].insert(0, "CPF")
        W2L2 = opt.get("w2l2", 0)
        if W2L2:
            L = ["s_lshr_b32 s%d, s2, 3" % S_K2, "s_mul_i32 s%d, s%d, 11" % (S_K2, S_K2),
                 "s_and_b32 s%d, s2, 1" % S_STO, "s_mul_i32 s%d, s%d, %d" % (S_STO, S_STO, 56 * 65536),
                 "s_bfe_u32 s%d, s2, 0x10002" % S_AB, "s_lshl_b32 s%d, s%d, 15" % (S_AB, S_AB), "s_add_u32 s%d, s%d, s%d" % (S_AB, S_AB, S_STO),
                 "v_lshlrev_b32 v%d, 7, v0" % V_PF]
            for n_ in range(w, 11, 4):
                L += ["s_add_u32 s%d, s%d, %d" % (S_STO, S_K2, n_), "s_and_b32 s%d, s%d, 3" % (S_PFOFF, S_STO), "s_lshl_b32 s%d, s%d, 13" % (S_PFOFF, S_PFOFF),
                      "s_lshr_b32 s%d, s%d, 2" % (S_STO, S_STO), "s_lshl_b32 s%d, s%d, 16" % (S_STO, S_STO),
                      "s_add_u32 s%d, s%d, s%d" % (S_PFOFF, S_PFOFF, S_STO), "s_add_u32 s%d, s%d, s%d" % (S_PFOFF, S_PFOFF, S_AB), "W2PF"]
            side.setdefault(W2L2, []).extend(L)
        if S_AT >= 0: side[S_AT].append("SLOAD")
        if WO_AT >= 0: side[WO_AT].append("WOPF")
        for s_ in PF_X: side[s_].append("PFJ")
        if SS0 < 3:
            side[SS0] += ["WAITS"] + stat_row(SA, T0, T1); side[SS0 + 1] += stat_row(SB, T2, T3) + ["SSTORE"]
        else:
            side[3] += ["WAITS"] + stat_row(SA, T0, T1) + stat_row(SB, T2, T3) + ["SSTORE"]
        def side_emit(x_):
            if x_ == "WAITS": a("s_waitcnt vmcnt(%d)", need_count([('S', 0)]))
            elif x_ == "CPF": code_pf(76, T0, V_PFD, S_T); q.append(('P', 0))
            elif x_ == "W2PF":
                a("buffer_load_dword v%d, v%d, s[%d:%d], s%d offen", V_PFD, V_PF, S_CD, S_CD + 3, S_PFOFF); q.append(('P', 0))
            elif x_ == "SLOAD": s_loads()
            elif x_ == "WOPF": wo_pf()
            elif x_ == "PFJ":
                if PFD and w < 3: emit_now([pf_job()])
            elif x_ == "SSTORE":
                a("s_mov_b64 exec, 1")
                a("buffer_store_dwordx4 v[%d:%d], off, s[%d:%d], s%d sc1", T0, T3, S_ST, S_ST + 3, S_T2); q.append(('SS', 0))
                a("s_mov_b64 exec, -1")
            else: a(x_)
        a("s_lshl_b32 s%d, s%d, 2", S_C1, S_MT)
        a("s_max_u32 s%d, s%d, 4", S_C0, S_C1)
        a("s_sub_u32 s%d, s%d, 4", S_C0, S_C0)
        a("s_mov_b32 s%d, 0", S_OK)

        lq = []
        def lds(instr, tag):
            if opt.get("nolds") and tag[1] > 0 and (opt["nolds"] == 1 or (opt["nolds"] == 2) == (tag[0] == 'W')): return
            a(instr); lq.append(tag)
        def lwait(tags):
            idx = [i for i, t in enumerate(lq) if t in tags]
            if not idx: return
            n = len(lq) - 1 - max(idx)
            a("s_waitcnt lgkmcnt(%d)", min(n, 15))
            del lq[:len(lq) - min(n, 15)]
        def w_reads(s, nf):
            stage = s & 3; hi = (stage >> 1) * 4; so = (stage & 1) * WSTAGE
            dst = WR(10 * s + nf)
            out = []
            for h in range(2):
                if wn == 0 and nf < 6:
                    ad = V_WRD[hi + 2 + (nf & 1)]; off = so + WQ_OFF + h * 768 + (nf >> 1) * 64
                else:
                    k = nf - 6 if wn == 0 else nf
                    slot = (k >> 1) + (0 if wn == 0 else 2); isu = k & 1
                    if slot == 6: ad = V_WRD[hi + 2 + h]; off = so + isu * WU_OFF
                    else: ad = V_WRD[hi + h]; off = so + isu * WU_OFF + slot * 32
                out.append(("ds_read_b64_tr_b16 %s, v%d offset:%d" % (dst.sub(2 * h, 2), ad, off), ('W', s, nf)))
            return out
        def x_reads(s):
            xs = (s >> 1) & 1; kk = s & 1
            out = [("ds_read_b128 %s, v%d offset:%d" % (XF(s & 1, mf), V_XR[kk], xs * XSLOT + mf * 2048), ('X', s, mf)) for mf in range(8)]
            out.append(("ds_read_b128 %s, v%d offset:%d" % (HX(s & 1), V_HX[kk], xs * XSLOT), ('H', s)))
            return out
        pend = []
        gapc = [0, 0]
        def step(s, waits=None, emit=True, hooks=None):
            last = s == NSTEP - 1
            ms = []
            for nf in range(10):
                mfs = range(8) if nf % 2 == 0 else range(7, -1, -1)
                grp = [(nf, mf) for mf in mfs]
                if nf in hset: grp.insert(4, (nf, -1))
                ms += grp
            xr = x_reads(s + 1) if not last else []
            first_of = {}
            for i, (nf, mf) in enumerate(ms): first_of.setdefault(nf, i)
            x0 = first_of[BAR] + 2 if (s & 1) else first_of[opt.get("xr_even", 2)] + 2
            xend = len(ms) - opt.get("xr_tail", 10)
            xpos = [x0 + ((xend - x0) * i) // len(xr) for i in range(len(xr))] if xr else []
            sd_ = list(side.get(s, [])) if (emit and (s < 4 or s >= NSTEP - 4)) else []
            s_hi = 66 if s == 28 else len(ms) - 2
            spos = [2 + ((s_hi - 2) * i) // len(sd_) for i in range(len(sd_))] if sd_ else []
            for i, (nf, mf) in enumerate(ms):
                post = []
                if i == first_of[nf] and nf == (FS[0] if FS else BAR) and not last:
                    tags = [('W', s + 1)]
                    if (s + 1) % 2 == 0: tags.append(('X', (s + 1) // 2))
                    n = min(63, need_count(tags))
                    if waits is not None:
                        if emit: n = waits[s & 3]
                        else: waits[s & 3] = min(waits.get(s & 3, 63), n)
                    if FS:
                        assert not any(t in tags for _, t in pend)
                        a("v_add_u32 v%d, 1, v%d", V_FS, V_FS)
                        lwait([('X', s, m_) for m_ in range(8)] + [('H', s)] + [('W', s - 1, n_) for n_ in range(10)])
                    if not opt.get("nodma") and not opt.get("nowait"): a("s_waitcnt vmcnt(%d)", n)
                    if FS: lds("ds_write_b32 v%d, v%d" % (V_FA, V_FS), ('F', s, 0))
                if FS and i == first_of[BAR] - FSL and not last:
                    lds("ds_read_b32 v%d, v%d" % (V_FD, V_FR), ('F', s, 1))
                if i == first_of[nf] and nf == BAR and not last:
                    if FS:
                        lwait([('F', s, 1)])
                        l1 = a.newlab("L_g1_fs"); l2 = a.newlab("L_g1_fr")
                        a("v_cmp_lt_u32 vcc, v%d, v%d", V_FD, V_FS)
                        a("s_cbranch_vccnz %s", l1)
                        a.label(l2)
                        if emit: spins.append((l1, l2))
                    elif not opt.get("nobar"): a("s_barrier")
                    assert not pend, "DMA jobs not drained"
                    if (s & 1) and (s + 3) // 2 < NSTEP // 2: pend.extend(x_jobs((s + 3) // 2))
                    if s + 3 < NSTEP: pend.extend(w_jobs(s + 3))
                    if PFD and (s & 3) == 0 and s < NSTEP - 4 and not (W2P and w == 3): pend.append(pf_job())
                    if W2P and (s & 3) == 0:
                        pend.append(r_job(s, 1))
                        if s == 0: pend.append(r_job(s, 0))
                    if KROT and (s & 3) == 1 and s < NSTEP - 4:
                        a("s_sub_u32 s%d, s%d, 1", S_RC, S_RC)
                        a("s_cmp_eq_u32 s%d, 0", S_RC)
                        a("s_cselect_b32 s%d, %d, 0", S_K2, 1024 * 7168)
                        a("s_cselect_b32 s%d, %d, 0", S_STO, 1024 * 6144)
                        a("s_cselect_b32 s%d, 2048, 0", S_T)
                        a("s_sub_u32 s%d, s%d, s%d", S_GOFF, S_GOFF, S_K2)
                        a("s_sub_u32 s%d, s%d, s%d", S_QOFF, S_QOFF, S_STO)
                        a("s_sub_u32 s%d, s%d, s%d", S_XK, S_XK, S_T)
                        a("s_sub_u32 s%d, s%d, s%d", S_XH, S_XH, S_T)
                    gapc[0] = 0; gapc[1] = s & 1
                    if hooks and 'bar' in hooks: hooks['bar']()
                job = None
                de = DE
                g0_ = 1 + DST[w]
                if isinstance(DE, list): de = DE[0] if gapc[1] else DE[1]
                if pend and gapc[0] >= g0_ and (gapc[0] - g0_) % de == 0:
                    job = pend.pop(0)
                    for x_ in job[0][0]: a(x_)
                gapc[0] += 1
                lwait([('W', s, nf), ('X', s, mf) if mf >= 0 else ('H', s)])
                wf = WR(10 * s + nf)
                if mf >= 0:
                    t = tiles[(nf, mf)]
                    a(mm(t, wf, XF(s & 1, mf), t if s else "0", nf))
                else:
                    t = HACC(hset.index(nf))
                    a(mm(t, wf, HX(s & 1), t if s else "0", nf))
                if job:
                    for x_ in job[0][1]:
                        if opt.get("nodma") and x_.startswith("buffer_load"): continue
                        if opt.get("dma_only") and x_.startswith("buffer_load") and job[1][0] not in opt["dma_only"]: continue
                        a(x_)
                    q.append(job[1])
                k = i - first_of[nf]
                if k < 2:
                    s2_, nf2 = (s, nf + LA) if nf + LA < 10 else (s + 1, nf + LA - 10)
                    if s2_ < NSTEP:
                        ins, tag = w_reads(s2_, nf2)[k]
                        lds(ins, tag)
                while xpos and xpos[0] <= i:
                    xpos.pop(0); ins, tag = xr.pop(0); lds(ins, tag)
                while spos and spos[0] <= i:
                    spos.pop(0); side_emit(sd_.pop(0))
                if W2P and (s & 3) == 3:
                    r0 = first_of[FS[0] if FS else BAR] + 4
                    if i == r0:
                        if last: a("s_waitcnt vmcnt(%d)", need_count([('R', s - 3)]))
                        r_read(s, 1)
                    if i == r0 + 12: r_store(s)
                    if s == 3 and i == r0 + 16: r_read(s, 0)
                    if s == 3 and i == r0 + 28: r_store(s)
                    if last and i == r0 + 20:
                        for r_ in range(RD, RD + 4): a("v_mov_b32 v%d, 0", r_)
                if hooks and i in hooks: hooks[i]()

        if PSPLIT == 1: pro2(); pro3()
        a("s_waitcnt vmcnt(%d)", need_count([('X', 0), ('W', 0)]))
        a("s_waitcnt lgkmcnt(0)")
        a("s_barrier")
        nst("pro")
        if PSPLIT == 2: pro2(); pro3()
        for nf in range(LA):
            for ins, tag in w_reads(0, nf): lds(ins, tag)
            if nf == 0:
                for ins, tag in x_reads(0): lds(ins, tag)
        a("s_waitcnt lgkmcnt(0)"); del lq[:]
        waits = {}
        saved = a.l; q0 = list(q); a.l = []
        for s in range(NSTEP - 4): step(s, waits, emit=False)
        q_after = list(q); lq_after = list(lq); pend_after = list(pend); gap_after = list(gapc)
        a.l = saved; q[:] = q0; del lq[:]; del pend[:]; gapc[:] = [0, 0]
        head = []
        peel = True
        def signal():
            a("v_mov_b32 v%d, 1", T0)
            a("v_mov_b32 v%d, 0", T1)
            a("s_mov_b64 exec, 1")
            a("buffer_atomic_add v%d, v%d, s[%d:%d], s%d offen sc1", T0, T1, S_DBG, S_DBG + 3, S_C1); q.append(('A', 0))
            a("s_mov_b64 exec, -1")
        nit = NSTEP // 4 - 1
        if peel:
            for s in range(4):
                step(s, waits, emit=True)
                nst("s%d" % s)
            nit -= 1
        loop = a.newlab("L_g1_loop")
        a("s_mov_b32 s%d, %d", S_LOOP, nit)
        lq_ss = [(t[0], t[1] - 24) + tuple(t[2:]) for t in lq_after]
        assert lq_ss[len(lq_ss) - len(lq):] == lq, (lq_ss, lq)
        lq[:] = lq_ss
        lq_in = [(t[0], t[1] - 4) + tuple(t[2:]) for t in lq]
        a.label(loop)
        def sig_cond():
            l_ = a.newlab("L_g1_sig")
            a("s_cmp_lg_u32 s%d, %d", S_LOOP, nit)
            a("s_cbranch_scc1 %s", l_)
            signal()
            a.label(l_)
        for s in range(4, 8):
            step(s, waits, emit=True, hooks=({'bar': sig_cond} if (w == 0 and s == 7) else None))
        lq_out = [(t[0], t[1] - 8) + tuple(t[2:]) for t in lq]
        if peel: assert lq_in == lq_out, (lq_in, lq_out)
        else:
            a("s_waitcnt lgkmcnt(0)"); del lq[:]
        a("s_sub_u32 s%d, s%d, 1", S_LOOP, S_LOOP)
        a("s_cmp_lg_u32 s%d, 0", S_LOOP)
        a("s_cbranch_scc1 %s", loop)
        a.c("waits %s" % waits)
        q[:] = q_after; pend[:] = pend_after; gapc[:] = gap_after
        lq[:] = lq_after if peel else []
        nb = 9 if wn == 0 else 8
        def poll():
            a("v_mov_b32 v%d, 0", T2)
            a("buffer_load_dword v%d, v%d, s[%d:%d], s%d offen sc1", T0, T2, S_DBG, S_DBG + 3, S_C0); q.append(('C', 0))
            a("buffer_load_dword v%d, v%d, s[%d:%d], s%d offen sc1", T1, T2, S_DBG, S_DBG + 3, S_C1); q.append(('C', 0))
        def check():
            a("s_waitcnt vmcnt(%d)", need_count([('C', 0)]))
            a("v_min_u32 v%d, v%d, v%d", T0, T0, T1)
            a("v_readfirstlane_b32 s%d, v%d", S_OK, T0)
        def st_loads():
            a("v_and_b32 v%d, 15, v0", T2)
            a("v_lshlrev_b32 v%d, 3, v%d", T2, T2)
            a("s_add_u32 s%d, s%d, %d", S_STO, S_M0, 128 * wm)
            a("s_lshl_b32 s%d, s%d, 3", S_STO, S_STO)
            for b in range(nb):
                bb = b - 1 if wn == 0 else b
                if bb < 0:
                    a("s_max_u32 s%d, s%d, 128", S_K2, S_STO)
                    a("s_sub_u32 s%d, s%d, 128", S_K2, S_K2)
                    a("buffer_load_dwordx2 v[%d:%d], v%d, s[%d:%d], s%d offen sc1", ST + 2 * b, ST + 2 * b + 1, T2, S_ST, S_ST + 3, S_K2)
                else:
                    a("buffer_load_dwordx2 v[%d:%d], v%d, s[%d:%d], s%d offen offset:%d sc1", ST + 2 * b, ST + 2 * b + 1, T2, S_ST, S_ST + 3, S_STO, bb * 128)
                q.append(('R', 0))
        def check_and_load():
            check(); st_loads()
        nst("s27")
        step(28, hooks={70: poll}); step(29, hooks={60: check_and_load}); step(30); step(31)
        assert not pend
        nst("loop")
        lok = a.newlab("L_g1_ok"); lsp = a.newlab("L_g1_spin")
        a("s_cmp_ge_u32 s%d, 32", S_OK)
        a("s_cbranch_scc1 %s", lok)
        a.label(lsp)
        a("s_sleep 4")
        poll()
        a("s_waitcnt vmcnt(0)")
        a("v_min_u32 v%d, v%d, v%d", T0, T0, T1)
        a("s_nop 1")
        a("v_readfirstlane_b32 s%d, v%d", S_OK, T0)
        a("s_nop 1")
        a("s_cmp_lt_u32 s%d, 32", S_OK)
        a("s_cbranch_scc1 %s", lsp)
        st_loads()
        a.label(lok)
        a("s_nop 7")
        RR = 1
        CG = 10
        V_L16 = 18; V_SGL = 19
        boff = 1 if wn == 0 else 0
        def stt(mf): return "v[%d:%d]" % (ST + 2 * (mf + boff), ST + 2 * (mf + boff) + 3)
        def SD(mf): return ST + 2 * (mf + boff) + 1
        def cst(i): return "v[%d:%d]" % (CST + 4 * i, CST + 4 * i + 3)
        a("v_lshrrev_b32 v%d, 4, v0", T0)
        a("v_lshlrev_b32 v%d, 4, v%d", T0, T0)
        a("v_add_u32 v%d, %d, v%d", T0, L_CS, T0)
        a("v_lshlrev_b32 v%d, 2, v0", T1)
        a("v_add_u32 v%d, %d, v%d", T1, L_CS, T1)
        a("v_lshlrev_b32 v%d, 4, v0", V_L16)
        a("s_mov_b32 s%d, 0x00010001", S_MSK); a("s_mov_b32 s%d, 0x00010001", S_MSK + 1)
        a("s_mov_b64 exec, s[%d:%d]", S_MSK, S_MSK + 1)
        for i, nf in enumerate(hset):
            if not isV(nf): a("ds_write_b128 v%d, %s offset:%d", T0, HACC(i), (wn * 10 + nf) * 64)
        a("s_mov_b64 exec, 0xffff")
        for i, nf in enumerate(hset):
            if isV(nf): a("ds_write_b32 v%d, %s offset:%d", T1, HACC(i).sub(0), (wn * 10 + nf) * 64)
        a("s_mov_b64 exec, -1")
        if w == 0:
            a("v_add_u32 v%d, %d, v%d", T2, L_KV, V_L16)
            for i in range(4): a("ds_write_b128 v%d, %s offset:%d", T2, tiles[(2 + i, 7)], i * 1024)
        a("s_waitcnt vmcnt(0)")
        for b in range(nb): a("v_rcp_f32 v%d, v%d", RR + b, ST + 2 * b + 1)
        if wn == 0:
            a("v_and_b32 v%d, 15, v0", T3)
            a("v_lshlrev_b32 v%d, 2, v%d", T3, T3)
            a("v_add_u32 v%d, %d, v%d", T3, L_RT + w * 640, T3)
            for b in range(nb): a("ds_write_b32 v%d, v%d offset:%d", T3, RR + b, b * 64)
        for mf in range(8): a("v_mul_f32 v%d, %s, v%d", CG + mf, f32(-LOG2E), RR + mf + boff)
        a("s_lshl_b32 s%d, s%d, 14", S_AB, S_MT)
        if wm: a("s_add_u32 s%d, s%d, 8192", S_AB, S_AB)
        a("s_lshr_b32 s%d, s%d, 1", S_T, S_J)
        a("s_mul_i32 s%d, s%d, 7", S_T, S_T)
        a("s_add_u32 s%d, s%d, 32", S_T, S_T)
        a("s_lshl_b32 s%d, s%d, 2", S_T2, S_ODD)
        a("s_add_u32 s%d, s%d, s%d", S_T2, S_T2, S_T)
        a("s_mul_i32 s%d, s%d, %d", S_K1, S_T2, ACT_KB)
        a("s_add_u32 s%d, s%d, s%d", S_K1, S_K1, S_AB)
        a("s_add_u32 s%d, s%d, 3", S_T, S_T)
        a("s_mul_i32 s%d, s%d, %d", S_K2, S_T, ACT_KB)
        a("s_add_u32 s%d, s%d, s%d", S_K2, S_K2, S_AB)
        a("s_lshl_b32 s%d, s%d, 9", S_T, S_ODD)
        a("s_add_u32 s%d, s%d, s%d", S_K2, S_K2, S_T)
        a("s_mul_i32 s%d, s%d, %d", S_T, S_J, ACT_KB)
        a("s_add_u32 s%d, s%d, s%d", S_AB, S_AB, S_T)
        a("v_lshrrev_b32 v%d, 5, v0", T2)
        a("v_lshl_add_u32 v%d, v%d, 9, v%d", V_SGL, T2, V_L16)
        a("s_waitcnt lgkmcnt(0)")
        nst("e0")
        a("s_barrier")
        nst("e1")
        a("s_mov_b64 exec, 0xffff")
        for nf in range(10): a("ds_read_b32 v%d, v%d offset:%d", CSR + nf, T1, (wn * 10 + nf) * 64)
        a("s_mov_b64 exec, -1")
        if w == 1:
            a("v_add_u32 v%d, %d, v%d", T2, L_KV, V_L16)
            for i in range(4): a("ds_read_b128 %s, v%d offset:%d", HACC(i), T2, i * 1024)
        a("s_mov_b32 s%d, 0xffff0000", S_T3)
        a("s_waitcnt lgkmcnt(0)")
        for nf in range(0, 10, 2):
            for z in range(2): a("v_cvt_pk_bf16_f32 v%d, v%d, v%d", T2 + z, CSR + nf + z, CSR + nf + z)
            for z in range(2): a("v_and_b32 v%d, s%d, v%d", T2 + z, S_T3, T2 + z)
            for z in range(2): a("v_sub_f32 v%d, v%d, v%d", T2 + z, CSR + nf + z, T2 + z)
            for z in range(2): a("v_cvt_pk_bf16_f32 v%d, v%d, v%d", CSR + nf + z, CSR + nf + z, T2 + z)
        def corr(t, nf, mf, ci):
            if isV(nf): return "v_mfma_f32_16x16x32_bf16 %s, %s, %s, %s" % (t, stt(mf), cst(ci), t)
            return "v_mfma_f32_16x16x32_bf16 %s, %s, %s, %s" % (t, cst(ci), stt(mf), t)
        def fetch(t, tmp, L):
            if t.kind == 'v': return t.base
            for i in range(4): L.append("v_accvgpr_read_b32 v%d, %s" % (tmp + i, t.sub(i)))
            return tmp
        def mul4(L, d, s_, m):
            if PK:
                mb = m & ~1; sel = m & 1
                for i in (0, 2):
                    L.append("v_pk_mul_f32 v[%d:%d], v[%d:%d], v[%d:%d] op_sel:[0,%d] op_sel_hi:[1,%d]" % (d + i, d + i + 1, s_ + i, s_ + i + 1, mb, mb + 1, sel, sel))
            else:
                for i in range(4): L.append("v_mul_f32 v%d, v%d, v%d" % (d + i, s_ + i, m))
        def mul44(L, d, s_, m):
            if PK:
                for i in (0, 2):
                    L.append("v_pk_mul_f32 v[%d:%d], v[%d:%d], v[%d:%d]" % (d + i, d + i + 1, s_ + i, s_ + i + 1, m + i, m + i + 1))
            else:
                for i in range(4): L.append("v_mul_f32 v%d, v%d, v%d" % (d + i, s_ + i, m + i))
        def glu_half(g, u, mf, o):
            L = []
            mul4(L, g, g, CG + mf)
            for i in range(4): L.append("v_exp_f32 v%d, v%d" % (g + i, g + i))
            sd = SD(mf)
            if PK:
                for i in (0, 2):
                    L.append("v_pk_fma_f32 v[%d:%d], v[%d:%d], v[%d:%d], v[%d:%d] op_sel:[0,1,1] op_sel_hi:[1,1,1]" % (g + i, g + i + 1, g + i, g + i + 1, sd - 1, sd, sd - 1, sd))
            else:
                for i in range(4): L.append("v_fma_f32 v%d, v%d, v%d, v%d" % (g + i, g + i, sd, sd))
            for i in range(4): L.append("v_rcp_f32 v%d, v%d" % (g + i, g + i))
            mul44(L, u, u, g)
            return L
        def glu_group(grp, tmp, sbase, soff, vaddr):
            F = []
            (ga, ua, ma), (gb, ub, mb) = grp
            ra = fetch(ga, tmp, F); rua = fetch(ua, tmp + 4, F); rb = fetch(gb, tmp + 8, F); rub = fetch(ub, tmp + 12, F)
            L = F + zipl(glu_half(ra, rua, ma, 0), glu_half(rb, rub, mb, 0))
            L.append("s_add_u32 s%d, s%d, %d" % (S_T, sbase, soff))
            L.append("v_cvt_pk_bf16_f32 v%d, v%d, v%d" % (ra, rua, rua + 1))
            L.append("v_cvt_pk_bf16_f32 v%d, v%d, v%d" % (ra + 2, rub, rub + 1))
            L.append("v_cvt_pk_bf16_f32 v%d, v%d, v%d" % (ra + 1, rua + 2, rua + 3))
            L.append("v_cvt_pk_bf16_f32 v%d, v%d, v%d" % (ra + 3, rub + 2, rub + 3))
            L.append("v_permlane32_swap_b32 v%d, v%d" % (ra, ra + 2))
            L.append("v_permlane32_swap_b32 v%d, v%d" % (ra + 1, ra + 3))
            L.append("buffer_store_dwordx4 v[%d:%d], v%d, s[%d:%d], s%d offen%s" % (ra, ra + 3, vaddr, S_ACT, S_ACT + 3, S_T, STM))
            return L
        def run_groups(groups):
            for x_ in groups[0][0] + groups[0][1]: a(x_)
            for k, (pre, cl, vl) in enumerate(groups):
                nxt = (groups[k + 1][0] + groups[k + 1][1]) if k + 1 < len(groups) else []
                for x_ in spread(vl, nxt, 0.05, 0.6): a(x_)
        def glu_groups(pairs, tmps):
            G = []
            for (na_, nb_, sbase, kboff) in pairs:
                if nb_ is not None:
                    for mf in range(8):
                        pre = []
                        if mf == 0:
                            pre = ["v_mov_b32 v%d, v%d" % (CST + 4 * i, CSR + nf) for i, nf in enumerate((na_, na_ + 1, nb_, nb_ + 1))]
                        cl = [corr(tiles[(nf, mf)], nf, mf, i) for i, nf in enumerate((na_, na_ + 1, nb_, nb_ + 1))]
                        vl = glu_group([(tiles[(na_, mf)], tiles[(na_ + 1, mf)], mf), (tiles[(nb_, mf)], tiles[(nb_ + 1, mf)], mf)],
                                       tmps[len(G) & 1], sbase, kboff + mf * 1024, V_L16)
                        G.append((pre, cl, vl))
                else:
                    for mf in range(0, 8, 2):
                        pre = []
                        if mf == 0:
                            pre = ["v_mov_b32 v%d, v%d" % (CST + 4 * i, CSR + nf) for i, nf in enumerate((na_, na_ + 1))]
                        cl = [corr(tiles[(na_ + z, mf + y)], na_ + z, mf + y, z) for y in range(2) for z in range(2)]
                        vl = glu_group([(tiles[(na_, mf)], tiles[(na_ + 1, mf)], mf), (tiles[(na_, mf + 1)], tiles[(na_ + 1, mf + 1)], mf + 1)],
                                       tmps[len(G) & 1], sbase, kboff + mf * 1024, V_SGL)
                        G.append((pre, cl, vl))
            return G
        if wn == 1:
            run_groups(glu_groups([(0, 2, S_K1, 1 * ACT_KB), (4, 6, S_K1, 2 * ACT_KB), (8, None, S_K2, 0)], [TV, TV + 16]))
            a("s_branch %s", fin)
            return
        a("v_lshrrev_b32 v%d, 4, v0", T3)
        a("v_lshlrev_b32 v%d, 4, v%d", T3, T3)
        a("v_add_u32 v%d, %d, v%d", T3, L_RT + w * 640, T3)
        RV = [CSR + 0, CSR + 0]
        prevK = [HACC(0), HACC(1)]; prevV = [HACC(2), HACC(3)]
        return_tiles = None
        conv(a, w, wm, tiles, VPB, prevK, prevV, locals())

    def conv(a, w, wm, tiles, VPB, prevK, prevV, env):
        (corr, fetch, mul4, mul44, run_groups, glu_groups, stt, cst, SD, RR, CG, V_L16, V_SGL) = [env[k] for k in
            ("corr", "fetch", "mul4", "mul44", "run_groups", "glu_groups", "stt", "cst", "SD", "RR", "CG", "V_L16", "V_SGL")]
        FT = 10
        RVB = [14, 74]
        a("v_mov_b32 v%d, v%d", T5, T3)
        RA = T5
        KP = CST + 0
        for i in range(6): a("v_mov_b32 v%d, v%d", CST + 4 * i, CSR + i)
        KPK = CSR
        RQ = CSR + 4
        groups = []
        for b in range(-1, 8):
            pre = ["ds_read_b128 v[%d:%d], v%d offset:%d" % (RVB[(b + 1) & 1], RVB[(b + 1) & 1] + 3, RA, (b + 1) * 64)]
            tl = {}
            for nf in range(6):
                if b < 0:
                    if nf >= 2: tl[nf] = (prevK + prevV)[nf - 2]
                else: tl[nf] = tiles[(nf, b)]
            cl = [corr(t, nf, b, nf) for nf, t in tl.items()]
            L = []
            r_ = RR + b + 1
            if b >= 0:
                L.append("v_mul_f32 v%d, %s, v%d" % (RQ, f32(LOG2E * 32 ** -0.5), r_))
            for base_nf, mreg in ((2, r_), (0, RQ)):
                if base_nf not in tl: continue
                dst = KPK if b < 0 else tl[base_nf].base
                for f in range(2):
                    s_ = fetch(tl[base_nf + f], FT, L)
                    mul4(L, s_, s_, mreg)
                    L.append("v_cvt_pk_bf16_f32 v%d, v%d, v%d" % (dst + 2 * f, s_, s_ + 1))
                    L.append("v_cvt_pk_bf16_f32 v%d, v%d, v%d" % (dst + 2 * f + 1, s_ + 2, s_ + 3))
            L.append("s_waitcnt lgkmcnt(%d)" % (1 if b < 7 else 0))
            for f in range(2):
                s_ = fetch(tl[4 + f], FT, L)
                mul44(L, s_, s_, RVB[(b + 1) & 1])
                dst = VPB[f] + 2 * (b + 1)
                L.append("v_cvt_pk_bf16_f32 v%d, v%d, v%d" % (dst, s_, s_ + 1))
                L.append("v_cvt_pk_bf16_f32 v%d, v%d, v%d" % (dst + 1, s_ + 2, s_ + 3))
            groups.append((pre, cl, L))
        for x_ in groups[0][0] + groups[0][1]: a(x_)
        for k, (pre, cl, vl) in enumerate(groups):
            if k + 1 < len(groups):
                for x_ in groups[k + 1][0]: a(x_)
                for x_ in spread(vl, groups[k + 1][1], 0.05, 0.6): a(x_)
            else:
                for x_ in vl: a(x_)
        nst("e2")
        K1 = [tiles[(3, mf)].base for mf in range(8)]
        BP, BC, BPF = K1[0], K1[1], K1[2]
        a("v_and_b32 v%d, 15, v0", T0)
        a("v_lshrrev_b32 v%d, 4, v0", T1)
        a("v_lshlrev_b32 v%d, 2, v%d", T1, T1)
        a("v_sub_u32 v%d, v%d, v%d", T0, T0, T1)
        a("v_mov_b32 v%d, %s", T3, f32(-1e30))
        a("s_mov_b32 s%d, 0x80000001", S_T3)
        a("s_brev_b32 s%d, 1", S_T2)
        for i in range(4):
            a("v_subrev_u32 v%d, %d, v%d", T1, i, T0)
            a("v_and_b32 v%d, s%d, v%d", T1, S_T3, T1)
            a("v_cmp_eq_u32 vcc, 0, v%d", T1)
            a("v_cndmask_b32 v%d, v%d, 0, vcc", BC + i, T3)
            a("v_cmp_eq_u32 vcc, s%d, v%d", S_T2, T1)
            a("v_cndmask_b32 v%d, v%d, 0, vcc", BP + i, T3)
        if wm == 0:
            a("s_cmp_eq_u32 s%d, 0", S_M0)
            a("s_cselect_b64 vcc, -1, 0")
            for i in range(4): a("v_cndmask_b32 v%d, v%d, v%d, vcc", BPF + i, BP + i, T3)
        else: BPF = BP
        sets = [(VPB[0] + 18, K1[3], K1[4]), (VPB[1] + 18, K1[5], K1[6])]
        def attn(b):
            base, P, M = sets[b & 1]
            SP, SC, O0, O1 = base, base + 4, base + 8, base + 12
            Tm = M + 1; Sm = M + 2; S2 = M + 3
            Qb = tiles[(0, b)].base; Kb = tiles[(2, b)].base; Kp = KPK if b == 0 else tiles[(2, b - 1)].base
            bp = BPF if b == 0 else BP
            L = []
            L.append("v_mfma_f32_16x16x32_bf16 v[%d:%d], v[%d:%d], v[%d:%d], v[%d:%d]" % (SP, SP + 3, Kp, Kp + 3, Qb, Qb + 3, bp, bp + 3))
            L.append("v_mfma_f32_16x16x32_bf16 v[%d:%d], v[%d:%d], v[%d:%d], v[%d:%d]" % (SC, SC + 3, Kb, Kb + 3, Qb, Qb + 3, BC, BC + 3))
            L += ["NOP"] * 4
            L.append("v_max3_f32 v%d, v%d, v%d, v%d" % (M, SP, SP + 1, SP + 2))
            L.append("v_max3_f32 v%d, v%d, v%d, v%d" % (Tm, SP + 3, SC, SC + 1))
            L.append("v_max3_f32 v%d, v%d, v%d, v%d" % (M, M, SC + 2, SC + 3))
            L.append("v_max_f32 v%d, v%d, v%d" % (M, M, Tm))
            for sw in ("16", "32"):
                L.append("v_mov_b32 v%d, v%d" % (Tm, M))
                L.append("v_permlane%s_swap_b32 v%d, v%d" % (sw, M, Tm))
                L.append("v_max_f32 v%d, v%d, v%d" % (M, M, Tm))
            for i in range(8): L.append("v_sub_f32 v%d, v%d, v%d" % (SP + i, SP + i, M))
            for i in range(8): L.append("v_exp_f32 v%d, v%d" % (SP + i, SP + i))
            for i in range(4): L.append("v_cvt_pk_bf16_f32 v%d, v%d, v%d" % (P + i, SP + 2 * i, SP + 2 * i + 1))
            L.append("v_add_f32 v%d, v%d, v%d" % (Sm, SP, SP + 1))
            L.append("v_add_f32 v%d, v%d, v%d" % (S2, SP + 2, SP + 3))
            for f, O in enumerate((O0, O1)):
                vb = VPB[f] + 2 * b
                L.append("v_mfma_f32_16x16x32_bf16 v[%d:%d], v[%d:%d], v[%d:%d], 0" % (O, O + 3, vb, vb + 3, P, P + 3))
            L.append("v_add_f32 v%d, v%d, v%d" % (Sm, Sm, SP + 4))
            L.append("v_add_f32 v%d, v%d, v%d" % (S2, S2, SP + 5))
            L.append("v_add_f32 v%d, v%d, v%d" % (Sm, Sm, SP + 6))
            L.append("v_add_f32 v%d, v%d, v%d" % (S2, S2, SP + 7))
            L.append("v_add_f32 v%d, v%d, v%d" % (Sm, Sm, S2))
            for sw in ("16", "32"):
                L.append("v_mov_b32 v%d, v%d" % (Tm, Sm))
                L.append("v_permlane%s_swap_b32 v%d, v%d" % (sw, Sm, Tm))
                L.append("v_add_f32 v%d, v%d, v%d" % (Sm, Sm, Tm))
            L.append("v_rcp_f32 v%d, v%d" % (Sm, Sm))
            mul4(L, O0, O0, Sm); mul4(L, O1, O1, Sm)
            st_ = S_T if b & 1 else S_T2
            L.append("s_add_u32 s%d, s%d, %d" % (st_, S_AB, b * 1024))
            L.append("v_cvt_pk_bf16_f32 v%d, v%d, v%d" % (SP, O0, O0 + 1))
            L.append("v_cvt_pk_bf16_f32 v%d, v%d, v%d" % (SP + 2, O1, O1 + 1))
            L.append("v_cvt_pk_bf16_f32 v%d, v%d, v%d" % (SP + 1, O0 + 2, O0 + 3))
            L.append("v_cvt_pk_bf16_f32 v%d, v%d, v%d" % (SP + 3, O1 + 2, O1 + 3))
            L.append("v_permlane32_swap_b32 v%d, v%d" % (SP, SP + 2))
            L.append("v_permlane32_swap_b32 v%d, v%d" % (SP + 1, SP + 3))
            L.append("buffer_store_dwordx4 v[%d:%d], v%d, s[%d:%d], s%d offen%s" % (SP, SP + 3, V_L16, S_ACT, S_ACT + 3, st_, STM))
            return L
        SAa = sum((attn(b) for b in range(0, 8, 2)), [])
        SBb = sum((attn(b) for b in range(1, 8, 2)), [])
        sh = len(attn(0)) // 2
        for x_ in zipl(SAa + ["NOP"] * sh, ["NOP"] * sh + SBb):
            if x_ != "NOP": a(x_)
        nst("e3")
        for mf in range(8): a("v_mul_f32 v%d, %s, v%d", CG + mf, f32(-LOG2E), RR + mf + 1)
        run_groups(glu_groups([(6, 8, S_K1, 0)], [TV, TV + 16]))
        a("s_branch %s", fin)

    for w in range(4):
        variant(w)
        a("s_nop 7"); a("s_nop 7")
        for l1, l2 in SPINS:
            a.label(l1)
            a("ds_read_b32 v%d, v%d", V_FD, V_FR)
            a("s_waitcnt lgkmcnt(0)")
            a("v_cmp_lt_u32 vcc, v%d, v%d", V_FD, V_FS)
            a("s_cbranch_vccnz %s", l1)
            a("s_branch %s", l2)
        del SPINS[:]
    a.label(fin)
    nst("epi")
    if opt.get("prof"):
        a("s_waitcnt vmcnt(0)")
    stamp(a, opt, 4)
    stamp_store(a, opt, 5, P_WS, S_W, 1, 20)
    a.label(done)
    a("s_endpgm")
    lines, added = hazard.fix(a.l)
    a0.l += lines
    a0._lab = a._lab
    return kernel_desc(name, 512, 256, 100)
```

```python
from gen_common import *

G2_LDS = 131072
ASLOT = 16384
WB = 65536

def gen_g2(a, name="g2_kernel", opt=None):
    opt = opt or {}
    M = opt.get("g2_m", 16)
    K1 = (72 - M) // 2
    NS = K1 + M
    LA = opt.get("g2_la", 4)
    assert (K1 - 4) % 4 == 0 and (M - 8) % 4 == 0 and K1 >= 20
    S_A = 4; S_W = 8; S_X = 12; S_O = 16; S_P = 20; S_F = 24
    S_AROW = [28, 29, 30, 31]
    S_AK = 32; S_WK = 33; S_WV = 34; S_WM = 35; S_WN = 36; S_KS = 37; S_MT = 38; S_NT = 39
    S_T = 40; S_T2 = 41; S_LOOP = 42; S_W1024 = 43; S_D16 = 44; S_DJA = 45; S_DJW = 46
    S_PSEND = 47; S_PRECV = 48; S_FSEND = 49; S_FRECV = 50; S_OK = 51; S_XROW = 52
    P_X = 54; P_WO = 56; P_WD = 58; P_OUT = 60; P_WS = 62
    V_ADMA = 1; V_WDMA = 2; V_AR = [3, 4]; V_WR = [5, 6, 7, 8]; V_L16 = 9; V_XO = 10; V_FL = 11; V_ONE = 12; V_ZERO = 13
    T0, T1, T2, T3 = 14, 15, 16, 17
    XL = 20
    def keep(mf, nf): return R('v', 40 + (mf * 4 + nf) * 4, 4)
    def send(mf, nf): return R('v', 72 + (mf * 4 + nf) * 4, 4)
    def afrag(st, i): return R('v', 104 + st * 32 + i * 4, 4)
    def wfrag(st, nf): return R('v', 104 + st * 32 + 16 + nf * 4, 4)
    RECV = 168

    kernel_header(a, name)
    done = a.newlab("L_g2_done")
    a("s_cmp_ge_u32 s2, 256")
    a("s_cbranch_scc1 %s", done)
    stamp(a, opt, 0)
    a("s_load_dwordx2 s[%d:%d], s[0:1], 0", P_X, P_X + 1)
    a("s_load_dwordx2 s[%d:%d], s[0:1], 16", P_WO, P_WO + 1)
    a("s_load_dwordx2 s[%d:%d], s[0:1], 48", P_WD, P_WD + 1)
    a("s_load_dwordx2 s[%d:%d], s[0:1], 56", P_OUT, P_OUT + 1)
    a("s_load_dwordx2 s[%d:%d], s[0:1], 72", P_WS, P_WS + 1)
    a("v_lshrrev_b32 v%d, 6, v0", T0)
    a("v_and_b32 v0, 63, v0")
    a("s_nop 0")
    a("v_readfirstlane_b32 s%d, v%d", S_WV, T0)
    LD = opt.get("g2_ld", 0)
    S_ROLE = 53
    if LD:
        a("s_lshr_b32 s%d, s%d, 2", S_ROLE, S_WV)
        a("s_and_b32 s%d, s%d, 3", S_WV, S_WV)
    a("s_and_b32 s%d, s2, 1", S_KS)
    if opt.get("g2_map", "4x8") == "4x8":
        a("s_bfe_u32 s%d, s2, 0x20001", S_MT)
        a("s_lshl_b32 s%d, s%d, 2", S_MT, S_MT)
        a("s_lshr_b32 s%d, s2, 6", S_T)
        a("s_add_u32 s%d, s%d, s%d", S_MT, S_MT, S_T)
        a("s_bfe_u32 s%d, s2, 0x30003", S_NT)
    else:
        a("s_bfe_u32 s%d, s2, 0x10001", S_MT)
        a("s_lshl_b32 s%d, s%d, 3", S_MT, S_MT)
        a("s_lshr_b32 s%d, s2, 5", S_T)
        a("s_add_u32 s%d, s%d, s%d", S_MT, S_MT, S_T)
        a("s_bfe_u32 s%d, s2, 0x10002", S_NT)
        a("s_lshl_b32 s%d, s%d, 2", S_NT, S_NT)
        a("s_bfe_u32 s%d, s2, 0x20003", S_T)
        a("s_add_u32 s%d, s%d, s%d", S_NT, S_NT, S_T)
    a("s_and_b32 s%d, s%d, 1", S_WM, S_WV)
    a("s_lshr_b32 s%d, s%d, 1", S_WN, S_WV)
    a("s_lshl_b32 s%d, s%d, 10", S_W1024, S_WV)
    PKD = opt.get("g1b", 0)
    AKB = opt.get("akb", 131072)
    ASTEP = 2 * AKB if PKD else 128
    if PKD:
        a("v_lshlrev_b32 v%d, 4, v0", V_ADMA)
    else:
        a("v_lshrrev_b32 v%d, 4, v0", T0)
        a("s_lshl_b32 s%d, s%d, 2", S_T, S_WM)
        a("v_add_u32 v%d, s%d, v%d", T0, S_T, T0)
        a("v_and_b32 v%d, 7, v0", T1)
        a("v_xor_b32 v%d, v%d, v%d", T0, T0, T1)
        a("v_lshlrev_b32 v%d, 4, v%d", T0, T0)
        a("v_lshrrev_b32 v%d, 3, v0", T1)
        a("v_mul_u32_u24 v%d, %d, v%d", T1, ACT2_STRIDE, T1)
        a("v_add_u32 v%d, v%d, v%d", V_ADMA, T1, T0)
    a("v_lshrrev_b32 v%d, 4, v0", T0)
    a("s_lshl_b32 s%d, s%d, 2", S_T, S_WM if PKD else S_WN)
    a("v_or_b32 v%d, s%d, v%d", T1, S_T, T0)
    a("v_lshlrev_b32 v%d, 1, v%d", T1, T1)
    a("v_and_b32 v%d, 15, v0", T2)
    a("v_xor_b32 v%d, v%d, v%d", T1, T1, T2)
    PC = opt.get("g2_piece", 256)
    if PC == 128:
        a("v_lshrrev_b32 v%d, 3, v%d", T2, T1)
        a("v_and_b32 v%d, 7, v%d", T1, T1)
        a("v_lshl_add_u32 v%d, v%d, 5, v%d", T1, T2, T1)
    elif PC == 64:
        a("v_lshrrev_b32 v%d, 2, v%d", T2, T1)
        a("v_and_b32 v%d, 3, v%d", T1, T1)
        a("v_lshl_add_u32 v%d, v%d, 4, v%d", T1, T2, T1)
    a("v_lshlrev_b32 v%d, 4, v%d", T1, T1)
    a("v_lshl_add_u32 v%d, v%d, 11, v%d", V_WDMA, T0, T1)
    W2P = opt.get("w2p", 0)
    if W2P: a("v_lshlrev_b32 v%d, 4, v0", V_WDMA)
    S_CB = 64
    if PC == 256: a("s_lshl_b32 s%d, s%d, 8", S_CB, S_NT)
    else:
        a("s_and_b32 s%d, s%d, 3", S_CB, S_NT)
        a("s_mul_i32 s%d, s%d, %d", S_CB, S_CB, PC)
        a("s_lshr_b32 s%d, s%d, 2", S_T, S_NT)
        a("s_lshl_b32 s%d, s%d, 10", S_T, S_T)
        a("s_add_u32 s%d, s%d, s%d", S_CB, S_CB, S_T)
    WNB = 128 if PC == 256 else 512
    PB = 256 if PC == 64 else 64
    a("s_lshl_b32 s%d, s%d, 7", S_T, S_MT)
    a("s_lshl_b32 s%d, s%d, 6", S_T2, S_KS)
    a("s_add_u32 s%d, s%d, s%d", S_XROW, S_T, S_T2)
    a("s_xor_b32 s%d, s%d, 64", S_T2, S_XROW)
    if PKD:
        a("s_lshl_b32 s%d, s%d, 6", S_AROW[0], S_XROW)
        a("s_add_u32 s%d, s%d, s%d", S_AROW[0], S_AROW[0], S_W1024)
        a("s_add_u32 s%d, s%d, %d", S_AROW[1], S_AROW[0], AKB)
        a("s_lshl_b32 s%d, s%d, 6", S_AROW[2], S_T2)
        a("s_add_u32 s%d, s%d, s%d", S_AROW[2], S_AROW[2], S_W1024)
        a("s_add_u32 s%d, s%d, %d", S_AROW[3], S_AROW[2], AKB)
    else:
        a("s_lshl_b32 s%d, s%d, 3", S_T, S_WV)
        a("s_add_u32 s%d, s%d, s%d", S_AROW[0], S_XROW, S_T)
        a("s_mul_i32 s%d, s%d, %d", S_AROW[0], S_AROW[0], ACT2_STRIDE)
        a("s_add_u32 s%d, s%d, %d", S_AROW[1], S_AROW[0], 32 * ACT2_STRIDE)
        a("s_add_u32 s%d, s%d, s%d", S_AROW[2], S_T2, S_T)
        a("s_mul_i32 s%d, s%d, %d", S_AROW[2], S_AROW[2], ACT2_STRIDE)
        a("s_add_u32 s%d, s%d, %d", S_AROW[3], S_AROW[2], 32 * ACT2_STRIDE)
    a("s_mul_i32 s%d, s%d, %d", S_AK, S_KS, (K1 + M) * ASTEP)
    if W2P:
        a("s_mul_i32 s%d, s%d, %d", S_WK, S_KS, (K1 + M) * 64 * 2048)
        a("s_add_u32 s%d, s%d, s%d", S_WK, S_WK, S_W1024)
        a("s_lshl_b32 s%d, s%d, 13", S_T, S_NT)
        a("s_add_u32 s%d, s%d, s%d", S_WK, S_WK, S_T)
    else:
        a("s_mul_i32 s%d, s%d, %d", S_WK, S_KS, ((K1 + M) * 64 - 1024) * 2048)
        a("s_lshl_b32 s%d, s%d, 13", S_T, S_WV)
        a("s_add_u32 s%d, s%d, s%d", S_WK, S_WK, S_T)
        a("s_add_u32 s%d, s%d, s%d", S_WK, S_WK, S_CB)
    a("s_cmp_eq_u32 s%d, 0", S_KS)
    a("s_cselect_b32 s%d, 0x%x, 0", S_D16, (-1024 * 2048) & 0xffffffff)
    a("s_cselect_b32 s%d, 0, 0x%x", S_DJA, ((K1 - 72) * ASTEP) & 0xffffffff)
    a("s_cselect_b32 s%d, 0, 0x%x", S_DJW, ((K1 - 72) * 64 * 2048) & 0xffffffff)
    a("s_waitcnt lgkmcnt(0)")
    make_srd(a, S_A, P_WS, 144 * AKB if PKD else 2048 * ACT2_STRIDE, WS_ACT2)
    a("s_cmp_eq_u32 s%d, 0", S_KS)
    a("s_cselect_b32 s%d, s%d, s%d", S_W, P_WO, P_WD)
    a("s_cselect_b32 s%d, s%d, s%d", S_W + 1, P_WO + 1, P_WD + 1)
    a("s_mov_b32 s%d, 0x%x", S_W + 2, 3584 * 2048)
    a("s_cselect_b32 s%d, 0x%x, s%d", S_W + 2, 1024 * 2048, S_W + 2)
    a("s_mov_b32 s%d, 0x00020000", S_W + 3)
    if W2P: make_srd(a, S_W, P_WS, 4608 * 2048, WS_W2P)
    make_srd(a, S_X, P_X, 2048 * 2048)

    q = []
    def a_jobs(slot, full):
        jobs = []
        for i in range(4 if full else 2):
            jobs.append(["s_add_u32 m0, s%d, %d" % (S_W1024, slot * ASLOT + i * 4096),
                         "s_add_u32 s%d, s%d, s%d" % (S_T, S_AK, S_AROW[i]),
                         "buffer_load_dwordx4 v%d, s[%d:%d], s%d offen%s lds" % (V_ADMA, S_A, S_A + 3, S_T, opt.get("g2_amod", ""))])
        if not opt.get("g2_samea"): jobs[-1].append("s_add_u32 s%d, s%d, %d" % (S_AK, S_AK, ASTEP))
        return jobs
    def w_jobs(slot):
        jobs = []
        for i in range(4):
            jobs.append(["s_add_u32 m0, s%d, %d" % (S_W1024, WB + slot * ASLOT + i * 4096),
                         "s_add_u32 s%d, s%d, %d" % (S_T, S_WK, ((i >> 1) * 65536 + (i & 1) * 4096) if W2P else i * 32768),
                         "buffer_load_dwordx4 v%d, s[%d:%d], s%d offen%s lds" % (V_WDMA, S_W, S_W + 3, S_T, opt.get("g2_wmod", ""))])
        if not opt.get("g2_samew"): jobs[-1].append("s_add_u32 s%d, s%d, %d" % (S_WK, S_WK, 64 * 2048))
        return jobs
    def block_jobs(b):
        aj = a_jobs(b & 3, b < K1); wj = w_jobs(b & 3)
        out = []
        for i in range(4):
            out.append(wj[i])
            if i < len(aj): out.append(aj[i])
        return [(j, ('B', b)) for j in out]
    def emit_now(jobs):
        for jb, tag in jobs:
            for s in jb: a(s)
            q.append(tag)
    def need_count(tags):
        last = max(i for i, t in enumerate(q) if t in tags)
        return len(q) - 1 - last
    if LD:
        lcons = a.newlab("L_g2_cons")
        a("s_cmp_eq_u32 s%d, 0", S_ROLE)
        a("s_cbranch_scc1 %s", lcons)
        for b in range(0, LA): emit_now(block_jobs(b))
        a("s_waitcnt vmcnt(%d)", need_count([('B', 0)]))
        a("s_barrier")
        def ld_step(c, ev16=False, wait=None):
            a("s_waitcnt vmcnt(%d)", need_count([('B', c + 1)]) if wait is None else wait)
            a("s_barrier")
            if c + LA == K1:
                a("s_add_u32 s%d, s%d, s%d" % (S_AK, S_AK, S_DJA)); a("s_add_u32 s%d, s%d, s%d" % (S_WK, S_WK, S_DJW))
            if ev16 and not W2P:
                for t_ in ["s_cmp_eq_u32 s%d, %d" % (S_LOOP, (K1 - 4) // 4 - (16 - LA) // 4),
                   "s_cselect_b32 s%d, s%d, s%d" % (S_W, P_WD, S_W),
                   "s_cselect_b32 s%d, s%d, s%d" % (S_W + 1, P_WD + 1, S_W + 1),
                   "s_cselect_b32 s%d, 0x%x, s%d" % (S_W + 2, 3584 * 2048, S_W + 2),
                   "s_cselect_b32 s%d, s%d, 0" % (S_T2, S_D16),
                   "s_add_u32 s%d, s%d, s%d" % (S_WK, S_WK, S_T2)]: a(t_)
            if c + LA < NS: emit_now(block_jobs(c + LA))
        def ld_loop(c0, c1, ev16):
            nonlocal q
            nit = (c1 - c0) // 4
            if nit == 0: return
            lab = a.newlab("L_g2_ldloop")
            a("s_mov_b32 s%d, %d", S_LOOP, nit)
            a.label(lab)
            for ds in range(4): ld_step(c0 + ds, ev16 and ds == (16 - LA) % 4)
            a("s_sub_u32 s%d, s%d, 1", S_LOOP, S_LOOP)
            a("s_cmp_lg_u32 s%d, 0", S_LOOP)
            a("s_cbranch_scc1 %s", lab)
            saved = a.l; a.l = []
            for c in range(c0 + 4, c1): ld_step(c)
            a.l = saved
        ld_loop(0, K1 - 4, True)
        for c in range(K1 - 4, K1 + 4): ld_step(c)
        ld_loop(K1 + 4, NS - 4, False)
        for c in range(NS - 4, NS - 1): ld_step(c)
        a("s_endpgm")
        a.label(lcons)
        q = []
        if opt.get("g2_prio"): a("s_setprio %d", opt["g2_prio"])
        def block_jobs(b): return []
    emit_now(block_jobs(0))
    a("v_and_b32 v%d, 15, v0", T0)
    a("v_lshrrev_b32 v%d, 4, v0", T1)
    a("v_lshlrev_b32 v%d, 11, v%d", T0, T0)
    a("v_lshl_add_u32 v%d, v%d, 3, v%d", T2, T1, T0)
    a("s_lshl_b32 s%d, s%d, 5", S_T, S_WM)
    a("s_add_u32 s%d, s%d, s%d", S_XROW, S_XROW, S_T)
    a("s_lshl_b32 s%d, s%d, 11", S_XROW, S_XROW)
    a("s_add_u32 s%d, s%d, s%d", S_XROW, S_XROW, S_CB)
    a("s_mul_i32 s%d, s%d, %d", S_T, S_WN, WNB)
    a("s_add_u32 s%d, s%d, s%d", S_XROW, S_XROW, S_T)
    a("s_add_u32 s%d, s%d, %d", S_T2, S_XROW, 16 * 2048)
    for mf in range(2):
        for nf in range(4):
            d = XL + (mf * 4 + nf) * 2
            a("buffer_load_dwordx2 v[%d:%d], v%d, s[%d:%d], s%d offen offset:%d", d, d + 1, T2, S_X, S_X + 3, S_XROW if mf == 0 else S_T2, (nf & 1) * 32 + (nf >> 1) * PB)
            q.append(('X', 0))
    for b in range(1, LA): emit_now(block_jobs(b))
    a("v_and_b32 v%d, 1, v%d", T2, T1)
    a("v_lshl_add_u32 v%d, v%d, 5, v%d", T2, T2, T0)
    a("v_lshrrev_b32 v%d, 1, v%d", T3, T1)
    a("v_lshl_add_u32 v%d, v%d, 4, v%d", V_XO, T3, T2)
    make_srd(a, S_O, P_OUT, 2048 * 2048)
    make_srd(a, S_P, P_WS, 256 * 32768, WS_PART)
    make_srd(a, S_F, P_WS, 4096, WS_FLAGS)
    a("s_lshl_b32 s%d, s%d, 3", S_T, S_MT)
    a("s_add_u32 s%d, s%d, s%d", S_T, S_T, S_NT)
    a("s_lshl_b32 s%d, s%d, 1", S_T, S_T)
    a("s_add_u32 s%d, s%d, s%d", S_T, S_T, S_KS)
    a("s_lshl_b32 s%d, s%d, 2", S_T, S_T)
    a("s_add_u32 s%d, s%d, s%d", S_T, S_T, S_WV)
    a("s_xor_b32 s%d, s%d, 4", S_T2, S_T)
    a("s_lshl_b32 s%d, s%d, 13", S_PRECV, S_T)
    a("s_lshl_b32 s%d, s%d, 13", S_PSEND, S_T2)
    a("s_lshl_b32 s%d, s%d, 2", S_FRECV, S_T)
    a("s_lshl_b32 s%d, s%d, 2", S_FSEND, S_T2)
    a("v_lshlrev_b32 v%d, 4, v0", V_L16)
    a("v_mov_b32 v%d, 1", V_ONE)
    a("v_mov_b32 v%d, 0", V_ZERO)
    a("v_and_b32 v%d, 15, v0", T0)
    a("v_lshrrev_b32 v%d, 1, v%d", T2, T0)
    a("s_lshl_b32 s%d, s%d, 5", S_T, S_WM)
    a("v_add_u32 v%d, s%d, v%d", T0, S_T, T0)
    a("v_lshlrev_b32 v%d, 7, v%d", T0, T0)
    a("v_xor_b32 v%d, v%d, v%d", T2, T2, T1)
    a("v_lshl_add_u32 v%d, v%d, 4, v%d", V_AR[0], T2, T0)
    a("v_xor_b32 v%d, 64, v%d", V_AR[1], V_AR[0])
    if PKD:
        a("s_lshl_b32 s%d, s%d, 11", S_T, S_WM)
        a("v_add_u32 v%d, s%d, v%d", V_AR[0], S_T, V_L16)
        a("v_add_u32 v%d, 4096, v%d", V_AR[1], V_AR[0])
    a("v_bfe_u32 v%d, v0, 2, 2", T0)
    a("v_lshl_add_u32 v%d, v%d, 3, v%d", T2, T1, T0)
    if PKD:
        a("v_and_b32 v%d, 1, v%d", T3, T1)
        a("v_lshlrev_b32 v%d, 2, v%d", T3, T3)
        a("v_sub_u32 v%d, v%d, v%d", T2, T2, T3)
    a("v_lshlrev_b32 v%d, 8, v%d", T2, T2)
    a("v_and_b32 v%d, 3, v0", T3)
    a("v_lshl_add_u32 v%d, v%d, 3, v%d", T2, T3, T2)
    a("v_add_u32 v%d, %d, v%d", T2, WB, T2)
    a("v_and_b32 v%d, 1, v%d", T3, T1)
    a("v_lshl_or_b32 v%d, v%d, 2, v%d", T0, T3, T0)
    a("s_lshl_b32 s%d, s%d, 2", S_T, S_WN)
    a("v_xor_b32 v%d, s%d, v%d", T0, S_T, T0)
    for nf in range(4):
        a("v_xor_b32 v%d, %d, v%d", T3, nf, T0)
        a("v_lshl_add_u32 v%d, v%d, 5, v%d", V_WR[nf], T3, T2)
    if W2P:
        a("s_lshl_b32 s%d, s%d, 12", S_T, S_WN)
        a("s_add_u32 s%d, s%d, %d", S_T, S_T, WB)
        a("v_add_u32 v%d, s%d, v%d", V_WR[0], S_T, V_L16)
    for mf in range(2):
        for nf in range(4):
            for i in range(4): a("v_mov_b32 %s, 0", send(mf, nf).sub(i))

    a("s_waitcnt vmcnt(%d)", need_count([('X', 0)]))
    a("s_mov_b32 s%d, 0xffff0000", S_T)
    for mf in range(2):
        for nf in range(4):
            d = XL + (mf * 4 + nf) * 2; t = keep(mf, nf)
            a("v_lshlrev_b32 %s, 16, v%d", t.sub(0), d)
            a("v_and_b32 %s, s%d, v%d", t.sub(1), S_T, d)
            a("v_lshlrev_b32 %s, 16, v%d", t.sub(2), d + 1)
            a("v_and_b32 %s, s%d, v%d", t.sub(3), S_T, d + 1)

    def reads_for(c, kk, st):
        slot = c & 3; full = c < K1
        wr = []
        for nf in range(4):
            for r in range(2):
                wr.append("ds_read_b64_tr_b16 %s, v%d offset:%d" % (wfrag(st, nf).sub(2 * r, 2), V_WR[nf], slot * ASLOT + kk * 8192 + r * (2048 if PKD else 1024)))
        if W2P:
            wr = ["ds_read_b128 %s, v%d offset:%d" % (wfrag(st, nf), V_WR[0], slot * ASLOT + kk * 8192 + nf * 1024) for nf in range(4)]
            ar_ = ["ds_read_b128 %s, v%d offset:%d" % (afrag(st, i), V_AR[kk], slot * ASLOT + (i >> 1) * 8192 + (i & 1) * 1024) for i in range(4 if full else 2)]
            return [wr[0]] + ar_ + wr[1:]
        ar_ = ["ds_read_b128 %s, v%d offset:%d" % (afrag(st, i), V_AR[kk], slot * ASLOT + (i >> 1) * 8192 + (i & 1) * (1024 if PKD else 2048)) for i in range(4 if full else 2)]
        return [wr[0], wr[1]] + ar_ + wr[2:]
    def mfmas(c, st):
        na = 4 if c < K1 else 2
        out = []
        for nf in range(4):
            idx = list(range(na))
            if nf & 1: idx = idx[::-1]
            for i in idx:
                t = keep(i, nf) if i < 2 else send(i - 2, nf)
                out.append("s_nop 0" if opt.get("g2_nomfma") else "v_mfma_f32_16x16x32_bf16 %s, %s, %s, %s" % (t, wfrag(st, nf), afrag(st, i), t))
        return out

    def substep(c, kk, pending, waitN=None, last=False, extra=None, post_barrier=None):
        ms = mfmas(c, kk)
        n = len(ms)
        fill = [[] for _ in range(n)]
        nxt = (c, 1) if kk == 0 else (None if last else (c + 1, 0))
        rd = reads_for(nxt[0], nxt[1], 1 - kk) if nxt else []
        a("s_waitcnt lgkmcnt(0)")
        gi = 0
        if kk == 1 and not last:
            fill[0] += ["WAITVM", "s_barrier"] + (post_barrier or [])
        rpg = opt.get("g2_rpg", 2) if n == 16 else 2
        i = 0
        while i < len(rd):
            fill[gi] += rd[i:i + rpg]; i += rpg; gi += 1
        if extra:
            for g_, ins in extra: fill[g_] += ins
        npend = len(pending) if kk == 0 else (len(pending) + 1) // 2
        slots = [min(n - 1, 1 + (j * n) // max(npend, 1)) for j in range(npend)]
        for k_, m in enumerate(ms):
            a(m)
            for f in fill[k_]:
                if f == "WAITVM":
                    wn_ = waitN()
                    if wn_ is not None: a("s_waitcnt vmcnt(%d)" % wn_)
                elif isinstance(f, tuple):
                    a(f[0]); q.append(f[1])
                else: a(f)
            while slots and slots[0] == k_:
                slots.pop(0)
                jb, tag = pending.pop(0)
                for x in jb: a(x)
                q.append(tag)

    FLAG_AT = K1 + opt.get("g2_flag_at", 1)
    def run_step(c, waits=None, key=None, emit=True, ev16=False):
        pend = block_jobs(c + LA) if c + LA < NS else []
        pb = []
        if c + LA == K1 and not opt.get("g2_samea") and not LD:
            pb += ["s_add_u32 s%d, s%d, s%d" % (S_AK, S_AK, S_DJA), "s_add_u32 s%d, s%d, s%d" % (S_WK, S_WK, S_DJW)]
        if ev16 and not opt.get("g2_samew") and not LD and not W2P:
            pb += ["s_cmp_eq_u32 s%d, %d" % (S_LOOP, (K1 - 4) // 4 - (16 - LA) // 4),
                   "s_cselect_b32 s%d, s%d, s%d" % (S_W, P_WD, S_W),
                   "s_cselect_b32 s%d, s%d, s%d" % (S_W + 1, P_WD + 1, S_W + 1),
                   "s_cselect_b32 s%d, 0x%x, s%d" % (S_W + 2, 3584 * 2048, S_W + 2),
                   "s_cselect_b32 s%d, s%d, 0" % (S_T2, S_D16),
                   "s_add_u32 s%d, s%d, s%d" % (S_WK, S_WK, S_T2)]
        last = (c == NS - 1)
        def wN():
            if LD: return need_count([('S', 0)]) if c == FLAG_AT else None
            if waits is not None and emit: return waits[key]
            tags = [('B', c + 1)]
            if c == FLAG_AT: tags.append(('S', 0))
            n = min(63, need_count(tags))
            if waits is not None: waits[key] = min(waits.get(key, 63), n)
            return n
        if c == FLAG_AT:
            pb += [("buffer_store_dword v%d, v%d, s[%d:%d], s%d offen sc1" % (V_ONE, V_ZERO, S_F, S_F + 3, S_FSEND), ('F', 0))]
        ex1 = None
        if c == NS - 4:
            ex1 = [(2, [("buffer_load_dword v%d, v%d, s[%d:%d], s%d offen sc1" % (V_FL, V_ZERO, S_F, S_F + 3, S_FRECV), ('FL', 0))])]
        substep(c, 1, pend, waitN=wN, last=last, post_barrier=pb, extra=ex1)
        if last: return
        ex0 = None
        if c + 1 == K1:
            ex0 = []
            for t in range(8):
                s_ = send(t >> 2, t & 3)
                ex0.append((min(7, 2 + t), [("buffer_store_dwordx4 %s, v%d, s[%d:%d], s%d offen offset:%d sc1" % (s_, V_L16, S_P, S_P + 3, S_PSEND, (t & 3) * 1024), ('S', 0))]
                            + (["s_add_u32 s%d, s%d, 4096" % (S_PSEND, S_PSEND)] if t == 3 else [])))
        if c + 1 == NS - 2:
            ex0 = [(1, ["s_waitcnt vmcnt(%d)" % need_count([('FL', 0)]), "v_readfirstlane_b32 s%d, v%d" % (S_OK, V_FL)])]
            ex0.append((2, ["s_add_u32 s%d, s%d, 4096" % (S_T2, S_PRECV)]))
            for t in range(8):
                ex0.append((min(7, 2 + t), [("buffer_load_dwordx4 v[%d:%d], v%d, s[%d:%d], s%d offen offset:%d sc1" % (RECV + 4 * t, RECV + 4 * t + 3, V_L16, S_P, S_P + 3, S_PRECV if t < 4 else S_T2, (t & 3) * 1024), ('R', 0))]))
        substep(c + 1, 0, pend, extra=ex0)
        assert not pend

    if not LD: a("s_waitcnt vmcnt(%d)", need_count([('B', 0)]))
    a("s_barrier")
    stamp(a, opt, 1)
    for r_ in reads_for(0, 0, 0): a(r_)
    substep(0, 0, [])
    def loop_section(c0, c1, ev16):
        nonlocal q
        nit = (c1 - c0) // 4
        if nit == 0: return
        waits = {}
        saved = a.l; q0 = list(q); a.l = []
        for c in range(c0, c1): run_step(c, waits, (c - c0) & 3, emit=False)
        q_after = list(q); a.l = saved; q = q0
        lab = a.newlab("L_g2_loop")
        a("s_mov_b32 s%d, %d", S_LOOP, nit)
        a.label(lab)
        for ds in range(4): run_step(c0 + ds, waits, ds, emit=True, ev16=(ev16 and ds == (16 - LA) % 4))
        a("s_sub_u32 s%d, s%d, 1", S_LOOP, S_LOOP)
        a("s_cmp_lg_u32 s%d, 0", S_LOOP)
        a("s_cbranch_scc1 %s", lab)
        a.c("waits %s" % waits)
        q = q_after
    loop_section(0, K1 - 4, True)
    for c in range(K1 - 4, K1 + 4): run_step(c)
    stamp(a, opt, 2)
    loop_section(K1 + 4, NS - 4, False)
    for c in range(NS - 4, NS): run_step(c)
    stamp(a, opt, 3)
    lok = a.newlab("L_g2_ok"); lsp = a.newlab("L_g2_spin")
    a("s_cmp_lg_u32 s%d, 0", S_OK)
    a("s_cbranch_scc1 %s", lok)
    a.label(lsp)
    a("s_sleep 2")
    a("buffer_load_dword v%d, v%d, s[%d:%d], s%d offen sc1", V_FL, V_ZERO, S_F, S_F + 3, S_FRECV)
    a("s_waitcnt vmcnt(0)")
    a("v_readfirstlane_b32 s%d, v%d", S_OK, V_FL)
    a("s_cmp_eq_u32 s%d, 0", S_OK)
    a("s_cbranch_scc1 %s", lsp)
    for t in range(8):
        a("buffer_load_dwordx4 v[%d:%d], v%d, s[%d:%d], s%d offen offset:%d sc1", RECV + 4 * t, RECV + 4 * t + 3, V_L16, S_P, S_P + 3, S_PRECV if t < 4 else S_T2, (t & 3) * 1024)
    a.label(lok)
    a("s_add_u32 s%d, s%d, %d", S_T2, S_XROW, 16 * 2048)
    a("s_waitcnt vmcnt(0)")
    a("s_nop 4")
    for mf in range(2):
        for p in range(2):
            pk = XL + (mf * 2 + p) * 4
            for z in range(2):
                nf = 2 * p + z; t = keep(mf, nf); rb = RECV + (mf * 4 + nf) * 4
                a("v_pk_add_f32 v[%d:%d], v[%d:%d], v[%d:%d]", t.base, t.base + 1, t.base, t.base + 1, rb, rb + 1)
                a("v_pk_add_f32 v[%d:%d], v[%d:%d], v[%d:%d]", t.base + 2, t.base + 3, t.base + 2, t.base + 3, rb + 2, rb + 3)
                a("v_cvt_pk_bf16_f32 v%d, v%d, v%d", pk + 2 * z, t.base, t.base + 1)
                a("v_cvt_pk_bf16_f32 v%d, v%d, v%d", pk + 2 * z + 1, t.base + 2, t.base + 3)
            a("s_nop 1")
            a("v_permlane16_swap_b32 v%d, v%d", pk, pk + 2)
            a("v_permlane16_swap_b32 v%d, v%d", pk + 1, pk + 3)
            a("buffer_store_dwordx4 v[%d:%d], v%d, s[%d:%d], s%d offen offset:%d", pk, pk + 3, V_XO, S_O, S_O + 3, S_XROW if mf == 0 else S_T2, p * PB)
    if opt.get("prof"):
        a("s_waitcnt vmcnt(0)")
    stamp(a, opt, 4)
    stamp_store(a, opt, 5, P_WS, S_WV, 2, 20)
    a.label(done)
    a("s_endpgm")
    return kernel_desc(name, 256, 256, 100)
```

```python
import sys, json
from gen_common import *
from gen_ln import gen_ln
from gen_g1 import gen_g1, G1_LDS

def build(path, opt):
    a = A()
    hdr = open("parallel_sum__sliding_local_dilated__glu_gated_glu__prompt.s.ref").read().split("\n")
    hdr = [l for l in hdr if l.startswith(";") and "@launch" not in l and "Override" not in l and "grid=ceil" not in l]
    launches = []
    descs = []
    body = A()
    if opt.get("g1b"):
        from gen_g1b import gen_g1b, G1B_LDS
        launches.append("; @launch kernel=g1_kernel grid=(256,1,1) block=(256,1,1) lds=%d" % G1B_LDS)
        descs.append(gen_g1b(body, opt=opt))
    if opt.get("ln", 1) and not opt.get("g1b"):
        launches.append("; @launch kernel=ln_kernel grid=(256,1,1) block=(512,1,1) lds=0")
        descs.append(gen_ln(body, opt=opt))
    if opt.get("g1", 1) and not opt.get("g1b"):
        launches.append("; @launch kernel=g1_kernel grid=(256,1,1) block=(256,1,1) lds=%d" % G1_LDS)
        descs.append(gen_g1(body, opt=opt))
    if opt.get("g2", 0):
        from gen_g2 import gen_g2, G2_LDS
        launches.append("; @launch kernel=g2_kernel grid=(256,1,1) block=(%d,1,1) lds=%d" % (512 if opt.get("g2_ld") else 256, G2_LDS))
        descs.append(gen_g2(body, opt=opt))
    body.label("L_code_end")
    if opt.get("align"):
        import align
        body.l, st = align.fix(body.l, opt.get("align_nop", 3))
        print("align: promoted %d nops %d left %d" % st)
    if opt.get("strip", 1):
        body.l = [l.strip() for l in body.l if not l.strip().startswith(";")]
    out = "\n".join(hdr + launches) + "\n"
    out += '.amdgcn_target "amdgcn-amd-amdhsa--gfx950"\n.text\n'
    out += body.text()
    out += '.section .rodata,"a"\n'
    for d in descs:
        out += ".p2align 6\n" + d
    open(path, "w").write(out)

if __name__ == "__main__":
    path = sys.argv[1]
    opt = json.loads(sys.argv[2]) if len(sys.argv) > 2 else {}
    build(path, opt)
```

```python
from gen_common import *
import hazard, struct, re
from gen_p2 import P2, FLG_ACT, FLG_BYTES, SLOTB

XROWS = 273
XSLOT = XROWS * 128
WBASE = 2 * XSLOT
WSTAGE = 20480
WG_OFF, WU_OFF, WQ_OFF = 0, 7168, 14336
SCR = WBASE + 4 * WSTAGE
L_CS = SCR
L_KV = SCR + 1280
L_RT = SCR + 5376
L_STG = SCR + 5376 + 2560
G1B_LDS = L_STG + 4096
WS_STATS = 0
LOG2E = 1.4426950408889634
def f32(x): return "0x%08x" % struct.unpack("<I", struct.pack("<f", x))[0]

def zipl(*ls):
    out = []
    n = max(len(l) for l in ls)
    for i in range(n):
        for l in ls:
            if i < len(l): out.append(l[i])
    return out

def spread(main, extra, lo=0.0, hi=0.7):
    n = len(main); k = len(extra)
    if k == 0: return list(main)
    pos = [int(n * lo + (n * (hi - lo)) * i / k) for i in range(k)]
    out = []; j = 0
    for i, m in enumerate(main):
        while j < k and pos[j] <= i:
            out.append(extra[j]); j += 1
        out.append(m)
    out += extra[j:]
    return out

def gen_g1b(a0, name="g1_kernel", opt=None):
    opt = opt or {}
    a = A(); a._lab = a0._lab + 1000
    NSTEP = 32
    LA = opt.get("la", 3)
    BAR = opt.get("bar", 4)
    ACT_KB = opt.get("akb", 131072)
    ACT_BYTES = 144 * ACT_KB
    KROT = opt.get("krot", 0)
    FS = opt.get("fs")
    FSL = opt.get("fs_lead", 5)
    if FS: BAR = FS[1]
    V_FS, V_FA, V_FR, V_FD = 54, 58, 62, 66
    L_FLG = L_RT + 1280
    W2P = opt.get("w2p", 0)
    S_CS, S_CD, S_CSO, S_CDO = 60, 64, 68, 69
    DE = opt.get("de", 5)
    DST = opt.get("dst", [0, 0, 0, 0])
    PK = opt.get("pk", 1)
    STM = opt.get("stmod", " sc1")
    NOCS = opt.get("nocs", 0)
    assert BAR <= 10 - LA
    S_X, S_G, S_U, S_Q, S_ACT, S_ST, S_DBG, S_PF = 4, 8, 12, 16, 20, 24, 28, 32
    S_XK, S_XH, S_GOFF, S_QOFF, S_T, S_T2, S_T3, S_W, S_M0, S_J, S_LOOP = 36, 37, 38, 39, 40, 41, 42, 43, 44, 45, 46
    S_PFOFF, S_PFSTR, S_OK, S_C0, S_C1, S_STO, S_AB, S_ODD, S_MT = 47, 48, 49, 50, 51, 52, 53, 58, 59
    S_K1 = 54; S_K2 = 55; S_MSK = 56
    S_RC = 56; S_RP = 57; S_ROT = 3
    P_X, P_Q, P_G, P_U, P_WS, P_DBG, P_WO, P_WD = 60, 62, 64, 66, 68, 70, 72, 74
    V_XDMA = 1; V_WDMA = [2, 3, 4, 5]; V_XR = [6, 7]; V_HX = [8, 9]; V_WRD = list(range(10, 18)); V_PF = 18; V_PFD = 19
    ST = 20
    CSR = 40
    CST = 50
    T0, T1, T2, T3, T4, T5 = 74, 75, 76, 77, 78, 79
    TV = 80
    def XF(st, mf): return R('a', 148 + st * 32 + mf * 4, 4)
    def WR(i): return R('a', 212 + (i & 3) * 4, 4)
    def HX(st): return R('a', 228 + st * 4, 4)
    def HACC(i): return R('a', 236 + i * 4, 4)

    FUSE = opt.get("fuse", 0)
    p2 = P2(opt, S_W)
    NPRE = opt.get("p2_npre", 14)
    QENT = []
    STP = opt.get("stp", ["pro", "loop", "epi"])
    def nst(nm):
        if nm in STP: stamp(a, opt, 1 + STP.index(nm))
    p2.nst = nst
    kernel_header(a, name)
    done = a.newlab("L_g1_done"); fin = a.newlab("L_g1_fin")
    go = a.newlab("L_g1_go")
    a("s_cmp_ge_u32 s2, 256")
    a("s_cbranch_scc0 %s", go)
    a("s_endpgm")
    a.label(go)
    a("s_load_dwordx4 s[%d:%d], s[0:1], 0", P_X, P_X + 3)
    a("s_load_dwordx4 s[%d:%d], s[0:1], 32", P_G, P_G + 3)
    a("s_load_dwordx2 s[%d:%d], s[0:1], 72", P_WS, P_WS + 1)
    a("s_load_dwordx2 s[%d:%d], s[0:1], 64", P_DBG, P_DBG + 1)
    a("s_load_dwordx2 s[%d:%d], s[0:1], 16", P_WO, P_WO + 1)
    a("s_load_dwordx2 s[%d:%d], s[0:1], 48", P_WD, P_WD + 1)
    if FUSE: a("s_load_dwordx2 s[100:101], s[0:1], 56")
    stamp(a, opt, 0)
    if opt.get("prof"):
        for r_ in range(84, 96): a("s_mov_b32 s%d, 0", r_)
    a("v_lshrrev_b32 v%d, 6, v0", T0)
    a("v_and_b32 v0, 63, v0")
    a("v_readfirstlane_b32 s%d, v%d", S_W, T0)
    a("s_lshr_b32 s%d, s2, 5", S_MT)
    a("s_lshl_b32 s%d, s%d, 8", S_M0, S_MT)
    a("s_and_b32 s%d, s2, 7", S_J)
    a("s_lshl_b32 s%d, s%d, 2", S_J, S_J)
    a("s_bfe_u32 s%d, s2, 0x20003", S_T)
    a("s_add_u32 s%d, s%d, s%d", S_J, S_J, S_T)
    a("s_and_b32 s%d, s%d, 1", S_ODD, S_J)
    a("s_mul_i32 s%d, s%d, 224", S_GOFF, S_J)
    a("s_lshl_b32 s%d, s%d, 6", S_QOFF, S_J)
    if KROT:
        a("s_and_b32 s%d, s2, 7", S_ROT)
        if KROT > 1: a("s_and_b32 s%d, s%d, %d", S_ROT, S_ROT, (8 - KROT) & 7)
        a("s_mul_i32 s%d, s%d, %d", S_T, S_ROT, 128 * 7168)
        a("s_add_u32 s%d, s%d, s%d", S_GOFF, S_GOFF, S_T)
        a("s_mul_i32 s%d, s%d, %d", S_T, S_ROT, 128 * 6144)
        a("s_add_u32 s%d, s%d, s%d", S_QOFF, S_QOFF, S_T)
        a("s_sub_u32 s%d, 8, s%d", S_RC, S_ROT)
        a("s_sub_u32 s%d, %d, s%d", S_RP, 8 - opt.get("pf_c0", 1), S_ROT)
    a("v_lshlrev_b32 v%d, 4, v0", T5)
    CPF = opt.get("cpf", 0)
    def code_pf(sb, vt, vd, st):
        l_ = a.newlab("L_g1_pc")
        a("s_getpc_b64 s[%d:%d]", sb, sb + 1)
        a.label(l_)
        a("s_sub_u32 s%d, s%d, %s-%s", sb, sb, l_, name)
        a("s_subb_u32 s%d, s%d, 0", sb + 1, sb + 1)
        a("s_lshr_b32 s%d, s2, 3", st)
        a("s_mul_i32 s%d, s%d, ((L_code_end-%s+4095)>>12)<<7", st, st, name)
        a("v_min_u32 v%d, ((L_code_end-%s+4095)>>12)-1, v0", vt, name)
        a("v_lshl_add_u32 v%d, v%d, 7, s%d", vt, vt, st)
        a("v_min_u32 v%d, L_code_end-%s-4, v%d", vt, name, vt)
        a("global_load_dword v%d, v%d, s[%d:%d]", vd, vt, sb, sb + 1)
    if CPF & 4: code_pf(76, T0, V_PFD, S_T)
    labs = [a.newlab("L_g1_w") for _ in range(4)]
    for w in range(1, 4):
        a("s_cmp_eq_u32 s%d, %d", S_W, w)
        a("s_cbranch_scc1 %s", labs[w])

    SPINS = []
    EP0 = [0]
    def weave(w):
        wn = w >> 1
        E = a.l[EP0[0]:]; del a.l[EP0[0]:]
        n = len(E)
        last = {}
        for k, ln in enumerate(E):
            for kind, r_ in hazard.regs_of(ln):
                if kind == 'a': last[r_] = k
        stores = [k for k, ln in enumerate(E) if ln.strip().startswith("buffer_store")]
        q = []
        def need(tags, upto=None):
            idx = [i for i, t in enumerate(q) if t in tags]
            return min(63, len(q) - 1 - max(idx))
        items = []
        WG_ = opt.get("wv_gap", 6)
        pos = opt.get("wv_w0", 4)
        for b in range(NPRE):
            j = p2.w_job(b)
            fr = max([last.get(r_, -1) for r_ in range(SLOTB[b], SLOTB[b] + 16)]) + 6
            pos = max(pos, fr)
            for part in (j[0:3], j[3:6]):
                items.append((pos, part)); pos += 2 * WG_
        WV2 = opt.get("wv2", 0)
        if not WV2:
            fP, fA = opt.get("wv_poll", [[0.62, 0.80], [0.62, 0.80]])[wn]
            items.append((int(n * fP), [p2.poll_ld(0)]))
            def chk():
                nst("ck0")
                a("s_waitcnt vmcnt(%d)", need([('PL', 0)]))
                nst("ck")
                for x_ in p2.poll_test(): a(x_)
                a("s_cselect_b32 s%d, 0, 0x%x", p2.Q_A2 + 2, ACT_BYTES)
            pos = int(n * fA)
            items.append((pos, [chk]))
            AG_ = opt.get("wv_agap", 5)
            for s_ in range(8):
                items.append((pos, p2.a_job(s_, p2.Q_A2))); pos += 4 * AG_
        elif wn == 1:
            items.append((int(n * opt.get("wv_fp", 0.8)), [p2.poll_ld(0)]))
        def sig(t, nst_):
            def f():
                a("v_mov_b32 v%d, 1", T2)
                nst("sa%d" % t)
                a("s_waitcnt vmcnt(%d)", need([('AS', nst_)]))
                nst("sg%d" % t)
                a("s_mov_b64 exec, 1")
                a("buffer_store_dword v%d, off, s[%d:%d], s%d offset:%d sc1", T2, p2.Q_F, p2.Q_F + 3, p2.Q_FSIG, 4 * t); q.append(('SG', 0))
                a("s_mov_b64 exec, -1")
            return f
        SD_ = opt.get("wv_sd", 130)
        if wn == 1:
            items.append((stores[7] + SD_, [sig(0, 7)]))
            items.append((stores[15] + SD_, [sig(1, 15)]))
        items.sort(key=lambda t_: t_[0])
        def put(lst):
            for x_ in lst:
                if isinstance(x_, tuple): a(x_[0]); q.append(x_[1])
                elif callable(x_): x_()
                else: a(x_)
        ns = 0
        for k, ln in enumerate(E):
            op = ln.strip()
            prev = E[k - 1].strip() if k else ""
            ok = not op.startswith(("v_cndmask", "s_cselect", "s_addc", "s_memtime", "s_waitcnt")) and not prev.startswith(("s_cmp", "v_cmp", "s_memrealtime"))
            if ok and items and items[0][0] <= k: put(items.pop(0)[1])
            a.l.append(ln)
            if op.startswith("buffer_store"):
                q.append(('AS', ns)); ns += 1
        for it in items: put(it[1])
        a("s_add_u32 s%d, s%d, %d", p2.Q_FSIG, p2.Q_FSIG, 8 if wn == 1 else 12)
        if WV2 and wn == 1:
            l1 = a.newlab("L_wv_sp"); l2 = a.newlab("L_wv_ok")
            nst("ck0")
            a("s_waitcnt vmcnt(%d)", need([('PL', 0)]))
            nst("ck")
            for x_ in p2.poll_test(): a(x_)
            a("s_cbranch_scc0 %s", l2)
            a("v_mov_b32 v%d, 1", T2)
            a("s_waitcnt vmcnt(0)")
            nst("sl1")
            a("s_mov_b64 exec, 1")
            a("buffer_store_dword v%d, off, s[%d:%d], s%d sc1", T2, p2.Q_F, p2.Q_F + 3, p2.Q_FSIG)
            a("s_mov_b64 exec, -1")
            a.label(l1)
            a(p2.poll_ld(0)[0])
            a("s_waitcnt vmcnt(0)")
            for x_ in p2.poll_test(): a(x_)
            a("s_cbranch_scc1 %s", l1)
            nst("sl2")
            a.label(l2)
            for s_ in range(WV2):
                put(p2.a_job(s_))
                put(p2.a_job(s_, None, True))
        QENT.append([('AS', 0) if t[0] == 'AS' else t for t in q])
    def variant(w):
        wm, wn = w & 1, w >> 1
        tiles = {}
        if wn == 0:
            VPB = [TV, TV + 34]
            for f in range(2):
                for mf in range(8): tiles[(4 + f, mf)] = R('v', VPB[f] + 2 + 4 * mf, 4)
            order = [(nf, mf) for nf in (2, 3, 0, 1) for mf in range(8)] + [(nf, mf) for mf in range(8) for nf in (6, 7, 8, 9)]
            nv = TV + 68
        else:
            order = [(nf, mf) for g in ((0, 1, 2, 3), (4, 5, 6, 7)) for mf in range(8) for nf in g] + [(nf, mf) for mf in range(8) for nf in (8, 9)]
            nv = TV
        na = 0
        for t in order:
            if nv + 4 <= 256:
                tiles[t] = R('v', nv, 4); nv += 4
            else:
                tiles[t] = R('a', na, 4); na += 4
        assert na <= 148, na
        hset = {0: [2, 3, 4, 5, 0], 1: [1, 6, 7, 8, 9], 2: [0, 2, 4, 6, 8], 3: [1, 3, 5, 7, 9]}[w]
        if NOCS: hset = hset[:NOCS - 1] if w else hset[:4]
        def isV(nf): return wn == 0 and nf in (4, 5)
        def mm(d, wf, xf, c, nf):
            if isV(nf): return "v_mfma_f32_16x16x32_bf16 %s, %s, %s, %s" % (d, xf, wf, c)
            return "v_mfma_f32_16x16x32_bf16 %s, %s, %s, %s" % (d, wf, xf, c)

        a.label(labs[w])
        q = []
        if CPF & 1 and w == 2:
            code_pf(76, T0, V_PFD, S_T); q.append(('P', 0))
        if CPF & 4: q.append(('P', 0))
        a("v_lshrrev_b32 v%d, 4, v0", T0)
        if wm: a("v_add_u32 v%d, 4, v%d", T0, T0)
        a("v_and_b32 v%d, 7, v0", T1)
        a("v_xor_b32 v%d, v%d, v%d", T0, T0, T1)
        a("v_lshlrev_b32 v%d, 4, v%d", T0, T0)
        a("v_lshrrev_b32 v%d, 3, v0", T1)
        a("v_lshl_add_u32 v%d, v%d, 11, v%d", V_XDMA, T1, T0)
        a("s_add_u32 s%d, s%d, %d", S_XK, S_M0, 8 * w)
        a("s_lshl_b32 s%d, s%d, 11", S_XK, S_XK)
        a("s_max_u32 s%d, s%d, 16", S_T, S_M0)
        a("s_sub_u32 s%d, s%d, %d", S_XH, S_T, 16 - 8 * wm)
        a("s_lshl_b32 s%d, s%d, 11", S_XH, S_XH)
        if KROT:
            a("s_lshl_b32 s%d, s%d, 8", S_T, S_ROT)
            a("s_add_u32 s%d, s%d, s%d", S_XK, S_XK, S_T)
            a("s_add_u32 s%d, s%d, s%d", S_XH, S_XH, S_T)
        a("s_lshl_b32 s%d, s%d, 3", S_T2, S_J)
        a("s_add_u32 s%d, s%d, s%d", S_T2, S_T2, S_M0)
        a("s_add_u32 s%d, s%d, %d", S_T2, S_T2, 2 * w)
        a("s_lshl_b32 s%d, s%d, 11", S_T3, S_T2)
        wjobs = [("G", w), ("U", w), ("Q", w)] + ([("G", 4 + w), ("U", 4 + w)] if w < 3 else [("Q", 4), ("Q", 5)])
        wreg = {}
        def gu_off(dst, job):
            a("v_add_u32 v%d, %d, v0", T0, job * 64)
            a("v_mul_u32_u24 v%d, 4682, v%d", T1, T0)
            a("v_lshrrev_b32 v%d, 16, v%d", T1, T1)
            a("v_mul_u32_u24 v%d, 14, v%d", T2, T1)
            a("v_sub_u32 v%d, v%d, v%d", T2, T0, T2)
            a("v_bfe_u32 v%d, v%d, 3, 1", T3, T1)
            a("v_lshlrev_b32 v%d, 2, v%d", T3, T3)
            a("v_xor_b32 v%d, v%d, v%d", T1, T1, T3)
            a("v_mul_u32_u24 v%d, 7168, v%d", T1, T1)
            a("v_lshl_add_u32 v%d, v%d, 4, v%d", dst, T2, T1)
        def q_off(dst, job):
            a("v_add_u32 v%d, %d, v0", T0, job * 64)
            a("v_mul_u32_u24 v%d, 5462, v%d", T1, T0)
            a("v_lshrrev_b32 v%d, 16, v%d", T1, T1)
            a("v_mul_u32_u24 v%d, 12, v%d", T2, T1)
            a("v_sub_u32 v%d, v%d, v%d", T2, T0, T2)
            a("v_bfe_u32 v%d, v%d, 3, 1", T3, T1)
            a("v_lshlrev_b32 v%d, 1, v%d", T3, T3)
            a("v_xor_b32 v%d, v%d, v%d", T2, T2, T3)
            a("v_mul_u32_u24 v%d, 6144, v%d", T1, T1)
            a("v_lshrrev_b32 v%d, 2, v%d", T3, T2)
            a("v_lshl_add_u32 v%d, v%d, 11, v%d", T1, T3, T1)
            a("v_and_b32 v%d, 3, v%d", T2, T2)
            a("v_lshl_add_u32 v%d, v%d, 4, v%d", dst, T2, T1)
        nreg = 0
        late = []
        for kind, job in wjobs:
            key = ("GU" if kind != "Q" else "Q", job)
            if key not in wreg:
                wreg[key] = V_WDMA[nreg]; nreg += 1
                late.append((key, wreg[key]))
        for key, dst in late:
            (gu_off if key[0] == "GU" else q_off)(dst, key[1])
            if opt.get("wlin"):
                a("v_lshlrev_b32 v%d, 4, v0", dst)
                a("v_add_u32 v%d, %d, v%d", dst, key[1] * (7168 * 4 if key[0] == "GU" else 6144 * 5), dst)
        a("s_waitcnt lgkmcnt(0)")
        make_srd(a, S_X, P_X, 2048 * 2048)
        make_srd(a, S_G, P_G, 1024 * 7168)
        make_srd(a, S_U, P_U, 1024 * 7168)
        make_srd(a, S_Q, P_Q, 1024 * 6144)
        def dup(jobs):
            if wn != opt["dma2"] - 1: return []
            out = []
            for pre, main in jobs:
                out.append((list(pre), main[:1])); out.append((pre, main))
            return out
        def x_jobs(t):
            slot = t & 1
            jobs = []
            for i in range(8):
                jobs.append((["s_mov_b32 m0, %d" % (slot * XSLOT + (w + 4 * i) * 1024),
                              "s_add_u32 s%d, s%d, %d" % (S_T, S_XK, i * 65536)],
                             ["buffer_load_dwordx4 v%d, s[%d:%d], s%d offen%s lds" % (V_XDMA, S_X, S_X + 3, S_T, " nt" if t < opt.get("nt_x", 0) else "")]))
            jobs[-1][1].append("s_add_u32 s%d, s%d, 128" % (S_XK, S_XK))
            if wn == slot:
                jobs.append((["s_mov_b32 m0, %d" % (slot * XSLOT + 32768 + wm * 1024)],
                             ["buffer_load_dwordx4 v%d, s[%d:%d], s%d offen lds" % (V_XDMA, S_X, S_X + 3, S_XH)]))
            jobs[-1][1].append("s_add_u32 s%d, s%d, 128" % (S_XH, S_XH))
            if opt.get("dma2") and t >= 2: jobs = dup(jobs)
            return [(j, ('X', t)) for j in jobs]
        def w_jobs(s):
            stage = s & 3
            jobs = []
            for kind, job in wjobs:
                srd = {"G": S_G, "U": S_U, "Q": S_Q}[kind]; off = {"G": WG_OFF, "U": WU_OFF, "Q": WQ_OFF}[kind]
                vo = wreg[("GU" if kind != "Q" else "Q", job)]
                jobs.append((["s_mov_b32 m0, %d" % (WBASE + stage * WSTAGE + off + job * 1024)],
                             ["buffer_load_dwordx4 v%d, s[%d:%d], s%d offen%s lds" % (vo, srd, srd + 3, S_QOFF if kind == "Q" else S_GOFF, " nt" if s < opt.get("nt_w", 0) else "")]))
            if not opt.get("samew"):
                jobs[-1][1].append("s_add_u32 s%d, s%d, %d" % (S_GOFF, S_GOFF, 32 * 7168))
                jobs[-1][1].append("s_add_u32 s%d, s%d, %d" % (S_QOFF, S_QOFF, 32 * 6144))
            if opt.get("dma2") and s >= 3: jobs = dup(jobs)
            return [(j, ('W', s)) for j in jobs]
        def emit_now(jobs):
            for (pre, main), tag in jobs:
                for s_ in pre + main: a(s_)
                q.append(tag)
        def need_count(tags):
            idx = [i for i, t in enumerate(q) if t in tags]
            if not idx: return 63
            return len(q) - 1 - max(idx)
        PSPLIT = opt.get("pro_split", 0); S_AT = opt.get("s_at", -1); WO_AT = opt.get("wo_at", -1)
        PF_C0 = opt.get("pf_c0", 1); PF_PRO = opt.get("pf_pro", 2); PF_X = opt.get("pf_x", [])
        PRO_A = opt.get("pro_a", 2)
        pro_list = [w_jobs(0), x_jobs(0), w_jobs(1), x_jobs(1), w_jobs(2)]
        for l_ in pro_list[:PRO_A]: emit_now(l_)
        SA = ST; SB = ST + 8
        def s_loads():
            for i in range(4):
                a("buffer_load_dwordx4 v[%d:%d], v%d, s[%d:%d], s%d offen offset:%d", SA + 4 * i, SA + 4 * i + 3, T5, S_X, S_X + 3, S_T3, 1024 * i)
                q.append(('S', 0))
        def wo_pf():
            if w != 3 or not PFD or W2P: return
            a("v_lshlrev_b32 v%d, 7, v0", ST + 50)
            a("s_lshl_b32 s%d, s2, 13", S_T)
            a("buffer_load_dword v%d, v%d, s[76:79], s%d offen", V_PFD, ST + 50, S_T); q.append(('P', 0))
        def pro2():
            for l_ in pro_list[PRO_A:]: emit_now(l_)
            if S_AT < 0: s_loads()
        def pro3():
            if WO_AT < 0: wo_pf()
            if PFD and w < 3:
                for i in range(PF_PRO): emit_now([pf_job()])
        if PSPLIT == 0: pro2()
        PFD = opt.get("pf_d", 384)
        if PFD:
            a("s_lshr_b32 s%d, s2, 3", S_T)
            a("s_and_b32 s%d, s2, 7", S_K1)
            if w < 2:
                a("v_min_u32 v%d, 27, v0", T0)
                a("v_mul_u32_u24 v%d, 9363, v%d", T1, T0)
                a("v_lshrrev_b32 v%d, 16, v%d", T1, T1)
                a("v_mul_u32_u24 v%d, 7, v%d", T2, T1)
                a("v_sub_u32 v%d, v%d, v%d", T2, T0, T2)
                a("v_lshlrev_b32 v%d, 5, v%d", T1, T1)
                a("v_add_u32 v%d, s%d, v%d", T1, S_T, T1)
                a("v_mul_u32_u24 v%d, 7168, v%d", T1, T1)
                a("v_lshl_add_u32 v%d, v%d, 7, v%d", V_PF, T2, T1)
                make_srd(a, S_PF, P_G if w == 0 else P_U, 1024 * 7168)
                a("s_mul_i32 s%d, s%d, 896", S_PFOFF, S_K1)
                a("s_add_u32 s%d, s%d, %d", S_PFOFF, S_PFOFF, PF_C0 * 128 * 7168)
                if KROT:
                    a("s_mul_i32 s%d, s%d, %d", S_T, S_ROT, 128 * 7168)
                    a("s_add_u32 s%d, s%d, s%d", S_PFOFF, S_PFOFF, S_T)
                a("s_mov_b32 s%d, %d", S_PFSTR, 128 * 7168)
            elif w == 2:
                a("v_min_u32 v%d, 23, v0", T0)
                a("v_mul_u32_u24 v%d, 10923, v%d", T1, T0)
                a("v_lshrrev_b32 v%d, 16, v%d", T1, T1)
                a("v_mul_u32_u24 v%d, 6, v%d", T2, T1)
                a("v_sub_u32 v%d, v%d, v%d", T2, T0, T2)
                a("v_lshlrev_b32 v%d, 5, v%d", T1, T1)
                a("v_add_u32 v%d, s%d, v%d", T1, S_T, T1)
                a("v_mul_u32_u24 v%d, 6144, v%d", T1, T1)
                a("v_lshrrev_b32 v%d, 1, v%d", T3, T2)
                a("v_lshl_add_u32 v%d, v%d, 11, v%d", T1, T3, T1)
                a("v_and_b32 v%d, 1, v%d", T2, T2)
                a("v_lshl_add_u32 v%d, v%d, 7, v%d", V_PF, T2, T1)
                make_srd(a, S_PF, P_Q, 1024 * 6144)
                a("s_lshl_b32 s%d, s%d, 8", S_PFOFF, S_K1)
                a("s_add_u32 s%d, s%d, %d", S_PFOFF, S_PFOFF, PF_C0 * 128 * 6144)
                if KROT:
                    a("s_mul_i32 s%d, s%d, %d", S_T, S_ROT, 128 * 6144)
                    a("s_add_u32 s%d, s%d, s%d", S_PFOFF, S_PFOFF, S_T)
                a("s_mov_b32 s%d, %d", S_PFSTR, 128 * 6144)
            else:
                make_srd(a, 76, P_WO, 1024 * 2048)
                a("v_lshlrev_b32 v%d, 7, v0", V_PF)
                a("v_min_u32 v%d, %d, v%d", V_PF, 31 * 128, V_PF)
                make_srd(a, S_PF, P_WD, 3584 * 2048)
                a("s_mul_i32 s%d, s2, 28672", S_PFOFF)
                a("s_mov_b32 s%d, 4096", S_PFSTR)
        def pf_job():
            pre = []
            if KROT and w < 3:
                pre = ["s_cmp_ge_u32 s%d, %d" % (S_PFOFF, 1024 * (7168 if w < 2 else 6144)),
                       "s_cselect_b32 s%d, %d, 0" % (S_T, 1024 * (7168 if w < 2 else 6144)),
                       "s_sub_u32 s%d, s%d, s%d" % (S_PFOFF, S_PFOFF, S_T)]
            return ((pre, ["buffer_load_dword v%d, v%d, s[%d:%d], s%d offen%s" % (V_PFD, V_PF, S_PF, S_PF + 3, S_PFOFF, " nt" if opt.get("nt_pf") else ""),
                          "s_add_u32 s%d, s%d, s%d" % (S_PFOFF, S_PFOFF, S_PFSTR)]), ('P', 0))
        if PSPLIT == 0: pro3()
        make_srd(a, S_ACT, P_WS, ACT_BYTES, WS_ACT2)
        make_srd(a, S_ST, P_WS, 2048 * 8, WS_STATS)
        make_srd(a, S_DBG, P_DBG, 256)
        a("v_and_b32 v%d, 15, v0", T0)
        a("v_lshrrev_b32 v%d, 4, v0", T1)
        a("v_lshrrev_b32 v%d, 1, v%d", T2, T0)
        a("v_xor_b32 v%d, v%d, v%d", T2, T2, T1)
        a("v_lshlrev_b32 v%d, 4, v%d", T2, T2)
        a("v_lshl_add_u32 v%d, v%d, 7, v%d", T3, T0, T2)
        a("v_add_u32 v%d, %d, v%d", V_XR[0], wm * 16384, T3)
        a("v_xor_b32 v%d, 64, v%d", V_XR[1], V_XR[0])
        a("v_add_u32 v%d, 32768, v%d", V_HX[0], T3)
        a("v_add_u32 v%d, %d, v%d", T4, 32768 + 2048, T3)
        a("v_cmp_eq_u32 vcc, 0, v%d", T0)
        a("v_cndmask_b32 v%d, v%d, v%d, vcc", V_HX[0], V_HX[0], T4)
        a("v_xor_b32 v%d, 64, v%d", V_HX[1], V_HX[0])
        a("v_lshrrev_b32 v%d, 2, v%d", T2, T0)
        a("v_lshl_add_u32 v%d, v%d, 3, v%d", T2, T1, T2)
        a("v_and_b32 v%d, 3, v0", T3)
        a("v_lshlrev_b32 v%d, 3, v%d", T3, T3)
        a("v_and_b32 v%d, 1, v%d", T1, T1)
        a("v_lshl_add_u32 v%d, v%d, 2, v%d", T4, T1, T2)
        a("v_mul_u32_u24 v%d, 224, v%d", V_WRD[0], T4)
        a("v_xor_b32 v%d, 4, v%d", T4, T4)
        a("v_mul_u32_u24 v%d, 224, v%d", V_WRD[1], T4)
        a("s_lshl_b32 s%d, s%d, 5", S_T, S_ODD)
        a("s_add_u32 s%d, s%d, %d", S_T, S_T, WBASE)
        if wn == 1:
            a("s_mul_i32 s%d, s%d, 192", S_K1, S_ODD)
            a("s_sub_u32 s%d, %d, s%d", S_K1, WBASE + 192, S_K1)
            for h in range(2):
                a("v_add3_u32 v%d, v%d, v%d, s%d", V_WRD[2 + h], V_WRD[h], T3, S_K1)
        else:
            a("v_mul_u32_u24 v%d, 192, v%d", T4, T2)
            a("v_lshl_add_u32 v%d, v%d, 5, v%d", T4, T1, T4)
            a("v_add_u32 v%d, v%d, v%d", T4, T4, T3)
            a("v_add_u32 v%d, %d, v%d", V_WRD[2], WBASE, T4)
            a("v_xor_b32 v%d, 32, v%d", T4, T4)
            a("v_add_u32 v%d, %d, v%d", V_WRD[3], WBASE, T4)
        for h in range(2):
            a("v_add3_u32 v%d, v%d, v%d, s%d", V_WRD[h], V_WRD[h], T3, S_T)
        for i in range(4):
            a("v_add_u32 v%d, %d, v%d", V_WRD[4 + i], 2 * WSTAGE, V_WRD[i])
        if w == 0:
            a("v_mov_b32 v%d, 0x3f803f80", T0)
            a("v_lshlrev_b32 v%d, 2, v0", T1)
            a("v_and_b32 v%d, 127, v%d", T1, T1)
            a("ds_write_b32 v%d, v%d offset:%d", T1, T0, 272 * 128)
            a("v_add_u32 v%d, %d, v%d", T1, XSLOT, T1)
            a("ds_write_b32 v%d, v%d offset:%d", T1, T0, 272 * 128)
        if w == 1 and FUSE:
            make_srd(a, 76, P_WS, FLG_BYTES, WS_FLAGS)
            a("s_mul_i32 s%d, s2, 48", S_T)
            for i in range(4): a("v_mov_b32 v%d, 0", T0 + i)
            a("s_mov_b64 exec, 7")
            a("buffer_store_dwordx4 v[%d:%d], v%d, s[76:79], s%d offen sc1", T0, T3, T5, S_T); q.append(('Z', 0))
            a("s_mov_b64 exec, -1")
        elif w == 1:
            make_srd(a, S_PF if not PFD else 76, P_WS, 4096, WS_FLAGS)
            sf = S_PF if not PFD else 76
            a("s_lshl_b32 s%d, s2, 4", S_T)
            for i in range(4): a("v_mov_b32 v%d, 0", T0 + i)
            a("s_mov_b64 exec, 1")
            a("buffer_store_dwordx4 v[%d:%d], v%d, s[%d:%d], s%d offen", T0, T3, T0, sf, sf + 3, S_T); q.append(('Z', 0))
            a("s_mov_b64 exec, -1")
        a("s_mov_b32 s%d, 0xffff0000", S_K1)
        RD = ST + 50
        spins = SPINS
        if FS:
            a("v_mov_b32 v%d, 0", V_FS)
            a("v_mov_b32 v%d, %d", V_FA, L_FLG + 4 * w)
            a("v_and_b32 v%d, 3, v0", V_FR)
            a("v_lshlrev_b32 v%d, 2, v%d", V_FR, V_FR)
            a("v_add_u32 v%d, %d, v%d", V_FR, L_FLG, V_FR)
            a("ds_write_b32 v%d, v%d", V_FA, V_FS)
        V_CSRC = V_PF if w == 3 else V_WDMA[3]; V_CRD = T4; V_CST = T5
        if W2P:
            make_srd(a, S_CS, P_WO, 1024 * 2048)
            make_srd(a, S_CD, P_WS, 4608 * 2048, WS_W2P)
            a("s_lshr_b32 s%d, s2, 4", S_T)
            a("s_lshl_b32 s%d, s%d, 16", S_T, S_T)
            a("s_and_b32 s%d, s2, 15", S_CDO)
            a("s_lshl_b32 s%d, s%d, 7", S_CSO, S_CDO)
            a("s_lshl_b32 s%d, s%d, 12", S_CDO, S_CDO)
            a("s_add_u32 s%d, s%d, s%d", S_CSO, S_CSO, S_T)
            a("s_add_u32 s%d, s%d, s%d", S_CDO, S_CDO, S_T)
            a("s_add_u32 s%d, s%d, %d", S_CSO, S_CSO, [0, 4, 16, 20][w] * 2048)
            a("s_add_u32 s%d, s%d, %d", S_CDO, S_CDO, w * 256)
            a("v_lshrrev_b32 v%d, 3, v0", RD)
            a("v_lshrrev_b32 v%d, 5, v0", RD + 1)
            a("v_lshl_add_u32 v%d, v%d, 2, v%d", RD, RD + 1, RD)
            a("v_and_b32 v%d, 7, v0", RD + 1)
            a("v_lshlrev_b32 v%d, 4, v%d", RD + 1, RD + 1)
            a("v_lshl_add_u32 v%d, v%d, 11, v%d", V_CSRC, RD, RD + 1)
            a("v_bfe_u32 v%d, v0, 2, 2", RD)
            a("v_lshlrev_b32 v%d, 7, v%d", RD, RD)
            a("v_lshrrev_b32 v%d, 4, v0", RD + 1)
            a("v_lshl_add_u32 v%d, v%d, 5, v%d", RD, RD + 1, RD)
            a("v_and_b32 v%d, 3, v0", RD + 1)
            a("v_lshl_add_u32 v%d, v%d, 3, v%d", RD, RD + 1, RD)
            a("v_add_u32 v%d, %d, v%d", V_CRD, L_KV + w * 1024, RD)
        def r_job(s, area):
            post = ["s_add_u32 s%d, s%d, 0x100000" % (S_CSO, S_CSO)]
            if area == 0 and s == 0:
                post = ["s_sub_u32 s%d, s%d, 0x100000" % (S_CSO, S_CSO), "s_mov_b32 s%d, s%d" % (S_CS, P_WD), "s_mov_b32 s%d, s%d" % (S_CS + 1, P_WD + 1),
                        "s_mov_b32 s%d, 0x%x" % (S_CS + 2, 3584 * 2048)]
            return ((["s_mov_b32 m0, %d" % ((L_STG if area else L_KV) + w * 1024)],
                     ["buffer_load_dwordx4 v%d, s[%d:%d], s%d offen%s lds" % (V_CSRC, S_CS, S_CS + 3, S_CSO, " nt" if opt.get("nt_r") else "")] + post), ('R', s + 1 - area))
        def r_read(s, area):
            o = (L_STG - L_KV) if area else 0
            lds("ds_read_b64_tr_b16 v[%d:%d], v%d offset:%d" % (RD, RD + 1, V_CRD, o), ('R', s, 0))
            lds("ds_read_b64_tr_b16 v[%d:%d], v%d offset:%d" % (RD + 2, RD + 3, V_CRD, o + 512), ('R', s, 0))
        def r_store(s):
            lwait([('R', s, 0)])
            if opt.get("w2rr") and s > 3:
                a("s_sub_u32 s%d, s%d, 0x100000", S_T, S_CDO)
                a("buffer_load_dword v%d, v%d, s[%d:%d], s%d offen%s", V_PFD, V_CST, S_CD, S_CD + 3, S_T, opt["w2rr"]); q.append(('P', 0))
            a("buffer_store_dwordx4 v[%d:%d], v%d, s[%d:%d], s%d offen%s", RD, RD + 3, V_CST, S_CD, S_CD + 3, S_CDO, opt.get("w2st", " sc1")); q.append(('RS', 0))
            a("s_add_u32 s%d, s%d, 0x100000", S_CDO, S_CDO)
        a("s_lshl_b32 s%d, s%d, 3", S_T2, S_T2)
        def stat_row(b, onm, osd):
            L = []
            X = ST + 16; Y = X; Z = ST + 48
            for i in range(8):
                L.append("v_lshlrev_b32 v%d, 16, v%d" % (X + 2 * i, b + i))
                L.append("v_and_b32 v%d, s%d, v%d" % (X + 2 * i + 1, S_K1, b + i))
            def red(src, dst):
                for i in range(8): L.append("v_add_f32 v%d, v%d, v%d" % (b + i, src + 2 * i, src + 2 * i + 1))
                for i in range(4): L.append("v_add_f32 v%d, v%d, v%d" % (b + i, b + 2 * i, b + 2 * i + 1))
                L.append("v_add_f32 v%d, v%d, v%d" % (b, b, b + 1))
                L.append("v_add_f32 v%d, v%d, v%d" % (b + 2, b + 2, b + 3))
                L.append("v_add_f32 v%d, v%d, v%d" % (dst, b, b + 2))
                for m_ in ("quad_perm:[1,0,3,2]", "quad_perm:[2,3,0,1]", "row_half_mirror", "row_mirror"):
                    L.append("v_add_f32_dpp v%d, v%d, v%d %s row_mask:0xf bank_mask:0xf" % (dst, dst, dst, m_))
                for sw in ("16", "32"):
                    L.append("v_mov_b32 v%d, v%d" % (b, dst))
                    L.append("v_permlane%s_swap_b32 v%d, v%d" % (sw, dst, b))
                    L.append("v_add_f32 v%d, v%d, v%d" % (dst, dst, b))
                L.append("v_mul_f32 v%d, 0x3a800000, v%d" % (dst, dst))
            red(X, Z)
            for i in range(16): L.append("v_sub_f32 v%d, v%d, v%d" % (Y + i, X + i, Z))
            for i in range(16): L.append("v_mul_f32 v%d, v%d, v%d" % (Y + i, Y + i, Y + i))
            red(Y, Z + 1)
            L.append("v_cvt_pk_bf16_f32 v%d, v%d, v%d" % (onm, Z, Z))
            L.append("v_xor_b32 v%d, 0x80008000, v%d" % (onm, onm))
            L.append("v_cvt_pk_bf16_f32 v%d, v%d, v%d" % (Z + 1, Z + 1, Z + 1))
            L.append("v_and_b32 v%d, s%d, v%d" % (Z + 1, S_K1, Z + 1))
            L.append("v_add_f32 v%d, 0x3727c5ac, v%d" % (Z + 1, Z + 1))
            L.append("v_cvt_pk_bf16_f32 v%d, v%d, v%d" % (Z + 1, Z + 1, Z + 1))
            L.append("v_and_b32 v%d, s%d, v%d" % (Z + 1, S_K1, Z + 1))
            L.append("v_sqrt_f32 v%d, v%d" % (Z + 1, Z + 1))
            L.append("v_cvt_pk_bf16_f32 v%d, v%d, v%d" % (Z + 1, Z + 1, Z + 1))
            L.append("v_and_b32 v%d, s%d, v%d" % (osd, S_K1, Z + 1))
            return L
        SS0 = opt.get("ss0", 2)
        side = {0: [], 1: [], 2: [], 3: [], 28: ["v_mov_b32 v%d, 0" % r_ for r_ in range(ST, CST + 24) if not (W2P and not FUSE and RD <= r_ < RD + 4) and not (FS and r_ in (V_FS, V_FA, V_FR, V_FD))]}
        if W2P:
            assert S_AT < 2
            side[2] += ["v_lshrrev_b32 v%d, 4, v0" % RD, "v_lshlrev_b32 v%d, 10, v%d" % (RD, RD), "v_and_b32 v%d, 15, v0" % (RD + 1),
                        "v_lshl_add_u32 v%d, v%d, 4, v%d" % (V_CST, RD + 1, RD)]
        if CPF & 2 and w == 2: side[28].insert(0, "CPF")
        W2L2 = opt.get("w2l2", 0)
        if W2L2:
            L = ["s_lshr_b32 s%d, s2, 3" % S_K2, "s_mul_i32 s%d, s%d, 11" % (S_K2, S_K2),
                 "s_and_b32 s%d, s2, 1" % S_STO, "s_mul_i32 s%d, s%d, %d" % (S_STO, S_STO, 56 * 65536),
                 "s_bfe_u32 s%d, s2, 0x10002" % S_AB, "s_lshl_b32 s%d, s%d, 15" % (S_AB, S_AB), "s_add_u32 s%d, s%d, s%d" % (S_AB, S_AB, S_STO),
                 "v_lshlrev_b32 v%d, 7, v0" % V_PF]
            for n_ in range(w, 11, 4):
                L += ["s_add_u32 s%d, s%d, %d" % (S_STO, S_K2, n_), "s_and_b32 s%d, s%d, 3" % (S_PFOFF, S_STO), "s_lshl_b32 s%d, s%d, 13" % (S_PFOFF, S_PFOFF),
                      "s_lshr_b32 s%d, s%d, 2" % (S_STO, S_STO), "s_lshl_b32 s%d, s%d, 16" % (S_STO, S_STO),
                      "s_add_u32 s%d, s%d, s%d" % (S_PFOFF, S_PFOFF, S_STO), "s_add_u32 s%d, s%d, s%d" % (S_PFOFF, S_PFOFF, S_AB), "W2PF"]
            side.setdefault(W2L2, []).extend(L)
        if FUSE:
            side[30] = p2.setup_s() + ["s_lshl_b32 s%d, s%d, 10" % (p2.Q_FSIG, S_MT), "s_lshl_b32 s%d, s%d, 4" % (p2.Q_T, S_J),
                                       "s_add_u32 s%d, s%d, s%d" % (p2.Q_FSIG, p2.Q_FSIG, p2.Q_T), "s_add_u32 s%d, s%d, %d" % (p2.Q_FSIG, p2.Q_FSIG, FLG_ACT + wm * 512)]
        if S_AT >= 0: side[S_AT].append("SLOAD")
        if WO_AT >= 0: side[WO_AT].append("WOPF")
        for s_ in PF_X: side[s_].append("PFJ")
        if SS0 < 3:
            side[SS0] += ["WAITS"] + stat_row(SA, T0, T1); side[SS0 + 1] += stat_row(SB, T2, T3) + ["SSTORE"]
        else:
            side[3] += ["WAITS"] + stat_row(SA, T0, T1) + stat_row(SB, T2, T3) + ["SSTORE"]
        def side_emit(x_):
            if isinstance(x_, list):
                for y_ in x_: a(y_)
            elif x_ == "WAITS": a("s_waitcnt vmcnt(%d)", need_count([('S', 0)]))
            elif x_ == "CPF": code_pf(76, T0, V_PFD, S_T); q.append(('P', 0))
            elif x_ == "W2PF":
                a("buffer_load_dword v%d, v%d, s[%d:%d], s%d offen", V_PFD, V_PF, S_CD, S_CD + 3, S_PFOFF); q.append(('P', 0))
            elif x_ == "SLOAD": s_loads()
            elif x_ == "WOPF": wo_pf()
            elif x_ == "PFJ":
                if PFD and w < 3: emit_now([pf_job()])
            elif x_ == "SSTORE":
                a("s_mov_b64 exec, 1")
                a("buffer_store_dwordx4 v[%d:%d], off, s[%d:%d], s%d sc1", T0, T3, S_ST, S_ST + 3, S_T2); q.append(('SS', 0))
                a("s_mov_b64 exec, -1")
            else: a(x_)
        a("s_lshl_b32 s%d, s%d, 2", S_C1, S_MT)
        a("s_max_u32 s%d, s%d, 4", S_C0, S_C1)
        a("s_sub_u32 s%d, s%d, 4", S_C0, S_C0)
        a("s_mov_b32 s%d, 0", S_OK)

        lq = []
        def lds(instr, tag):
            if opt.get("nolds") and tag[1] > 0 and (opt["nolds"] == 1 or (opt["nolds"] == 2) == (tag[0] == 'W')): return
            a(instr); lq.append(tag)
        def lwait(tags):
            idx = [i for i, t in enumerate(lq) if t in tags]
            if not idx: return
            n = len(lq) - 1 - max(idx)
            a("s_waitcnt lgkmcnt(%d)", min(n, 15))
            del lq[:len(lq) - min(n, 15)]
        def w_reads(s, nf):
            stage = s & 3; hi = (stage >> 1) * 4; so = (stage & 1) * WSTAGE
            dst = WR(10 * s + nf)
            out = []
            for h in range(2):
                if wn == 0 and nf < 6:
                    ad = V_WRD[hi + 2 + (nf & 1)]; off = so + WQ_OFF + h * 768 + (nf >> 1) * 64
                else:
                    k = nf - 6 if wn == 0 else nf
                    slot = (k >> 1) + (0 if wn == 0 else 2); isu = k & 1
                    if slot == 6: ad = V_WRD[hi + 2 + h]; off = so + isu * WU_OFF
                    else: ad = V_WRD[hi + h]; off = so + isu * WU_OFF + slot * 32
                out.append(("ds_read_b64_tr_b16 %s, v%d offset:%d" % (dst.sub(2 * h, 2), ad, off), ('W', s, nf)))
            return out
        def x_reads(s):
            xs = (s >> 1) & 1; kk = s & 1
            out = [("ds_read_b128 %s, v%d offset:%d" % (XF(s & 1, mf), V_XR[kk], xs * XSLOT + mf * 2048), ('X', s, mf)) for mf in range(8)]
            out.append(("ds_read_b128 %s, v%d offset:%d" % (HX(s & 1), V_HX[kk], xs * XSLOT), ('H', s)))
            return out
        pend = []
        gapc = [0, 0]
        def step(s, waits=None, emit=True, hooks=None):
            last = s == NSTEP - 1
            ms = []
            for nf in range(10):
                mfs = range(8) if nf % 2 == 0 else range(7, -1, -1)
                grp = [(nf, mf) for mf in mfs]
                if nf in hset: grp.insert(4, (nf, -1))
                ms += grp
            xr = x_reads(s + 1) if not last else []
            first_of = {}
            for i, (nf, mf) in enumerate(ms): first_of.setdefault(nf, i)
            x0 = first_of[BAR] + 2 if (s & 1) else first_of[opt.get("xr_even", 2)] + 2
            xend = len(ms) - opt.get("xr_tail", 10)
            xpos = [x0 + ((xend - x0) * i) // len(xr) for i in range(len(xr))] if xr else []
            sd_ = list(side.get(s, [])) if (emit and (s < 4 or s >= NSTEP - 4)) else []
            s_hi = 66 if s == 28 else len(ms) - 2
            spos = [2 + ((s_hi - 2) * i) // len(sd_) for i in range(len(sd_))] if sd_ else []
            for i, (nf, mf) in enumerate(ms):
                post = []
                if i == first_of[nf] and nf == (FS[0] if FS else BAR) and not last:
                    tags = [('W', s + 1)]
                    if (s + 1) % 2 == 0: tags.append(('X', (s + 1) // 2))
                    n = min(63, need_count(tags))
                    if waits is not None:
                        if emit: n = waits[s & 3]
                        else: waits[s & 3] = min(waits.get(s & 3, 63), n)
                    if FS:
                        assert not any(t in tags for _, t in pend)
                        a("v_add_u32 v%d, 1, v%d", V_FS, V_FS)
                        lwait([('X', s, m_) for m_ in range(8)] + [('H', s)] + [('W', s - 1, n_) for n_ in range(10)])
                    if not opt.get("nodma") and not opt.get("nowait"): a("s_waitcnt vmcnt(%d)", n)
                    if FS: lds("ds_write_b32 v%d, v%d" % (V_FA, V_FS), ('F', s, 0))
                if FS and i == first_of[BAR] - FSL and not last:
                    lds("ds_read_b32 v%d, v%d" % (V_FD, V_FR), ('F', s, 1))
                if i == first_of[nf] and nf == BAR and not last:
                    if FS:
                        lwait([('F', s, 1)])
                        l1 = a.newlab("L_g1_fs"); l2 = a.newlab("L_g1_fr")
                        a("v_cmp_lt_u32 vcc, v%d, v%d", V_FD, V_FS)
                        a("s_cbranch_vccnz %s", l1)
                        a.label(l2)
                        if emit: spins.append((l1, l2))
                    elif not opt.get("nobar"): a("s_barrier")
                    assert not pend, "DMA jobs not drained"
                    if (s & 1) and (s + 3) // 2 < NSTEP // 2: pend.extend(x_jobs((s + 3) // 2))
                    if s + 3 < NSTEP: pend.extend(w_jobs(s + 3))
                    if PFD and (s & 3) == 0 and s < NSTEP - 4 and not (W2P and w == 3): pend.append(pf_job())
                    if W2P and (s & 3) == 0 and not (FUSE and s >= 28):
                        pend.append(r_job(s, 1))
                        if s == 0 or FUSE: pend.append(r_job(s, 0))
                    if KROT and (s & 3) == 1 and s < NSTEP - 4:
                        a("s_sub_u32 s%d, s%d, 1", S_RC, S_RC)
                        a("s_cmp_eq_u32 s%d, 0", S_RC)
                        a("s_cselect_b32 s%d, %d, 0", S_K2, 1024 * 7168)
                        a("s_cselect_b32 s%d, %d, 0", S_STO, 1024 * 6144)
                        a("s_cselect_b32 s%d, 2048, 0", S_T)
                        if not opt.get("samew"):
                            a("s_sub_u32 s%d, s%d, s%d", S_GOFF, S_GOFF, S_K2)
                            a("s_sub_u32 s%d, s%d, s%d", S_QOFF, S_QOFF, S_STO)
                        a("s_sub_u32 s%d, s%d, s%d", S_XK, S_XK, S_T)
                        a("s_sub_u32 s%d, s%d, s%d", S_XH, S_XH, S_T)
                    gapc[0] = 0; gapc[1] = s & 1
                    if hooks and 'bar' in hooks: hooks['bar']()
                job = None
                de = DE
                g0_ = 1 + DST[w]
                if isinstance(DE, list): de = DE[0] if gapc[1] else DE[1]
                if opt.get("dma2"): de = opt.get("de2", 2)
                if pend and gapc[0] >= g0_ and (gapc[0] - g0_) % de == 0:
                    job = pend.pop(0)
                    for x_ in job[0][0]: a(x_)
                gapc[0] += 1
                lwait([('W', s, nf), ('X', s, mf) if mf >= 0 else ('H', s)])
                wf = WR(10 * s + nf)
                if mf >= 0 and opt.get("m32") and (wn == 1 or opt["m32"] == 2):
                    if mf & 1:
                        b_ = (nf // 2) * 4 + mf // 2
                        t = R('v', 80 + 16 * b_, 16) if b_ < 11 else R('a', 16 * (b_ - 11), 16)
                        a("v_mfma_f32_32x32x16_bf16 %s, %s, %s, %s" % (t, wf, XF(s & 1, mf), t if s else "0"))
                elif mf >= 0:
                    t = tiles[(nf, mf)]
                    a(mm(t, wf, XF(s & 1, mf), t if s else "0", nf))
                else:
                    t = HACC(hset.index(nf))
                    a(mm(t, wf, HX(s & 1), t if s else "0", nf))
                if job:
                    for x_ in job[0][1]:
                        if opt.get("nodma") and x_.startswith("buffer_load"): continue
                        if opt.get("dma_only") and x_.startswith("buffer_load") and job[1][0] not in opt["dma_only"]: continue
                        if opt.get("dma_reg") and x_.endswith(" lds") and 4 <= s < 28 and job[1][0] in opt["dma_reg"]:
                            x_ = x_[:-4].replace("buffer_load_dwordx4 ", "buffer_load_dwordx4 v[24:27], ")
                            if opt.get("dma_x1"): x_ = x_.replace("dwordx4 v[24:27]", "dword v24")
                        a(x_)
                    q.append(job[1])
                k = i - first_of[nf]
                if k < 2:
                    s2_, nf2 = (s, nf + LA) if nf + LA < 10 else (s + 1, nf + LA - 10)
                    if s2_ < NSTEP:
                        ins, tag = w_reads(s2_, nf2)[k]
                        lds(ins, tag)
                while xpos and xpos[0] <= i:
                    xpos.pop(0); ins, tag = xr.pop(0); lds(ins, tag)
                while spos and spos[0] <= i:
                    spos.pop(0); side_emit(sd_.pop(0))
                if W2P and (s & 3) == 3 and not (FUSE and s >= 28):
                    r0 = first_of[FS[0] if FS else BAR] + 4
                    if i == r0:
                        if last: a("s_waitcnt vmcnt(%d)", need_count([('R', s - 3)]))
                        r_read(s, 1)
                    if i == r0 + 12: r_store(s)
                    if (s == 3 or FUSE) and i == r0 + 16: r_read(s, 0)
                    if (s == 3 or FUSE) and i == r0 + 28: r_store(s)
                    if last and i == r0 + 20:
                        for r_ in range(RD, RD + 4): a("v_mov_b32 v%d, 0", r_)
                if hooks and i in hooks: hooks[i]()

        if PSPLIT == 1: pro2(); pro3()
        a("s_waitcnt vmcnt(%d)", need_count([('X', 0), ('W', 0)]))
        a("s_waitcnt lgkmcnt(0)")
        a("s_barrier")
        nst("pro")
        if PSPLIT == 2: pro2(); pro3()
        for nf in range(LA):
            for ins, tag in w_reads(0, nf): lds(ins, tag)
            if nf == 0:
                for ins, tag in x_reads(0): lds(ins, tag)
        a("s_waitcnt lgkmcnt(0)"); del lq[:]
        waits = {}
        saved = a.l; q0 = list(q); a.l = []
        for s in range(NSTEP - 4): step(s, waits, emit=False)
        q_after = list(q); lq_after = list(lq); pend_after = list(pend); gap_after = list(gapc)
        a.l = saved; q[:] = q0; del lq[:]; del pend[:]; gapc[:] = [0, 0]
        head = []
        peel = True
        def signal():
            a("v_mov_b32 v%d, 1", T0)
            a("v_mov_b32 v%d, 0", T1)
            a("s_mov_b64 exec, 1")
            a("buffer_atomic_add v%d, v%d, s[%d:%d], s%d offen sc1", T0, T1, S_DBG, S_DBG + 3, S_C1); q.append(('A', 0))
            a("s_mov_b64 exec, -1")
        nit = NSTEP // 4 - 1
        if peel:
            for s in range(4):
                step(s, waits, emit=True)
                nst("s%d" % s)
            nit -= 1
        loop = a.newlab("L_g1_loop")
        a("s_mov_b32 s%d, %d", S_LOOP, nit)
        lq_ss = [(t[0], t[1] - 24) + tuple(t[2:]) for t in lq_after]
        assert lq_ss[len(lq_ss) - len(lq):] == lq, (lq_ss, lq)
        lq[:] = lq_ss
        lq_in = [(t[0], t[1] - 4) + tuple(t[2:]) for t in lq]
        a.label(loop)
        def sig_cond():
            l_ = a.newlab("L_g1_sig")
            a("s_cmp_lg_u32 s%d, %d", S_LOOP, nit - 4 if FUSE else nit)
            a("s_cbranch_scc1 %s", l_)
            signal()
            a.label(l_)
        for s in range(4, 8):
            step(s, waits, emit=True, hooks=({'bar': sig_cond} if (w == 0 and s == 7) else None))
        lq_out = [(t[0], t[1] - 8) + tuple(t[2:]) for t in lq]
        if peel: assert lq_in == lq_out, (lq_in, lq_out)
        else:
            a("s_waitcnt lgkmcnt(0)"); del lq[:]
        a("s_sub_u32 s%d, s%d, 1", S_LOOP, S_LOOP)
        a("s_cmp_lg_u32 s%d, 0", S_LOOP)
        a("s_cbranch_scc1 %s", loop)
        a.c("waits %s" % waits)
        q[:] = q_after; pend[:] = pend_after; gapc[:] = gap_after
        lq[:] = lq_after if peel else []
        nb = 9 if wn == 0 else 8
        def poll():
            if FUSE:
                a("v_min_u32 v%d, 7, v0", T2)
                a("v_lshlrev_b32 v%d, 2, v%d", T2, T2)
                a("buffer_load_dword v%d, v%d, s[%d:%d], 0 offen sc1", T0, T2, S_DBG, S_DBG + 3); q.append(('C', 0))
                return
            a("v_mov_b32 v%d, 0", T2)
            a("buffer_load_dword v%d, v%d, s[%d:%d], s%d offen sc1", T0, T2, S_DBG, S_DBG + 3, S_C0); q.append(('C', 0))
            a("buffer_load_dword v%d, v%d, s[%d:%d], s%d offen sc1", T1, T2, S_DBG, S_DBG + 3, S_C1); q.append(('C', 0))
        def check():
            a("s_waitcnt vmcnt(%d)", need_count([('C', 0)]))
            okval()
        def okval():
            if FUSE:
                a("v_cmp_gt_u32 vcc, 32, v%d", T0)
                a("s_cmp_eq_u64 vcc, 0")
                a("s_cselect_b32 s%d, 32, 0", S_OK)
                return
            a("v_min_u32 v%d, v%d, v%d", T0, T0, T1)
            a("s_nop 1")
            a("v_readfirstlane_b32 s%d, v%d", S_OK, T0)
        def st_loads():
            a("v_and_b32 v%d, 15, v0", T2)
            a("v_lshlrev_b32 v%d, 3, v%d", T2, T2)
            a("s_add_u32 s%d, s%d, %d", S_STO, S_M0, 128 * wm)
            a("s_lshl_b32 s%d, s%d, 3", S_STO, S_STO)
            for b in range(nb):
                bb = b - 1 if wn == 0 else b
                if bb < 0:
                    a("s_max_u32 s%d, s%d, 128", S_K2, S_STO)
                    a("s_sub_u32 s%d, s%d, 128", S_K2, S_K2)
                    a("buffer_load_dwordx2 v[%d:%d], v%d, s[%d:%d], s%d offen sc1", ST + 2 * b, ST + 2 * b + 1, T2, S_ST, S_ST + 3, S_K2)
                else:
                    a("buffer_load_dwordx2 v[%d:%d], v%d, s[%d:%d], s%d offen offset:%d sc1", ST + 2 * b, ST + 2 * b + 1, T2, S_ST, S_ST + 3, S_STO, bb * 128)
                q.append(('R', 0))
        def check_and_load():
            check(); st_loads()
        nst("s27")
        hk29 = {60: check_and_load}
        NPF = opt.get("w2pf", 0)
        if FUSE and NPF:
            def pf_set():
                a("s_lshr_b32 s%d, s2, 4", S_T)
                a("s_and_b32 s%d, s%d, 7", S_T2, S_T)
                a("s_mul_i32 s%d, s%d, 7", S_T2, S_T2)
                a("s_lshr_b32 s%d, s%d, 3", S_T, S_T)
                a("s_add_u32 s%d, s%d, s%d", S_T2, S_T2, S_T)
                a("s_bfe_u32 s%d, s2, 0x10003", S_T)
                a("s_lshl_b32 s%d, s%d, 2", S_T, S_T)
                a("s_add_u32 s%d, s%d, s%d", S_T2, S_T2, S_T)
                a("s_and_b32 s%d, s2, 1", S_T)
                a("s_mul_i32 s%d, s%d, 56", S_T, S_T)
                a("s_add_u32 s%d, s%d, s%d", S_T2, S_T2, S_T)
                a("s_add_u32 s%d, s%d, 33", S_T2, S_T2)
                a("s_lshl_b32 s%d, s%d, 16", S_T2, S_T2)
                a("s_add_u32 s%d, s%d, %d", S_T2, S_T2, w * 16384)
            def pf_set2():
                a("s_mov_b32 s%d, s%d", S_G, S_CD); a("s_mov_b32 s%d, s%d", S_G + 1, S_CD + 1)
                a("s_cmp_ge_u32 s%d, 32", S_OK)
                a("s_cselect_b32 s%d, s%d, 0", S_G + 2, S_CD + 2)
                a("v_lshlrev_b32 v%d, 7, v0", V_PF)
                a("s_add_u32 s%d, s%d, 8192", S_T3, S_T2)
            def pf_ld(so):
                def f():
                    a("buffer_load_dword v%d, v%d, s[%d:%d], s%d offen sc1", V_PFD, V_PF, S_G, S_G + 3, so); q.append(('P', 0))
                return f
            hk29.update({56: pf_set, 64: pf_set2, 68: pf_ld(S_T2), 72: pf_ld(S_T3)})
        step(28, hooks={70: poll}); step(29, hooks=hk29); step(30); step(31)
        assert not pend
        nst("loop")
        lok = a.newlab("L_g1_ok"); lsp = a.newlab("L_g1_spin")
        a("s_cmp_ge_u32 s%d, 32", S_OK)
        a("s_cbranch_scc1 %s", lok)
        a.label(lsp)
        a("s_sleep 4")
        poll()
        a("s_waitcnt vmcnt(0)")
        okval()
        a("s_nop 1")
        a("s_cmp_lt_u32 s%d, 32", S_OK)
        a("s_cbranch_scc1 %s", lsp)
        st_loads()
        a.label(lok)
        a("s_nop 7")
        RR = 1
        CG = 10
        V_L16 = 18; V_SGL = 19
        boff = 1 if wn == 0 else 0
        def stt(mf): return "v[%d:%d]" % (ST + 2 * (mf + boff), ST + 2 * (mf + boff) + 3)
        def SD(mf): return ST + 2 * (mf + boff) + 1
        def cst(i): return "v[%d:%d]" % (CST + 4 * i, CST + 4 * i + 3)
        a("v_lshrrev_b32 v%d, 4, v0", T0)
        a("v_lshlrev_b32 v%d, 4, v%d", T0, T0)
        a("v_add_u32 v%d, %d, v%d", T0, L_CS, T0)
        a("v_lshlrev_b32 v%d, 2, v0", T1)
        a("v_add_u32 v%d, %d, v%d", T1, L_CS, T1)
        a("v_lshlrev_b32 v%d, 4, v0", V_L16)
        a("s_mov_b32 s%d, 0x00010001", S_MSK); a("s_mov_b32 s%d, 0x00010001", S_MSK + 1)
        a("s_mov_b64 exec, s[%d:%d]", S_MSK, S_MSK + 1)
        for i, nf in enumerate(hset):
            if not isV(nf): a("ds_write_b128 v%d, %s offset:%d", T0, HACC(i), (wn * 10 + nf) * 64)
        a("s_mov_b64 exec, 0xffff")
        for i, nf in enumerate(hset):
            if isV(nf): a("ds_write_b32 v%d, %s offset:%d", T1, HACC(i).sub(0), (wn * 10 + nf) * 64)
        a("s_mov_b64 exec, -1")
        if w == 0:
            a("v_add_u32 v%d, %d, v%d", T2, L_KV, V_L16)
            for i in range(4): a("ds_write_b128 v%d, %s offset:%d", T2, tiles[(2 + i, 7)], i * 1024)
        a("s_waitcnt vmcnt(0)")
        for b in range(nb): a("v_rcp_f32 v%d, v%d", RR + b, ST + 2 * b + 1)
        if wn == 0:
            a("v_and_b32 v%d, 15, v0", T3)
            a("v_lshlrev_b32 v%d, 2, v%d", T3, T3)
            a("v_add_u32 v%d, %d, v%d", T3, L_RT + w * 640, T3)
            for b in range(nb): a("ds_write_b32 v%d, v%d offset:%d", T3, RR + b, b * 64)
        for mf in range(8): a("v_mul_f32 v%d, %s, v%d", CG + mf, f32(-LOG2E), RR + mf + boff)
        a("s_lshl_b32 s%d, s%d, 14", S_AB, S_MT)
        if wm: a("s_add_u32 s%d, s%d, 8192", S_AB, S_AB)
        a("s_lshr_b32 s%d, s%d, 1", S_T, S_J)
        a("s_mul_i32 s%d, s%d, 7", S_T, S_T)
        a("s_add_u32 s%d, s%d, 32", S_T, S_T)
        a("s_lshl_b32 s%d, s%d, 2", S_T2, S_ODD)
        a("s_add_u32 s%d, s%d, s%d", S_T2, S_T2, S_T)
        a("s_mul_i32 s%d, s%d, %d", S_K1, S_T2, ACT_KB)
        a("s_add_u32 s%d, s%d, s%d", S_K1, S_K1, S_AB)
        a("s_add_u32 s%d, s%d, 3", S_T, S_T)
        a("s_mul_i32 s%d, s%d, %d", S_K2, S_T, ACT_KB)
        a("s_add_u32 s%d, s%d, s%d", S_K2, S_K2, S_AB)
        a("s_lshl_b32 s%d, s%d, 9", S_T, S_ODD)
        a("s_add_u32 s%d, s%d, s%d", S_K2, S_K2, S_T)
        a("s_mul_i32 s%d, s%d, %d", S_T, S_J, ACT_KB)
        a("s_add_u32 s%d, s%d, s%d", S_AB, S_AB, S_T)
        a("v_lshrrev_b32 v%d, 5, v0", T2)
        a("v_lshl_add_u32 v%d, v%d, 9, v%d", V_SGL, T2, V_L16)
        a("s_waitcnt lgkmcnt(0)")
        nst("e0")
        a("s_barrier")
        nst("e1")
        a("s_mov_b64 exec, 0xffff")
        for nf in range(10): a("ds_read_b32 v%d, v%d offset:%d", CSR + nf, T1, (wn * 10 + nf) * 64)
        a("s_mov_b64 exec, -1")
        if w == 1:
            a("v_add_u32 v%d, %d, v%d", T2, L_KV, V_L16)
            for i in range(4): a("ds_read_b128 %s, v%d offset:%d", HACC(i), T2, i * 1024)
        EP0[0] = len(a.l)
        a("s_mov_b32 s%d, 0xffff0000", S_T3)
        a("s_waitcnt lgkmcnt(0)")
        for nf in range(0, 10, 2):
            for z in range(2): a("v_cvt_pk_bf16_f32 v%d, v%d, v%d", T2 + z, CSR + nf + z, CSR + nf + z)
            for z in range(2): a("v_and_b32 v%d, s%d, v%d", T2 + z, S_T3, T2 + z)
            for z in range(2): a("v_sub_f32 v%d, v%d, v%d", T2 + z, CSR + nf + z, T2 + z)
            for z in range(2): a("v_cvt_pk_bf16_f32 v%d, v%d, v%d", CSR + nf + z, CSR + nf + z, T2 + z)
        def corr(t, nf, mf, ci):
            if isV(nf): return "v_mfma_f32_16x16x32_bf16 %s, %s, %s, %s" % (t, stt(mf), cst(ci), t)
            return "v_mfma_f32_16x16x32_bf16 %s, %s, %s, %s" % (t, cst(ci), stt(mf), t)
        def fetch(t, tmp, L):
            if t.kind == 'v': return t.base
            for i in range(4): L.append("v_accvgpr_read_b32 v%d, %s" % (tmp + i, t.sub(i)))
            return tmp
        def mul4(L, d, s_, m):
            if PK:
                mb = m & ~1; sel = m & 1
                for i in (0, 2):
                    L.append("v_pk_mul_f32 v[%d:%d], v[%d:%d], v[%d:%d] op_sel:[0,%d] op_sel_hi:[1,%d]" % (d + i, d + i + 1, s_ + i, s_ + i + 1, mb, mb + 1, sel, sel))
            else:
                for i in range(4): L.append("v_mul_f32 v%d, v%d, v%d" % (d + i, s_ + i, m))
        def mul44(L, d, s_, m):
            if PK:
                for i in (0, 2):
                    L.append("v_pk_mul_f32 v[%d:%d], v[%d:%d], v[%d:%d]" % (d + i, d + i + 1, s_ + i, s_ + i + 1, m + i, m + i + 1))
            else:
                for i in range(4): L.append("v_mul_f32 v%d, v%d, v%d" % (d + i, s_ + i, m + i))
        def glu_half(g, u, mf, o):
            L = []
            mul4(L, g, g, CG + mf)
            for i in range(4): L.append("v_exp_f32 v%d, v%d" % (g + i, g + i))
            sd = SD(mf)
            if PK:
                for i in (0, 2):
                    L.append("v_pk_fma_f32 v[%d:%d], v[%d:%d], v[%d:%d], v[%d:%d] op_sel:[0,1,1] op_sel_hi:[1,1,1]" % (g + i, g + i + 1, g + i, g + i + 1, sd - 1, sd, sd - 1, sd))
            else:
                for i in range(4): L.append("v_fma_f32 v%d, v%d, v%d, v%d" % (g + i, g + i, sd, sd))
            for i in range(4): L.append("v_rcp_f32 v%d, v%d" % (g + i, g + i))
            mul44(L, u, u, g)
            return L
        def glu_group(grp, tmp, sbase, soff, vaddr):
            F = []
            (ga, ua, ma), (gb, ub, mb) = grp
            ra = fetch(ga, tmp, F); rua = fetch(ua, tmp + 4, F); rb = fetch(gb, tmp + 8, F); rub = fetch(ub, tmp + 12, F)
            L = F + zipl(glu_half(ra, rua, ma, 0), glu_half(rb, rub, mb, 0))
            L.append("s_add_u32 s%d, s%d, %d" % (S_T, sbase, soff))
            L.append("v_cvt_pk_bf16_f32 v%d, v%d, v%d" % (ra, rua, rua + 1))
            L.append("v_cvt_pk_bf16_f32 v%d, v%d, v%d" % (ra + 2, rub, rub + 1))
            L.append("v_cvt_pk_bf16_f32 v%d, v%d, v%d" % (ra + 1, rua + 2, rua + 3))
            L.append("v_cvt_pk_bf16_f32 v%d, v%d, v%d" % (ra + 3, rub + 2, rub + 3))
            L.append("v_permlane32_swap_b32 v%d, v%d" % (ra, ra + 2))
            L.append("v_permlane32_swap_b32 v%d, v%d" % (ra + 1, ra + 3))
            L.append("buffer_store_dwordx4 v[%d:%d], v%d, s[%d:%d], s%d offen%s" % (ra, ra + 3, vaddr, S_ACT, S_ACT + 3, S_T, STM))
            return L
        def run_groups(groups):
            for x_ in groups[0][0] + groups[0][1]: a(x_)
            for k, (pre, cl, vl) in enumerate(groups):
                nxt = (groups[k + 1][0] + groups[k + 1][1]) if k + 1 < len(groups) else []
                for x_ in spread(vl, nxt, 0.05, 0.6): a(x_)
        def glu_groups(pairs, tmps):
            G = []
            for (na_, nb_, sbase, kboff) in pairs:
                if nb_ is not None:
                    for mf in range(8):
                        pre = []
                        if mf == 0:
                            pre = ["v_mov_b32 v%d, v%d" % (CST + 4 * i, CSR + nf) for i, nf in enumerate((na_, na_ + 1, nb_, nb_ + 1))]
                        cl = [corr(tiles[(nf, mf)], nf, mf, i) for i, nf in enumerate((na_, na_ + 1, nb_, nb_ + 1))]
                        vl = glu_group([(tiles[(na_, mf)], tiles[(na_ + 1, mf)], mf), (tiles[(nb_, mf)], tiles[(nb_ + 1, mf)], mf)],
                                       tmps[len(G) & 1], sbase, kboff + mf * 1024, V_L16)
                        G.append((pre, cl, vl))
                else:
                    for mf in range(0, 8, 2):
                        pre = []
                        if mf == 0:
                            pre = ["v_mov_b32 v%d, v%d" % (CST + 4 * i, CSR + nf) for i, nf in enumerate((na_, na_ + 1))]
                        cl = [corr(tiles[(na_ + z, mf + y)], na_ + z, mf + y, z) for y in range(2) for z in range(2)]
                        vl = glu_group([(tiles[(na_, mf)], tiles[(na_ + 1, mf)], mf), (tiles[(na_, mf + 1)], tiles[(na_ + 1, mf + 1)], mf + 1)],
                                       tmps[len(G) & 1], sbase, kboff + mf * 1024, V_SGL)
                        G.append((pre, cl, vl))
            return G
        if wn == 1:
            run_groups(glu_groups([(0, 2, S_K1, 1 * ACT_KB), (4, 6, S_K1, 2 * ACT_KB), (8, None, S_K2, 0)], [TV, TV + 16]))
            if FUSE: weave(w)
            a("s_branch %s", fin)
            return
        a("v_lshrrev_b32 v%d, 4, v0", T3)
        a("v_lshlrev_b32 v%d, 4, v%d", T3, T3)
        a("v_add_u32 v%d, %d, v%d", T3, L_RT + w * 640, T3)
        RV = [CSR + 0, CSR + 0]
        prevK = [HACC(0), HACC(1)]; prevV = [HACC(2), HACC(3)]
        return_tiles = None
        conv(a, w, wm, tiles, VPB, prevK, prevV, locals())

    def conv(a, w, wm, tiles, VPB, prevK, prevV, env):
        (corr, fetch, mul4, mul44, run_groups, glu_groups, stt, cst, SD, RR, CG, V_L16, V_SGL) = [env[k] for k in
            ("corr", "fetch", "mul4", "mul44", "run_groups", "glu_groups", "stt", "cst", "SD", "RR", "CG", "V_L16", "V_SGL")]
        FT = 10
        RVB = [14, 74]
        a("v_mov_b32 v%d, v%d", T5, T3)
        RA = T5
        KP = CST + 0
        for i in range(6): a("v_mov_b32 v%d, v%d", CST + 4 * i, CSR + i)
        KPK = CSR
        RQ = CSR + 4
        groups = []
        for b in range(-1, 8):
            pre = ["ds_read_b128 v[%d:%d], v%d offset:%d" % (RVB[(b + 1) & 1], RVB[(b + 1) & 1] + 3, RA, (b + 1) * 64)]
            tl = {}
            for nf in range(6):
                if b < 0:
                    if nf >= 2: tl[nf] = (prevK + prevV)[nf - 2]
                else: tl[nf] = tiles[(nf, b)]
            cl = [corr(t, nf, b, nf) for nf, t in tl.items()]
            L = []
            r_ = RR + b + 1
            if b >= 0:
                L.append("v_mul_f32 v%d, %s, v%d" % (RQ, f32(LOG2E * 32 ** -0.5), r_))
            for base_nf, mreg in ((2, r_), (0, RQ)):
                if base_nf not in tl: continue
                dst = KPK if b < 0 else tl[base_nf].base
                for f in range(2):
                    s_ = fetch(tl[base_nf + f], FT, L)
                    mul4(L, s_, s_, mreg)
                    L.append("v_cvt_pk_bf16_f32 v%d, v%d, v%d" % (dst + 2 * f, s_, s_ + 1))
                    L.append("v_cvt_pk_bf16_f32 v%d, v%d, v%d" % (dst + 2 * f + 1, s_ + 2, s_ + 3))
            L.append("s_waitcnt lgkmcnt(%d)" % (1 if b < 7 else 0))
            for f in range(2):
                s_ = fetch(tl[4 + f], FT, L)
                mul44(L, s_, s_, RVB[(b + 1) & 1])
                dst = VPB[f] + 2 * (b + 1)
                L.append("v_cvt_pk_bf16_f32 v%d, v%d, v%d" % (dst, s_, s_ + 1))
                L.append("v_cvt_pk_bf16_f32 v%d, v%d, v%d" % (dst + 1, s_ + 2, s_ + 3))
            groups.append((pre, cl, L))
        for x_ in groups[0][0] + groups[0][1]: a(x_)
        for k, (pre, cl, vl) in enumerate(groups):
            if k + 1 < len(groups):
                for x_ in groups[k + 1][0]: a(x_)
                for x_ in spread(vl, groups[k + 1][1], 0.05, 0.6): a(x_)
            else:
                for x_ in vl: a(x_)
        nst("e2")
        K1 = [tiles[(3, mf)].base for mf in range(8)]
        BP, BC, BPF = K1[0], K1[1], K1[2]
        a("v_and_b32 v%d, 15, v0", T0)
        a("v_lshrrev_b32 v%d, 4, v0", T1)
        a("v_lshlrev_b32 v%d, 2, v%d", T1, T1)
        a("v_sub_u32 v%d, v%d, v%d", T0, T0, T1)
        a("v_mov_b32 v%d, %s", T3, f32(-1e30))
        a("s_mov_b32 s%d, 0x80000001", S_T3)
        a("s_brev_b32 s%d, 1", S_T2)
        for i in range(4):
            a("v_subrev_u32 v%d, %d, v%d", T1, i, T0)
            a("v_and_b32 v%d, s%d, v%d", T1, S_T3, T1)
            a("v_cmp_eq_u32 vcc, 0, v%d", T1)
            a("v_cndmask_b32 v%d, v%d, 0, vcc", BC + i, T3)
            a("v_cmp_eq_u32 vcc, s%d, v%d", S_T2, T1)
            a("v_cndmask_b32 v%d, v%d, 0, vcc", BP + i, T3)
        if wm == 0:
            a("s_cmp_eq_u32 s%d, 0", S_M0)
            a("s_cselect_b64 vcc, -1, 0")
            for i in range(4): a("v_cndmask_b32 v%d, v%d, v%d, vcc", BPF + i, BP + i, T3)
        else: BPF = BP
        sets = [(VPB[0] + 18, K1[3], K1[4]), (VPB[1] + 18, K1[5], K1[6])]
        def attn(b):
            base, P, M = sets[b & 1]
            SP, SC, O0, O1 = base, base + 4, base + 8, base + 12
            Tm = M + 1; Sm = M + 2; S2 = M + 3
            Qb = tiles[(0, b)].base; Kb = tiles[(2, b)].base; Kp = KPK if b == 0 else tiles[(2, b - 1)].base
            bp = BPF if b == 0 else BP
            L = []
            L.append("v_mfma_f32_16x16x32_bf16 v[%d:%d], v[%d:%d], v[%d:%d], v[%d:%d]" % (SP, SP + 3, Kp, Kp + 3, Qb, Qb + 3, bp, bp + 3))
            L.append("v_mfma_f32_16x16x32_bf16 v[%d:%d], v[%d:%d], v[%d:%d], v[%d:%d]" % (SC, SC + 3, Kb, Kb + 3, Qb, Qb + 3, BC, BC + 3))
            L += ["NOP"] * 4
            L.append("v_max3_f32 v%d, v%d, v%d, v%d" % (M, SP, SP + 1, SP + 2))
            L.append("v_max3_f32 v%d, v%d, v%d, v%d" % (Tm, SP + 3, SC, SC + 1))
            L.append("v_max3_f32 v%d, v%d, v%d, v%d" % (M, M, SC + 2, SC + 3))
            L.append("v_max_f32 v%d, v%d, v%d" % (M, M, Tm))
            for sw in ("16", "32"):
                L.append("v_mov_b32 v%d, v%d" % (Tm, M))
                L.append("v_permlane%s_swap_b32 v%d, v%d" % (sw, M, Tm))
                L.append("v_max_f32 v%d, v%d, v%d" % (M, M, Tm))
            for i in range(8): L.append("v_sub_f32 v%d, v%d, v%d" % (SP + i, SP + i, M))
            for i in range(8): L.append("v_exp_f32 v%d, v%d" % (SP + i, SP + i))
            for i in range(4): L.append("v_cvt_pk_bf16_f32 v%d, v%d, v%d" % (P + i, SP + 2 * i, SP + 2 * i + 1))
            L.append("v_add_f32 v%d, v%d, v%d" % (Sm, SP, SP + 1))
            L.append("v_add_f32 v%d, v%d, v%d" % (S2, SP + 2, SP + 3))
            for f, O in enumerate((O0, O1)):
                vb = VPB[f] + 2 * b
                L.append("v_mfma_f32_16x16x32_bf16 v[%d:%d], v[%d:%d], v[%d:%d], 0" % (O, O + 3, vb, vb + 3, P, P + 3))
            L.append("v_add_f32 v%d, v%d, v%d" % (Sm, Sm, SP + 4))
            L.append("v_add_f32 v%d, v%d, v%d" % (S2, S2, SP + 5))
            L.append("v_add_f32 v%d, v%d, v%d" % (Sm, Sm, SP + 6))
            L.append("v_add_f32 v%d, v%d, v%d" % (S2, S2, SP + 7))
            L.append("v_add_f32 v%d, v%d, v%d" % (Sm, Sm, S2))
            for sw in ("16", "32"):
                L.append("v_mov_b32 v%d, v%d" % (Tm, Sm))
                L.append("v_permlane%s_swap_b32 v%d, v%d" % (sw, Sm, Tm))
                L.append("v_add_f32 v%d, v%d, v%d" % (Sm, Sm, Tm))
            L.append("v_rcp_f32 v%d, v%d" % (Sm, Sm))
            mul4(L, O0, O0, Sm); mul4(L, O1, O1, Sm)
            st_ = S_T if b & 1 else S_T2
            L.append("s_add_u32 s%d, s%d, %d" % (st_, S_AB, b * 1024))
            L.append("v_cvt_pk_bf16_f32 v%d, v%d, v%d" % (SP, O0, O0 + 1))
            L.append("v_cvt_pk_bf16_f32 v%d, v%d, v%d" % (SP + 2, O1, O1 + 1))
            L.append("v_cvt_pk_bf16_f32 v%d, v%d, v%d" % (SP + 1, O0 + 2, O0 + 3))
            L.append("v_cvt_pk_bf16_f32 v%d, v%d, v%d" % (SP + 3, O1 + 2, O1 + 3))
            L.append("v_permlane32_swap_b32 v%d, v%d" % (SP, SP + 2))
            L.append("v_permlane32_swap_b32 v%d, v%d" % (SP + 1, SP + 3))
            L.append("buffer_store_dwordx4 v[%d:%d], v%d, s[%d:%d], s%d offen%s" % (SP, SP + 3, V_L16, S_ACT, S_ACT + 3, st_, STM))
            return L
        SAa = sum((attn(b) for b in range(0, 8, 2)), [])
        SBb = sum((attn(b) for b in range(1, 8, 2)), [])
        sh = len(attn(0)) // 2
        for x_ in zipl(SAa + ["NOP"] * sh, ["NOP"] * sh + SBb):
            if x_ != "NOP": a(x_)
        nst("e3")
        for mf in range(8): a("v_mul_f32 v%d, %s, v%d", CG + mf, f32(-LOG2E), RR + mf + 1)
        run_groups(glu_groups([(6, 8, S_K1, 0)], [TV, TV + 16]))
        if FUSE: weave(w)
        a("s_branch %s", fin)

    for w in range(4):
        variant(w)
        a("s_nop 7"); a("s_nop 7")
        for l1, l2 in SPINS:
            a.label(l1)
            a("ds_read_b32 v%d, v%d", V_FD, V_FR)
            a("s_waitcnt lgkmcnt(0)")
            a("v_cmp_lt_u32 vcc, v%d, v%d", V_FD, V_FS)
            a("s_cbranch_vccnz %s", l1)
            a("s_branch %s", l2)
        del SPINS[:]
    a.label(fin)
    nst("epi")
    if FUSE:
        lslow = a.newlab("L_p2_slow"); lback = a.newlab("L_p2_back")
        if not opt.get("wv2"):
            a("s_cmp_eq_u32 s%d, 0", p2.Q_A2 + 2)
            a("s_cbranch_scc1 %s", lslow)
        a.label(lback)
        spins = p2.body(a, QENT, NPRE, True, lambda i: nst(["p0", "p20", "p28", "p36"][i]))
    if opt.get("prof"):
        a("s_waitcnt vmcnt(0)")
    stamp(a, opt, 4)
    stamp_store(a, opt, 5, P_WS, S_W, 1, 20)
    a.label(done)
    a("s_endpgm")
    if FUSE:
        a("s_nop 7")
        p2.spin_code(a, spins)
    if FUSE and not opt.get("wv2"):
        a.label(lslow)
        a("v_mov_b32 v%d, 1", T2)
        a("s_waitcnt vmcnt(0)")
        nst("sl1")
        a("s_mov_b64 exec, 1")
        a("buffer_store_dword v%d, off, s[%d:%d], s%d sc1", T2, p2.Q_F, p2.Q_F + 3, p2.Q_FSIG)
        a("s_mov_b64 exec, -1")
        lsl2 = a.newlab("L_p2_slow2")
        a.label(lsl2)
        a(p2.poll_ld(0)[0])
        a("s_waitcnt vmcnt(0)")
        for x_ in p2.poll_test(): a(x_)
        a("s_cbranch_scc1 %s", lsl2)
        nst("sl2")
        for s_ in range(8):
            for x_ in p2.a_job(s_): a(x_[0] if isinstance(x_, tuple) else x_)
        a("s_waitcnt vmcnt(%d)", 0)
        a("s_branch %s", lback)
    lines, added = hazard.fix(a.l)
    a0.l += lines
    a0._lab = a._lab
    return kernel_desc(name, 512, 256, 102 if FUSE else 100)
```

```python
from gen_common import *

G2_LDS = 131072 + 64
L_FULL = 131072
L_FREE = 131072 + 16
ASLOT = 16384
WB = 65536

def gen_g2(a, name="g2_kernel", opt=None):
    opt = opt or {}
    M = opt.get("g2_m", 16)
    K1 = (72 - M) // 2
    NS = K1 + M
    LA = opt.get("g2_la", 4)
    assert (K1 - 4) % 4 == 0 and (M - 8) % 4 == 0 and K1 >= 20
    S_A = 4; S_W = 8; S_X = 12; S_O = 16; S_P = 20; S_F = 24
    S_AROW = [28, 29, 30, 31]
    S_AK = 32; S_WK = 33; S_WV = 34; S_WM = 35; S_WN = 36; S_KS = 37; S_MT = 38; S_NT = 39
    S_T = 40; S_T2 = 41; S_LOOP = 42; S_W1024 = 43; S_D16 = 44; S_DJA = 45; S_DJW = 46
    S_PSEND = 47; S_PRECV = 48; S_FSEND = 49; S_FRECV = 50; S_OK = 51; S_XROW = 52
    P_X = 54; P_WO = 56; P_WD = 58; P_OUT = 60; P_WS = 62
    V_ADMA = 1; V_WDMA = 2; V_AR = [3, 4]; V_WR = [5, 6, 7, 8]; V_L16 = 9; V_XO = 10; V_FL = 11; V_ONE = 12; V_ZERO = 13
    T0, T1, T2, T3 = 14, 15, 16, 17
    XL = 20
    def keep(mf, nf): return R('v', 40 + (mf * 4 + nf) * 4, 4)
    def send(mf, nf): return R('v', 72 + (mf * 4 + nf) * 4, 4)
    def afrag(st, i): return R('v', 104 + st * 32 + i * 4, 4)
    def wfrag(st, nf): return R('v', 104 + st * 32 + 16 + nf * 4, 4)
    RECV = 168

    kernel_header(a, name)
    done = a.newlab("L_g2_done")
    a("s_cmp_ge_u32 s2, 256")
    a("s_cbranch_scc1 %s", done)
    stamp(a, opt, 0)
    a("s_load_dwordx2 s[%d:%d], s[0:1], 0", P_X, P_X + 1)
    a("s_load_dwordx2 s[%d:%d], s[0:1], 16", P_WO, P_WO + 1)
    a("s_load_dwordx2 s[%d:%d], s[0:1], 48", P_WD, P_WD + 1)
    a("s_load_dwordx2 s[%d:%d], s[0:1], 56", P_OUT, P_OUT + 1)
    a("s_load_dwordx2 s[%d:%d], s[0:1], 72", P_WS, P_WS + 1)
    a("v_lshrrev_b32 v%d, 6, v0", T0)
    a("v_and_b32 v0, 63, v0")
    a("s_nop 0")
    a("v_readfirstlane_b32 s%d, v%d", S_WV, T0)
    LD = opt.get("g2_ld", 0)
    S_ROLE = 53
    if LD:
        a("s_lshr_b32 s%d, s%d, 2", S_ROLE, S_WV)
        a("s_and_b32 s%d, s%d, 3", S_WV, S_WV)
    a("s_and_b32 s%d, s2, 1", S_KS)
    if opt.get("g2_map", "4x8") == "4x8":
        a("s_bfe_u32 s%d, s2, 0x20001", S_MT)
        a("s_lshl_b32 s%d, s%d, 2", S_MT, S_MT)
        a("s_lshr_b32 s%d, s2, 6", S_T)
        a("s_add_u32 s%d, s%d, s%d", S_MT, S_MT, S_T)
        a("s_bfe_u32 s%d, s2, 0x30003", S_NT)
    else:
        a("s_bfe_u32 s%d, s2, 0x10001", S_MT)
        a("s_lshl_b32 s%d, s%d, 3", S_MT, S_MT)
        a("s_lshr_b32 s%d, s2, 5", S_T)
        a("s_add_u32 s%d, s%d, s%d", S_MT, S_MT, S_T)
        a("s_bfe_u32 s%d, s2, 0x10002", S_NT)
        a("s_lshl_b32 s%d, s%d, 2", S_NT, S_NT)
        a("s_bfe_u32 s%d, s2, 0x20003", S_T)
        a("s_add_u32 s%d, s%d, s%d", S_NT, S_NT, S_T)
    a("s_and_b32 s%d, s%d, 1", S_WM, S_WV)
    a("s_lshr_b32 s%d, s%d, 1", S_WN, S_WV)
    a("s_lshl_b32 s%d, s%d, 10", S_W1024, S_WV)
    PKD = opt.get("g1b", 0)
    AKB = opt.get("akb", 131072)
    ASTEP = 2 * AKB if PKD else 128
    if PKD:
        a("v_lshlrev_b32 v%d, 4, v0", V_ADMA)
    else:
        a("v_lshrrev_b32 v%d, 4, v0", T0)
        a("s_lshl_b32 s%d, s%d, 2", S_T, S_WM)
        a("v_add_u32 v%d, s%d, v%d", T0, S_T, T0)
        a("v_and_b32 v%d, 7, v0", T1)
        a("v_xor_b32 v%d, v%d, v%d", T0, T0, T1)
        a("v_lshlrev_b32 v%d, 4, v%d", T0, T0)
        a("v_lshrrev_b32 v%d, 3, v0", T1)
        a("v_mul_u32_u24 v%d, %d, v%d", T1, ACT2_STRIDE, T1)
        a("v_add_u32 v%d, v%d, v%d", V_ADMA, T1, T0)
    a("v_lshrrev_b32 v%d, 4, v0", T0)
    a("s_lshl_b32 s%d, s%d, 2", S_T, S_WM if PKD else S_WN)
    a("v_or_b32 v%d, s%d, v%d", T1, S_T, T0)
    a("v_lshlrev_b32 v%d, 1, v%d", T1, T1)
    a("v_and_b32 v%d, 15, v0", T2)
    a("v_xor_b32 v%d, v%d, v%d", T1, T1, T2)
    PC = opt.get("g2_piece", 256)
    if PC == 128:
        a("v_lshrrev_b32 v%d, 3, v%d", T2, T1)
        a("v_and_b32 v%d, 7, v%d", T1, T1)
        a("v_lshl_add_u32 v%d, v%d, 5, v%d", T1, T2, T1)
    elif PC == 64:
        a("v_lshrrev_b32 v%d, 2, v%d", T2, T1)
        a("v_and_b32 v%d, 3, v%d", T1, T1)
        a("v_lshl_add_u32 v%d, v%d, 4, v%d", T1, T2, T1)
    a("v_lshlrev_b32 v%d, 4, v%d", T1, T1)
    a("v_lshl_add_u32 v%d, v%d, 11, v%d", V_WDMA, T0, T1)
    W2P = opt.get("w2p", 0)
    if W2P: a("v_lshlrev_b32 v%d, 4, v0", V_WDMA)
    S_CB = 64
    if PC == 256: a("s_lshl_b32 s%d, s%d, 8", S_CB, S_NT)
    else:
        a("s_and_b32 s%d, s%d, 3", S_CB, S_NT)
        a("s_mul_i32 s%d, s%d, %d", S_CB, S_CB, PC)
        a("s_lshr_b32 s%d, s%d, 2", S_T, S_NT)
        a("s_lshl_b32 s%d, s%d, 10", S_T, S_T)
        a("s_add_u32 s%d, s%d, s%d", S_CB, S_CB, S_T)
    WNB = 128 if PC == 256 else 512
    PB = 256 if PC == 64 else 64
    a("s_lshl_b32 s%d, s%d, 7", S_T, S_MT)
    a("s_lshl_b32 s%d, s%d, 6", S_T2, S_KS)
    a("s_add_u32 s%d, s%d, s%d", S_XROW, S_T, S_T2)
    a("s_xor_b32 s%d, s%d, 64", S_T2, S_XROW)
    if PKD:
        a("s_lshl_b32 s%d, s%d, 6", S_AROW[0], S_XROW)
        a("s_add_u32 s%d, s%d, s%d", S_AROW[0], S_AROW[0], S_W1024)
        a("s_add_u32 s%d, s%d, %d", S_AROW[1], S_AROW[0], AKB)
        a("s_lshl_b32 s%d, s%d, 6", S_AROW[2], S_T2)
        a("s_add_u32 s%d, s%d, s%d", S_AROW[2], S_AROW[2], S_W1024)
        a("s_add_u32 s%d, s%d, %d", S_AROW[3], S_AROW[2], AKB)
    else:
        a("s_lshl_b32 s%d, s%d, 3", S_T, S_WV)
        a("s_add_u32 s%d, s%d, s%d", S_AROW[0], S_XROW, S_T)
        a("s_mul_i32 s%d, s%d, %d", S_AROW[0], S_AROW[0], ACT2_STRIDE)
        a("s_add_u32 s%d, s%d, %d", S_AROW[1], S_AROW[0], 32 * ACT2_STRIDE)
        a("s_add_u32 s%d, s%d, s%d", S_AROW[2], S_T2, S_T)
        a("s_mul_i32 s%d, s%d, %d", S_AROW[2], S_AROW[2], ACT2_STRIDE)
        a("s_add_u32 s%d, s%d, %d", S_AROW[3], S_AROW[2], 32 * ACT2_STRIDE)
    a("s_mul_i32 s%d, s%d, %d", S_AK, S_KS, (K1 + M) * ASTEP)
    if W2P:
        a("s_mul_i32 s%d, s%d, %d", S_WK, S_KS, (K1 + M) * 64 * 2048)
        a("s_add_u32 s%d, s%d, s%d", S_WK, S_WK, S_W1024)
        a("s_lshl_b32 s%d, s%d, 13", S_T, S_NT)
        a("s_add_u32 s%d, s%d, s%d", S_WK, S_WK, S_T)
    else:
        a("s_mul_i32 s%d, s%d, %d", S_WK, S_KS, ((K1 + M) * 64 - 1024) * 2048)
        a("s_lshl_b32 s%d, s%d, 13", S_T, S_WV)
        a("s_add_u32 s%d, s%d, s%d", S_WK, S_WK, S_T)
        a("s_add_u32 s%d, s%d, s%d", S_WK, S_WK, S_CB)
    a("s_cmp_eq_u32 s%d, 0", S_KS)
    a("s_cselect_b32 s%d, 0x%x, 0", S_D16, (-1024 * 2048) & 0xffffffff)
    a("s_cselect_b32 s%d, 0, 0x%x", S_DJA, ((K1 - 72) * ASTEP) & 0xffffffff)
    a("s_cselect_b32 s%d, 0, 0x%x", S_DJW, ((K1 - 72) * 64 * 2048) & 0xffffffff)
    a("s_waitcnt lgkmcnt(0)")
    make_srd(a, S_A, P_WS, 144 * AKB if PKD else 2048 * ACT2_STRIDE, WS_ACT2)
    a("s_cmp_eq_u32 s%d, 0", S_KS)
    a("s_cselect_b32 s%d, s%d, s%d", S_W, P_WO, P_WD)
    a("s_cselect_b32 s%d, s%d, s%d", S_W + 1, P_WO + 1, P_WD + 1)
    a("s_mov_b32 s%d, 0x%x", S_W + 2, 3584 * 2048)
    a("s_cselect_b32 s%d, 0x%x, s%d", S_W + 2, 1024 * 2048, S_W + 2)
    a("s_mov_b32 s%d, 0x00020000", S_W + 3)
    if W2P: make_srd(a, S_W, P_WS, 4608 * 2048, WS_W2P)
    make_srd(a, S_X, P_X, 2048 * 2048)

    q = []
    def a_jobs(slot, full):
        jobs = []
        for i in range(4 if full else 2):
            jobs.append(["s_add_u32 m0, s%d, %d" % (S_W1024, slot * ASLOT + i * 4096),
                         "s_add_u32 s%d, s%d, s%d" % (S_T, S_AK, S_AROW[i]),
                         "buffer_load_dwordx4 v%d, s[%d:%d], s%d offen%s lds" % (V_ADMA, S_A, S_A + 3, S_T, opt.get("g2_amod", ""))])
        if not opt.get("g2_samea"): jobs[-1].append("s_add_u32 s%d, s%d, %d" % (S_AK, S_AK, ASTEP))
        return jobs
    def w_jobs(slot):
        jobs = []
        for i in range(4):
            jobs.append(["s_add_u32 m0, s%d, %d" % (S_W1024, WB + slot * ASLOT + i * 4096),
                         "s_add_u32 s%d, s%d, %d" % (S_T, S_WK, ((i >> 1) * 65536 + (i & 1) * 4096) if W2P else i * 32768),
                         "buffer_load_dwordx4 v%d, s[%d:%d], s%d offen%s lds" % (V_WDMA, S_W, S_W + 3, S_T, opt.get("g2_wmod", ""))])
        if not opt.get("g2_samew"): jobs[-1].append("s_add_u32 s%d, s%d, %d" % (S_WK, S_WK, 64 * 2048))
        return jobs
    def block_jobs(b):
        aj = a_jobs(b & 3, b < K1); wj = w_jobs(b & 3)
        out = []
        for i in range(4):
            out.append(wj[i])
            if i < len(aj): out.append(aj[i])
        return [(j, ('B', b)) for j in out]
    def emit_now(jobs):
        for jb, tag in jobs:
            for s in jb:
                if opt.get("g2_nodma") and s.startswith("buffer_load") and tag[1] >= 4: continue
                a(s)
            q.append(tag)
    def need_count(tags):
        last = max(i for i, t in enumerate(q) if t in tags)
        return len(q) - 1 - last
    FL = opt.get("g2_fl", 0)
    V_CNT, V_FRD, V_FWR, V_FD = 210, 211, 212, 213
    SPIN = []
    PD = opt.get("g2_pd", 0)
    PCN = opt.get("g2_pc", 0)
    V_PA, V_PI, V_PD = (200, 201, 202) if PCN else (20, 21, 22)
    S_PF = 68
    def pf_ins(g, loopval=None):
        if not PD or 4 * g >= NS: return []
        L = []
        if loopval is not None:
            L += ["s_cmp_eq_u32 s%d, %d" % (S_LOOP, loopval), "s_cselect_b32 s%d, -1, 0" % (S_PF + 4),
                  "v_and_b32 v%d, s%d, v%d" % (V_PD + 2, S_PF + 4, V_PD + 1), "v_sub_u32 v%d, v%d, v%d" % (V_PA, V_PA, V_PD + 2)]
        elif 4 * g == K1:
            L.append("v_sub_u32 v%d, v%d, v%d" % (V_PA, V_PA, V_PD + 1))
        L.append(("buffer_load_dword v%d, v%d, s[%d:%d], 0 offen%s" % (V_PD, V_PA, S_PF, S_PF + 3, opt.get("g2_pmod", "")), ('P', 0)))
        L.append("v_lshl_add_u32 v%d, v%d, 2, v%d" % (V_PA, V_PI, V_PA))
        return L
    def pf(g):
        for f in pf_ins(g):
            if isinstance(f, tuple): a(f[0]); q.append(f[1])
            else: a(f)
    def pf_setup():
        assert W2P and opt.get("g2_map", "4x8") == "4x8"
        make_srd(a, S_PF, P_WS, WS_PART - WS_ACT2, WS_ACT2)
        a("s_lshr_b32 s%d, s2, 3", S_T)
        a("s_lshl_b32 s%d, s%d, 12", S_T2, S_T)
        a("s_add_u32 s%d, s%d, %d", S_T2, S_T2, WS_W2P - WS_ACT2)
        a("v_lshlrev_b32 v%d, 7, v0", T0)
        a("v_add_u32 v%d, s%d, v%d", T0, S_T2, T0)
        a("s_lshr_b32 s%d, s%d, 4", S_T2, S_T)
        a("s_mul_i32 s%d, s%d, %d", S_T2, S_T2, AKB)
        a("s_and_b32 s%d, s%d, 15", S_T, S_T)
        a("s_lshl_b32 s%d, s%d, 11", S_T, S_T)
        a("s_add_u32 s%d, s%d, s%d", S_T2, S_T2, S_T)
        a("s_bfe_u32 s%d, s2, 0x20001", S_T)
        a("s_lshl_b32 s%d, s%d, 15", S_T, S_T)
        a("s_add_u32 s%d, s%d, s%d", S_T2, S_T2, S_T)
        a("v_and_b32 v%d, 15, v0", T1)
        a("v_lshlrev_b32 v%d, 7, v%d", T1, T1)
        a("v_add_u32 v%d, s%d, v%d", T1, S_T2, T1)
        a("v_cmp_gt_u32 vcc, 32, v0")
        a("v_cndmask_b32 v%d, v%d, v%d, vcc", V_PA, T1, T0)
        a("v_mov_b32 v%d, %d", T1, ASTEP)
        a("v_mov_b32 v%d, %d", T0, 131072)
        a("v_cndmask_b32 v%d, v%d, v%d, vcc", V_PI, T1, T0)
        a("s_mul_i32 s%d, s%d, %d", S_T, S_KS, K1 + M)
        a("v_mul_u32_u24 v%d, s%d, v%d", V_PD + 1, S_T, V_PI)
        a("s_add_u32 s%d, s%d, s%d", S_T, S_T, S_WV)
        a("s_add_u32 s%d, s%d, 4", S_T, S_T)
        a("v_mad_u32_u24 v%d, v%d, s%d, v%d", V_PA, V_PI, S_T, V_PA)
        for g in range(1, PD // 4 + 1): pf(g)
    if LD:
        lcons = a.newlab("L_g2_cons")
        a("s_cmp_eq_u32 s%d, 0", S_ROLE)
        a("s_cbranch_scc1 %s", lcons)
        for b in range(0, LA): emit_now(block_jobs(b))
        if PD and not PCN: pf_setup()
        if FL:
            a("v_mov_b32 v%d, 1", V_CNT)
            a("v_and_b32 v%d, 3, v0", V_FRD)
            a("v_lshlrev_b32 v%d, 2, v%d", V_FRD, V_FRD)
            a("v_add_u32 v%d, %d, v%d", V_FRD, L_FREE, V_FRD)
            a("s_lshl_b32 s%d, s%d, 2", S_T, S_WV)
            a("s_add_u32 s%d, s%d, %d", S_T, S_T, L_FULL)
            a("v_mov_b32 v%d, s%d", V_FWR, S_T)
            a("ds_write_b32 v%d, v%d", V_FWR, V_CNT)
            a("s_waitcnt lgkmcnt(0)")
        a("s_waitcnt vmcnt(%d)", need_count([('B', 0)]))
        a("s_barrier")
        def ld_step(c, ev16=False, wait=None):
            if FL: a("v_add_u32 v%d, 1, v%d", V_CNT, V_CNT)
            a("s_waitcnt vmcnt(%d)", need_count([('B', c + 1)]) if wait is None else wait)
            if FL:
                a("ds_write_b32 v%d, v%d", V_FWR, V_CNT)
                if c + LA < NS:
                    l_ = a.newlab("L_g2_poll")
                    a.label(l_)
                    a("ds_read_b32 v%d, v%d", V_FD, V_FRD)
                    if opt.get("g2_slp"): a("s_sleep %d", opt["g2_slp"])
                    a("s_waitcnt lgkmcnt(0)")
                    a("v_add_u32 v%d, 1, v%d", V_FD, V_FD)
                    a("v_cmp_lt_u32 vcc, v%d, v%d", V_FD, V_CNT)
                    a("s_cbranch_vccnz %s", l_)
            elif not opt.get("g2_nobar"): a("s_barrier")
            if c + LA == K1:
                a("s_add_u32 s%d, s%d, s%d" % (S_AK, S_AK, S_DJA)); a("s_add_u32 s%d, s%d, s%d" % (S_WK, S_WK, S_DJW))
            if ev16 and not W2P:
                for t_ in ["s_cmp_eq_u32 s%d, %d" % (S_LOOP, (K1 - 4) // 4 - (16 - LA) // 4),
                   "s_cselect_b32 s%d, s%d, s%d" % (S_W, P_WD, S_W),
                   "s_cselect_b32 s%d, s%d, s%d" % (S_W + 1, P_WD + 1, S_W + 1),
                   "s_cselect_b32 s%d, 0x%x, s%d" % (S_W + 2, 3584 * 2048, S_W + 2),
                   "s_cselect_b32 s%d, s%d, 0" % (S_T2, S_D16),
                   "s_add_u32 s%d, s%d, s%d" % (S_WK, S_WK, S_T2)]: a(t_)
            if c + LA < NS: emit_now(block_jobs(c + LA))
            if c % 4 == 3 and not PCN: pf((c + 1 + PD) // 4)
        def ld_loop(c0, c1, ev16):
            nonlocal q
            nit = (c1 - c0) // 4
            if nit == 0: return
            lab = a.newlab("L_g2_ldloop")
            a("s_mov_b32 s%d, %d", S_LOOP, nit)
            a.label(lab)
            for ds in range(4): ld_step(c0 + ds, ev16 and ds == (16 - LA) % 4)
            a("s_sub_u32 s%d, s%d, 1", S_LOOP, S_LOOP)
            a("s_cmp_lg_u32 s%d, 0", S_LOOP)
            a("s_cbranch_scc1 %s", lab)
            saved = a.l; a.l = []
            for c in range(c0 + 4, c1): ld_step(c)
            a.l = saved
        if PD and not PCN:
            for c in range(0, NS - 1): ld_step(c)
        else:
            ld_loop(0, K1 - 4, True)
            for c in range(K1 - 4, K1 + 4): ld_step(c)
            ld_loop(K1 + 4, NS - 4, False)
            for c in range(NS - 4, NS - 1): ld_step(c)
        a("s_waitcnt lgkmcnt(0)")
        a("s_endpgm")
        a.label(lcons)
        q = []
        if opt.get("g2_prio"): a("s_setprio %d", opt["g2_prio"])
        def block_jobs(b): return []
    emit_now(block_jobs(0))
    a("v_and_b32 v%d, 15, v0", T0)
    a("v_lshrrev_b32 v%d, 4, v0", T1)
    a("v_lshlrev_b32 v%d, 11, v%d", T0, T0)
    a("v_lshl_add_u32 v%d, v%d, 3, v%d", T2, T1, T0)
    a("s_lshl_b32 s%d, s%d, 5", S_T, S_WM)
    a("s_add_u32 s%d, s%d, s%d", S_XROW, S_XROW, S_T)
    a("s_lshl_b32 s%d, s%d, 11", S_XROW, S_XROW)
    a("s_add_u32 s%d, s%d, s%d", S_XROW, S_XROW, S_CB)
    a("s_mul_i32 s%d, s%d, %d", S_T, S_WN, WNB)
    a("s_add_u32 s%d, s%d, s%d", S_XROW, S_XROW, S_T)
    a("s_add_u32 s%d, s%d, %d", S_T2, S_XROW, 16 * 2048)
    for mf in range(2):
        for nf in range(4):
            d = XL + (mf * 4 + nf) * 2
            a("buffer_load_dwordx2 v[%d:%d], v%d, s[%d:%d], s%d offen offset:%d", d, d + 1, T2, S_X, S_X + 3, S_XROW if mf == 0 else S_T2, (nf & 1) * 32 + (nf >> 1) * PB)
            q.append(('X', 0))
    for b in range(1, LA): emit_now(block_jobs(b))
    a("v_and_b32 v%d, 1, v%d", T2, T1)
    a("v_lshl_add_u32 v%d, v%d, 5, v%d", T2, T2, T0)
    a("v_lshrrev_b32 v%d, 1, v%d", T3, T1)
    a("v_lshl_add_u32 v%d, v%d, 4, v%d", V_XO, T3, T2)
    make_srd(a, S_O, P_OUT, 2048 * 2048)
    make_srd(a, S_P, P_WS, 256 * 32768, WS_PART)
    make_srd(a, S_F, P_WS, 4096, WS_FLAGS)
    a("s_lshl_b32 s%d, s%d, 3", S_T, S_MT)
    a("s_add_u32 s%d, s%d, s%d", S_T, S_T, S_NT)
    a("s_lshl_b32 s%d, s%d, 1", S_T, S_T)
    a("s_add_u32 s%d, s%d, s%d", S_T, S_T, S_KS)
    a("s_lshl_b32 s%d, s%d, 2", S_T, S_T)
    a("s_add_u32 s%d, s%d, s%d", S_T, S_T, S_WV)
    a("s_xor_b32 s%d, s%d, 4", S_T2, S_T)
    a("s_lshl_b32 s%d, s%d, 13", S_PRECV, S_T)
    a("s_lshl_b32 s%d, s%d, 13", S_PSEND, S_T2)
    a("s_lshl_b32 s%d, s%d, 2", S_FRECV, S_T)
    a("s_lshl_b32 s%d, s%d, 2", S_FSEND, S_T2)
    a("v_lshlrev_b32 v%d, 4, v0", V_L16)
    a("v_mov_b32 v%d, 1", V_ONE)
    a("v_mov_b32 v%d, 0", V_ZERO)
    a("v_and_b32 v%d, 15, v0", T0)
    a("v_lshrrev_b32 v%d, 1, v%d", T2, T0)
    a("s_lshl_b32 s%d, s%d, 5", S_T, S_WM)
    a("v_add_u32 v%d, s%d, v%d", T0, S_T, T0)
    a("v_lshlrev_b32 v%d, 7, v%d", T0, T0)
    a("v_xor_b32 v%d, v%d, v%d", T2, T2, T1)
    a("v_lshl_add_u32 v%d, v%d, 4, v%d", V_AR[0], T2, T0)
    a("v_xor_b32 v%d, 64, v%d", V_AR[1], V_AR[0])
    if PKD:
        a("s_lshl_b32 s%d, s%d, 11", S_T, S_WM)
        a("v_add_u32 v%d, s%d, v%d", V_AR[0], S_T, V_L16)
        a("v_add_u32 v%d, 4096, v%d", V_AR[1], V_AR[0])
    a("v_bfe_u32 v%d, v0, 2, 2", T0)
    a("v_lshl_add_u32 v%d, v%d, 3, v%d", T2, T1, T0)
    if PKD:
        a("v_and_b32 v%d, 1, v%d", T3, T1)
        a("v_lshlrev_b32 v%d, 2, v%d", T3, T3)
        a("v_sub_u32 v%d, v%d, v%d", T2, T2, T3)
    a("v_lshlrev_b32 v%d, 8, v%d", T2, T2)
    a("v_and_b32 v%d, 3, v0", T3)
    a("v_lshl_add_u32 v%d, v%d, 3, v%d", T2, T3, T2)
    a("v_add_u32 v%d, %d, v%d", T2, WB, T2)
    a("v_and_b32 v%d, 1, v%d", T3, T1)
    a("v_lshl_or_b32 v%d, v%d, 2, v%d", T0, T3, T0)
    a("s_lshl_b32 s%d, s%d, 2", S_T, S_WN)
    a("v_xor_b32 v%d, s%d, v%d", T0, S_T, T0)
    for nf in range(4):
        a("v_xor_b32 v%d, %d, v%d", T3, nf, T0)
        a("v_lshl_add_u32 v%d, v%d, 5, v%d", V_WR[nf], T3, T2)
    if W2P:
        a("s_lshl_b32 s%d, s%d, 12", S_T, S_WN)
        a("s_add_u32 s%d, s%d, %d", S_T, S_T, WB)
        a("v_add_u32 v%d, s%d, v%d", V_WR[0], S_T, V_L16)
    for mf in range(2):
        for nf in range(4):
            for i in range(4): a("v_mov_b32 %s, 0", send(mf, nf).sub(i))

    if FL:
        a("v_mov_b32 v%d, 0", V_CNT)
        a("v_and_b32 v%d, 3, v0", V_FRD)
        a("v_lshlrev_b32 v%d, 2, v%d", V_FRD, V_FRD)
        a("v_add_u32 v%d, %d, v%d", V_FRD, L_FULL, V_FRD)
        a("s_lshl_b32 s%d, s%d, 2", S_T, S_WV)
        a("s_add_u32 s%d, s%d, %d", S_T, S_T, L_FREE)
        a("v_mov_b32 v%d, s%d", V_FWR, S_T)
        a("ds_write_b32 v%d, v%d", V_FWR, V_CNT)
        a("s_waitcnt lgkmcnt(0)")
    if PD and PCN: pf_setup()
    a("s_waitcnt vmcnt(%d)", need_count([('X', 0)]))
    a("s_mov_b32 s%d, 0xffff0000", S_T)
    for mf in range(2):
        for nf in range(4):
            d = XL + (mf * 4 + nf) * 2; t = keep(mf, nf)
            a("v_lshlrev_b32 %s, 16, v%d", t.sub(0), d)
            a("v_and_b32 %s, s%d, v%d", t.sub(1), S_T, d)
            a("v_lshlrev_b32 %s, 16, v%d", t.sub(2), d + 1)
            a("v_and_b32 %s, s%d, v%d", t.sub(3), S_T, d + 1)

    def reads_for(c, kk, st):
        slot = c & 3; full = c < K1
        wr = []
        for nf in range(4):
            for r in range(2):
                wr.append("ds_read_b64_tr_b16 %s, v%d offset:%d" % (wfrag(st, nf).sub(2 * r, 2), V_WR[nf], slot * ASLOT + kk * 8192 + r * (2048 if PKD else 1024)))
        if W2P:
            wr = ["ds_read_b128 %s, v%d offset:%d" % (wfrag(st, nf), V_WR[0], slot * ASLOT + kk * 8192 + nf * 1024) for nf in range(4)]
            ar_ = ["ds_read_b128 %s, v%d offset:%d" % (afrag(st, i), V_AR[kk], slot * ASLOT + (i >> 1) * 8192 + (i & 1) * 1024) for i in range(4 if full else 2)]
            return [wr[0]] + ar_ + wr[1:]
        ar_ = ["ds_read_b128 %s, v%d offset:%d" % (afrag(st, i), V_AR[kk], slot * ASLOT + (i >> 1) * 8192 + (i & 1) * (1024 if PKD else 2048)) for i in range(4 if full else 2)]
        return [wr[0], wr[1]] + ar_ + wr[2:]
    def mfmas(c, st):
        na = 4 if c < K1 else 2
        out = []
        for nf in range(4):
            idx = list(range(na))
            if nf & 1: idx = idx[::-1]
            for i in idx:
                t = keep(i, nf) if i < 2 else send(i - 2, nf)
                out.append("s_nop 0" if opt.get("g2_nomfma") else "v_mfma_f32_16x16x32_bf16 %s, %s, %s, %s" % (t, wfrag(st, nf), afrag(st, i), t))
        return out

    def substep(c, kk, pending, waitN=None, last=False, extra=None, post_barrier=None):
        ms = mfmas(c, kk)
        n = len(ms)
        fill = [[] for _ in range(n)]
        nxt = (c, 1) if kk == 0 else (None if last else (c + 1, 0))
        rd = reads_for(nxt[0], nxt[1], 1 - kk) if nxt else []
        if opt.get("g2_nolds"): rd = rd[:opt["g2_nolds"] - 1]
        a("s_waitcnt lgkmcnt(0)")
        gi = 0
        if kk == 1 and not last and FL:
            fill[0] += ["ds_write_b32 v%d, v%d" % (V_FWR, V_CNT), "CHECK", "WAITVM"] + (post_barrier or [])
            gi = opt.get("g2_fgi", 1)
        elif kk == 1 and not last:
            fill[0] += ["WAITVM"] + ([] if opt.get("g2_nobar") else ["s_barrier"]) + (post_barrier or [])
        if kk == 0 and FL and c < NS - 1:
            fg = opt.get("g2_fg", 7) if n == 16 else 3
            fill[fg] += ["ds_read_b32 v%d, v%d" % (V_FD, V_FRD), "v_add_u32 v%d, 1, v%d" % (V_CNT, V_CNT)]
        rpg = opt.get("g2_rpg", 2) if n == 16 else 2
        i = 0
        while i < len(rd):
            fill[gi] += rd[i:i + rpg]; i += rpg; gi += 1
        if extra:
            for g_, ins in extra: fill[g_] += ins
        npend = len(pending) if kk == 0 else (len(pending) + 1) // 2
        slots = [min(n - 1, 1 + (j * n) // max(npend, 1)) for j in range(npend)]
        for k_, m in enumerate(ms):
            a(m)
            for f in fill[k_]:
                if f == "WAITVM":
                    wn_ = waitN()
                    if wn_ is not None: a("s_waitcnt vmcnt(%d)" % wn_)
                elif f == "CHECK":
                    l1 = a.newlab("L_g2_sp"); l2 = a.newlab("L_g2_sr")
                    a("v_cmp_le_u32 vcc, v%d, v%d", V_FD, V_CNT)
                    a("s_cbranch_vccnz %s", l1)
                    a.label(l2)
                    SPIN.append((l1, l2))
                elif isinstance(f, tuple):
                    a(f[0]); q.append(f[1])
                else: a(f)
            while slots and slots[0] == k_:
                slots.pop(0)
                jb, tag = pending.pop(0)
                for x in jb: a(x)
                q.append(tag)

    FLAG_AT = K1 + opt.get("g2_flag_at", 1)
    def run_step(c, waits=None, key=None, emit=True, ev16=False):
        pend = block_jobs(c + LA) if c + LA < NS else []
        pb = []
        if c + LA == K1 and not opt.get("g2_samea") and not LD:
            pb += ["s_add_u32 s%d, s%d, s%d" % (S_AK, S_AK, S_DJA), "s_add_u32 s%d, s%d, s%d" % (S_WK, S_WK, S_DJW)]
        if ev16 and not opt.get("g2_samew") and not LD and not W2P:
            pb += ["s_cmp_eq_u32 s%d, %d" % (S_LOOP, (K1 - 4) // 4 - (16 - LA) // 4),
                   "s_cselect_b32 s%d, s%d, s%d" % (S_W, P_WD, S_W),
                   "s_cselect_b32 s%d, s%d, s%d" % (S_W + 1, P_WD + 1, S_W + 1),
                   "s_cselect_b32 s%d, 0x%x, s%d" % (S_W + 2, 3584 * 2048, S_W + 2),
                   "s_cselect_b32 s%d, s%d, 0" % (S_T2, S_D16),
                   "s_add_u32 s%d, s%d, s%d" % (S_WK, S_WK, S_T2)]
        last = (c == NS - 1)
        def wN():
            if LD: return need_count([('S', 0)]) if c == FLAG_AT else None
            if waits is not None and emit: return waits[key]
            tags = [('B', c + 1)]
            if c == FLAG_AT: tags.append(('S', 0))
            n = min(63, need_count(tags))
            if waits is not None: waits[key] = min(waits.get(key, 63), n)
            return n
        if c == FLAG_AT:
            pb += [("buffer_store_dword v%d, v%d, s[%d:%d], s%d offen sc1" % (V_ONE, V_ZERO, S_F, S_F + 3, S_FSEND), ('F', 0))]
        ex1 = None
        if c == NS - 4:
            ex1 = [(2, [("buffer_load_dword v%d, v%d, s[%d:%d], s%d offen sc1" % (V_FL, V_ZERO, S_F, S_F + 3, S_FRECV), ('FL', 0))])]
        if PD and PCN and c % 4 == 3:
            g_ = (c + 1 + PD) // 4
            lv = None
            if waits is not None and ev16 is not None and c < K1 - 4:
                lv = (K1 - 4) // 4 - (K1 - PD - 4) // 4
            ex1 = (ex1 or []) + [(6, pf_ins(g_, lv))]
        substep(c, 1, pend, waitN=wN, last=last, post_barrier=pb, extra=ex1)
        if last: return
        ex0 = None
        if c + 1 == K1:
            ex0 = []
            for t in range(8):
                s_ = send(t >> 2, t & 3)
                ex0.append((min(7, 2 + t), [("buffer_store_dwordx4 %s, v%d, s[%d:%d], s%d offen offset:%d sc1" % (s_, V_L16, S_P, S_P + 3, S_PSEND, (t & 3) * 1024), ('S', 0))]
                            + (["s_add_u32 s%d, s%d, 4096" % (S_PSEND, S_PSEND)] if t == 3 else [])))
        if c + 1 == NS - 2:
            ex0 = [(1, ["s_waitcnt vmcnt(%d)" % need_count([('FL', 0)]), "v_readfirstlane_b32 s%d, v%d" % (S_OK, V_FL)])]
            ex0.append((2, ["s_add_u32 s%d, s%d, 4096" % (S_T2, S_PRECV)]))
            for t in range(8):
                ex0.append((min(7, 2 + t), [("buffer_load_dwordx4 v[%d:%d], v%d, s[%d:%d], s%d offen offset:%d sc1" % (RECV + 4 * t, RECV + 4 * t + 3, V_L16, S_P, S_P + 3, S_PRECV if t < 4 else S_T2, (t & 3) * 1024), ('R', 0))]))
        substep(c + 1, 0, pend, extra=ex0)
        assert not pend

    if not LD: a("s_waitcnt vmcnt(%d)", need_count([('B', 0)]))
    a("s_barrier")
    stamp(a, opt, 1)
    for r_ in reads_for(0, 0, 0): a(r_)
    substep(0, 0, [])
    def loop_section(c0, c1, ev16):
        nonlocal q
        nit = (c1 - c0) // 4
        if nit == 0: return
        waits = {}
        saved = a.l; q0 = list(q); a.l = []; nsp = len(SPIN)
        for c in range(c0, c1): run_step(c, waits, (c - c0) & 3, emit=False)
        q_after = list(q); a.l = saved; q = q0; del SPIN[nsp:]
        lab = a.newlab("L_g2_loop")
        a("s_mov_b32 s%d, %d", S_LOOP, nit)
        a.label(lab)
        for ds in range(4): run_step(c0 + ds, waits, ds, emit=True, ev16=(ev16 and ds == (16 - LA) % 4))
        a("s_sub_u32 s%d, s%d, 1", S_LOOP, S_LOOP)
        a("s_cmp_lg_u32 s%d, 0", S_LOOP)
        a("s_cbranch_scc1 %s", lab)
        a.c("waits %s" % waits)
        q = q_after
    loop_section(0, K1 - 4, True)
    if opt.get("g2_stp"): stamp(a, opt, 2)
    for c in range(K1 - 4, K1 + 4): run_step(c)
    stamp(a, opt, 3 if opt.get("g2_stp") else 2)
    loop_section(K1 + 4, NS - 4, False)
    for c in range(NS - 4, NS): run_step(c)
    if not opt.get("g2_stp"): stamp(a, opt, 3)
    lok = a.newlab("L_g2_ok"); lsp = a.newlab("L_g2_spin")
    a("s_cmp_lg_u32 s%d, 0", S_OK)
    a("s_cbranch_scc1 %s", lok)
    a.label(lsp)
    a("s_sleep 2")
    a("buffer_load_dword v%d, v%d, s[%d:%d], s%d offen sc1", V_FL, V_ZERO, S_F, S_F + 3, S_FRECV)
    a("s_waitcnt vmcnt(0)")
    a("v_readfirstlane_b32 s%d, v%d", S_OK, V_FL)
    a("s_cmp_eq_u32 s%d, 0", S_OK)
    a("s_cbranch_scc1 %s", lsp)
    for t in range(8):
        a("buffer_load_dwordx4 v[%d:%d], v%d, s[%d:%d], s%d offen offset:%d sc1", RECV + 4 * t, RECV + 4 * t + 3, V_L16, S_P, S_P + 3, S_PRECV if t < 4 else S_T2, (t & 3) * 1024)
    a.label(lok)
    a("s_add_u32 s%d, s%d, %d", S_T2, S_XROW, 16 * 2048)
    a("s_waitcnt vmcnt(0)")
    a("s_nop 4")
    for mf in range(2):
        for p in range(2):
            pk = XL + (mf * 2 + p) * 4
            for z in range(2):
                nf = 2 * p + z; t = keep(mf, nf); rb = RECV + (mf * 4 + nf) * 4
                a("v_pk_add_f32 v[%d:%d], v[%d:%d], v[%d:%d]", t.base, t.base + 1, t.base, t.base + 1, rb, rb + 1)
                a("v_pk_add_f32 v[%d:%d], v[%d:%d], v[%d:%d]", t.base + 2, t.base + 3, t.base + 2, t.base + 3, rb + 2, rb + 3)
                a("v_cvt_pk_bf16_f32 v%d, v%d, v%d", pk + 2 * z, t.base, t.base + 1)
                a("v_cvt_pk_bf16_f32 v%d, v%d, v%d", pk + 2 * z + 1, t.base + 2, t.base + 3)
            a("s_nop 1")
            a("v_permlane16_swap_b32 v%d, v%d", pk, pk + 2)
            a("v_permlane16_swap_b32 v%d, v%d", pk + 1, pk + 3)
            a("buffer_store_dwordx4 v[%d:%d], v%d, s[%d:%d], s%d offen offset:%d", pk, pk + 3, V_XO, S_O, S_O + 3, S_XROW if mf == 0 else S_T2, p * PB)
    if opt.get("prof"):
        a("s_waitcnt vmcnt(0)")
    stamp(a, opt, 4)
    stamp_store(a, opt, 5, P_WS, S_WV, 2, 20)
    a.label(done)
    a("s_endpgm")
    for l1, l2 in SPIN:
        a.label(l1)
        a("ds_read_b32 v%d, v%d", V_FD, V_FRD)
        a("s_waitcnt lgkmcnt(0)")
        a("v_cmp_le_u32 vcc, v%d, v%d", V_FD, V_CNT)
        a("s_cbranch_vccnz %s", l1)
        a("s_branch %s", l2)
    return kernel_desc(name, 256, 256, 100)
```

```python
from gen_common import *
import hazard

NSLOT = 9
FLG_ACT = 4096
FLG_BYTES = 4096 + 8192
SLOTB = [160, 176, 192, 208, 224, 240] + [16 * i for i in range(10)]

class P2:
    Q_X, Q_O, Q_P, Q_F, Q_A, Q_W, Q_A2 = 4, 8, 12, 16, 20, 64, 60
    Q_BA, Q_BC, Q_BT, Q_BP, Q_KD, Q_WG, Q_WT, Q_M0W = 32, 33, 34, 35, 36, 37, 38, 39
    Q_T, Q_T2, Q_OK = 46, 47, 48
    Q_XROW, Q_PSEND, Q_PRECV, Q_FSEND, Q_FRECV, Q_FPOLL, Q_FSIG, Q_KS, Q_MT, Q_NT = 68, 69, 70, 71, 72, 73, 74, 75, 76, 77
    P_OUT = 100
    V_L16 = 18; V_POLL = 78
    V_R = [18, 2, 3]; V_XL = 4; V_XO = 5; V_FL = 6; V_ONE = 7; V_ZERO = 8; T0, T1, T2, T3 = 9, 10, 11, 12
    XL = 20; RECV = 208

    def __init__(self, opt, S_W):
        self.opt = opt; self.S_W = S_W; self.nst = None
        self.AKB = opt.get("akb", 131072)
        self.amod = opt.get("p2_amod", " sc1"); self.wmod = opt.get("p2_wmod", " sc1")
    def acc(self, half, mf, nf): return R('v', 80 + half * 32 + (mf * 2 + nf) * 4, 4)
    def afrag(self, st, i): return R('v', 144 + st * 32 + i * 4, 4)
    def wfrag(self, b, kk, nf): return R('a', SLOTB[b & 15] + (kk * 2 + nf) * 4, 4)

    def setup_s(self):
        p = self; L = []; AKB = p.AKB; W = p.S_W
        def e(s, *x): L.append(s % x if x else s)
        e("s_and_b32 s%d, s2, 1", p.Q_KS)
        e("s_bfe_u32 s%d, s2, 0x20001", p.Q_MT)
        e("s_lshl_b32 s%d, s%d, 2", p.Q_MT, p.Q_MT)
        e("s_lshr_b32 s%d, s2, 6", p.Q_T)
        e("s_add_u32 s%d, s%d, s%d", p.Q_MT, p.Q_MT, p.Q_T)
        e("s_bfe_u32 s%d, s2, 0x30003", p.Q_NT)
        e("s_lshl_b32 s%d, s%d, 12", p.Q_M0W, W)
        e("s_lshl_b32 s%d, s%d, 1", p.Q_T, p.Q_MT)
        e("s_add_u32 s%d, s%d, s%d", p.Q_T, p.Q_T, p.Q_KS)
        e("s_lshl_b32 s%d, s%d, 17", p.Q_XROW, p.Q_T)
        e("s_lshl_b32 s%d, s%d, 12", p.Q_T, p.Q_T)
        e("s_xor_b32 s%d, s%d, 4096", p.Q_T2, p.Q_T)
        e("s_sub_u32 s%d, s%d, s%d", p.Q_KD, p.Q_T, p.Q_T2)
        e("s_lshl_b32 s%d, s%d, 4", p.Q_BT, p.Q_KS)
        e("s_add_u32 s%d, s%d, s%d", p.Q_BT, p.Q_BT, W)
        e("s_mul_i32 s%d, s%d, %d", p.Q_BT, p.Q_BT, AKB)
        e("s_add_u32 s%d, s%d, s%d", p.Q_BT, p.Q_BT, p.Q_T2)
        e("s_mul_i32 s%d, s%d, 56", p.Q_WG, p.Q_KS)
        e("s_add_u32 s%d, s%d, 32", p.Q_WG, p.Q_WG)
        e("s_lshr_b32 s%d, s%d, 1", p.Q_BC, W)
        e("s_lshl_b32 s%d, s%d, 2", p.Q_BP, W)
        e("s_sub_u32 s%d, s%d, s%d", p.Q_BP, p.Q_BP, p.Q_BC)
        e("s_add_u32 s%d, s%d, s%d", p.Q_BP, p.Q_BP, p.Q_WG)
        e("s_mul_i32 s%d, s%d, %d", p.Q_BP, p.Q_BP, AKB)
        e("s_add_u32 s%d, s%d, s%d", p.Q_BP, p.Q_BP, p.Q_T2)
        e("s_and_b32 s%d, s%d, 1", p.Q_T2, W)
        e("s_lshl_b32 s%d, s%d, 12", p.Q_T2, p.Q_T2)
        e("s_xor_b32 s%d, s%d, s%d", p.Q_T, p.Q_T, p.Q_T2)
        e("s_lshl_b32 s%d, s%d, 2", p.Q_BA, p.Q_BC)
        e("s_add_u32 s%d, s%d, s%d", p.Q_BA, p.Q_BA, p.Q_WG)
        e("s_mul_i32 s%d, s%d, %d", p.Q_BA, p.Q_BA, AKB)
        e("s_add_u32 s%d, s%d, s%d", p.Q_BA, p.Q_BA, p.Q_T)
        e("s_mul_i32 s%d, s%d, 7", p.Q_BC, p.Q_BC)
        e("s_add_u32 s%d, s%d, s%d", p.Q_BC, p.Q_BC, p.Q_WG)
        e("s_mul_i32 s%d, s%d, %d", p.Q_BC, p.Q_BC, AKB)
        e("s_add_u32 s%d, s%d, s%d", p.Q_BC, p.Q_BC, p.Q_T)
        e("s_lshl_b32 s%d, s%d, 13", p.Q_T, p.Q_NT)
        e("s_lshl_b32 s%d, s%d, 11", p.Q_T2, W)
        e("s_add_u32 s%d, s%d, s%d", p.Q_T, p.Q_T, p.Q_T2)
        e("s_lshl_b32 s%d, s%d, 16", p.Q_WG, p.Q_WG)
        e("s_add_u32 s%d, s%d, s%d", p.Q_WG, p.Q_WG, p.Q_T)
        e("s_lshl_b32 s%d, s%d, 20", p.Q_WT, p.Q_KS)
        e("s_add_u32 s%d, s%d, s%d", p.Q_WT, p.Q_WT, p.Q_T)
        e("s_lshr_b32 s%d, s%d, 5", p.Q_T, p.Q_T)
        e("s_add_u32 s%d, s%d, s%d", p.Q_XROW, p.Q_XROW, p.Q_T)
        e("s_lshl_b32 s%d, s%d, 3", p.Q_T, p.Q_MT)
        e("s_add_u32 s%d, s%d, s%d", p.Q_T, p.Q_T, p.Q_NT)
        e("s_lshl_b32 s%d, s%d, 1", p.Q_T, p.Q_T)
        e("s_add_u32 s%d, s%d, s%d", p.Q_T, p.Q_T, p.Q_KS)
        e("s_lshl_b32 s%d, s%d, 2", p.Q_T, p.Q_T)
        e("s_add_u32 s%d, s%d, s%d", p.Q_T, p.Q_T, W)
        e("s_xor_b32 s%d, s%d, 4", p.Q_T2, p.Q_T)
        e("s_lshl_b32 s%d, s%d, 13", p.Q_PRECV, p.Q_T)
        e("s_lshl_b32 s%d, s%d, 13", p.Q_PSEND, p.Q_T2)
        e("s_lshl_b32 s%d, s%d, 2", p.Q_FRECV, p.Q_T)
        e("s_lshl_b32 s%d, s%d, 2", p.Q_FSEND, p.Q_T2)
        e("s_lshl_b32 s%d, s%d, 9", p.Q_FPOLL, p.Q_MT)
        e("s_lshl_b32 s%d, s%d, 8", p.Q_T, p.Q_KS)
        e("s_add_u32 s%d, s%d, s%d", p.Q_FPOLL, p.Q_FPOLL, p.Q_T)
        e("s_add_u32 s%d, s%d, %d", p.Q_FPOLL, p.Q_FPOLL, FLG_ACT)
        e("s_mov_b32 s%d, s%d", p.Q_O, p.P_OUT); e("s_mov_b32 s%d, s%d", p.Q_O + 1, p.P_OUT + 1)
        e("s_mov_b32 s%d, 0x%x", p.Q_O + 2, 2048 * 2048); e("s_mov_b32 s%d, 0x00020000", p.Q_O + 3)
        for d, off, nb in ((p.Q_P, WS_PART, 256 * 32768), (p.Q_F, WS_FLAGS, FLG_BYTES)):
            L.append(["s_add_u32 s%d, s%d, 0x%x" % (d, p.Q_A, off - WS_ACT2), "s_addc_u32 s%d, s%d, 0" % (d + 1, p.Q_A + 1)])
            e("s_mov_b32 s%d, 0x%x", d + 2, nb); e("s_mov_b32 s%d, 0x00020000", d + 3)
        e("s_mov_b32 s%d, s%d", p.Q_A2, p.Q_A); e("s_mov_b32 s%d, s%d", p.Q_A2 + 1, p.Q_A + 1)
        e("s_mov_b32 s%d, 0", p.Q_A2 + 2); e("s_mov_b32 s%d, 0x00020000", p.Q_A2 + 3)
        return L

    def a_job(self, s, srd=None, other=False):
        p = self; srd = p.Q_A if srd is None else srd
        if s < 8: base, kb = p.Q_BA, 7 * s + 1
        elif s < 16: base, kb = p.Q_BA, 7 * (s - 8) + 2
        elif s < 20: base, kb = p.Q_BC, 14 * (s - 16) + 3
        elif (s - 20) % 8 < 4: base, kb = p.Q_BT, 4 * ((s - 20) % 8)
        else: base, kb = p.Q_BP, 14 * ((s - 24) % 8)
        L = []
        if s == 28: L += ["s_add_u32 s%d, s%d, s%d" % (p.Q_BT, p.Q_BT, p.Q_KD), "s_add_u32 s%d, s%d, s%d" % (p.Q_BP, p.Q_BP, p.Q_KD)]
        if other: L += ["s_sub_u32 m0, m0, 8192", "s_sub_u32 s%d, s%d, %d" % (p.Q_T, p.Q_T, 4 * p.AKB)]
        else: L += ["s_add_u32 m0, s%d, %d" % (p.Q_M0W, (s % NSLOT) * 16384), "s_add_u32 s%d, s%d, %d" % (p.Q_T, base, kb * p.AKB)]
        for i in range(4):
            L.append(("buffer_load_dwordx4 v%d, s[%d:%d], s%d offen offset:%d%s lds" % (p.V_L16, srd, srd + 3, p.Q_T, 1024 * i, p.amod), ('A', s)))
        return L
    def w_kbs(self, b):
        if b < 8: return self.Q_WG, 7 * b + 1, 4
        if b < 16: return self.Q_WG, 7 * (b - 8) + 2, 4
        if b < 20: return self.Q_WG, 14 * (b - 16) + 3, 7
        if b < 28: return self.Q_WT, 2 * (b - 20), 1
        return self.Q_WG, 7 * (b - 28), 4
    def w_job(self, b):
        p = self; base, kb, d = p.w_kbs(b); L = []
        for kk in range(2):
            L.append("s_add_u32 s%d, s%d, %d" % (p.Q_T2, base, (kb + kk * d) * 65536))
            for nf in range(2):
                L.append(("buffer_load_dwordx4 %s, v%d, s[%d:%d], s%d offen offset:%d%s" % (p.wfrag(b, kk, nf), p.V_L16, p.Q_W, p.Q_W + 3, p.Q_T2, 1024 * nf, p.wmod), ('W', b)))
        return L
    def poll_ld(self, t):
        p = self
        return ("buffer_load_dword v%d, v%d, s[%d:%d], s%d offen offset:%d sc1" % (p.V_POLL, p.V_L16, p.Q_F, p.Q_F + 3, p.Q_FPOLL, 4 * t), ('PL', t))
    def poll_test(self):
        return ["v_cmp_eq_u32 vcc, 0, v%d" % self.V_POLL, "s_and_b32 s%d, vcc_lo, 0xffff" % self.Q_T]

    def body(self, a, queues, npre, fused, stamp_fn=None):
        p = self; opt = p.opt
        qs = [list(q) for q in queues]
        def push(t):
            for q in qs: q.append(t)
        def need(tags):
            n = 63
            for q in qs:
                idx = [i for i, t in enumerate(q) if t in tags]
                if idx: n = min(n, len(q) - 1 - max(idx))
            return n
        def need1(q, tags):
            idx = [i for i, t in enumerate(q) if t in tags]
            return min(63, len(q) - 1 - max(idx)) if idx else 63
        def vwait(tags):
            if len(qs) == 4 and opt.get("wv2"):
                n0 = min(need1(qs[0], tags), need1(qs[1], tags)); n1 = min(need1(qs[2], tags), need1(qs[3], tags))
                if n0 > n1 + 1:
                    l_ = a.newlab("L_p2_w")
                    a("s_cmp_lt_u32 s%d, 2", p.S_W)
                    a("s_cbranch_scc1 %s", l_)
                    a("s_waitcnt vmcnt(%d)", n1)
                    a.label(l_)
                    a("s_waitcnt vmcnt(%d)", n0)
                    return
            a("s_waitcnt vmcnt(%d)", need(tags))
        lq = []
        def lwait(tags):
            idx = [i for i, t in enumerate(lq) if t in tags]
            if not idx: return
            n = len(lq) - 1 - max(idx)
            a("s_waitcnt lgkmcnt(%d)", min(n, 15))
            del lq[:len(lq) - min(n, 15)]
        spins = []
        def emit(x):
            if isinstance(x, tuple):
                if x[1][0] in opt.get("p2_skip", []): return
                a(x[0]); push(x[1])
            elif callable(x): x()
            else: a(x)
        def rd(n):
            c, u = n >> 1, n & 1
            out = []
            for i in range(8):
                off = (c % NSLOT) * 16384 + u * 8192 + i * 1024
                out.append(("ds_read_b128 %s, v%d offset:%d" % (p.afrag(u, i), p.V_R[off >> 16], off & 65535), ('L', n, i)))
            return out
        def wblocks(c): return [c] if c < 20 else [20 + 2 * ((c - 20) % 8), 21 + 2 * ((c - 20) % 8)]
        touched = set()
        def mf_list(n):
            c, u = n >> 1, n & 1
            out = []
            for i in range(8):
                for z in range(2):
                    nf = z ^ (i & 1)
                    if c < 20: t = p.acc(i >> 2, i & 3, nf); wf = p.wfrag(c, u, nf)
                    else: t = p.acc(1 if c < 28 else 0, i & 3, nf); wf = p.wfrag(wblocks(c)[u], i >> 2, nf)
                    first = t.base not in touched; touched.add(t.base)
                    out.append(("v_mfma_f32_16x16x32_bf16 %s, %s, %s, %s" % (t, wf, p.afrag(u, i), "0" if first else t), i))
            return out
        a("v_add_u32 v%d, 65536, v%d", p.V_R[1], p.V_L16)
        a("v_add_u32 v%d, 131072, v%d", p.V_R[2], p.V_L16)
        vwait([('A', 0), ('W', 0)])
        a("s_barrier")
        if stamp_fn: stamp_fn(0)
        for ins, tag in rd(0): a(ins); lq.append(tag)
        T0, T1, T2, T3 = p.T0, p.T1, p.T2, p.T3
        misc = ["v_and_b32 v%d, 15, v0" % T0, "v_lshrrev_b32 v%d, 4, v0" % T1, "v_lshlrev_b32 v%d, 11, v%d" % (T0, T0),
                "v_lshl_add_u32 v%d, v%d, 3, v%d" % (p.V_XL, T1, T0),
                "v_and_b32 v%d, 1, v%d" % (T2, T1), "v_lshl_add_u32 v%d, v%d, 5, v%d" % (T2, T2, T0), "v_lshrrev_b32 v%d, 1, v%d" % (T3, T1),
                "v_lshl_add_u32 v%d, v%d, 4, v%d" % (p.V_XO, T3, T2), "v_mov_b32 v%d, 1" % p.V_ONE, "v_mov_b32 v%d, 0" % p.V_ZERO]
        for x in misc: a(x)
        D0 = opt.get("p2_d0", 2) if fused else 0
        jobs = {c: [] for c in range(-1, 36)}
        NA0 = opt.get("wv2", 8) if fused else 8
        def check(t):
            def f():
                l1 = a.newlab("L_p2_sp"); l2 = a.newlab("L_p2_sr")
                if p.nst: p.nst("c%da" % t)
                a("s_waitcnt vmcnt(%d)", need([('PL', t)]))
                for x in p.poll_test(): a(x)
                a("s_cbranch_scc1 %s", l1)
                a.label(l2)
                if p.nst: p.nst("c%db" % t)
                spins.append((l1, l2, t))
            return f
        dma_at = {s: max(s - 8, D0 + (s - 8) // 2, (s - NA0) // 2 - 1) for s in range(8, 36)}
        for s in range(NA0, 8): dma_at[s] = (s - NA0) // 2 - 1
        nxtw = npre
        for c in range(-1, 36):
            for s in range(NA0, 36):
                if dma_at[s] == c:
                    if fused and s in (8, 16, 20): jobs[c].append([check({8: 1, 16: 2, 20: 3}[s])])
                    j = p.a_job(s); k = len(j) - 4
                    jobs[c] += [j[:k + 1]] + [[x] for x in j[k + 1:]]
            nw = 0
            while c >= 0 and nxtw < 36 and nxtw - 16 < c and nw < opt.get("p2_wps", 2):
                j = p.w_job(nxtw); jobs[c] += [j[0:2], j[2:3], j[3:5], j[5:6]]; nxtw += 1; nw += 1
        if fused:
            for s, t in ((8, 1), (16, 2), (20, 3)):
                c = dma_at[s] - 2
                if c >= 0: jobs[c].insert(0, [p.poll_ld(t)])
                else: emit(p.poll_ld(t))
            SG = opt.get("p2_sig", 2)
            def sig():
                if p.nst: p.nst("sga")
                a("s_waitcnt vmcnt(%d)", need([('AS', 0)]))
                if p.nst: p.nst("sgb")
                a("s_mov_b64 exec, 1")
                emit(("buffer_store_dword v%d, v%d, s[%d:%d], s%d offen sc1" % (p.V_ONE, p.V_ZERO, p.Q_F, p.Q_F + 3, p.Q_FSIG), ('SG', 0)))
                a("s_mov_b64 exec, -1")
            jobs[SG].insert(0, [sig])
        XC = 10
        for mf in range(4):
            jobs[XC + mf].append(["s_add_u32 s%d, s%d, %d" % (p.Q_T2, p.Q_XROW, mf * 32768)] +
                                 [("buffer_load_dwordx2 v[%d:%d], v%d, s[%d:%d], s%d offen offset:%d" % (p.XL + (mf * 2 + nf) * 2, p.XL + (mf * 2 + nf) * 2 + 1, p.V_XL, p.Q_X, p.Q_X + 3, p.Q_T2, nf * 32), ('X', 0)) for nf in range(2)])
        valu = {c: [] for c in range(36)}
        valu[21].append([lambda: a("s_waitcnt vmcnt(%d)", need([('X', 0)])), "s_mov_b32 s%d, 0xffff0000" % p.Q_OK])
        for k in range(8):
            t = p.acc(0, k >> 1, k & 1); d = p.XL + 2 * k
            for h in range(2):
                c = 21 + k // 2
                valu[c].append(["v_lshlrev_b32 v%d, 16, v%d" % (T0, d + h), "v_and_b32 v%d, s%d, v%d" % (T1, p.Q_OK, d + h)])
                valu[c].append(["v_add_f32 %s, %s, v%d" % (t.sub(2 * h), t.sub(2 * h), T0), "v_add_f32 %s, %s, v%d" % (t.sub(2 * h + 1), t.sub(2 * h + 1), T1)])
        FA = opt.get("p2_fa", 31); PA = opt.get("p2_pa", 33); RA = opt.get("p2_ra", 34)
        pre0 = {c: [] for c in range(36)}
        for k in range(8):
            t = p.acc(1, k >> 1, k & 1)
            pre0[28].append([("buffer_store_dwordx4 %s, v%d, s[%d:%d], s%d offen offset:%d sc1" % (t, p.V_L16, p.Q_P, p.Q_P + 3, p.Q_PSEND, (k & 3) * 1024), ('S', 0))]
                            + (["s_add_u32 s%d, s%d, 4096" % (p.Q_PSEND, p.Q_PSEND)] if k == 3 else []))
        def flag():
            a("s_waitcnt vmcnt(%d)", need([('S', 0)]))
            emit(("buffer_store_dword v%d, v%d, s[%d:%d], s%d offen sc1" % (p.V_ONE, p.V_ZERO, p.Q_F, p.Q_F + 3, p.Q_FSEND), ('F', 0)))
        jobs[FA].insert(0, [flag])
        jobs[PA].append([("buffer_load_dword v%d, v%d, s[%d:%d], s%d offen sc1" % (p.V_FL, p.V_ZERO, p.Q_F, p.Q_F + 3, p.Q_FRECV), ('FL', 0))])
        def rloads():
            return [("buffer_load_dwordx4 v[%d:%d], v%d, s[%d:%d], s%d offen offset:%d sc1" % (p.RECV + 4 * k, p.RECV + 4 * k + 3, p.V_L16, p.Q_P, p.Q_P + 3, p.Q_PRECV if k < 4 else p.Q_T2, (k & 3) * 1024), ('R', 0)) for k in range(8)]
        jobs[RA].append([lambda: a("s_waitcnt vmcnt(%d)", need([('FL', 0)])), "v_readfirstlane_b32 s%d, v%d" % (p.Q_OK, p.V_FL), "s_add_u32 s%d, s%d, 4096" % (p.Q_T2, p.Q_PRECV)])
        jobs[RA] += [[x] for x in rloads()]
        pend = list(jobs[-1]); gap = 0; step_ = 1
        JG = opt.get("p2_jg", 2)
        for n in range(72):
            c, u = n >> 1, n & 1
            ms = mf_list(n)
            nr = rd(n + 1) if n + 1 < 72 else []
            side = list(pre0[c]) if u == 0 else []
            vs = valu[c][u * 8:(u + 1) * 8] if len(valu[c]) <= 16 else None
            for k, (m, i) in enumerate(ms):
                lwait([('L', n, i)])
                a(m)
                if k == 0 and u == 1:
                    if c < 35:
                        vwait([('A', c + 1)] + [('W', b) for b in wblocks(c + 1)])
                        if not opt.get("p2_nobar"): a("s_barrier")
                    assert not pend, (c, pend)
                    pend = list(jobs[c]); gap = 0
                    span = 30 if c < 35 else 14
                    step_ = max(1, min(JG + 1, span // max(1, len(pend))))
                if k % 2 == 0 and nr:
                    ins, tag = nr.pop(0)
                    if not opt.get("p2_nolds"): a(ins); lq.append(tag)
                elif side and k >= 1:
                    for x in side.pop(0): emit(x)
                elif vs:
                    for x in vs.pop(0): emit(x)
                if pend:
                    gap += 1
                    if gap >= 2 and (gap - 2) % step_ == 0:
                        for x in pend.pop(0): emit(x)
            assert not side and not vs
            if stamp_fn and n in (39, 55): stamp_fn(1 if n == 39 else 2)
            if p.nst and u == 1: p.nst("q%d" % (c + 1))
        assert not pend
        if stamp_fn: stamp_fn(3)
        lok = a.newlab("L_p2_ok"); lsp = a.newlab("L_p2_spin")
        a("s_cmp_lg_u32 s%d, 0", p.Q_OK)
        a("s_cbranch_scc1 %s", lok)
        a.label(lsp)
        a("s_sleep 2")
        a("buffer_load_dword v%d, v%d, s[%d:%d], s%d offen sc1", p.V_FL, p.V_ZERO, p.Q_F, p.Q_F + 3, p.Q_FRECV)
        a("s_waitcnt vmcnt(0)")
        a("v_readfirstlane_b32 s%d, v%d", p.Q_OK, p.V_FL)
        a("s_nop 1")
        a("s_cmp_eq_u32 s%d, 0", p.Q_OK)
        a("s_cbranch_scc1 %s", lsp)
        for x in rloads(): a(x[0])
        a.label(lok)
        a("s_nop 4")
        for mf in range(4):
            pk = p.XL + mf * 4
            a("s_waitcnt vmcnt(%d)", 6 - mf)
            for nf in range(2):
                t = p.acc(0, mf, nf); rb = p.RECV + (mf * 2 + nf) * 4
                a("v_pk_add_f32 v[%d:%d], v[%d:%d], v[%d:%d]", t.base, t.base + 1, t.base, t.base + 1, rb, rb + 1)
                a("v_pk_add_f32 v[%d:%d], v[%d:%d], v[%d:%d]", t.base + 2, t.base + 3, t.base + 2, t.base + 3, rb + 2, rb + 3)
                a("v_cvt_pk_bf16_f32 v%d, v%d, v%d", pk + 2 * nf, t.base, t.base + 1)
                a("v_cvt_pk_bf16_f32 v%d, v%d, v%d", pk + 2 * nf + 1, t.base + 2, t.base + 3)
            a("s_add_u32 s%d, s%d, %d", p.Q_T, p.Q_XROW, mf * 32768)
            a("v_permlane16_swap_b32 v%d, v%d", pk, pk + 2)
            a("v_permlane16_swap_b32 v%d, v%d", pk + 1, pk + 3)
            a("buffer_store_dwordx4 v[%d:%d], v%d, s[%d:%d], s%d offen", pk, pk + 3, p.V_XO, p.Q_O, p.Q_O + 3, p.Q_T)
        return spins
    def spin_code(self, a, spins):
        for l1, l2, t in spins:
            a.label(l1)
            a("s_sleep 2")
            a(self.poll_ld(t)[0])
            a("s_waitcnt vmcnt(0)")
            for x in self.poll_test(): a(x)
            a("s_cbranch_scc1 %s", l1)
            a("s_branch %s", l2)

P2_LDS = NSLOT * 16384

def gen_p2k(a0, name="g2_kernel", opt=None):
    a = A(); a._lab = a0._lab + 5000
    S_W = 43
    p = P2(opt, S_W)
    kernel_header(a, name)
    done = a.newlab("L_p2_done")
    a("s_cmp_ge_u32 s2, 256")
    a("s_cbranch_scc1 %s", done)
    stamp(a, opt, 0)
    a("s_load_dwordx2 s[24:25], s[0:1], 0")
    a("s_load_dwordx2 s[100:101], s[0:1], 56")
    a("s_load_dwordx2 s[26:27], s[0:1], 72")
    a("v_lshrrev_b32 v1, 6, v0")
    a("v_and_b32 v0, 63, v0")
    a("v_readfirstlane_b32 s%d, v1", S_W)
    a("v_lshlrev_b32 v%d, 4, v0", p.V_L16)
    a("s_waitcnt lgkmcnt(0)")
    make_srd(a, p.Q_X, 24, 2048 * 2048)
    make_srd(a, p.Q_A, 26, 144 * p.AKB, WS_ACT2)
    make_srd(a, p.Q_W, 26, 4608 * 2048, WS_W2P)
    for x in p.setup_s():
        for y in (x if isinstance(x, list) else [x]): a(y)
    q = []
    NPRE = opt.get("p2_npre", 6)
    for s in range(8):
        for x in p.a_job(s) + (p.w_job(s) if s < NPRE else []):
            if isinstance(x, tuple): a(x[0]); q.append(x[1])
            else: a(x)
    def sf(i):
        if opt.get("p2_stp"):
            if i: stamp(a, opt, i)
        elif i != 2: stamp(a, opt, {0: 1, 1: 2, 3: 3}[i])
    spins = p.body(a, [q], NPRE, False, sf)
    if opt.get("prof"): a("s_waitcnt vmcnt(0)")
    stamp(a, opt, 4)
    stamp_store(a, opt, 5, 26, S_W, 2, 20)
    a.label(done)
    a("s_endpgm")
    lines, added = hazard.fix(a.l)
    a0.l += lines
    a0._lab = a._lab
    return kernel_desc(name, 512, 256, 102)
```

```python
import sys, json
from gen_common import *
from gen_ln import gen_ln
from gen_g1 import gen_g1, G1_LDS

def build(path, opt):
    a = A()
    hdr = open("parallel_sum__sliding_local_dilated__glu_gated_glu__prompt.s.ref").read().split("\n")
    hdr = [l for l in hdr if l.startswith(";") and "@launch" not in l and "Override" not in l and "grid=ceil" not in l]
    launches = []
    descs = []
    body = A()
    if opt.get("g1b"):
        from gen_g1b import gen_g1b, G1B_LDS
        launches.append("; @launch kernel=g1_kernel grid=(256,1,1) block=(256,1,1) lds=%d" % G1B_LDS)
        descs.append(gen_g1b(body, opt=opt))
    if opt.get("ln", 1) and not opt.get("g1b"):
        launches.append("; @launch kernel=ln_kernel grid=(256,1,1) block=(512,1,1) lds=0")
        descs.append(gen_ln(body, opt=opt))
    if opt.get("g1", 1) and not opt.get("g1b"):
        launches.append("; @launch kernel=g1_kernel grid=(256,1,1) block=(256,1,1) lds=%d" % G1_LDS)
        descs.append(gen_g1(body, opt=opt))
    if opt.get("g2", 0):
        from gen_g2 import gen_g2, G2_LDS
        launches.append("; @launch kernel=g2_kernel grid=(256,1,1) block=(%d,1,1) lds=%d" % (512 if opt.get("g2_ld") else 256, G2_LDS))
        descs.append(gen_g2(body, opt=opt))
    if opt.get("p2k"):
        from gen_p2 import gen_p2k, P2_LDS
        launches.append("; @launch kernel=g2_kernel grid=(256,1,1) block=(256,1,1) lds=%d" % P2_LDS)
        descs.append(gen_p2k(body, opt=opt))
    body.label("L_code_end")
    if opt.get("align"):
        import align
        body.l, st = align.fix(body.l, opt.get("align_nop", 3), opt.get("ga", 0))
        print("align: promoted %d nops %d left %d" % st)
    if opt.get("strip", 1):
        body.l = [l.strip() for l in body.l if not l.strip().startswith(";")]
    out = "\n".join(hdr + launches) + "\n"
    out += '.amdgcn_target "amdgcn-amd-amdhsa--gfx950"\n.text\n'
    out += body.text()
    out += '.section .rodata,"a"\n'
    for d in descs:
        out += ".p2align 6\n" + d
    open(path, "w").write(out)

if __name__ == "__main__":
    path = sys.argv[1]
    opt = json.loads(sys.argv[2]) if len(sys.argv) > 2 else {}
    build(path, opt)
```

```python
from gen_common import *
import hazard, struct, re
from gen_p2 import P2, FLG_ACT, FLG_BYTES, SLOTB

XROWS = 273
XSLOT = XROWS * 128
WBASE = 2 * XSLOT
WSTAGE = 20480
WG_OFF, WU_OFF, WQ_OFF = 0, 7168, 14336
SCR = WBASE + 4 * WSTAGE
L_CS = SCR
L_KV = SCR + 1280
L_RT = SCR + 5376
L_STG = SCR + 5376 + 2560
G1B_LDS = L_STG + 4096
WS_STATS = 0
LOG2E = 1.4426950408889634
def f32(x): return "0x%08x" % struct.unpack("<I", struct.pack("<f", x))[0]

def zipl(*ls):
    out = []
    n = max(len(l) for l in ls)
    for i in range(n):
        for l in ls:
            if i < len(l): out.append(l[i])
    return out

def spread(main, extra, lo=0.0, hi=0.7):
    n = len(main); k = len(extra)
    if k == 0: return list(main)
    pos = [int(n * lo + (n * (hi - lo)) * i / k) for i in range(k)]
    out = []; j = 0
    for i, m in enumerate(main):
        while j < k and pos[j] <= i:
            if extra[j].startswith("v_mfma") and out and out[-1].startswith("v_pk_"): break
            out.append(extra[j]); j += 1
        out.append(m)
    out += extra[j:]
    return out

def gen_g1b(a0, name="g1_kernel", opt=None):
    opt = opt or {}
    a = A(); a._lab = a0._lab + 1000
    NSTEP = 32
    LA = opt.get("la", 3)
    BAR = opt.get("bar", 4)
    ACT_KB = opt.get("akb", 131072)
    ACT_BYTES = 144 * ACT_KB
    KROT = opt.get("krot", 0)
    FS = opt.get("fs")
    FSL = opt.get("fs_lead", 5)
    if FS: BAR = FS[1]
    V_FS, V_FA, V_FR, V_FD = 54, 58, 62, 66
    L_FLG = L_RT + 1280
    W2P = opt.get("w2p", 0)
    S_CS, S_CD, S_CSO, S_CDO = 60, 64, 68, 69
    DE = opt.get("de", 5)
    DST = opt.get("dst", [0, 0, 0, 0])
    PK = opt.get("pk", 1)
    STM = opt.get("stmod", " sc1")
    NOCS = opt.get("nocs", 0)
    assert BAR <= 10 - LA
    S_X, S_G, S_U, S_Q, S_ACT, S_ST, S_DBG, S_PF = 4, 8, 12, 16, 20, 24, 28, 32
    S_XK, S_XH, S_GOFF, S_QOFF, S_T, S_T2, S_T3, S_W, S_M0, S_J, S_LOOP = 36, 37, 38, 39, 40, 41, 42, 43, 44, 45, 46
    S_PFOFF, S_PFSTR, S_OK, S_C0, S_C1, S_STO, S_AB, S_ODD, S_MT = 47, 48, 49, 50, 51, 52, 53, 58, 59
    S_K1 = 54; S_K2 = 55; S_MSK = 56
    S_RC = 56; S_RP = 57; S_ROT = 3
    P_X, P_Q, P_G, P_U, P_WS, P_DBG, P_WO, P_WD = 60, 62, 64, 66, 68, 70, 72, 74
    V_XDMA = 1; V_WDMA = [2, 3, 4, 5]; V_XR = [6, 7]; V_HX = [8, 9]; V_WRD = list(range(10, 18)); V_PF = 18; V_PFD = 19
    ST = 20
    CSR = 40
    CST = 50
    T0, T1, T2, T3, T4, T5 = 74, 75, 76, 77, 78, 79
    TV = 80
    def XF(st, mf): return R('a', 148 + st * 32 + mf * 4, 4)
    def WR(i): return R('a', 212 + (i & 3) * 4, 4)
    def HX(st): return R('a', 228 + st * 4, 4)
    def HACC(i): return R('a', 236 + i * 4, 4)

    FUSE = opt.get("fuse", 0)
    EP2 = opt.get("ep2", 0)
    XE = opt.get("xe", 0)
    p2 = P2(opt, S_W)
    NPRE = opt.get("p2_npre", 14)
    QENT = []
    STP = opt.get("stp", ["pro", "loop", "epi"])
    def nst(nm):
        if nm in STP: stamp(a, opt, 1 + STP.index(nm))
    p2.nst = nst
    kernel_header(a, name)
    done = a.newlab("L_g1_done"); fin = a.newlab("L_g1_fin")
    go = a.newlab("L_g1_go")
    a("s_cmp_ge_u32 s2, 256")
    a("s_cbranch_scc0 %s", go)
    a("s_endpgm")
    a.label(go)
    a("s_load_dwordx4 s[%d:%d], s[0:1], 0", P_X, P_X + 3)
    a("s_load_dwordx4 s[%d:%d], s[0:1], 32", P_G, P_G + 3)
    a("s_load_dwordx2 s[%d:%d], s[0:1], 72", P_WS, P_WS + 1)
    a("s_load_dwordx2 s[%d:%d], s[0:1], 64", P_DBG, P_DBG + 1)
    a("s_load_dwordx2 s[%d:%d], s[0:1], 16", P_WO, P_WO + 1)
    a("s_load_dwordx2 s[%d:%d], s[0:1], 48", P_WD, P_WD + 1)
    if FUSE: a("s_load_dwordx2 s[100:101], s[0:1], 56")
    stamp(a, opt, 0)
    if opt.get("prof"):
        for r_ in range(84, 96): a("s_mov_b32 s%d, 0", r_)
    a("v_lshrrev_b32 v%d, 6, v0", T0)
    a("v_and_b32 v0, 63, v0")
    a("v_readfirstlane_b32 s%d, v%d", S_W, T0)
    a("s_lshr_b32 s%d, s2, 5", S_MT)
    a("s_lshl_b32 s%d, s%d, 8", S_M0, S_MT)
    a("s_and_b32 s%d, s2, 7", S_J)
    a("s_lshl_b32 s%d, s%d, 2", S_J, S_J)
    a("s_bfe_u32 s%d, s2, 0x20003", S_T)
    a("s_add_u32 s%d, s%d, s%d", S_J, S_J, S_T)
    a("s_and_b32 s%d, s%d, 1", S_ODD, S_J)
    a("s_mul_i32 s%d, s%d, 224", S_GOFF, S_J)
    a("s_lshl_b32 s%d, s%d, 6", S_QOFF, S_J)
    if KROT:
        a("s_and_b32 s%d, s2, 7", S_ROT)
        if KROT > 1: a("s_and_b32 s%d, s%d, %d", S_ROT, S_ROT, (8 - KROT) & 7)
        a("s_mul_i32 s%d, s%d, %d", S_T, S_ROT, 128 * 7168)
        a("s_add_u32 s%d, s%d, s%d", S_GOFF, S_GOFF, S_T)
        a("s_mul_i32 s%d, s%d, %d", S_T, S_ROT, 128 * 6144)
        a("s_add_u32 s%d, s%d, s%d", S_QOFF, S_QOFF, S_T)
        a("s_sub_u32 s%d, 8, s%d", S_RC, S_ROT)
        a("s_sub_u32 s%d, %d, s%d", S_RP, 8 - opt.get("pf_c0", 1), S_ROT)
    a("v_lshlrev_b32 v%d, 4, v0", T5)
    CPF = opt.get("cpf", 0)
    def code_pf(sb, vt, vd, st):
        l_ = a.newlab("L_g1_pc")
        a("s_getpc_b64 s[%d:%d]", sb, sb + 1)
        a.label(l_)
        cs = "L_code_start" if FUSE else name
        a("s_sub_u32 s%d, s%d, %s-%s", sb, sb, l_, cs)
        a("s_subb_u32 s%d, s%d, 0", sb + 1, sb + 1)
        a("s_lshr_b32 s%d, s2, 3", st)
        a("s_mul_i32 s%d, s%d, ((L_code_end-%s+4095)>>12)<<7", st, st, cs)
        a("v_min_u32 v%d, ((L_code_end-%s+4095)>>12)-1, v0", vt, cs)
        a("v_lshl_add_u32 v%d, v%d, 7, s%d", vt, vt, st)
        a("v_min_u32 v%d, L_code_end-%s-4, v%d", vt, cs, vt)
        a("global_load_dword v%d, v%d, s[%d:%d]", vd, vt, sb, sb + 1)
    if CPF & 4: code_pf(76, T0, V_PFD, S_T)
    labs = [a.newlab("L_g1_w") for _ in range(4)]
    for w in range(1, 4):
        a("s_cmp_eq_u32 s%d, %d", S_W, w)
        a("s_cbranch_scc1 %s", labs[w])

    SPINS = []
    EP0 = [0]
    def weave(w):
        wn = w >> 1
        E = a.l[EP0[0]:]; del a.l[EP0[0]:]
        n = len(E)
        last = {}
        for k, ln in enumerate(E):
            for kind, r_ in hazard.regs_of(ln):
                if kind == 'a': last[r_] = k
        stores = [k for k, ln in enumerate(E) if ln.strip().startswith("buffer_store")]
        q = []
        def need(tags, upto=None):
            idx = [i for i, t in enumerate(q) if t in tags]
            return min(63, len(q) - 1 - max(idx))
        items = []
        WG_ = opt.get("wv_gap", 6)
        pos = opt.get("wv_w0", 4)
        for b in range(NPRE):
            j = p2.w_job(b)
            fr = max([last.get(r_, -1) for r_ in range(p2.SL[b], p2.SL[b] + 16)]) + 6
            pos = max(pos, fr)
            for part in (j[0:3], j[3:6]):
                items.append((pos, part)); pos += 2 * WG_
        WV2 = opt.get("wv2", 0)
        if not WV2:
            fP, fA = opt.get("wv_poll", [[0.62, 0.80], [0.62, 0.80]])[wn]
            items.append((int(n * fP), p2.poll_seq(0)))
            def chk():
                nst("ck0")
                a("s_waitcnt vmcnt(%d)", need([('PL', 0)]))
                nst("ck")
                for x_ in p2.poll_test(0): a(x_)
                a("s_cselect_b32 s%d, 0, 0x%x", p2.Q_A2 + 2, ACT_BYTES)
            pos = int(n * fA)
            items.append((pos, [chk]))
            AG_ = opt.get("wv_agap", 5)
            for s_ in range(8):
                items.append((pos, p2.a_job(s_, p2.Q_A2))); pos += 4 * AG_
        elif wn == 1:
            items.append((int(n * opt.get("wv_fp", 0.8)), p2.poll_seq(0)))
        def sig(t, nst_):
            def f():
                a("v_mov_b32 v%d, 1", T2)
                nst("sa%d" % t)
                a("s_waitcnt vmcnt(%d)", need([('AS', nst_)]))
                nst("sg%d" % t)
                a("s_mov_b64 exec, 1")
                a("buffer_store_dword v%d, off, s[%d:%d], s%d offset:%d sc1", T2, p2.Q_F, p2.Q_F + 3, p2.Q_FSIG, 4 * t); q.append(('SG', 0))
                a("s_mov_b64 exec, -1")
            return f
        SD_ = opt.get("wv_sd", 130)
        if wn == 1:
            items.append((stores[7] + SD_, [sig(0, 7)]))
            items.append((stores[15] + SD_, [sig(1, 15)]))
        items.sort(key=lambda t_: t_[0])
        def put(lst):
            for x_ in lst:
                if isinstance(x_, tuple): a(x_[0]); q.append(x_[1])
                elif callable(x_): x_()
                else: a(x_)
        ns = 0
        for k, ln in enumerate(E):
            op = ln.strip()
            prev = E[k - 1].strip() if k else ""
            ok = not op.startswith(("v_cndmask", "s_cselect", "s_addc", "s_memtime", "s_waitcnt")) and not prev.startswith(("s_cmp", "v_cmp", "s_memrealtime"))
            if ok and items and items[0][0] <= k: put(items.pop(0)[1])
            a.l.append(ln)
            if op.startswith("buffer_store"):
                q.append(('AS', ns)); ns += 1
        for it in items: put(it[1])
        a("s_add_u32 s%d, s%d, %d", p2.Q_FSIG, p2.Q_FSIG, 8 if wn == 1 else 12)
        if WV2 and wn == 1:
            l1 = a.newlab("L_wv_sp"); l2 = a.newlab("L_wv_ok")
            nst("ck0")
            a("s_waitcnt vmcnt(%d)", need([('PL', 0)]))
            nst("ck")
            for x_ in p2.poll_test(0): a(x_)
            a("s_cbranch_scc0 %s", l2)
            a("v_mov_b32 v%d, 1", T2)
            a("s_waitcnt vmcnt(0)")
            nst("sl1")
            a("s_mov_b64 exec, 1")
            a("buffer_store_dword v%d, off, s[%d:%d], s%d sc1", T2, p2.Q_F, p2.Q_F + 3, p2.Q_FSIG)
            a("s_mov_b64 exec, -1")
            a.label(l1)
            if opt.get("wv_sleep"): a("s_sleep %d", opt["wv_sleep"])
            p2.poll_emit(a, 0)
            a("s_waitcnt vmcnt(0)")
            for x_ in p2.poll_test(0): a(x_)
            a("s_cbranch_scc1 %s", l1)
            nst("sl2")
            a.label(l2)
            for s_ in range(WV2):
                put(p2.a_job(s_))
                put(p2.a_job(s_, None, True))
        QENT.append([('AS', 0) if t[0] == 'AS' else t for t in q])
    def weave2(w):
        wn = w >> 1
        E = a.l[EP0[0]:]; del a.l[EP0[0]:]
        n = len(E)
        last = {}
        for k, ln in enumerate(E):
            for kr in hazard.regs_of(ln): last[kr] = k
        stores = [k for k, ln in enumerate(E) if ln.strip().startswith("buffer_store")]
        q = [('XL', 0)] * (8 if XE else 0)
        def need(tags):
            idx = [i for i, t in enumerate(q) if t in tags]
            return min(63, len(q) - 1 - max(idx))
        items = []
        def per(name, dflt):
            v = opt.get(name, dflt)
            return v[wn] if isinstance(v, list) else v
        free = {b: max([last.get(('a', r_), -1) for r_ in range(p2.SL[b], p2.SL[b] + 16)]) + 6 for b in range(16)}
        if XE:
            xp = max([last.get(('v', r_), -1) for r_ in range(p2.XL, p2.XL + 16)] + [int(n * per("wv_xf", 0.3))]) + 4
            items.append((xp, [lambda: a("s_waitcnt vmcnt(%d)", need([('XL', 0)]))]))
            for i in range(0, 16, 4):
                items.append((xp + 1 + i, ["v_accvgpr_read_b32 v%d, a%d" % (p2.XL + i + z, p2.SL[XE] + i + z) for z in range(4)]))
            free[XE] = xp + 24
        WG_ = per("wv_gap", 6)
        pos = opt.get("wv_w0", 4)
        for b in sorted(range(NPRE), key=lambda b_: (max(free[b_], 0), b_)):
            j = p2.w_job(b)
            pos = max(pos, free[b])
            if opt.get("wv_one"):
                for part in (j[0:2], j[2:3], j[3:5], j[5:6]):
                    items.append((pos, part)); pos += WG_
                continue
            for part in (j[0:3], j[3:6]):
                items.append((pos, part)); pos += 2 * WG_
        fP, fA = opt.get("wv_poll", [[0.5, 0.7], [0.5, 0.7]])[wn]
        items.append((int(n * fP), p2.poll_seq(0)))
        def chk():
            nst("ck0")
            a("s_waitcnt vmcnt(%d)", need([('PL', 0)]))
            nst("ck")
            for x_ in p2.poll_test(0): a(x_)
            a("s_cselect_b32 s%d, 0, 0x%x", p2.Q_A2 + 2, ACT_BYTES)
        pos = int(n * fA)
        items.append((pos, [chk]))
        AG_ = per("wv_agap", 8)
        for s_ in range(opt.get("wv_na", 8)):
            j = p2.a_job(s_, p2.Q_A2)
            if opt.get("wv_one"):
                for part in (j[0:3], j[3:4], j[4:5], j[5:6]):
                    items.append((pos, part)); pos += AG_
                continue
            items.append((pos, j)); pos += 4 * AG_
        def sig():
            a("v_mov_b32 v%d, 1", T2)
            nst("sa0")
            a("s_waitcnt vmcnt(%d)", need([('AS', 7)]))
            nst("sg0")
            a("s_mov_b64 exec, 1")
            a("buffer_store_dword v%d, off, s[%d:%d], s%d sc1", T2, p2.Q_F, p2.Q_F + 3, p2.Q_FSIG); q.append(('SG', 0))
            a("s_mov_b64 exec, -1")
        items.append((stores[7] + per("wv_sd", 100), [sig]))
        items.sort(key=lambda t_: t_[0])
        def put(lst):
            for x_ in lst:
                if isinstance(x_, tuple): a(x_[0]); q.append(x_[1])
                elif callable(x_): x_()
                else: a(x_)
        ns = 0
        for k, ln in enumerate(E):
            op = ln.strip()
            prev = E[k - 1].strip() if k else ""
            ok = not op.startswith(("v_cndmask", "s_cselect", "s_addc", "s_memtime", "s_waitcnt")) and not prev.startswith(("s_cmp", "v_cmp", "s_memrealtime"))
            if ok and items and items[0][0] <= k: put(items.pop(0)[1])
            a.l.append(ln)
            if op.startswith("buffer_store"):
                q.append(('AS', ns)); ns += 1
        for it in items: put(it[1])
        QENT.append([('AS', 0) if t[0] == 'AS' else t for t in q])
    def variant(w):
        wm, wn = w & 1, w >> 1
        tiles = {}
        if EP2:
            VPB = None
            if wn == 0:
                arch = [(nf, mf) for mf in range(8) for nf in (6, 7, 8, 9)] + [(nf, mf) for mf in (6, 7) for nf in range(6)]
                acc = [(nf, mf) for mf in range(6) for nf in range(6)]
                areg = list(range(TV, 256, 4))
            else:
                allt = [(nf, mf) for g in ((0, 1, 2, 3), (4, 5, 6, 7)) for mf in range(8) for nf in g] + [(nf, mf) for mf in range(8) for nf in (8, 9)]
                g0 = 4 * opt.get("w1_g0", 5)
                arch = allt[:g0] + allt[g0 + 36:]; acc = allt[g0:g0 + 36]
                areg = list(range(TV, TV + 32, 4)) + list(range(240, 256, 4)) + list(range(TV + 32, 240, 4))
            for t, r_ in zip(arch, areg): tiles[t] = R('v', r_, 4)
            for i, t in enumerate(acc): tiles[t] = R('a', 4 * i, 4)
            assert len(arch) == 44 and len(tiles) == 80
            order = []; nv = 256
        elif wn == 0:
            VPB = [TV, TV + 34]
            for f in range(2):
                for mf in range(8): tiles[(4 + f, mf)] = R('v', VPB[f] + 2 + 4 * mf, 4)
            order = [(nf, mf) for nf in (2, 3, 0, 1) for mf in range(8)] + [(nf, mf) for mf in range(8) for nf in (6, 7, 8, 9)]
            nv = TV + 68
        else:
            order = [(nf, mf) for g in ((0, 1, 2, 3), (4, 5, 6, 7)) for mf in range(8) for nf in g] + [(nf, mf) for mf in range(8) for nf in (8, 9)]
            nv = TV
        na = 0
        for t in order:
            if nv + 4 <= 256:
                tiles[t] = R('v', nv, 4); nv += 4
            else:
                tiles[t] = R('a', na, 4); na += 4
        assert na <= 148, na
        hset = {0: [2, 3, 4, 5, 0], 1: [1, 6, 7, 8, 9], 2: [0, 2, 4, 6, 8], 3: [1, 3, 5, 7, 9]}[w]
        if NOCS: hset = hset[:NOCS - 1] if w else hset[:4]
        def isV(nf): return wn == 0 and nf in (4, 5)
        def mm(d, wf, xf, c, nf):
            if isV(nf): return "v_mfma_f32_16x16x32_bf16 %s, %s, %s, %s" % (d, xf, wf, c)
            return "v_mfma_f32_16x16x32_bf16 %s, %s, %s, %s" % (d, wf, xf, c)

        a.label(labs[w])
        q = []
        if CPF & 1 and w == 2:
            code_pf(76, T0, V_PFD, S_T); q.append(('P', 0))
        if CPF & 4: q.append(('P', 0))
        a("v_lshrrev_b32 v%d, 4, v0", T0)
        if wm: a("v_add_u32 v%d, 4, v%d", T0, T0)
        a("v_and_b32 v%d, 7, v0", T1)
        a("v_xor_b32 v%d, v%d, v%d", T0, T0, T1)
        a("v_lshlrev_b32 v%d, 4, v%d", T0, T0)
        a("v_lshrrev_b32 v%d, 3, v0", T1)
        a("v_lshl_add_u32 v%d, v%d, 11, v%d", V_XDMA, T1, T0)
        a("s_add_u32 s%d, s%d, %d", S_XK, S_M0, 8 * w)
        a("s_lshl_b32 s%d, s%d, 11", S_XK, S_XK)
        a("s_max_u32 s%d, s%d, 16", S_T, S_M0)
        a("s_sub_u32 s%d, s%d, %d", S_XH, S_T, 16 - 8 * wm)
        a("s_lshl_b32 s%d, s%d, 11", S_XH, S_XH)
        if KROT:
            a("s_lshl_b32 s%d, s%d, 8", S_T, S_ROT)
            a("s_add_u32 s%d, s%d, s%d", S_XK, S_XK, S_T)
            a("s_add_u32 s%d, s%d, s%d", S_XH, S_XH, S_T)
        a("s_lshl_b32 s%d, s%d, 3", S_T2, S_J)
        a("s_add_u32 s%d, s%d, s%d", S_T2, S_T2, S_M0)
        a("s_add_u32 s%d, s%d, %d", S_T2, S_T2, 2 * w)
        a("s_lshl_b32 s%d, s%d, 11", S_T3, S_T2)
        wjobs = [("G", w), ("U", w), ("Q", w)] + ([("G", 4 + w), ("U", 4 + w)] if w < 3 else [("Q", 4), ("Q", 5)])
        wreg = {}
        def gu_off(dst, job):
            a("v_add_u32 v%d, %d, v0", T0, job * 64)
            a("v_mul_u32_u24 v%d, 4682, v%d", T1, T0)
            a("v_lshrrev_b32 v%d, 16, v%d", T1, T1)
            a("v_mul_u32_u24 v%d, 14, v%d", T2, T1)
            a("v_sub_u32 v%d, v%d, v%d", T2, T0, T2)
            a("v_bfe_u32 v%d, v%d, 3, 1", T3, T1)
            a("v_lshlrev_b32 v%d, 2, v%d", T3, T3)
            a("v_xor_b32 v%d, v%d, v%d", T1, T1, T3)
            a("v_mul_u32_u24 v%d, 7168, v%d", T1, T1)
            a("v_lshl_add_u32 v%d, v%d, 4, v%d", dst, T2, T1)
        def q_off(dst, job):
            a("v_add_u32 v%d, %d, v0", T0, job * 64)
            a("v_mul_u32_u24 v%d, 5462, v%d", T1, T0)
            a("v_lshrrev_b32 v%d, 16, v%d", T1, T1)
            a("v_mul_u32_u24 v%d, 12, v%d", T2, T1)
            a("v_sub_u32 v%d, v%d, v%d", T2, T0, T2)
            a("v_bfe_u32 v%d, v%d, 3, 1", T3, T1)
            a("v_lshlrev_b32 v%d, 1, v%d", T3, T3)
            a("v_xor_b32 v%d, v%d, v%d", T2, T2, T3)
            a("v_mul_u32_u24 v%d, 6144, v%d", T1, T1)
            a("v_lshrrev_b32 v%d, 2, v%d", T3, T2)
            a("v_lshl_add_u32 v%d, v%d, 11, v%d", T1, T3, T1)
            a("v_and_b32 v%d, 3, v%d", T2, T2)
            a("v_lshl_add_u32 v%d, v%d, 4, v%d", dst, T2, T1)
        nreg = 0
        late = []
        for kind, job in wjobs:
            key = ("GU" if kind != "Q" else "Q", job)
            if key not in wreg:
                wreg[key] = V_WDMA[nreg]; nreg += 1
                late.append((key, wreg[key]))
        for key, dst in late:
            (gu_off if key[0] == "GU" else q_off)(dst, key[1])
            if opt.get("wlin"):
                a("v_lshlrev_b32 v%d, 4, v0", dst)
                a("v_add_u32 v%d, %d, v%d", dst, key[1] * (7168 * 4 if key[0] == "GU" else 6144 * 5), dst)
        a("s_waitcnt lgkmcnt(0)")
        make_srd(a, S_X, P_X, 2048 * 2048)
        make_srd(a, S_G, P_G, 1024 * 7168)
        make_srd(a, S_U, P_U, 1024 * 7168)
        make_srd(a, S_Q, P_Q, 1024 * 6144)
        def dup(jobs):
            if wn != opt["dma2"] - 1: return []
            out = []
            for pre, main in jobs:
                out.append((list(pre), main[:1])); out.append((pre, main))
            return out
        def x_jobs(t):
            slot = t & 1
            jobs = []
            for i in range(8):
                jobs.append((["s_mov_b32 m0, %d" % (slot * XSLOT + (w + 4 * i) * 1024),
                              "s_add_u32 s%d, s%d, %d" % (S_T, S_XK, i * 65536)],
                             ["buffer_load_dwordx4 v%d, s[%d:%d], s%d offen%s lds" % (V_XDMA, S_X, S_X + 3, S_T, " nt" if t < opt.get("nt_x", 0) else "")]))
            jobs[-1][1].append("s_add_u32 s%d, s%d, 128" % (S_XK, S_XK))
            if wn == slot:
                jobs.append((["s_mov_b32 m0, %d" % (slot * XSLOT + 32768 + wm * 1024)],
                             ["buffer_load_dwordx4 v%d, s[%d:%d], s%d offen lds" % (V_XDMA, S_X, S_X + 3, S_XH)]))
            jobs[-1][1].append("s_add_u32 s%d, s%d, 128" % (S_XH, S_XH))
            if opt.get("dma2") and t >= 2: jobs = dup(jobs)
            return [(j, ('X', t)) for j in jobs]
        def w_jobs(s):
            stage = s & 3
            jobs = []
            for kind, job in wjobs:
                srd = {"G": S_G, "U": S_U, "Q": S_Q}[kind]; off = {"G": WG_OFF, "U": WU_OFF, "Q": WQ_OFF}[kind]
                vo = wreg[("GU" if kind != "Q" else "Q", job)]
                jobs.append((["s_mov_b32 m0, %d" % (WBASE + stage * WSTAGE + off + job * 1024)],
                             ["buffer_load_dwordx4 v%d, s[%d:%d], s%d offen%s lds" % (vo, srd, srd + 3, S_QOFF if kind == "Q" else S_GOFF, " nt" if s < opt.get("nt_w", 0) else "")]))
            if not opt.get("samew"):
                jobs[-1][1].append("s_add_u32 s%d, s%d, %d" % (S_GOFF, S_GOFF, 32 * 7168))
                jobs[-1][1].append("s_add_u32 s%d, s%d, %d" % (S_QOFF, S_QOFF, 32 * 6144))
            if opt.get("dma2") and s >= 3: jobs = dup(jobs)
            return [(j, ('W', s)) for j in jobs]
        def emit_now(jobs):
            for (pre, main), tag in jobs:
                for s_ in pre + main: a(s_)
                q.append(tag)
        def need_count(tags):
            idx = [i for i, t in enumerate(q) if t in tags]
            if not idx: return 63
            return len(q) - 1 - max(idx)
        PSPLIT = opt.get("pro_split", 0); S_AT = opt.get("s_at", -1); WO_AT = opt.get("wo_at", -1)
        PF_C0 = opt.get("pf_c0", 1); PF_PRO = opt.get("pf_pro", 2); PF_X = opt.get("pf_x", [])
        PRO_A = opt.get("pro_a", 2)
        pro_list = [w_jobs(0), x_jobs(0), w_jobs(1), x_jobs(1), w_jobs(2)]
        for l_ in pro_list[:PRO_A]: emit_now(l_)
        SA = ST; SB = ST + 8
        def s_loads():
            for i in range(4):
                a("buffer_load_dwordx4 v[%d:%d], v%d, s[%d:%d], s%d offen offset:%d", SA + 4 * i, SA + 4 * i + 3, T5, S_X, S_X + 3, S_T3, 1024 * i)
                q.append(('S', 0))
        def wo_pf():
            if w != 3 or not PFD or W2P: return
            a("v_lshlrev_b32 v%d, 7, v0", ST + 50)
            a("s_lshl_b32 s%d, s2, 13", S_T)
            a("buffer_load_dword v%d, v%d, s[76:79], s%d offen", V_PFD, ST + 50, S_T); q.append(('P', 0))
        def pro2():
            for l_ in pro_list[PRO_A:]: emit_now(l_)
            if S_AT < 0: s_loads()
        def pro3():
            if WO_AT < 0: wo_pf()
            if PFD and w < 3:
                for i in range(PF_PRO): emit_now([pf_job()])
        if PSPLIT == 0: pro2()
        PFD = opt.get("pf_d", 384)
        if PFD:
            a("s_lshr_b32 s%d, s2, 3", S_T)
            a("s_and_b32 s%d, s2, 7", S_K1)
            if w < 2:
                a("v_min_u32 v%d, 27, v0", T0)
                a("v_mul_u32_u24 v%d, 9363, v%d", T1, T0)
                a("v_lshrrev_b32 v%d, 16, v%d", T1, T1)
                a("v_mul_u32_u24 v%d, 7, v%d", T2, T1)
                a("v_sub_u32 v%d, v%d, v%d", T2, T0, T2)
                a("v_lshlrev_b32 v%d, 5, v%d", T1, T1)
                a("v_add_u32 v%d, s%d, v%d", T1, S_T, T1)
                a("v_mul_u32_u24 v%d, 7168, v%d", T1, T1)
                a("v_lshl_add_u32 v%d, v%d, 7, v%d", V_PF, T2, T1)
                make_srd(a, S_PF, P_G if w == 0 else P_U, 1024 * 7168)
                a("s_mul_i32 s%d, s%d, 896", S_PFOFF, S_K1)
                a("s_add_u32 s%d, s%d, %d", S_PFOFF, S_PFOFF, PF_C0 * 128 * 7168)
                if KROT:
                    a("s_mul_i32 s%d, s%d, %d", S_T, S_ROT, 128 * 7168)
                    a("s_add_u32 s%d, s%d, s%d", S_PFOFF, S_PFOFF, S_T)
                a("s_mov_b32 s%d, %d", S_PFSTR, 128 * 7168)
            elif w == 2:
                a("v_min_u32 v%d, 23, v0", T0)
                a("v_mul_u32_u24 v%d, 10923, v%d", T1, T0)
                a("v_lshrrev_b32 v%d, 16, v%d", T1, T1)
                a("v_mul_u32_u24 v%d, 6, v%d", T2, T1)
                a("v_sub_u32 v%d, v%d, v%d", T2, T0, T2)
                a("v_lshlrev_b32 v%d, 5, v%d", T1, T1)
                a("v_add_u32 v%d, s%d, v%d", T1, S_T, T1)
                a("v_mul_u32_u24 v%d, 6144, v%d", T1, T1)
                a("v_lshrrev_b32 v%d, 1, v%d", T3, T2)
                a("v_lshl_add_u32 v%d, v%d, 11, v%d", T1, T3, T1)
                a("v_and_b32 v%d, 1, v%d", T2, T2)
                a("v_lshl_add_u32 v%d, v%d, 7, v%d", V_PF, T2, T1)
                make_srd(a, S_PF, P_Q, 1024 * 6144)
                a("s_lshl_b32 s%d, s%d, 8", S_PFOFF, S_K1)
                a("s_add_u32 s%d, s%d, %d", S_PFOFF, S_PFOFF, PF_C0 * 128 * 6144)
                if KROT:
                    a("s_mul_i32 s%d, s%d, %d", S_T, S_ROT, 128 * 6144)
                    a("s_add_u32 s%d, s%d, s%d", S_PFOFF, S_PFOFF, S_T)
                a("s_mov_b32 s%d, %d", S_PFSTR, 128 * 6144)
            else:
                make_srd(a, 76, P_WO, 1024 * 2048)
                a("v_lshlrev_b32 v%d, 7, v0", V_PF)
                a("v_min_u32 v%d, %d, v%d", V_PF, 31 * 128, V_PF)
                make_srd(a, S_PF, P_WD, 3584 * 2048)
                a("s_mul_i32 s%d, s2, 28672", S_PFOFF)
                a("s_mov_b32 s%d, 4096", S_PFSTR)
        def pf_job():
            pre = []
            if KROT and w < 3:
                pre = ["s_cmp_ge_u32 s%d, %d" % (S_PFOFF, 1024 * (7168 if w < 2 else 6144)),
                       "s_cselect_b32 s%d, %d, 0" % (S_T, 1024 * (7168 if w < 2 else 6144)),
                       "s_sub_u32 s%d, s%d, s%d" % (S_PFOFF, S_PFOFF, S_T)]
            return ((pre, ["buffer_load_dword v%d, v%d, s[%d:%d], s%d offen%s" % (V_PFD, V_PF, S_PF, S_PF + 3, S_PFOFF, " nt" if opt.get("nt_pf") else ""),
                          "s_add_u32 s%d, s%d, s%d" % (S_PFOFF, S_PFOFF, S_PFSTR)]), ('P', 0))
        if PSPLIT == 0: pro3()
        make_srd(a, S_ACT, P_WS, ACT_BYTES, WS_ACT2)
        make_srd(a, S_ST, P_WS, 2048 * 8, WS_STATS)
        make_srd(a, S_DBG, P_DBG, 256)
        a("v_and_b32 v%d, 15, v0", T0)
        a("v_lshrrev_b32 v%d, 4, v0", T1)
        a("v_lshrrev_b32 v%d, 1, v%d", T2, T0)
        a("v_xor_b32 v%d, v%d, v%d", T2, T2, T1)
        a("v_lshlrev_b32 v%d, 4, v%d", T2, T2)
        a("v_lshl_add_u32 v%d, v%d, 7, v%d", T3, T0, T2)
        a("v_add_u32 v%d, %d, v%d", V_XR[0], wm * 16384, T3)
        a("v_xor_b32 v%d, 64, v%d", V_XR[1], V_XR[0])
        a("v_add_u32 v%d, 32768, v%d", V_HX[0], T3)
        a("v_add_u32 v%d, %d, v%d", T4, 32768 + 2048, T3)
        a("v_cmp_eq_u32 vcc, 0, v%d", T0)
        a("v_cndmask_b32 v%d, v%d, v%d, vcc", V_HX[0], V_HX[0], T4)
        a("v_xor_b32 v%d, 64, v%d", V_HX[1], V_HX[0])
        a("v_lshrrev_b32 v%d, 2, v%d", T2, T0)
        a("v_lshl_add_u32 v%d, v%d, 3, v%d", T2, T1, T2)
        a("v_and_b32 v%d, 3, v0", T3)
        a("v_lshlrev_b32 v%d, 3, v%d", T3, T3)
        a("v_and_b32 v%d, 1, v%d", T1, T1)
        a("v_lshl_add_u32 v%d, v%d, 2, v%d", T4, T1, T2)
        a("v_mul_u32_u24 v%d, 224, v%d", V_WRD[0], T4)
        a("v_xor_b32 v%d, 4, v%d", T4, T4)
        a("v_mul_u32_u24 v%d, 224, v%d", V_WRD[1], T4)
        a("s_lshl_b32 s%d, s%d, 5", S_T, S_ODD)
        a("s_add_u32 s%d, s%d, %d", S_T, S_T, WBASE)
        if wn == 1:
            a("s_mul_i32 s%d, s%d, 192", S_K1, S_ODD)
            a("s_sub_u32 s%d, %d, s%d", S_K1, WBASE + 192, S_K1)
            for h in range(2):
                a("v_add3_u32 v%d, v%d, v%d, s%d", V_WRD[2 + h], V_WRD[h], T3, S_K1)
        else:
            a("v_mul_u32_u24 v%d, 192, v%d", T4, T2)
            a("v_lshl_add_u32 v%d, v%d, 5, v%d", T4, T1, T4)
            a("v_add_u32 v%d, v%d, v%d", T4, T4, T3)
            a("v_add_u32 v%d, %d, v%d", V_WRD[2], WBASE, T4)
            a("v_xor_b32 v%d, 32, v%d", T4, T4)
            a("v_add_u32 v%d, %d, v%d", V_WRD[3], WBASE, T4)
        for h in range(2):
            a("v_add3_u32 v%d, v%d, v%d, s%d", V_WRD[h], V_WRD[h], T3, S_T)
        for i in range(4):
            a("v_add_u32 v%d, %d, v%d", V_WRD[4 + i], 2 * WSTAGE, V_WRD[i])
        if w == 0:
            a("v_mov_b32 v%d, 0x3f803f80", T0)
            a("v_lshlrev_b32 v%d, 2, v0", T1)
            a("v_and_b32 v%d, 127, v%d", T1, T1)
            a("ds_write_b32 v%d, v%d offset:%d", T1, T0, 272 * 128)
            a("v_add_u32 v%d, %d, v%d", T1, XSLOT, T1)
            a("ds_write_b32 v%d, v%d offset:%d", T1, T0, 272 * 128)
        if w == 1 and FUSE:
            make_srd(a, 76, P_WS, FLG_BYTES, WS_FLAGS)
            a("s_mul_i32 s%d, s2, 48", S_T)
            for i in range(4): a("v_mov_b32 v%d, 0", T0 + i)
            a("s_mov_b64 exec, 7")
            a("buffer_store_dwordx4 v[%d:%d], v%d, s[76:79], s%d offen sc1", T0, T3, T5, S_T); q.append(('Z', 0))
            a("s_mov_b64 exec, -1")
        elif w == 1:
            make_srd(a, S_PF if not PFD else 76, P_WS, 4096, WS_FLAGS)
            sf = S_PF if not PFD else 76
            a("s_lshl_b32 s%d, s2, 4", S_T)
            for i in range(4): a("v_mov_b32 v%d, 0", T0 + i)
            a("s_mov_b64 exec, 1")
            a("buffer_store_dwordx4 v[%d:%d], v%d, s[%d:%d], s%d offen", T0, T3, T0, sf, sf + 3, S_T); q.append(('Z', 0))
            a("s_mov_b64 exec, -1")
        a("s_mov_b32 s%d, 0xffff0000", S_K1)
        RD = ST + 50
        spins = SPINS
        if FS:
            a("v_mov_b32 v%d, 0", V_FS)
            a("v_mov_b32 v%d, %d", V_FA, L_FLG + 4 * w)
            a("v_and_b32 v%d, 3, v0", V_FR)
            a("v_lshlrev_b32 v%d, 2, v%d", V_FR, V_FR)
            a("v_add_u32 v%d, %d, v%d", V_FR, L_FLG, V_FR)
            a("ds_write_b32 v%d, v%d", V_FA, V_FS)
        V_CSRC = V_PF if w == 3 else V_WDMA[3]; V_CRD = T4; V_CST = T5
        if W2P:
            make_srd(a, S_CS, P_WO, 1024 * 2048)
            make_srd(a, S_CD, P_WS, 4608 * 2048, WS_W2P)
            a("s_lshr_b32 s%d, s2, 4", S_T)
            a("s_lshl_b32 s%d, s%d, 16", S_T, S_T)
            a("s_and_b32 s%d, s2, 15", S_CDO)
            a("s_lshl_b32 s%d, s%d, 7", S_CSO, S_CDO)
            a("s_lshl_b32 s%d, s%d, 12", S_CDO, S_CDO)
            a("s_add_u32 s%d, s%d, s%d", S_CSO, S_CSO, S_T)
            a("s_add_u32 s%d, s%d, s%d", S_CDO, S_CDO, S_T)
            a("s_add_u32 s%d, s%d, %d", S_CSO, S_CSO, [0, 4, 16, 20][w] * 2048)
            a("s_add_u32 s%d, s%d, %d", S_CDO, S_CDO, w * 256)
            a("v_lshrrev_b32 v%d, 3, v0", RD)
            a("v_lshrrev_b32 v%d, 5, v0", RD + 1)
            a("v_lshl_add_u32 v%d, v%d, 2, v%d", RD, RD + 1, RD)
            a("v_and_b32 v%d, 7, v0", RD + 1)
            a("v_lshlrev_b32 v%d, 4, v%d", RD + 1, RD + 1)
            a("v_lshl_add_u32 v%d, v%d, 11, v%d", V_CSRC, RD, RD + 1)
            a("v_bfe_u32 v%d, v0, 2, 2", RD)
            a("v_lshlrev_b32 v%d, 7, v%d", RD, RD)
            a("v_lshrrev_b32 v%d, 4, v0", RD + 1)
            a("v_lshl_add_u32 v%d, v%d, 5, v%d", RD, RD + 1, RD)
            a("v_and_b32 v%d, 3, v0", RD + 1)
            a("v_lshl_add_u32 v%d, v%d, 3, v%d", RD, RD + 1, RD)
            a("v_add_u32 v%d, %d, v%d", V_CRD, L_KV + w * 1024, RD)
        def r_job(s, area):
            post = ["s_add_u32 s%d, s%d, 0x100000" % (S_CSO, S_CSO)]
            if area == 0 and s == 0:
                post = ["s_sub_u32 s%d, s%d, 0x100000" % (S_CSO, S_CSO), "s_mov_b32 s%d, s%d" % (S_CS, P_WD), "s_mov_b32 s%d, s%d" % (S_CS + 1, P_WD + 1),
                        "s_mov_b32 s%d, 0x%x" % (S_CS + 2, 3584 * 2048)]
            return ((["s_mov_b32 m0, %d" % ((L_STG if area else L_KV) + w * 1024)],
                     ["buffer_load_dwordx4 v%d, s[%d:%d], s%d offen%s lds" % (V_CSRC, S_CS, S_CS + 3, S_CSO, " nt" if opt.get("nt_r") else "")] + post), ('R', s + 1 - area))
        def r_read(s, area):
            o = (L_STG - L_KV) if area else 0
            lds("ds_read_b64_tr_b16 v[%d:%d], v%d offset:%d" % (RD, RD + 1, V_CRD, o), ('R', s, 0))
            lds("ds_read_b64_tr_b16 v[%d:%d], v%d offset:%d" % (RD + 2, RD + 3, V_CRD, o + 512), ('R', s, 0))
        def r_store(s):
            lwait([('R', s, 0)])
            if opt.get("w2rr") and s > 3:
                a("s_sub_u32 s%d, s%d, 0x100000", S_T, S_CDO)
                a("buffer_load_dword v%d, v%d, s[%d:%d], s%d offen%s", V_PFD, V_CST, S_CD, S_CD + 3, S_T, opt["w2rr"]); q.append(('P', 0))
            a("buffer_store_dwordx4 v[%d:%d], v%d, s[%d:%d], s%d offen%s", RD, RD + 3, V_CST, S_CD, S_CD + 3, S_CDO, opt.get("w2st", " sc1")); q.append(('RS', 0))
            a("s_add_u32 s%d, s%d, 0x100000", S_CDO, S_CDO)
        a("s_lshl_b32 s%d, s%d, 3", S_T2, S_T2)
        def stat_row(b, onm, osd):
            L = []
            X = ST + 16; Y = X; Z = ST + 48
            for i in range(8):
                L.append("v_lshlrev_b32 v%d, 16, v%d" % (X + 2 * i, b + i))
                L.append("v_and_b32 v%d, s%d, v%d" % (X + 2 * i + 1, S_K1, b + i))
            def red(src, dst):
                for i in range(8): L.append("v_add_f32 v%d, v%d, v%d" % (b + i, src + 2 * i, src + 2 * i + 1))
                for i in range(4): L.append("v_add_f32 v%d, v%d, v%d" % (b + i, b + 2 * i, b + 2 * i + 1))
                L.append("v_add_f32 v%d, v%d, v%d" % (b, b, b + 1))
                L.append("v_add_f32 v%d, v%d, v%d" % (b + 2, b + 2, b + 3))
                L.append("v_add_f32 v%d, v%d, v%d" % (dst, b, b + 2))
                for m_ in ("quad_perm:[1,0,3,2]", "quad_perm:[2,3,0,1]", "row_half_mirror", "row_mirror"):
                    L.append("v_add_f32_dpp v%d, v%d, v%d %s row_mask:0xf bank_mask:0xf" % (dst, dst, dst, m_))
                for sw in ("16", "32"):
                    L.append("v_mov_b32 v%d, v%d" % (b, dst))
                    L.append("v_permlane%s_swap_b32 v%d, v%d" % (sw, dst, b))
                    L.append("v_add_f32 v%d, v%d, v%d" % (dst, dst, b))
                L.append("v_mul_f32 v%d, 0x3a800000, v%d" % (dst, dst))
            red(X, Z)
            for i in range(16): L.append("v_sub_f32 v%d, v%d, v%d" % (Y + i, X + i, Z))
            for i in range(16): L.append("v_mul_f32 v%d, v%d, v%d" % (Y + i, Y + i, Y + i))
            red(Y, Z + 1)
            L.append("v_cvt_pk_bf16_f32 v%d, v%d, v%d" % (onm, Z, Z))
            L.append("v_xor_b32 v%d, 0x80008000, v%d" % (onm, onm))
            L.append("v_cvt_pk_bf16_f32 v%d, v%d, v%d" % (Z + 1, Z + 1, Z + 1))
            L.append("v_and_b32 v%d, s%d, v%d" % (Z + 1, S_K1, Z + 1))
            L.append("v_add_f32 v%d, 0x3727c5ac, v%d" % (Z + 1, Z + 1))
            L.append("v_cvt_pk_bf16_f32 v%d, v%d, v%d" % (Z + 1, Z + 1, Z + 1))
            L.append("v_and_b32 v%d, s%d, v%d" % (Z + 1, S_K1, Z + 1))
            L.append("v_sqrt_f32 v%d, v%d" % (Z + 1, Z + 1))
            L.append("v_cvt_pk_bf16_f32 v%d, v%d, v%d" % (Z + 1, Z + 1, Z + 1))
            L.append("v_and_b32 v%d, s%d, v%d" % (osd, S_K1, Z + 1))
            return L
        SS0 = opt.get("ss0", 2)
        side = {0: [], 1: [], 2: [], 3: [], 28: ["v_mov_b32 v%d, 0" % r_ for r_ in range(ST, CST + 24) if not (W2P and not FUSE and RD <= r_ < RD + 4) and not (FS and r_ in (V_FS, V_FA, V_FR, V_FD))]}
        if W2P:
            assert S_AT < 2
            side[2] += ["v_lshrrev_b32 v%d, 4, v0" % RD, "v_lshlrev_b32 v%d, 10, v%d" % (RD, RD), "v_and_b32 v%d, 15, v0" % (RD + 1),
                        "v_lshl_add_u32 v%d, v%d, 4, v%d" % (V_CST, RD + 1, RD)]
        if CPF & 2 and w == 2: side[28].insert(0, "CPF")
        W2L2 = opt.get("w2l2", 0)
        if W2L2:
            L = ["s_lshr_b32 s%d, s2, 3" % S_K2, "s_mul_i32 s%d, s%d, 11" % (S_K2, S_K2),
                 "s_and_b32 s%d, s2, 1" % S_STO, "s_mul_i32 s%d, s%d, %d" % (S_STO, S_STO, 56 * 65536),
                 "s_bfe_u32 s%d, s2, 0x10002" % S_AB, "s_lshl_b32 s%d, s%d, 15" % (S_AB, S_AB), "s_add_u32 s%d, s%d, s%d" % (S_AB, S_AB, S_STO),
                 "v_lshlrev_b32 v%d, 7, v0" % V_PF]
            for n_ in range(w, 11, 4):
                L += ["s_add_u32 s%d, s%d, %d" % (S_STO, S_K2, n_), "s_and_b32 s%d, s%d, 3" % (S_PFOFF, S_STO), "s_lshl_b32 s%d, s%d, 13" % (S_PFOFF, S_PFOFF),
                      "s_lshr_b32 s%d, s%d, 2" % (S_STO, S_STO), "s_lshl_b32 s%d, s%d, 16" % (S_STO, S_STO),
                      "s_add_u32 s%d, s%d, s%d" % (S_PFOFF, S_PFOFF, S_STO), "s_add_u32 s%d, s%d, s%d" % (S_PFOFF, S_PFOFF, S_AB), "W2PF"]
            side.setdefault(W2L2, []).extend(L)
        if FUSE:
            side[30] = p2.setup_s() + ["s_lshl_b32 s%d, s%d, 10" % (p2.Q_FSIG, S_MT), "s_lshl_b32 s%d, s%d, 4" % (p2.Q_T, S_J),
                                       "s_add_u32 s%d, s%d, s%d" % (p2.Q_FSIG, p2.Q_FSIG, p2.Q_T), "s_add_u32 s%d, s%d, %d" % (p2.Q_FSIG, p2.Q_FSIG, FLG_ACT + wm * 512 + (4 * (1 - wn) if EP2 else 0))]
            if XE:
                XA_ = p2.SL[XE]
                side[31] = ["v_and_b32 v%d, 15, v0" % T4, "v_lshrrev_b32 v%d, 4, v0" % T5, "v_lshlrev_b32 v%d, 11, v%d" % (T4, T4), "v_lshl_add_u32 v%d, v%d, 3, v%d" % (T4, T5, T4)]
                for mf in range(4):
                    side[31] += ["s_add_u32 s%d, s%d, %d" % (p2.Q_T2, p2.Q_XROW, mf * 32768)]
                    for nf in range(2):
                        r_ = XA_ + (mf * 2 + nf) * 2
                        side[31] += [("XLD", "buffer_load_dwordx2 a[%d:%d], v%d, s[%d:%d], s%d offen offset:%d" % (r_, r_ + 1, T4, S_X, S_X + 3, p2.Q_T2, nf * 32))]
                side[31] += [None] * 30
        if S_AT >= 0: side[S_AT].append("SLOAD")
        if WO_AT >= 0: side[WO_AT].append("WOPF")
        for s_ in PF_X: side[s_].append("PFJ")
        if SS0 < 3:
            side[SS0] += ["WAITS"] + stat_row(SA, T0, T1); side[SS0 + 1] += stat_row(SB, T2, T3) + ["SSTORE"]
        else:
            side[3] += ["WAITS"] + stat_row(SA, T0, T1) + stat_row(SB, T2, T3) + ["SSTORE"]
        def side_emit(x_):
            if x_ is None: return
            if isinstance(x_, tuple): a(x_[1]); q.append(('XL', 0))
            elif isinstance(x_, list):
                for y_ in x_: a(y_)
            elif x_ == "WAITS": a("s_waitcnt vmcnt(%d)", need_count([('S', 0)]))
            elif x_ == "CPF": code_pf(76, T0, V_PFD, S_T); q.append(('P', 0))
            elif x_ == "W2PF":
                a("buffer_load_dword v%d, v%d, s[%d:%d], s%d offen", V_PFD, V_PF, S_CD, S_CD + 3, S_PFOFF); q.append(('P', 0))
            elif x_ == "SLOAD": s_loads()
            elif x_ == "WOPF": wo_pf()
            elif x_ == "PFJ":
                if PFD and w < 3: emit_now([pf_job()])
            elif x_ == "SSTORE":
                a("s_mov_b64 exec, 1")
                a("buffer_store_dwordx4 v[%d:%d], off, s[%d:%d], s%d sc1", T0, T3, S_ST, S_ST + 3, S_T2); q.append(('SS', 0))
                a("s_mov_b64 exec, -1")
            else: a(x_)
        a("s_lshl_b32 s%d, s%d, 2", S_C1, S_MT)
        a("s_max_u32 s%d, s%d, 4", S_C0, S_C1)
        a("s_sub_u32 s%d, s%d, 4", S_C0, S_C0)
        a("s_mov_b32 s%d, 0", S_OK)

        lq = []
        def lds(instr, tag):
            if opt.get("nolds") and tag[1] > 0 and (opt["nolds"] == 1 or (opt["nolds"] == 2) == (tag[0] == 'W')): return
            a(instr); lq.append(tag)
        def lwait(tags):
            idx = [i for i, t in enumerate(lq) if t in tags]
            if not idx: return
            n = len(lq) - 1 - max(idx)
            a("s_waitcnt lgkmcnt(%d)", min(n, 15))
            del lq[:len(lq) - min(n, 15)]
        def w_reads(s, nf):
            stage = s & 3; hi = (stage >> 1) * 4; so = (stage & 1) * WSTAGE
            dst = WR(10 * s + nf)
            out = []
            for h in range(2):
                if wn == 0 and nf < 6:
                    ad = V_WRD[hi + 2 + (nf & 1)]; off = so + WQ_OFF + h * 768 + (nf >> 1) * 64
                else:
                    k = nf - 6 if wn == 0 else nf
                    slot = (k >> 1) + (0 if wn == 0 else 2); isu = k & 1
                    if slot == 6: ad = V_WRD[hi + 2 + h]; off = so + isu * WU_OFF
                    else: ad = V_WRD[hi + h]; off = so + isu * WU_OFF + slot * 32
                out.append(("ds_read_b64_tr_b16 %s, v%d offset:%d" % (dst.sub(2 * h, 2), ad, off), ('W', s, nf)))
            return out
        def x_reads(s):
            xs = (s >> 1) & 1; kk = s & 1
            out = [("ds_read_b128 %s, v%d offset:%d" % (XF(s & 1, mf), V_XR[kk], xs * XSLOT + mf * 2048), ('X', s, mf)) for mf in range(8)]
            out.append(("ds_read_b128 %s, v%d offset:%d" % (HX(s & 1), V_HX[kk], xs * XSLOT), ('H', s)))
            return out
        pend = []
        gapc = [0, 0]
        def step(s, waits=None, emit=True, hooks=None):
            last = s == NSTEP - 1
            ms = []
            for nf in range(10):
                mfs = range(8) if nf % 2 == 0 else range(7, -1, -1)
                grp = [(nf, mf) for mf in mfs]
                if nf in hset: grp.insert(4, (nf, -1))
                ms += grp
            xr = x_reads(s + 1) if not last else []
            first_of = {}
            for i, (nf, mf) in enumerate(ms): first_of.setdefault(nf, i)
            x0 = first_of[BAR] + 2 if (s & 1) else first_of[opt.get("xr_even", 2)] + 2
            xend = len(ms) - opt.get("xr_tail", 10)
            xpos = [x0 + ((xend - x0) * i) // len(xr) for i in range(len(xr))] if xr else []
            sd_ = list(side.get(s, [])) if (emit and (s < 4 or s >= NSTEP - 4)) else []
            s_hi = 66 if s == 28 else len(ms) - 2
            spos = [2 + ((s_hi - 2) * i) // len(sd_) for i in range(len(sd_))] if sd_ else []
            for i, (nf, mf) in enumerate(ms):
                post = []
                if i == first_of[nf] and nf == (FS[0] if FS else BAR) and not last:
                    tags = [('W', s + 1)]
                    if (s + 1) % 2 == 0: tags.append(('X', (s + 1) // 2))
                    n = min(63, need_count(tags))
                    if waits is not None:
                        if emit: n = waits[s & 3]
                        else: waits[s & 3] = min(waits.get(s & 3, 63), n)
                    if FS:
                        assert not any(t in tags for _, t in pend)
                        a("v_add_u32 v%d, 1, v%d", V_FS, V_FS)
                        lwait([('X', s, m_) for m_ in range(8)] + [('H', s)] + [('W', s - 1, n_) for n_ in range(10)])
                    if not opt.get("nodma") and not opt.get("nowait"): a("s_waitcnt vmcnt(%d)", n)
                    if FS: lds("ds_write_b32 v%d, v%d" % (V_FA, V_FS), ('F', s, 0))
                if FS and i == first_of[BAR] - FSL and not last:
                    lds("ds_read_b32 v%d, v%d" % (V_FD, V_FR), ('F', s, 1))
                if i == first_of[nf] and nf == BAR and not last:
                    if FS:
                        lwait([('F', s, 1)])
                        l1 = a.newlab("L_g1_fs"); l2 = a.newlab("L_g1_fr")
                        a("v_cmp_lt_u32 vcc, v%d, v%d", V_FD, V_FS)
                        a("s_cbranch_vccnz %s", l1)
                        a.label(l2)
                        if emit: spins.append((l1, l2))
                    elif not opt.get("nobar"): a("s_barrier")
                    assert not pend, "DMA jobs not drained"
                    if (s & 1) and (s + 3) // 2 < NSTEP // 2: pend.extend(x_jobs((s + 3) // 2))
                    if s + 3 < NSTEP: pend.extend(w_jobs(s + 3))
                    if PFD and (s & 3) == 0 and s < NSTEP - 4 and not (W2P and w == 3): pend.append(pf_job())
                    if W2P and (s & 3) == 0 and not (FUSE and s >= 28):
                        pend.append(r_job(s, 1))
                        if s == 0 or FUSE: pend.append(r_job(s, 0))
                    if KROT and (s & 3) == 1 and s < NSTEP - 4:
                        a("s_sub_u32 s%d, s%d, 1", S_RC, S_RC)
                        a("s_cmp_eq_u32 s%d, 0", S_RC)
                        a("s_cselect_b32 s%d, %d, 0", S_K2, 1024 * 7168)
                        a("s_cselect_b32 s%d, %d, 0", S_STO, 1024 * 6144)
                        a("s_cselect_b32 s%d, 2048, 0", S_T)
                        if not opt.get("samew"):
                            a("s_sub_u32 s%d, s%d, s%d", S_GOFF, S_GOFF, S_K2)
                            a("s_sub_u32 s%d, s%d, s%d", S_QOFF, S_QOFF, S_STO)
                        a("s_sub_u32 s%d, s%d, s%d", S_XK, S_XK, S_T)
                        a("s_sub_u32 s%d, s%d, s%d", S_XH, S_XH, S_T)
                    gapc[0] = 0; gapc[1] = s & 1
                    if hooks and 'bar' in hooks: hooks['bar']()
                job = None
                de = DE
                g0_ = 1 + DST[w]
                if isinstance(DE, list): de = DE[0] if gapc[1] else DE[1]
                if opt.get("dma2"): de = opt.get("de2", 2)
                if pend and gapc[0] >= g0_ and (gapc[0] - g0_) % de == 0:
                    job = pend.pop(0)
                    for x_ in job[0][0]: a(x_)
                gapc[0] += 1
                lwait([('W', s, nf), ('X', s, mf) if mf >= 0 else ('H', s)])
                wf = WR(10 * s + nf)
                if mf >= 0 and opt.get("m32") and (wn == 1 or opt["m32"] == 2):
                    if mf & 1:
                        b_ = (nf // 2) * 4 + mf // 2
                        t = R('v', 80 + 16 * b_, 16) if b_ < 11 else R('a', 16 * (b_ - 11), 16)
                        a("v_mfma_f32_32x32x16_bf16 %s, %s, %s, %s" % (t, wf, XF(s & 1, mf), t if s else "0"))
                elif mf >= 0:
                    t = tiles[(nf, mf)]
                    a(mm(t, wf, XF(s & 1, mf), t if s else "0", nf))
                else:
                    t = HACC(hset.index(nf))
                    a(mm(t, wf, HX(s & 1), t if s else "0", nf))
                if job:
                    for x_ in job[0][1]:
                        if opt.get("nodma") and x_.startswith("buffer_load"): continue
                        if opt.get("dma_only") and x_.startswith("buffer_load") and job[1][0] not in opt["dma_only"]: continue
                        if opt.get("dma_reg") and x_.endswith(" lds") and 4 <= s < 28 and job[1][0] in opt["dma_reg"]:
                            x_ = x_[:-4].replace("buffer_load_dwordx4 ", "buffer_load_dwordx4 v[24:27], ")
                            if opt.get("dma_x1"): x_ = x_.replace("dwordx4 v[24:27]", "dword v24")
                        a(x_)
                    q.append(job[1])
                k = i - first_of[nf]
                if k < 2:
                    s2_, nf2 = (s, nf + LA) if nf + LA < 10 else (s + 1, nf + LA - 10)
                    if s2_ < NSTEP:
                        ins, tag = w_reads(s2_, nf2)[k]
                        lds(ins, tag)
                while xpos and xpos[0] <= i:
                    xpos.pop(0); ins, tag = xr.pop(0); lds(ins, tag)
                while spos and spos[0] <= i:
                    spos.pop(0); side_emit(sd_.pop(0))
                if W2P and (s & 3) == 3 and not (FUSE and s >= 28):
                    r0 = first_of[FS[0] if FS else BAR] + 4
                    if i == r0:
                        if last: a("s_waitcnt vmcnt(%d)", need_count([('R', s - 3)]))
                        r_read(s, 1)
                    if i == r0 + 12: r_store(s)
                    if (s == 3 or FUSE) and i == r0 + 16: r_read(s, 0)
                    if (s == 3 or FUSE) and i == r0 + 28: r_store(s)
                    if last and i == r0 + 20:
                        for r_ in range(RD, RD + 4): a("v_mov_b32 v%d, 0", r_)
                if hooks and i in hooks: hooks[i]()

        if PSPLIT == 1: pro2(); pro3()
        a("s_waitcnt vmcnt(%d)", need_count([('X', 0), ('W', 0)]))
        a("s_waitcnt lgkmcnt(0)")
        a("s_barrier")
        nst("pro")
        if PSPLIT == 2: pro2(); pro3()
        for nf in range(LA):
            for ins, tag in w_reads(0, nf): lds(ins, tag)
            if nf == 0:
                for ins, tag in x_reads(0): lds(ins, tag)
        a("s_waitcnt lgkmcnt(0)"); del lq[:]
        waits = {}
        saved = a.l; q0 = list(q); a.l = []
        for s in range(NSTEP - 4): step(s, waits, emit=False)
        q_after = list(q); lq_after = list(lq); pend_after = list(pend); gap_after = list(gapc)
        a.l = saved; q[:] = q0; del lq[:]; del pend[:]; gapc[:] = [0, 0]
        head = []
        peel = True
        def signal():
            a("v_mov_b32 v%d, 1", T0)
            a("v_mov_b32 v%d, 0", T1)
            a("s_mov_b64 exec, 1")
            a("buffer_atomic_add v%d, v%d, s[%d:%d], s%d offen sc1", T0, T1, S_DBG, S_DBG + 3, S_C1); q.append(('A', 0))
            a("s_mov_b64 exec, -1")
        nit = NSTEP // 4 - 1
        if peel:
            for s in range(4):
                step(s, waits, emit=True)
                nst("s%d" % s)
            nit -= 1
        loop = a.newlab("L_g1_loop")
        a("s_mov_b32 s%d, %d", S_LOOP, nit)
        lq_ss = [(t[0], t[1] - 24) + tuple(t[2:]) for t in lq_after]
        assert lq_ss[len(lq_ss) - len(lq):] == lq, (lq_ss, lq)
        lq[:] = lq_ss
        lq_in = [(t[0], t[1] - 4) + tuple(t[2:]) for t in lq]
        a.label(loop)
        def sig_cond():
            l_ = a.newlab("L_g1_sig")
            a("s_cmp_lg_u32 s%d, %d", S_LOOP, nit - 4 if FUSE else nit)
            a("s_cbranch_scc1 %s", l_)
            signal()
            a.label(l_)
        for s in range(4, 8):
            step(s, waits, emit=True, hooks=({'bar': sig_cond} if (w == 0 and s == 7) else None))
        lq_out = [(t[0], t[1] - 8) + tuple(t[2:]) for t in lq]
        if peel: assert lq_in == lq_out, (lq_in, lq_out)
        else:
            a("s_waitcnt lgkmcnt(0)"); del lq[:]
        a("s_sub_u32 s%d, s%d, 1", S_LOOP, S_LOOP)
        a("s_cmp_lg_u32 s%d, 0", S_LOOP)
        a("s_cbranch_scc1 %s", loop)
        a.c("waits %s" % waits)
        q[:] = q_after; pend[:] = pend_after; gapc[:] = gap_after
        lq[:] = lq_after if peel else []
        nb = 9 if wn == 0 else 8
        def poll():
            if FUSE:
                a("v_min_u32 v%d, 7, v0", T2)
                a("v_lshlrev_b32 v%d, 2, v%d", T2, T2)
                a("buffer_load_dword v%d, v%d, s[%d:%d], 0 offen sc1", T0, T2, S_DBG, S_DBG + 3); q.append(('C', 0))
                return
            a("v_mov_b32 v%d, 0", T2)
            a("buffer_load_dword v%d, v%d, s[%d:%d], s%d offen sc1", T0, T2, S_DBG, S_DBG + 3, S_C0); q.append(('C', 0))
            a("buffer_load_dword v%d, v%d, s[%d:%d], s%d offen sc1", T1, T2, S_DBG, S_DBG + 3, S_C1); q.append(('C', 0))
        def check():
            a("s_waitcnt vmcnt(%d)", need_count([('C', 0)]))
            okval()
        def okval():
            if FUSE:
                a("v_cmp_gt_u32 vcc, 32, v%d", T0)
                a("s_cmp_eq_u64 vcc, 0")
                a("s_cselect_b32 s%d, 32, 0", S_OK)
                return
            a("v_min_u32 v%d, v%d, v%d", T0, T0, T1)
            a("s_nop 1")
            a("v_readfirstlane_b32 s%d, v%d", S_OK, T0)
        def st_loads():
            a("v_and_b32 v%d, 15, v0", T2)
            a("v_lshlrev_b32 v%d, 3, v%d", T2, T2)
            a("s_add_u32 s%d, s%d, %d", S_STO, S_M0, 128 * wm)
            a("s_lshl_b32 s%d, s%d, 3", S_STO, S_STO)
            for b in range(nb):
                bb = b - 1 if wn == 0 else b
                if bb < 0:
                    a("s_max_u32 s%d, s%d, 128", S_K2, S_STO)
                    a("s_sub_u32 s%d, s%d, 128", S_K2, S_K2)
                    a("buffer_load_dwordx2 v[%d:%d], v%d, s[%d:%d], s%d offen sc1", ST + 2 * b, ST + 2 * b + 1, T2, S_ST, S_ST + 3, S_K2)
                else:
                    a("buffer_load_dwordx2 v[%d:%d], v%d, s[%d:%d], s%d offen offset:%d sc1", ST + 2 * b, ST + 2 * b + 1, T2, S_ST, S_ST + 3, S_STO, bb * 128)
                q.append(('R', 0))
        def check_and_load():
            check(); st_loads()
        nst("s27")
        hk29 = {60: check_and_load}
        NPF = opt.get("w2pf", 0)
        if FUSE and NPF:
            def pf_set():
                a("s_lshr_b32 s%d, s2, 4", S_T)
                a("s_and_b32 s%d, s%d, 7", S_T2, S_T)
                a("s_mul_i32 s%d, s%d, 7", S_T2, S_T2)
                a("s_lshr_b32 s%d, s%d, 3", S_T, S_T)
                a("s_add_u32 s%d, s%d, 33", S_T2, S_T2)
                a("%s s%d, s%d, s%d", "s_sub_u32" if EP2 else "s_add_u32", S_T2, S_T2, S_T)
                a("s_bfe_u32 s%d, s2, 0x10003", S_T)
                a("s_lshl_b32 s%d, s%d, 2", S_T, S_T)
                a("s_add_u32 s%d, s%d, s%d", S_T2, S_T2, S_T)
                a("s_and_b32 s%d, s2, 1", S_T)
                a("s_mul_i32 s%d, s%d, 56", S_T, S_T)
                a("s_add_u32 s%d, s%d, s%d", S_T2, S_T2, S_T)
                a("s_lshl_b32 s%d, s%d, 16", S_T2, S_T2)
                a("s_add_u32 s%d, s%d, %d", S_T2, S_T2, w * 16384)
            def pf_set2():
                a("s_mov_b32 s%d, s%d", S_G, S_CD); a("s_mov_b32 s%d, s%d", S_G + 1, S_CD + 1)
                a("s_cmp_ge_u32 s%d, 32", S_OK)
                a("s_cselect_b32 s%d, s%d, 0", S_G + 2, S_CD + 2)
                a("v_lshlrev_b32 v%d, 7, v0", V_PF)
                a("s_add_u32 s%d, s%d, 8192", S_T3, S_T2)
            def pf_ld(so):
                def f():
                    a("buffer_load_dword v%d, v%d, s[%d:%d], s%d offen sc1", V_PFD, V_PF, S_G, S_G + 3, so); q.append(('P', 0))
                return f
            hk29.update({56: pf_set, 64: pf_set2, 68: pf_ld(S_T2), 72: pf_ld(S_T3)})
        step(28, hooks={70: poll}); step(29, hooks=hk29); step(30); step(31)
        assert not pend
        n_after = need_count([('R', 0), ('P', 0), ('C', 0)]) if XE else 0
        assert n_after in (0, 8)
        nst("loop")
        lok = a.newlab("L_g1_ok"); lsp = a.newlab("L_g1_spin")
        a("s_cmp_ge_u32 s%d, 32", S_OK)
        a("s_cbranch_scc1 %s", lok)
        a.label(lsp)
        a("s_sleep 4")
        poll()
        a("s_waitcnt vmcnt(0)")
        okval()
        a("s_nop 1")
        a("s_cmp_lt_u32 s%d, 32", S_OK)
        a("s_cbranch_scc1 %s", lsp)
        st_loads()
        if XE: a("s_waitcnt vmcnt(0)")
        a.label(lok)
        a("s_nop 7")
        RR = 1
        CG = 10
        V_L16 = 18; V_SGL = 19
        boff = 1 if wn == 0 else 0
        def stt(mf): return "v[%d:%d]" % (ST + 2 * (mf + boff), ST + 2 * (mf + boff) + 3)
        def SD(mf): return ST + 2 * (mf + boff) + 1
        def cst(i): return "v[%d:%d]" % (CST + 4 * i, CST + 4 * i + 3)
        a("v_lshrrev_b32 v%d, 4, v0", T0)
        a("v_lshlrev_b32 v%d, 4, v%d", T0, T0)
        a("v_add_u32 v%d, %d, v%d", T0, L_CS, T0)
        a("v_lshlrev_b32 v%d, 2, v0", T1)
        a("v_add_u32 v%d, %d, v%d", T1, L_CS, T1)
        a("v_lshlrev_b32 v%d, 4, v0", V_L16)
        a("s_mov_b32 s%d, 0x00010001", S_MSK); a("s_mov_b32 s%d, 0x00010001", S_MSK + 1)
        a("s_mov_b64 exec, s[%d:%d]", S_MSK, S_MSK + 1)
        for i, nf in enumerate(hset):
            if not isV(nf): a("ds_write_b128 v%d, %s offset:%d", T0, HACC(i), (wn * 10 + nf) * 64)
        a("s_mov_b64 exec, 0xffff")
        for i, nf in enumerate(hset):
            if isV(nf): a("ds_write_b32 v%d, %s offset:%d", T1, HACC(i).sub(0), (wn * 10 + nf) * 64)
        a("s_mov_b64 exec, -1")
        if w == 0:
            a("v_add_u32 v%d, %d, v%d", T2, L_KV, V_L16)
            for i in range(4): a("ds_write_b128 v%d, %s offset:%d", T2, tiles[(2 + i, 7)], i * 1024)
        a("s_waitcnt vmcnt(%d)", n_after)
        for b in range(nb): a("v_rcp_f32 v%d, v%d", RR + b, ST + 2 * b + 1)
        if wn == 0:
            a("v_and_b32 v%d, 15, v0", T3)
            a("v_lshlrev_b32 v%d, 2, v%d", T3, T3)
            a("v_add_u32 v%d, %d, v%d", T3, L_RT + w * 640, T3)
            for b in range(nb): a("ds_write_b32 v%d, v%d offset:%d", T3, RR + b, b * 64)
        for mf in range(8): a("v_mul_f32 v%d, %s, v%d", CG + mf, f32(-LOG2E), RR + mf + boff)
        a("s_lshl_b32 s%d, s%d, 14", S_AB, S_MT)
        if wm: a("s_add_u32 s%d, s%d, 8192", S_AB, S_AB)
        a("s_lshr_b32 s%d, s%d, 1", S_T, S_J)
        a("s_mul_i32 s%d, s%d, 7", S_T, S_T)
        a("s_add_u32 s%d, s%d, 32", S_T, S_T)
        a("s_lshl_b32 s%d, s%d, 2", S_T2, S_ODD)
        a("s_add_u32 s%d, s%d, s%d", S_T2, S_T2, S_T)
        a("s_mul_i32 s%d, s%d, %d", S_K1, S_T2, ACT_KB)
        a("s_add_u32 s%d, s%d, s%d", S_K1, S_K1, S_AB)
        a("s_add_u32 s%d, s%d, 3", S_T, S_T)
        a("s_mul_i32 s%d, s%d, %d", S_K2, S_T, ACT_KB)
        a("s_add_u32 s%d, s%d, s%d", S_K2, S_K2, S_AB)
        a("s_lshl_b32 s%d, s%d, 9", S_T, S_ODD)
        a("s_add_u32 s%d, s%d, s%d", S_K2, S_K2, S_T)
        a("s_mul_i32 s%d, s%d, %d", S_T, S_J, ACT_KB)
        a("s_add_u32 s%d, s%d, s%d", S_AB, S_AB, S_T)
        a("v_lshrrev_b32 v%d, 5, v0", T2)
        a("v_lshl_add_u32 v%d, v%d, 9, v%d", V_SGL, T2, V_L16)
        a("s_waitcnt lgkmcnt(0)")
        nst("e0")
        a("s_barrier")
        nst("e1")
        a("s_mov_b64 exec, 0xffff")
        for nf in range(10): a("ds_read_b32 v%d, v%d offset:%d", CSR + nf, T1, (wn * 10 + nf) * 64)
        a("s_mov_b64 exec, -1")
        if w == 1:
            a("v_add_u32 v%d, %d, v%d", T2, L_KV, V_L16)
            for i in range(4): a("ds_read_b128 %s, v%d offset:%d", HACC(i), T2, i * 1024)
        EP0[0] = len(a.l)
        a("s_mov_b32 s%d, 0xffff0000", S_T3)
        a("s_waitcnt lgkmcnt(0)")
        for nf in range(0, 10, 2):
            for z in range(2): a("v_cvt_pk_bf16_f32 v%d, v%d, v%d", T2 + z, CSR + nf + z, CSR + nf + z)
            for z in range(2): a("v_and_b32 v%d, s%d, v%d", T2 + z, S_T3, T2 + z)
            for z in range(2): a("v_sub_f32 v%d, v%d, v%d", T2 + z, CSR + nf + z, T2 + z)
            for z in range(2): a("v_cvt_pk_bf16_f32 v%d, v%d, v%d", CSR + nf + z, CSR + nf + z, T2 + z)
        def corr(t, nf, mf, ci):
            if isV(nf): return "v_mfma_f32_16x16x32_bf16 %s, %s, %s, %s" % (t, stt(mf), cst(ci), t)
            return "v_mfma_f32_16x16x32_bf16 %s, %s, %s, %s" % (t, cst(ci), stt(mf), t)
        def fetch(t, tmp, L):
            if t.kind == 'v': return t.base
            for i in range(4): L.append("v_accvgpr_read_b32 v%d, %s" % (tmp + i, t.sub(i)))
            return tmp
        def mul4(L, d, s_, m):
            if PK:
                mb = m & ~1; sel = m & 1
                for i in (0, 2):
                    L.append("v_pk_mul_f32 v[%d:%d], v[%d:%d], v[%d:%d] op_sel:[0,%d] op_sel_hi:[1,%d]" % (d + i, d + i + 1, s_ + i, s_ + i + 1, mb, mb + 1, sel, sel))
            else:
                for i in range(4): L.append("v_mul_f32 v%d, v%d, v%d" % (d + i, s_ + i, m))
        def mul44(L, d, s_, m):
            if PK:
                for i in (0, 2):
                    L.append("v_pk_mul_f32 v[%d:%d], v[%d:%d], v[%d:%d]" % (d + i, d + i + 1, s_ + i, s_ + i + 1, m + i, m + i + 1))
            else:
                for i in range(4): L.append("v_mul_f32 v%d, v%d, v%d" % (d + i, s_ + i, m + i))
        def glu_half(g, u, mf, o):
            L = []
            mul4(L, g, g, CG + mf)
            for i in range(4): L.append("v_exp_f32 v%d, v%d" % (g + i, g + i))
            sd = SD(mf)
            if PK:
                for i in (0, 2):
                    L.append("v_pk_fma_f32 v[%d:%d], v[%d:%d], v[%d:%d], v[%d:%d] op_sel:[0,1,1] op_sel_hi:[1,1,1]" % (g + i, g + i + 1, g + i, g + i + 1, sd - 1, sd, sd - 1, sd))
            else:
                for i in range(4): L.append("v_fma_f32 v%d, v%d, v%d, v%d" % (g + i, g + i, sd, sd))
            for i in range(4): L.append("v_rcp_f32 v%d, v%d" % (g + i, g + i))
            mul44(L, u, u, g)
            return L
        def glu_group(grp, tmp, sbase, soff, vaddr):
            F = []
            (ga, ua, ma), (gb, ub, mb) = grp
            ra = fetch(ga, tmp, F); rua = fetch(ua, tmp + 4, F); rb = fetch(gb, tmp + 8, F); rub = fetch(ub, tmp + 12, F)
            L = F + zipl(glu_half(ra, rua, ma, 0), glu_half(rb, rub, mb, 0))
            L.append("s_add_u32 s%d, s%d, %d" % (S_T, sbase, soff))
            L.append("v_cvt_pk_bf16_f32 v%d, v%d, v%d" % (ra, rua, rua + 1))
            L.append("v_cvt_pk_bf16_f32 v%d, v%d, v%d" % (ra + 2, rub, rub + 1))
            L.append("v_cvt_pk_bf16_f32 v%d, v%d, v%d" % (ra + 1, rua + 2, rua + 3))
            L.append("v_cvt_pk_bf16_f32 v%d, v%d, v%d" % (ra + 3, rub + 2, rub + 3))
            L.append("v_permlane32_swap_b32 v%d, v%d" % (ra, ra + 2))
            L.append("v_permlane32_swap_b32 v%d, v%d" % (ra + 1, ra + 3))
            L.append("buffer_store_dwordx4 v[%d:%d], v%d, s[%d:%d], s%d offen%s" % (ra, ra + 3, vaddr, S_ACT, S_ACT + 3, S_T, STM))
            return L
        def run_groups(groups):
            for x_ in groups[0][0] + groups[0][1]: a(x_)
            for k, (pre, cl, vl) in enumerate(groups):
                nxt = (groups[k + 1][0] + groups[k + 1][1]) if k + 1 < len(groups) else []
                for x_ in spread(vl, nxt, 0.05, 0.6): a(x_)
        def glu_groups(pairs, tmps):
            G = []
            for (na_, nb_, sbase, kboff) in pairs:
                if nb_ is not None:
                    for mf in range(8):
                        pre = []
                        if mf == 0:
                            pre = ["v_mov_b32 v%d, v%d" % (CST + 4 * i, CSR + nf) for i, nf in enumerate((na_, na_ + 1, nb_, nb_ + 1))]
                        cl = [corr(tiles[(nf, mf)], nf, mf, i) for i, nf in enumerate((na_, na_ + 1, nb_, nb_ + 1))]
                        vl = glu_group([(tiles[(na_, mf)], tiles[(na_ + 1, mf)], mf), (tiles[(nb_, mf)], tiles[(nb_ + 1, mf)], mf)],
                                       tmps[len(G) & 1], sbase, kboff + mf * 1024, V_L16)
                        G.append((pre, cl, vl))
                else:
                    for mf in range(0, 8, 2):
                        pre = []
                        if mf == 0:
                            pre = ["v_mov_b32 v%d, v%d" % (CST + 4 * i, CSR + nf) for i, nf in enumerate((na_, na_ + 1))]
                        cl = [corr(tiles[(na_ + z, mf + y)], na_ + z, mf + y, z) for y in range(2) for z in range(2)]
                        vl = glu_group([(tiles[(na_, mf)], tiles[(na_ + 1, mf)], mf), (tiles[(na_, mf + 1)], tiles[(na_ + 1, mf + 1)], mf + 1)],
                                       tmps[len(G) & 1], sbase, kboff + mf * 1024, V_SGL)
                        G.append((pre, cl, vl))
            return G
        if wn == 1:
            run_groups(glu_groups([(0, 2, S_K1, 1 * ACT_KB), (4, 6, S_K1, 2 * ACT_KB), (8, None, S_K2, 0)], [TV, TV + 16]))
            if FUSE: (weave2 if EP2 else weave)(w)
            a("s_branch %s", fin)
            return
        if EP2:
            conv2(a, w, wm, tiles, [HACC(0), HACC(1)], [HACC(2), HACC(3)], locals())
            return
        a("v_lshrrev_b32 v%d, 4, v0", T3)
        a("v_lshlrev_b32 v%d, 4, v%d", T3, T3)
        a("v_add_u32 v%d, %d, v%d", T3, L_RT + w * 640, T3)
        RV = [CSR + 0, CSR + 0]
        prevK = [HACC(0), HACC(1)]; prevV = [HACC(2), HACC(3)]
        return_tiles = None
        conv(a, w, wm, tiles, VPB, prevK, prevV, locals())

    def conv2(a, w, wm, tiles, prevK, prevV, env):
        (corr, fetch, mul4, mul44, run_groups, glu_groups, stt, cst, SD, RR, CG, V_L16, V_SGL) = [env[k] for k in
            ("corr", "fetch", "mul4", "mul44", "run_groups", "glu_groups", "stt", "cst", "SD", "RR", "CG", "V_L16", "V_SGL")]
        RA = V_SGL
        a("v_lshrrev_b32 v%d, 4, v0", RA)
        a("v_lshlrev_b32 v%d, 4, v%d", RA, RA)
        a("v_add_u32 v%d, %d, v%d", RA, L_RT + w * 640, RA)
        def KP(b): return 80 + 4 * (b + 1)
        def QP(b): return 116 + 4 * b
        VA = [148, 166]
        FT = [184, 188, 196, 200, 204, 192]
        RVB = [10, 14]
        RQ = T3
        groups = glu_groups([(6, 8, S_K1, 0)], [TV, TV + 16])
        for b in range(-1, 8):
            pre = ["ds_read_b128 v[%d:%d], v%d offset:%d" % (RVB[(b + 1) & 1], RVB[(b + 1) & 1] + 3, RA, (b + 1) * 64)]
            if b == -1: pre += ["v_mov_b32 v%d, v%d" % (CST + 4 * i, CSR + i) for i in (2, 3, 4, 5, 0, 1)]
            tl = {}
            for nf in (2, 3, 0, 1, 4, 5):
                if b < 0:
                    if nf >= 2: tl[nf] = (prevK + prevV)[nf - 2]
                else: tl[nf] = tiles[(nf, b)]
            cl = [corr(t, nf, b, nf) for nf, t in tl.items()]
            L = []; ft = list(FT)
            r_ = RR + b + 1
            if b >= 0:
                L.append("v_mul_f32 v%d, %s, v%d" % (RQ, f32(LOG2E * 32 ** -0.5), r_))
            def two(ts, mulf, dsts):
                Ls = []
                for t, d in zip(ts, dsts):
                    l_ = []
                    s_ = fetch(t, ft.pop(0), l_)
                    mulf(l_, s_)
                    l_.append("v_cvt_pk_bf16_f32 v%d, v%d, v%d" % (d, s_, s_ + 1))
                    l_.append("v_cvt_pk_bf16_f32 v%d, v%d, v%d" % (d + 1, s_ + 2, s_ + 3))
                    Ls.append(l_)
                return zipl(*Ls)
            L += two([tl[2], tl[3]], lambda l_, s_: mul4(l_, s_, s_, r_), [KP(b), KP(b) + 2])
            if b >= 0: L += two([tl[0], tl[1]], lambda l_, s_: mul4(l_, s_, s_, RQ), [QP(b), QP(b) + 2])
            L.append("s_waitcnt lgkmcnt(%d)" % (1 if b < 7 else 0))
            L += two([tl[4], tl[5]], lambda l_, s_: mul44(l_, s_, s_, RVB[(b + 1) & 1]), [VA[0] + 2 * (b + 1), VA[1] + 2 * (b + 1)])
            groups.append((pre, cl, L))
        run_groups(groups)
        nst("e2")
        BP, BC, BPF = 224, 228, 232
        a("v_and_b32 v%d, 15, v0", T0)
        a("v_lshrrev_b32 v%d, 4, v0", T1)
        a("v_lshlrev_b32 v%d, 2, v%d", T1, T1)
        a("v_sub_u32 v%d, v%d, v%d", T0, T0, T1)
        a("v_mov_b32 v%d, %s", T3, f32(-1e30))
        a("s_mov_b32 s%d, 0x80000001", S_T3)
        a("s_brev_b32 s%d, 1", S_T2)
        for i in range(4):
            a("v_subrev_u32 v%d, %d, v%d", T1, i, T0)
            a("v_and_b32 v%d, s%d, v%d", T1, S_T3, T1)
            a("v_cmp_eq_u32 vcc, 0, v%d", T1)
            a("v_cndmask_b32 v%d, v%d, 0, vcc", BC + i, T3)
            a("v_cmp_eq_u32 vcc, s%d, v%d", S_T2, T1)
            a("v_cndmask_b32 v%d, v%d, 0, vcc", BP + i, T3)
        if wm == 0:
            a("s_cmp_eq_u32 s%d, 0", S_M0)
            a("s_cselect_b64 vcc, -1, 0")
            for i in range(4): a("v_cndmask_b32 v%d, v%d, v%d, vcc", BPF + i, BP + i, T3)
        else: BPF = BP
        attn_all(a, [(184, 216, 10), (200, 220, 14)], QP, KP, VA, BP, BC, BPF, mul4, V_L16)
        nst("e3")
        weave2(w)
        a("s_branch %s", fin)

    def attn_all(a, sets, QP, KP, VPB, BP, BC, BPF, mul4, V_L16):
        def attn(b):
            base, P, M = sets[b & 1]
            SP, SC, O0, O1 = base, base + 4, base + 8, base + 12
            Tm = M + 1; Sm = M + 2; S2 = M + 3
            Qb = QP(b); Kb = KP(b); Kp = KP(b - 1)
            bp = BPF if b == 0 else BP
            L = []
            L.append("v_mfma_f32_16x16x32_bf16 v[%d:%d], v[%d:%d], v[%d:%d], v[%d:%d]" % (SP, SP + 3, Kp, Kp + 3, Qb, Qb + 3, bp, bp + 3))
            L.append("v_mfma_f32_16x16x32_bf16 v[%d:%d], v[%d:%d], v[%d:%d], v[%d:%d]" % (SC, SC + 3, Kb, Kb + 3, Qb, Qb + 3, BC, BC + 3))
            L += ["NOP"] * 4
            L.append("v_max3_f32 v%d, v%d, v%d, v%d" % (M, SP, SP + 1, SP + 2))
            L.append("v_max3_f32 v%d, v%d, v%d, v%d" % (Tm, SP + 3, SC, SC + 1))
            L.append("v_max3_f32 v%d, v%d, v%d, v%d" % (M, M, SC + 2, SC + 3))
            L.append("v_max_f32 v%d, v%d, v%d" % (M, M, Tm))
            for sw in ("16", "32"):
                L.append("v_mov_b32 v%d, v%d" % (Tm, M))
                L.append("v_permlane%s_swap_b32 v%d, v%d" % (sw, M, Tm))
                L.append("v_max_f32 v%d, v%d, v%d" % (M, M, Tm))
            for i in range(8): L.append("v_sub_f32 v%d, v%d, v%d" % (SP + i, SP + i, M))
            for i in range(8): L.append("v_exp_f32 v%d, v%d" % (SP + i, SP + i))
            for i in range(4): L.append("v_cvt_pk_bf16_f32 v%d, v%d, v%d" % (P + i, SP + 2 * i, SP + 2 * i + 1))
            L.append("v_add_f32 v%d, v%d, v%d" % (Sm, SP, SP + 1))
            L.append("v_add_f32 v%d, v%d, v%d" % (S2, SP + 2, SP + 3))
            for f, O in enumerate((O0, O1)):
                vb = VPB[f] + 2 * b
                L.append("v_mfma_f32_16x16x32_bf16 v[%d:%d], v[%d:%d], v[%d:%d], 0" % (O, O + 3, vb, vb + 3, P, P + 3))
            L.append("v_add_f32 v%d, v%d, v%d" % (Sm, Sm, SP + 4))
            L.append("v_add_f32 v%d, v%d, v%d" % (S2, S2, SP + 5))
            L.append("v_add_f32 v%d, v%d, v%d" % (Sm, Sm, SP + 6))
            L.append("v_add_f32 v%d, v%d, v%d" % (S2, S2, SP + 7))
            L.append("v_add_f32 v%d, v%d, v%d" % (Sm, Sm, S2))
            for sw in ("16", "32"):
                L.append("v_mov_b32 v%d, v%d" % (Tm, Sm))
                L.append("v_permlane%s_swap_b32 v%d, v%d" % (sw, Sm, Tm))
                L.append("v_add_f32 v%d, v%d, v%d" % (Sm, Sm, Tm))
            L.append("v_rcp_f32 v%d, v%d" % (Sm, Sm))
            mul4(L, O0, O0, Sm); mul4(L, O1, O1, Sm)
            st_ = S_T if b & 1 else S_T2
            L.append("s_add_u32 s%d, s%d, %d" % (st_, S_AB, b * 1024))
            L.append("v_cvt_pk_bf16_f32 v%d, v%d, v%d" % (SP, O0, O0 + 1))
            L.append("v_cvt_pk_bf16_f32 v%d, v%d, v%d" % (SP + 2, O1, O1 + 1))
            L.append("v_cvt_pk_bf16_f32 v%d, v%d, v%d" % (SP + 1, O0 + 2, O0 + 3))
            L.append("v_cvt_pk_bf16_f32 v%d, v%d, v%d" % (SP + 3, O1 + 2, O1 + 3))
            L.append("v_permlane32_swap_b32 v%d, v%d" % (SP, SP + 2))
            L.append("v_permlane32_swap_b32 v%d, v%d" % (SP + 1, SP + 3))
            L.append("buffer_store_dwordx4 v[%d:%d], v%d, s[%d:%d], s%d offen%s" % (SP, SP + 3, V_L16, S_ACT, S_ACT + 3, st_, STM))
            return L
        SAa = sum((attn(b) for b in range(0, 8, 2)), [])
        SBb = sum((attn(b) for b in range(1, 8, 2)), [])
        sh = len(attn(0)) // 2
        for x_ in zipl(SAa + ["NOP"] * sh, ["NOP"] * sh + SBb):
            if x_ != "NOP": a(x_)

    def conv(a, w, wm, tiles, VPB, prevK, prevV, env):
        (corr, fetch, mul4, mul44, run_groups, glu_groups, stt, cst, SD, RR, CG, V_L16, V_SGL) = [env[k] for k in
            ("corr", "fetch", "mul4", "mul44", "run_groups", "glu_groups", "stt", "cst", "SD", "RR", "CG", "V_L16", "V_SGL")]
        FT = 10
        RVB = [14, 74]
        a("v_mov_b32 v%d, v%d", T5, T3)
        RA = T5
        KP = CST + 0
        for i in range(6): a("v_mov_b32 v%d, v%d", CST + 4 * i, CSR + i)
        KPK = CSR
        RQ = CSR + 4
        groups = []
        for b in range(-1, 8):
            pre = ["ds_read_b128 v[%d:%d], v%d offset:%d" % (RVB[(b + 1) & 1], RVB[(b + 1) & 1] + 3, RA, (b + 1) * 64)]
            tl = {}
            for nf in range(6):
                if b < 0:
                    if nf >= 2: tl[nf] = (prevK + prevV)[nf - 2]
                else: tl[nf] = tiles[(nf, b)]
            cl = [corr(t, nf, b, nf) for nf, t in tl.items()]
            L = []
            r_ = RR + b + 1
            if b >= 0:
                L.append("v_mul_f32 v%d, %s, v%d" % (RQ, f32(LOG2E * 32 ** -0.5), r_))
            for base_nf, mreg in ((2, r_), (0, RQ)):
                if base_nf not in tl: continue
                dst = KPK if b < 0 else tl[base_nf].base
                for f in range(2):
                    s_ = fetch(tl[base_nf + f], FT, L)
                    mul4(L, s_, s_, mreg)
                    L.append("v_cvt_pk_bf16_f32 v%d, v%d, v%d" % (dst + 2 * f, s_, s_ + 1))
                    L.append("v_cvt_pk_bf16_f32 v%d, v%d, v%d" % (dst + 2 * f + 1, s_ + 2, s_ + 3))
            L.append("s_waitcnt lgkmcnt(%d)" % (1 if b < 7 else 0))
            for f in range(2):
                s_ = fetch(tl[4 + f], FT, L)
                mul44(L, s_, s_, RVB[(b + 1) & 1])
                dst = VPB[f] + 2 * (b + 1)
                L.append("v_cvt_pk_bf16_f32 v%d, v%d, v%d" % (dst, s_, s_ + 1))
                L.append("v_cvt_pk_bf16_f32 v%d, v%d, v%d" % (dst + 1, s_ + 2, s_ + 3))
            groups.append((pre, cl, L))
        for x_ in groups[0][0] + groups[0][1]: a(x_)
        for k, (pre, cl, vl) in enumerate(groups):
            if k + 1 < len(groups):
                for x_ in groups[k + 1][0]: a(x_)
                for x_ in spread(vl, groups[k + 1][1], 0.05, 0.6): a(x_)
            else:
                for x_ in vl: a(x_)
        nst("e2")
        K1 = [tiles[(3, mf)].base for mf in range(8)]
        BP, BC, BPF = K1[0], K1[1], K1[2]
        a("v_and_b32 v%d, 15, v0", T0)
        a("v_lshrrev_b32 v%d, 4, v0", T1)
        a("v_lshlrev_b32 v%d, 2, v%d", T1, T1)
        a("v_sub_u32 v%d, v%d, v%d", T0, T0, T1)
        a("v_mov_b32 v%d, %s", T3, f32(-1e30))
        a("s_mov_b32 s%d, 0x80000001", S_T3)
        a("s_brev_b32 s%d, 1", S_T2)
        for i in range(4):
            a("v_subrev_u32 v%d, %d, v%d", T1, i, T0)
            a("v_and_b32 v%d, s%d, v%d", T1, S_T3, T1)
            a("v_cmp_eq_u32 vcc, 0, v%d", T1)
            a("v_cndmask_b32 v%d, v%d, 0, vcc", BC + i, T3)
            a("v_cmp_eq_u32 vcc, s%d, v%d", S_T2, T1)
            a("v_cndmask_b32 v%d, v%d, 0, vcc", BP + i, T3)
        if wm == 0:
            a("s_cmp_eq_u32 s%d, 0", S_M0)
            a("s_cselect_b64 vcc, -1, 0")
            for i in range(4): a("v_cndmask_b32 v%d, v%d, v%d, vcc", BPF + i, BP + i, T3)
        else: BPF = BP
        sets = [(VPB[0] + 18, K1[3], K1[4]), (VPB[1] + 18, K1[5], K1[6])]
        def attn(b):
            base, P, M = sets[b & 1]
            SP, SC, O0, O1 = base, base + 4, base + 8, base + 12
            Tm = M + 1; Sm = M + 2; S2 = M + 3
            Qb = tiles[(0, b)].base; Kb = tiles[(2, b)].base; Kp = KPK if b == 0 else tiles[(2, b - 1)].base
            bp = BPF if b == 0 else BP
            L = []
            L.append("v_mfma_f32_16x16x32_bf16 v[%d:%d], v[%d:%d], v[%d:%d], v[%d:%d]" % (SP, SP + 3, Kp, Kp + 3, Qb, Qb + 3, bp, bp + 3))
            L.append("v_mfma_f32_16x16x32_bf16 v[%d:%d], v[%d:%d], v[%d:%d], v[%d:%d]" % (SC, SC + 3, Kb, Kb + 3, Qb, Qb + 3, BC, BC + 3))
            L += ["NOP"] * 4
            L.append("v_max3_f32 v%d, v%d, v%d, v%d" % (M, SP, SP + 1, SP + 2))
            L.append("v_max3_f32 v%d, v%d, v%d, v%d" % (Tm, SP + 3, SC, SC + 1))
            L.append("v_max3_f32 v%d, v%d, v%d, v%d" % (M, M, SC + 2, SC + 3))
            L.append("v_max_f32 v%d, v%d, v%d" % (M, M, Tm))
            for sw in ("16", "32"):
                L.append("v_mov_b32 v%d, v%d" % (Tm, M))
                L.append("v_permlane%s_swap_b32 v%d, v%d" % (sw, M, Tm))
                L.append("v_max_f32 v%d, v%d, v%d" % (M, M, Tm))
            for i in range(8): L.append("v_sub_f32 v%d, v%d, v%d" % (SP + i, SP + i, M))
            for i in range(8): L.append("v_exp_f32 v%d, v%d" % (SP + i, SP + i))
            for i in range(4): L.append("v_cvt_pk_bf16_f32 v%d, v%d, v%d" % (P + i, SP + 2 * i, SP + 2 * i + 1))
            L.append("v_add_f32 v%d, v%d, v%d" % (Sm, SP, SP + 1))
            L.append("v_add_f32 v%d, v%d, v%d" % (S2, SP + 2, SP + 3))
            for f, O in enumerate((O0, O1)):
                vb = VPB[f] + 2 * b
                L.append("v_mfma_f32_16x16x32_bf16 v[%d:%d], v[%d:%d], v[%d:%d], 0" % (O, O + 3, vb, vb + 3, P, P + 3))
            L.append("v_add_f32 v%d, v%d, v%d" % (Sm, Sm, SP + 4))
            L.append("v_add_f32 v%d, v%d, v%d" % (S2, S2, SP + 5))
            L.append("v_add_f32 v%d, v%d, v%d" % (Sm, Sm, SP + 6))
            L.append("v_add_f32 v%d, v%d, v%d" % (S2, S2, SP + 7))
            L.append("v_add_f32 v%d, v%d, v%d" % (Sm, Sm, S2))
            for sw in ("16", "32"):
                L.append("v_mov_b32 v%d, v%d" % (Tm, Sm))
                L.append("v_permlane%s_swap_b32 v%d, v%d" % (sw, Sm, Tm))
                L.append("v_add_f32 v%d, v%d, v%d" % (Sm, Sm, Tm))
            L.append("v_rcp_f32 v%d, v%d" % (Sm, Sm))
            mul4(L, O0, O0, Sm); mul4(L, O1, O1, Sm)
            st_ = S_T if b & 1 else S_T2
            L.append("s_add_u32 s%d, s%d, %d" % (st_, S_AB, b * 1024))
            L.append("v_cvt_pk_bf16_f32 v%d, v%d, v%d" % (SP, O0, O0 + 1))
            L.append("v_cvt_pk_bf16_f32 v%d, v%d, v%d" % (SP + 2, O1, O1 + 1))
            L.append("v_cvt_pk_bf16_f32 v%d, v%d, v%d" % (SP + 1, O0 + 2, O0 + 3))
            L.append("v_cvt_pk_bf16_f32 v%d, v%d, v%d" % (SP + 3, O1 + 2, O1 + 3))
            L.append("v_permlane32_swap_b32 v%d, v%d" % (SP, SP + 2))
            L.append("v_permlane32_swap_b32 v%d, v%d" % (SP + 1, SP + 3))
            L.append("buffer_store_dwordx4 v[%d:%d], v%d, s[%d:%d], s%d offen%s" % (SP, SP + 3, V_L16, S_ACT, S_ACT + 3, st_, STM))
            return L
        SAa = sum((attn(b) for b in range(0, 8, 2)), [])
        SBb = sum((attn(b) for b in range(1, 8, 2)), [])
        sh = len(attn(0)) // 2
        for x_ in zipl(SAa + ["NOP"] * sh, ["NOP"] * sh + SBb):
            if x_ != "NOP": a(x_)
        nst("e3")
        for mf in range(8): a("v_mul_f32 v%d, %s, v%d", CG + mf, f32(-LOG2E), RR + mf + 1)
        run_groups(glu_groups([(6, 8, S_K1, 0)], [TV, TV + 16]))
        if FUSE: weave(w)
        a("s_branch %s", fin)

    for w in range(4):
        variant(w)
        a("s_nop 7"); a("s_nop 7")
        for l1, l2 in SPINS:
            a.label(l1)
            a("ds_read_b32 v%d, v%d", V_FD, V_FR)
            a("s_waitcnt lgkmcnt(0)")
            a("v_cmp_lt_u32 vcc, v%d, v%d", V_FD, V_FS)
            a("s_cbranch_vccnz %s", l1)
            a("s_branch %s", l2)
        del SPINS[:]
    a.label(fin)
    nst("epi")
    if FUSE:
        lslow = a.newlab("L_p2_slow"); lback = a.newlab("L_p2_back")
        if not opt.get("wv2"):
            a("s_cmp_eq_u32 s%d, 0", p2.Q_A2 + 2)
            a("s_cbranch_scc1 %s", lslow)
        a.label(lback)
        if EP2: QENT.append([('A', s_) for s_ in range(opt.get("wv_na", 8)) for _ in range(4)])
        spins = p2.body(a, QENT, NPRE, True, lambda i: nst(["p0", "p20", "p28", "p36"][i]))
    if opt.get("prof"):
        a("s_waitcnt vmcnt(0)")
    stamp(a, opt, 4)
    stamp_store(a, opt, 5, P_WS, S_W, 1, 20)
    a.label(done)
    a("s_endpgm")
    if FUSE:
        a("s_nop 7")
        p2.spin_code(a, spins)
    if FUSE and not opt.get("wv2"):
        a.label(lslow)
        a("v_mov_b32 v%d, %d", T2, 2 if EP2 else 1)
        a("s_waitcnt vmcnt(0)")
        nst("sl1")
        a("s_mov_b64 exec, 1")
        a("buffer_store_dword v%d, off, s[%d:%d], s%d sc1", T2, p2.Q_F, p2.Q_F + 3, p2.Q_FSIG)
        a("s_mov_b64 exec, -1")
        lsl2 = a.newlab("L_p2_slow2")
        a.label(lsl2)
        if opt.get("wv_sleep"): a("s_sleep %d", opt["wv_sleep"])
        p2.poll_emit(a, 0)
        a("s_waitcnt vmcnt(0)")
        for x_ in p2.poll_test(0): a(x_)
        a("s_cbranch_scc1 %s", lsl2)
        nst("sl2")
        for s_ in range(opt.get("wv_na", 8) if EP2 else 8):
            for x_ in p2.a_job(s_): a(x_[0] if isinstance(x_, tuple) else x_)
        if not EP2: a("s_waitcnt vmcnt(%d)", 0)
        a("s_branch %s", lback)
    if FUSE:
        i0 = a.l.index(labs[3] + ":"); i1 = a.l.index(fin + ":")
        a.l = [".p2align 8", "L_code_start:"] + a.l[i0:i1] + a.l[:i0] + a.l[i1:]
    lines, added = hazard.fix(a.l)
    a0.l += lines
    a0._lab = a._lab
    return kernel_desc(name, 512, 256, 102 if FUSE else 100)
```

```python
from gen_common import *
import hazard

NSLOT = 9
FLG_ACT = 4096
FLG_BYTES = 4096 + 8192
SLOTB = [160, 176, 192, 208, 224, 240] + [16 * i for i in range(10)]

class P2:
    Q_X, Q_O, Q_P, Q_F, Q_A, Q_W, Q_A2 = 4, 8, 12, 16, 20, 64, 60
    Q_BA, Q_BC, Q_BT, Q_BP, Q_KD, Q_WG, Q_WT, Q_M0W = 32, 33, 34, 35, 36, 37, 38, 39
    Q_T, Q_T2, Q_OK = 46, 47, 48
    Q_XROW, Q_PSEND, Q_PRECV, Q_FSEND, Q_FRECV, Q_FPOLL, Q_FSIG, Q_KS, Q_MT, Q_NT = 68, 69, 70, 71, 72, 73, 74, 75, 76, 77
    P_OUT = 100
    V_L16 = 18; V_POLL = 78
    V_R = [18, 2, 3]; V_XL = 4; V_XO = 5; V_FL = 6; V_ONE = 7; V_ZERO = 8; T0, T1, T2, T3 = 9, 10, 11, 12
    XL = 20; RECV = 208

    def __init__(self, opt, S_W):
        self.opt = opt; self.S_W = S_W; self.nst = None
        self.EP2 = opt.get("ep2", 0); self.XE = opt.get("xe", 0)
        self.SL = list(SLOTB)
        if self.XE:
            self.SL = SLOTB[1:self.XE + 1] + SLOTB[:1] + SLOTB[self.XE + 1:]
            self.XL = 240
        self.AKB = opt.get("akb", 131072)
        self.amod = opt.get("p2_amod", " sc1"); self.wmod = opt.get("p2_wmod", " sc1")
    def acc(self, half, mf, nf): return R('v', 80 + half * 32 + (mf * 2 + nf) * 4, 4)
    def afrag(self, st, i): return R('v', 144 + st * 32 + i * 4, 4)
    def wfrag(self, b, kk, nf): return R('a', self.SL[b & 15] + (kk * 2 + nf) * 4, 4)

    def setup_s(self):
        p = self; L = []; AKB = p.AKB; W = p.S_W
        def e(s, *x): L.append(s % x if x else s)
        e("s_and_b32 s%d, s2, 1", p.Q_KS)
        e("s_bfe_u32 s%d, s2, 0x20001", p.Q_MT)
        e("s_lshl_b32 s%d, s%d, 2", p.Q_MT, p.Q_MT)
        e("s_lshr_b32 s%d, s2, 6", p.Q_T)
        e("s_add_u32 s%d, s%d, s%d", p.Q_MT, p.Q_MT, p.Q_T)
        e("s_bfe_u32 s%d, s2, 0x30003", p.Q_NT)
        e("s_lshl_b32 s%d, s%d, 12", p.Q_M0W, W)
        e("s_lshl_b32 s%d, s%d, 1", p.Q_T, p.Q_MT)
        e("s_add_u32 s%d, s%d, s%d", p.Q_T, p.Q_T, p.Q_KS)
        e("s_lshl_b32 s%d, s%d, 17", p.Q_XROW, p.Q_T)
        e("s_lshl_b32 s%d, s%d, 12", p.Q_T, p.Q_T)
        e("s_xor_b32 s%d, s%d, 4096", p.Q_T2, p.Q_T)
        e("s_sub_u32 s%d, s%d, s%d", p.Q_KD, p.Q_T, p.Q_T2)
        e("s_lshl_b32 s%d, s%d, 4", p.Q_BT, p.Q_KS)
        e("s_add_u32 s%d, s%d, s%d", p.Q_BT, p.Q_BT, W)
        e("s_mul_i32 s%d, s%d, %d", p.Q_BT, p.Q_BT, AKB)
        e("s_add_u32 s%d, s%d, s%d", p.Q_BT, p.Q_BT, p.Q_T2)
        e("s_mul_i32 s%d, s%d, 56", p.Q_WG, p.Q_KS)
        e("s_add_u32 s%d, s%d, 32", p.Q_WG, p.Q_WG)
        e("s_lshr_b32 s%d, s%d, 1", p.Q_BC, W)
        e("s_lshl_b32 s%d, s%d, 2", p.Q_BP, W)
        e("s_sub_u32 s%d, s%d, s%d", p.Q_BP, p.Q_BP, p.Q_BC)
        e("s_add_u32 s%d, s%d, s%d", p.Q_BP, p.Q_BP, p.Q_WG)
        e("s_mul_i32 s%d, s%d, %d", p.Q_BP, p.Q_BP, AKB)
        e("s_add_u32 s%d, s%d, s%d", p.Q_BP, p.Q_BP, p.Q_T2)
        e("s_and_b32 s%d, s%d, 1", p.Q_T2, W)
        e("s_lshl_b32 s%d, s%d, 12", p.Q_T2, p.Q_T2)
        e("s_xor_b32 s%d, s%d, s%d", p.Q_T, p.Q_T, p.Q_T2)
        e("s_lshl_b32 s%d, s%d, 2", p.Q_BA, p.Q_BC)
        e("s_add_u32 s%d, s%d, s%d", p.Q_BA, p.Q_BA, p.Q_WG)
        e("s_mul_i32 s%d, s%d, %d", p.Q_BA, p.Q_BA, AKB)
        e("s_add_u32 s%d, s%d, s%d", p.Q_BA, p.Q_BA, p.Q_T)
        e("s_mul_i32 s%d, s%d, 7", p.Q_BC, p.Q_BC)
        e("s_add_u32 s%d, s%d, s%d", p.Q_BC, p.Q_BC, p.Q_WG)
        e("s_mul_i32 s%d, s%d, %d", p.Q_BC, p.Q_BC, AKB)
        e("s_add_u32 s%d, s%d, s%d", p.Q_BC, p.Q_BC, p.Q_T)
        e("s_lshl_b32 s%d, s%d, 13", p.Q_T, p.Q_NT)
        e("s_lshl_b32 s%d, s%d, 11", p.Q_T2, W)
        e("s_add_u32 s%d, s%d, s%d", p.Q_T, p.Q_T, p.Q_T2)
        e("s_lshl_b32 s%d, s%d, 16", p.Q_WG, p.Q_WG)
        e("s_add_u32 s%d, s%d, s%d", p.Q_WG, p.Q_WG, p.Q_T)
        e("s_lshl_b32 s%d, s%d, 20", p.Q_WT, p.Q_KS)
        e("s_add_u32 s%d, s%d, s%d", p.Q_WT, p.Q_WT, p.Q_T)
        e("s_lshr_b32 s%d, s%d, 5", p.Q_T, p.Q_T)
        e("s_add_u32 s%d, s%d, s%d", p.Q_XROW, p.Q_XROW, p.Q_T)
        e("s_lshl_b32 s%d, s%d, 3", p.Q_T, p.Q_MT)
        e("s_add_u32 s%d, s%d, s%d", p.Q_T, p.Q_T, p.Q_NT)
        e("s_lshl_b32 s%d, s%d, 1", p.Q_T, p.Q_T)
        e("s_add_u32 s%d, s%d, s%d", p.Q_T, p.Q_T, p.Q_KS)
        e("s_lshl_b32 s%d, s%d, 2", p.Q_T, p.Q_T)
        e("s_add_u32 s%d, s%d, s%d", p.Q_T, p.Q_T, W)
        e("s_xor_b32 s%d, s%d, 4", p.Q_T2, p.Q_T)
        e("s_lshl_b32 s%d, s%d, 13", p.Q_PRECV, p.Q_T)
        e("s_lshl_b32 s%d, s%d, 13", p.Q_PSEND, p.Q_T2)
        e("s_lshl_b32 s%d, s%d, 2", p.Q_FRECV, p.Q_T)
        e("s_lshl_b32 s%d, s%d, 2", p.Q_FSEND, p.Q_T2)
        e("s_lshl_b32 s%d, s%d, 9", p.Q_FPOLL, p.Q_MT)
        e("s_lshl_b32 s%d, s%d, 8", p.Q_T, p.Q_KS)
        e("s_add_u32 s%d, s%d, s%d", p.Q_FPOLL, p.Q_FPOLL, p.Q_T)
        e("s_add_u32 s%d, s%d, %d", p.Q_FPOLL, p.Q_FPOLL, FLG_ACT)
        e("s_mov_b32 s%d, s%d", p.Q_O, p.P_OUT); e("s_mov_b32 s%d, s%d", p.Q_O + 1, p.P_OUT + 1)
        e("s_mov_b32 s%d, 0x%x", p.Q_O + 2, 2048 * 2048); e("s_mov_b32 s%d, 0x00020000", p.Q_O + 3)
        for d, off, nb in ((p.Q_P, WS_PART, 256 * 32768), (p.Q_F, WS_FLAGS, FLG_BYTES)):
            L.append(["s_add_u32 s%d, s%d, 0x%x" % (d, p.Q_A, off - WS_ACT2), "s_addc_u32 s%d, s%d, 0" % (d + 1, p.Q_A + 1)])
            e("s_mov_b32 s%d, 0x%x", d + 2, nb); e("s_mov_b32 s%d, 0x00020000", d + 3)
        e("s_mov_b32 s%d, s%d", p.Q_A2, p.Q_A); e("s_mov_b32 s%d, s%d", p.Q_A2 + 1, p.Q_A + 1)
        e("s_mov_b32 s%d, 0", p.Q_A2 + 2); e("s_mov_b32 s%d, 0x00020000", p.Q_A2 + 3)
        return L

    def a_job(self, s, srd=None, other=False):
        p = self; srd = p.Q_A if srd is None else srd
        if s < 8: base, kb = p.Q_BA, 7 * s + 1
        elif s < 16: base, kb = p.Q_BA, 7 * (s - 8) + (0 if p.EP2 else 2)
        elif s < 20: base, kb = p.Q_BC, 14 * (s - 16) + 3
        elif p.EP2:
            i = (s - 20) % 8
            base, kb = (p.Q_BP, 14 * i + 2) if i < 4 else (p.Q_BT, 4 * (i - 4))
        elif (s - 20) % 8 < 4: base, kb = p.Q_BT, 4 * ((s - 20) % 8)
        else: base, kb = p.Q_BP, 14 * ((s - 24) % 8)
        L = []
        if s == 28: L += ["s_add_u32 s%d, s%d, s%d" % (p.Q_BT, p.Q_BT, p.Q_KD), "s_add_u32 s%d, s%d, s%d" % (p.Q_BP, p.Q_BP, p.Q_KD)]
        if other: L += ["s_sub_u32 m0, m0, 8192", "s_sub_u32 s%d, s%d, %d" % (p.Q_T, p.Q_T, 4 * p.AKB)]
        else: L += ["s_add_u32 m0, s%d, %d" % (p.Q_M0W, (s % NSLOT) * 16384), "s_add_u32 s%d, s%d, %d" % (p.Q_T, base, kb * p.AKB)]
        for i in range(4):
            L.append(("buffer_load_dwordx4 v%d, s[%d:%d], s%d offen offset:%d%s lds" % (p.V_L16, srd, srd + 3, p.Q_T, 1024 * i, p.amod), ('A', s)))
        return L
    def w_kbs(self, b):
        if b < 8: return self.Q_WG, 7 * b + 1, 4
        if b < 16: return self.Q_WG, 7 * (b - 8) + (0 if self.EP2 else 2), 4
        if b < 20: return self.Q_WG, 14 * (b - 16) + 3, 7
        if self.EP2: return (self.Q_WG, 7 * (b - 20) + 2, 4) if b < 28 else (self.Q_WT, 2 * (b - 28), 1)
        if b < 28: return self.Q_WT, 2 * (b - 20), 1
        return self.Q_WG, 7 * (b - 28), 4
    def w_job(self, b):
        p = self; base, kb, d = p.w_kbs(b); L = []
        for kk in range(2):
            L.append("s_add_u32 s%d, s%d, %d" % (p.Q_T2, base, (kb + kk * d) * 65536))
            for nf in range(2):
                L.append(("buffer_load_dwordx4 %s, v%d, s[%d:%d], s%d offen offset:%d%s" % (p.wfrag(b, kk, nf), p.V_L16, p.Q_W, p.Q_W + 3, p.Q_T2, 1024 * nf, p.wmod), ('W', b)))
        return L
    def poll_ld(self, t):
        p = self
        return ("buffer_load_dword v%d, v%d, s[%d:%d], s%d offen offset:%d sc1" % (p.V_POLL, p.V_L16, p.Q_F, p.Q_F + 3, p.Q_FPOLL, 4 * (t & 1) if p.EP2 else 4 * t), ('PL', t))
    def poll_seq(self, t):
        if self.opt.get("p2_pl16"): return ["s_mov_b64 exec, 0xffff", self.poll_ld(t), "s_mov_b64 exec, -1"]
        return [self.poll_ld(t)]
    def poll_emit(self, a, t):
        for x in self.poll_seq(t): a(x[0] if isinstance(x, tuple) else x)
    def poll_test(self, t):
        if self.EP2: return ["v_cmp_gt_u32 vcc, %d, v%d" % (1 + (t >> 1), self.V_POLL), "s_and_b32 s%d, vcc_lo, 0xffff" % self.Q_T]
        return ["v_cmp_eq_u32 vcc, 0, v%d" % self.V_POLL, "s_and_b32 s%d, vcc_lo, 0xffff" % self.Q_T]

    def body(self, a, queues, npre, fused, stamp_fn=None):
        p = self; opt = p.opt
        qs = [list(q) for q in queues]
        def push(t):
            for q in qs: q.append(t)
        def need(tags):
            n = 63
            for q in qs:
                idx = [i for i, t in enumerate(q) if t in tags]
                if idx: n = min(n, len(q) - 1 - max(idx))
            return n
        def need1(q, tags):
            idx = [i for i, t in enumerate(q) if t in tags]
            return min(63, len(q) - 1 - max(idx)) if idx else 63
        def vwait(tags):
            if p.EP2:
                n0 = min(need1(q_, tags) for q_ in qs[:4]); n1 = need1(qs[4], tags)
                if n0 > n1 + 1:
                    l_ = a.newlab("L_p2_w")
                    a("s_cmp_lg_u32 s%d, 0", p.Q_A2 + 2)
                    a("s_cbranch_scc1 %s", l_)
                    a("s_waitcnt vmcnt(%d)", n1)
                    a.label(l_)
                    a("s_waitcnt vmcnt(%d)", n0)
                    return
            elif len(qs) == 4 and opt.get("wv2"):
                n0 = min(need1(qs[0], tags), need1(qs[1], tags)); n1 = min(need1(qs[2], tags), need1(qs[3], tags))
                if n0 > n1 + 1:
                    l_ = a.newlab("L_p2_w")
                    a("s_cmp_lt_u32 s%d, 2", p.S_W)
                    a("s_cbranch_scc1 %s", l_)
                    a("s_waitcnt vmcnt(%d)", n1)
                    a.label(l_)
                    a("s_waitcnt vmcnt(%d)", n0)
                    return
            a("s_waitcnt vmcnt(%d)", need(tags))
        lq = []
        def lwait(tags):
            idx = [i for i, t in enumerate(lq) if t in tags]
            if not idx: return
            n = len(lq) - 1 - max(idx)
            a("s_waitcnt lgkmcnt(%d)", min(n, 15))
            del lq[:len(lq) - min(n, 15)]
        spins = []
        def emit(x):
            if isinstance(x, tuple):
                if x[1][0] in opt.get("p2_skip", []): return
                a(x[0]); push(x[1])
            elif callable(x): x()
            else: a(x)
        def rd(n):
            c, u = n >> 1, n & 1
            out = []
            for i in range(8):
                off = (c % NSLOT) * 16384 + u * 8192 + i * 1024
                out.append(("ds_read_b128 %s, v%d offset:%d" % (p.afrag(u, i), p.V_R[off >> 16], off & 65535), ('L', n, i)))
            return out
        def wblocks(c): return [c] if c < 20 else [20 + 2 * ((c - 20) % 8), 21 + 2 * ((c - 20) % 8)]
        touched = set()
        def mf_list(n):
            c, u = n >> 1, n & 1
            out = []
            for i in range(8):
                for z in range(2):
                    nf = z ^ (i & 1)
                    if c < 20: t = p.acc(i >> 2, i & 3, nf); wf = p.wfrag(c, u, nf)
                    else: t = p.acc(1 if c < 28 else 0, i & 3, nf); wf = p.wfrag(wblocks(c)[u], i >> 2, nf)
                    first = t.base not in touched; touched.add(t.base)
                    out.append(("v_mfma_f32_16x16x32_bf16 %s, %s, %s, %s" % (t, wf, p.afrag(u, i), "0" if first else t), i))
            return out
        a("v_add_u32 v%d, 65536, v%d", p.V_R[1], p.V_L16)
        a("v_add_u32 v%d, 131072, v%d", p.V_R[2], p.V_L16)
        vwait([('A', 0), ('W', 0)])
        a("s_barrier")
        if stamp_fn: stamp_fn(0)
        for ins, tag in rd(0): a(ins); lq.append(tag)
        T0, T1, T2, T3 = p.T0, p.T1, p.T2, p.T3
        misc = ["v_and_b32 v%d, 15, v0" % T0, "v_lshrrev_b32 v%d, 4, v0" % T1, "v_lshlrev_b32 v%d, 11, v%d" % (T0, T0),
                "v_lshl_add_u32 v%d, v%d, 3, v%d" % (p.V_XL, T1, T0),
                "v_and_b32 v%d, 1, v%d" % (T2, T1), "v_lshl_add_u32 v%d, v%d, 5, v%d" % (T2, T2, T0), "v_lshrrev_b32 v%d, 1, v%d" % (T3, T1),
                "v_lshl_add_u32 v%d, v%d, 4, v%d" % (p.V_XO, T3, T2), "v_mov_b32 v%d, %d" % (p.V_ONE, 2 if p.EP2 else 1), "v_mov_b32 v%d, 0" % p.V_ZERO]
        for x in misc: a(x)
        D0 = opt.get("p2_d0", 2) if fused else 0
        jobs = {c: [] for c in range(-1, 36)}
        NA0 = opt.get("wv2", 8) if fused else 8
        if p.EP2: NA0 = opt.get("wv_na", 8)
        CK = {8: 1, 16: 2, 24: 3} if p.EP2 else {8: 1, 16: 2, 20: 3}
        def check(t):
            def f():
                l1 = a.newlab("L_p2_sp"); l2 = a.newlab("L_p2_sr")
                if p.nst: p.nst("c%da" % t)
                a("s_waitcnt vmcnt(%d)", need([('PL', t)]))
                for x in p.poll_test(t): a(x)
                a("s_cbranch_scc1 %s", l1)
                a.label(l2)
                if p.nst: p.nst("c%db" % t)
                spins.append((l1, l2, t))
            return f
        dma_at = {s: max(s - 8, D0 + (s - 8) // 2, (s - NA0) // 2 - 1) for s in range(8, 36)}
        for s in range(NA0, 8): dma_at[s] = (s - NA0) // 2 - 1
        nxtw = npre
        for c in range(-1, 36):
            for s in range(NA0, 36):
                if dma_at[s] == c:
                    if fused and s in CK: jobs[c].append([check(CK[s])])
                    j = p.a_job(s); k = len(j) - 4
                    jobs[c] += [j[:k + 1]] + [[x] for x in j[k + 1:]]
            nw = 0
            while c >= 0 and nxtw < 36 and nxtw - 16 < c and nw < opt.get("p2_wps", 2):
                j = p.w_job(nxtw); jobs[c] += [j[0:2], j[2:3], j[3:5], j[5:6]]; nxtw += 1; nw += 1
        if fused:
            for s, t in CK.items():
                c = dma_at[s] - 2
                if c >= 0: jobs[c].insert(0, p.poll_seq(t))
                else:
                    for x in p.poll_seq(t): emit(x)
            SG = opt.get("p2_sig", 2)
            def sig():
                if p.nst: p.nst("sga")
                a("s_waitcnt vmcnt(%d)", need([('AS', 0)]))
                if p.nst: p.nst("sgb")
                a("s_mov_b64 exec, 1")
                emit(("buffer_store_dword v%d, v%d, s[%d:%d], s%d offen sc1" % (p.V_ONE, p.V_ZERO, p.Q_F, p.Q_F + 3, p.Q_FSIG), ('SG', 0)))
                a("s_mov_b64 exec, -1")
            jobs[SG].insert(0, [sig])
        XLATE = opt.get("p2_xl", 0)
        XC = XLATE if XLATE else 10
        for mf in range(0 if p.XE else 4):
            jobs[XC + (mf >> 1 if XLATE else mf)].append(["s_add_u32 s%d, s%d, %d" % (p.Q_T2, p.Q_XROW, mf * 32768)] +
                                 [("buffer_load_dwordx2 v[%d:%d], v%d, s[%d:%d], s%d offen offset:%d" % (p.XL + (mf * 2 + nf) * 2, p.XL + (mf * 2 + nf) * 2 + 1, p.V_XL, p.Q_X, p.Q_X + 3, p.Q_T2, nf * 32), ('X', 0)) for nf in range(2)])
        valu = {c: [] for c in range(36)}
        XA = 33 if XLATE else 21
        valu[XA].append([lambda: a("s_waitcnt vmcnt(%d)", need([('X', 0), ('S', 0)])), "s_mov_b32 s%d, 0xffff0000" % p.Q_BA])
        for k in range(8):
            t = p.acc(0, k >> 1, k & 1); d = p.XL + 2 * k
            for h in range(2):
                if XLATE:
                    t = p.acc(1, k >> 1, k & 1)
                    valu[XA + k // 4].append(["v_lshlrev_b32 %s, 16, v%d" % (t.sub(2 * h), d + h), "v_and_b32 %s, s%d, v%d" % (t.sub(2 * h + 1), p.Q_BA, d + h)])
                    continue
                c = 21 + k // 2
                valu[c].append(["v_lshlrev_b32 v%d, 16, v%d" % (T0, d + h), "v_and_b32 v%d, s%d, v%d" % (T1, p.Q_BA, d + h)])
                valu[c].append(["v_add_f32 %s, %s, v%d" % (t.sub(2 * h), t.sub(2 * h), T0), "v_add_f32 %s, %s, v%d" % (t.sub(2 * h + 1), t.sub(2 * h + 1), T1)])
        FA = opt.get("p2_fa", 31); PA = opt.get("p2_pa", 33); RA = opt.get("p2_ra", 34)
        pre0 = {c: [] for c in range(36)}
        for k in range(8):
            t = p.acc(1, k >> 1, k & 1)
            pre0[28].append([("buffer_store_dwordx4 %s, v%d, s[%d:%d], s%d offen offset:%d sc1" % (t, p.V_L16, p.Q_P, p.Q_P + 3, p.Q_PSEND, (k & 3) * 1024), ('S', 0))]
                            + (["s_add_u32 s%d, s%d, 4096" % (p.Q_PSEND, p.Q_PSEND)] if k == 3 else []))
        def flag():
            a("s_waitcnt vmcnt(%d)", need([('S', 0)]))
            emit(("buffer_store_dword v%d, v%d, s[%d:%d], s%d offen sc1" % (p.V_ONE, p.V_ZERO, p.Q_F, p.Q_F + 3, p.Q_FSEND), ('F', 0)))
        jobs[FA].insert(0, [flag])
        jobs[PA].append([("buffer_load_dword v%d, v%d, s[%d:%d], s%d offen sc1" % (p.V_FL, p.V_ZERO, p.Q_F, p.Q_F + 3, p.Q_FRECV), ('FL', 0))])
        def rloads():
            return [("buffer_load_dwordx4 v[%d:%d], v%d, s[%d:%d], s%d offen offset:%d sc1" % (p.RECV + 4 * k, p.RECV + 4 * k + 3, p.V_L16, p.Q_P, p.Q_P + 3, p.Q_PRECV if k < 4 else p.Q_T2, (k & 3) * 1024), ('R', 0)) for k in range(8)]
        jobs[RA].append([lambda: a("s_waitcnt vmcnt(%d)", need([('FL', 0)])), "v_readfirstlane_b32 s%d, v%d" % (p.Q_OK, p.V_FL), "s_add_u32 s%d, s%d, 4096" % (p.Q_T2, p.Q_PRECV)])
        jobs[RA] += [[x] for x in rloads()]
        pend = list(jobs[-1]); gap = 0; step_ = 1
        JG = opt.get("p2_jg", 2)
        for n in range(72):
            c, u = n >> 1, n & 1
            ms = mf_list(n)
            nr = rd(n + 1) if n + 1 < 72 else []
            side = list(pre0[c]) if u == 0 else []
            vs = valu[c][u * 8:(u + 1) * 8] if len(valu[c]) <= 16 else None
            for k, (m, i) in enumerate(ms):
                LW = opt.get("p2_lw", 1) if n else 1
                lwait([('L', n, min(7, i // LW * LW + LW - 1))])
                a(m)
                if k == 0 and u == 1:
                    if c < 35:
                        vwait([('A', c + 1)] + [('W', b) for b in wblocks(c + 1)])
                        if not opt.get("p2_nobar"): a("s_barrier")
                    assert not pend, (c, pend)
                    pend = list(jobs[c]); gap = 0
                    span = 30 if c < 35 else 14
                    step_ = max(1, min(JG + 1, span // max(1, len(pend))))
                    if opt.get("p2_even"):
                        step_ = 1
                        for st in (4, 2):
                            if 2 + (len(pend) - 1) * st <= span + 1: step_ = st; break
                        if step_ == 4 and opt["p2_even"] > 1 and pend:
                            np_ = []
                            for it in pend:
                                k_ = 0
                                while k_ < len(it) - 1 and isinstance(it[k_], str) and it[k_].startswith("s_add"): k_ += 1
                                np_ += [it[:k_], it[k_:]]
                            for x in np_.pop(0): emit(x)
                            pend = np_; step_ = 2
                if k % 2 == 0 and nr:
                    ins, tag = nr.pop(0)
                    if not opt.get("p2_nolds"): a(ins); lq.append(tag)
                elif side and k >= 1:
                    for x in side.pop(0): emit(x)
                elif vs:
                    for x in vs.pop(0): emit(x)
                if pend:
                    gap += 1
                    if gap >= 2 and (gap - 2) % step_ == 0:
                        for x in pend.pop(0): emit(x)
            assert not side and not vs
            if stamp_fn and n in (39, 55): stamp_fn(1 if n == 39 else 2)
            if p.nst and u == 1: p.nst("q%d" % (c + 1))
        assert not pend
        if stamp_fn: stamp_fn(3)
        if XLATE:
            a("s_nop 4")
            for k in range(8):
                t = p.acc(0, k >> 1, k & 1); x_ = p.acc(1, k >> 1, k & 1)
                for h in (0, 2): a("v_pk_add_f32 %s, %s, %s", t.sub(h, 2), t.sub(h, 2), x_.sub(h, 2))
        lok = a.newlab("L_p2_ok"); lsp = a.newlab("L_p2_spin")
        a("s_cmp_lg_u32 s%d, 0", p.Q_OK)
        a("s_cbranch_scc1 %s", lok)
        a.label(lsp)
        a("s_sleep 2")
        a("buffer_load_dword v%d, v%d, s[%d:%d], s%d offen sc1", p.V_FL, p.V_ZERO, p.Q_F, p.Q_F + 3, p.Q_FRECV)
        a("s_waitcnt vmcnt(0)")
        a("v_readfirstlane_b32 s%d, v%d", p.Q_OK, p.V_FL)
        a("s_nop 1")
        a("s_cmp_eq_u32 s%d, 0", p.Q_OK)
        a("s_cbranch_scc1 %s", lsp)
        for x in rloads(): a(x[0])
        a.label(lok)
        a("s_nop 4")
        for mf in range(4):
            pk = p.XL + mf * 4
            a("s_waitcnt vmcnt(%d)", 6 - mf)
            for nf in range(2):
                t = p.acc(0, mf, nf); rb = p.RECV + (mf * 2 + nf) * 4
                a("v_pk_add_f32 v[%d:%d], v[%d:%d], v[%d:%d]", t.base, t.base + 1, t.base, t.base + 1, rb, rb + 1)
                a("v_pk_add_f32 v[%d:%d], v[%d:%d], v[%d:%d]", t.base + 2, t.base + 3, t.base + 2, t.base + 3, rb + 2, rb + 3)
                a("v_cvt_pk_bf16_f32 v%d, v%d, v%d", pk + 2 * nf, t.base, t.base + 1)
                a("v_cvt_pk_bf16_f32 v%d, v%d, v%d", pk + 2 * nf + 1, t.base + 2, t.base + 3)
            a("s_add_u32 s%d, s%d, %d", p.Q_T, p.Q_XROW, mf * 32768)
            a("v_permlane16_swap_b32 v%d, v%d", pk, pk + 2)
            a("v_permlane16_swap_b32 v%d, v%d", pk + 1, pk + 3)
            a("buffer_store_dwordx4 v[%d:%d], v%d, s[%d:%d], s%d offen", pk, pk + 3, p.V_XO, p.Q_O, p.Q_O + 3, p.Q_T)
        return spins
    def spin_code(self, a, spins):
        for l1, l2, t in spins:
            a.label(l1)
            a("s_sleep 2")
            self.poll_emit(a, t)
            a("s_waitcnt vmcnt(0)")
            for x in self.poll_test(t): a(x)
            a("s_cbranch_scc1 %s", l1)
            a("s_branch %s", l2)

P2_LDS = NSLOT * 16384

def gen_p2k(a0, name="g2_kernel", opt=None):
    a = A(); a._lab = a0._lab + 5000
    S_W = 43
    p = P2(opt, S_W)
    kernel_header(a, name)
    done = a.newlab("L_p2_done")
    a("s_cmp_ge_u32 s2, 256")
    a("s_cbranch_scc1 %s", done)
    stamp(a, opt, 0)
    a("s_load_dwordx2 s[24:25], s[0:1], 0")
    a("s_load_dwordx2 s[100:101], s[0:1], 56")
    a("s_load_dwordx2 s[26:27], s[0:1], 72")
    a("v_lshrrev_b32 v1, 6, v0")
    a("v_and_b32 v0, 63, v0")
    a("v_readfirstlane_b32 s%d, v1", S_W)
    a("v_lshlrev_b32 v%d, 4, v0", p.V_L16)
    a("s_waitcnt lgkmcnt(0)")
    make_srd(a, p.Q_X, 24, 2048 * 2048)
    make_srd(a, p.Q_A, 26, 144 * p.AKB, WS_ACT2)
    make_srd(a, p.Q_W, 26, 4608 * 2048, WS_W2P)
    for x in p.setup_s():
        for y in (x if isinstance(x, list) else [x]): a(y)
    q = []
    NPRE = opt.get("p2_npre", 6)
    for s in range(8):
        for x in p.a_job(s) + (p.w_job(s) if s < NPRE else []):
            if isinstance(x, tuple): a(x[0]); q.append(x[1])
            else: a(x)
    def sf(i):
        if opt.get("p2_stp"):
            if i: stamp(a, opt, i)
        elif i != 2: stamp(a, opt, {0: 1, 1: 2, 3: 3}[i])
    spins = p.body(a, [q], NPRE, False, sf)
    if opt.get("prof"): a("s_waitcnt vmcnt(0)")
    stamp(a, opt, 4)
    stamp_store(a, opt, 5, 26, S_W, 2, 20)
    a.label(done)
    a("s_endpgm")
    lines, added = hazard.fix(a.l)
    a0.l += lines
    a0._lab = a._lab
    return kernel_desc(name, 512, 256, 102)
```

```python
from gen_common import *
import hazard, struct, re
from gen_p2 import P2, FLG_ACT, FLG_BYTES, SLOTB

XROWS = 273
XSLOT = XROWS * 128
WBASE = 2 * XSLOT
WSTAGE = 20480
WG_OFF, WU_OFF, WQ_OFF = 0, 7168, 14336
SCR = WBASE + 4 * WSTAGE
L_CS = SCR
L_KV = SCR + 1280
L_RT = SCR + 5376
L_STG = SCR + 5376 + 2560
G1B_LDS = L_STG + 4096
WS_STATS = 0
LOG2E = 1.4426950408889634
def f32(x): return "0x%08x" % struct.unpack("<I", struct.pack("<f", x))[0]

def zipl(*ls):
    out = []
    n = max(len(l) for l in ls)
    for i in range(n):
        for l in ls:
            if i < len(l): out.append(l[i])
    return out

def spread(main, extra, lo=0.0, hi=0.7):
    n = len(main); k = len(extra)
    if k == 0: return list(main)
    pos = [int(n * lo + (n * (hi - lo)) * i / k) for i in range(k)]
    out = []; j = 0
    for i, m in enumerate(main):
        while j < k and pos[j] <= i:
            if extra[j].startswith("v_mfma") and out and out[-1].startswith("v_pk_"): break
            out.append(extra[j]); j += 1
        out.append(m)
    out += extra[j:]
    return out

def gen_g1b(a0, name="g1_kernel", opt=None):
    opt = opt or {}
    a = A(); a._lab = a0._lab + 1000
    NSTEP = 32
    LA = opt.get("la", 3)
    BAR = opt.get("bar", 4)
    ACT_KB = opt.get("akb", 131072)
    ACT_BYTES = 144 * ACT_KB
    KROT = opt.get("krot", 0)
    FS = opt.get("fs")
    FSL = opt.get("fs_lead", 5)
    if FS: BAR = FS[1]
    V_FS, V_FA, V_FR, V_FD = 54, 58, 62, 66
    L_FLG = L_RT + 1280
    W2P = opt.get("w2p", 0)
    S_CS, S_CD, S_CSO, S_CDO = 60, 64, 68, 69
    DE = opt.get("de", 5)
    DST = opt.get("dst", [0, 0, 0, 0])
    PK = opt.get("pk", 1)
    STM = opt.get("stmod", " sc1")
    NOCS = opt.get("nocs", 0)
    assert BAR <= 10 - LA
    S_X, S_G, S_U, S_Q, S_ACT, S_ST, S_DBG, S_PF = 4, 8, 12, 16, 20, 24, 28, 32
    S_XK, S_XH, S_GOFF, S_QOFF, S_T, S_T2, S_T3, S_W, S_M0, S_J, S_LOOP = 36, 37, 38, 39, 40, 41, 42, 43, 44, 45, 46
    S_PFOFF, S_PFSTR, S_OK, S_C0, S_C1, S_STO, S_AB, S_ODD, S_MT = 47, 48, 49, 50, 51, 52, 53, 58, 59
    S_K1 = 54; S_K2 = 55; S_MSK = 56
    S_RC = 56; S_RP = 57; S_ROT = 3
    P_X, P_Q, P_G, P_U, P_WS, P_DBG, P_WO, P_WD = 60, 62, 64, 66, 68, 70, 72, 74
    V_XDMA = 1; V_WDMA = [2, 3, 4, 5]; V_XR = [6, 7]; V_HX = [8, 9]; V_WRD = list(range(10, 18)); V_PF = 18; V_PFD = 19
    ST = 20
    CSR = 40
    CST = 50
    T0, T1, T2, T3, T4, T5 = 74, 75, 76, 77, 78, 79
    TV = 80
    def XF(st, mf): return R('a', 148 + st * 32 + mf * 4, 4)
    def WR(i): return R('a', 212 + (i & 3) * 4, 4)
    def HX(st): return R('a', 228 + st * 4, 4)
    def HACC(i): return R('a', 236 + i * 4, 4)

    FUSE = opt.get("fuse", 0)
    EP2 = opt.get("ep2", 0)
    XE = opt.get("xe", 0)
    p2 = P2(opt, S_W)
    CSD = opt.get("cs2", 0)
    S_CSW, S_CSM = S_XH, S_C0
    DACC = R('a', 144, 4); DWF = HACC(4)
    CS_OFF = 16384
    H2 = opt.get("h2", 0)
    L_HF = L_CS
    WST = opt.get("wst", [])
    WSB = [0, 16384, WBASE, WBASE + 16384]
    S_WSB = 79
    NPRE = opt.get("p2_npre", 14)
    QENT = []
    STP = opt.get("stp", ["pro", "loop", "epi"])
    def nst(nm):
        if nm in STP: stamp(a, opt, 1 + STP.index(nm))
    p2.nst = nst
    kernel_header(a, name)
    done = a.newlab("L_g1_done"); fin = a.newlab("L_g1_fin")
    go = a.newlab("L_g1_go")
    a("s_cmp_ge_u32 s2, 256")
    a("s_cbranch_scc0 %s", go)
    a("s_endpgm")
    a.label(go)
    a("s_load_dwordx4 s[%d:%d], s[0:1], 0", P_X, P_X + 3)
    a("s_load_dwordx4 s[%d:%d], s[0:1], 32", P_G, P_G + 3)
    a("s_load_dwordx2 s[%d:%d], s[0:1], 72", P_WS, P_WS + 1)
    a("s_load_dwordx2 s[%d:%d], s[0:1], 64", P_DBG, P_DBG + 1)
    a("s_load_dwordx2 s[%d:%d], s[0:1], 16", P_WO, P_WO + 1)
    a("s_load_dwordx2 s[%d:%d], s[0:1], 48", P_WD, P_WD + 1)
    if FUSE: a("s_load_dwordx2 s[100:101], s[0:1], 56")
    stamp(a, opt, 0)
    if opt.get("prof"):
        for r_ in range(84, 96): a("s_mov_b32 s%d, 0", r_)
    a("v_lshrrev_b32 v%d, 6, v0", T0)
    a("v_and_b32 v0, 63, v0")
    a("v_readfirstlane_b32 s%d, v%d", S_W, T0)
    a("s_lshr_b32 s%d, s2, 5", S_MT)
    a("s_lshl_b32 s%d, s%d, 8", S_M0, S_MT)
    a("s_and_b32 s%d, s2, 7", S_J)
    a("s_lshl_b32 s%d, s%d, 2", S_J, S_J)
    a("s_bfe_u32 s%d, s2, 0x20003", S_T)
    a("s_add_u32 s%d, s%d, s%d", S_J, S_J, S_T)
    a("s_and_b32 s%d, s%d, 1", S_ODD, S_J)
    a("s_mul_i32 s%d, s%d, 224", S_GOFF, S_J)
    a("s_lshl_b32 s%d, s%d, 6", S_QOFF, S_J)
    if KROT:
        a("s_and_b32 s%d, s2, 7", S_ROT)
        if opt.get("rot_mt"):
            if opt["rot_mt"] == 2: a("s_mov_b32 s%d, 0", S_ROT)
            if opt["rot_mt"] == 3:
                a("s_and_b32 s%d, s%d, 4", S_T, S_MT)
                a("s_add_u32 s%d, s%d, s%d", S_ROT, S_ROT, S_T)
            elif opt["rot_mt"] >= 4:
                a("s_and_b32 s%d, s%d, 1", S_T, S_MT)
                a("s_mul_i32 s%d, s%d, %d", S_T, S_T, opt["rot_mt"] - 3)
                a("s_add_u32 s%d, s%d, s%d", S_ROT, S_ROT, S_T)
            else: a("s_add_u32 s%d, s%d, s%d", S_ROT, S_ROT, S_MT)
            a("s_and_b32 s%d, s%d, 7", S_ROT, S_ROT)
        if KROT > 1: a("s_and_b32 s%d, s%d, %d", S_ROT, S_ROT, (8 - KROT) & 7)
        a("s_mul_i32 s%d, s%d, %d", S_T, S_ROT, 128 * 7168)
        a("s_add_u32 s%d, s%d, s%d", S_GOFF, S_GOFF, S_T)
        a("s_mul_i32 s%d, s%d, %d", S_T, S_ROT, 128 * 6144)
        a("s_add_u32 s%d, s%d, s%d", S_QOFF, S_QOFF, S_T)
        a("s_sub_u32 s%d, 8, s%d", S_RC, S_ROT)
        a("s_sub_u32 s%d, %d, s%d", S_RP, 8 - opt.get("pf_c0", 1), S_ROT)
    a("v_lshlrev_b32 v%d, 4, v0", T5)
    CPF = opt.get("cpf", 0)
    def code_pf(sb, vt, vd, st):
        l_ = a.newlab("L_g1_pc")
        a("s_getpc_b64 s[%d:%d]", sb, sb + 1)
        a.label(l_)
        cs = "L_code_start" if FUSE else name
        a("s_sub_u32 s%d, s%d, %s-%s", sb, sb, l_, cs)
        a("s_subb_u32 s%d, s%d, 0", sb + 1, sb + 1)
        a("s_lshr_b32 s%d, s2, 3", st)
        a("s_mul_i32 s%d, s%d, ((L_code_end-%s+4095)>>12)<<7", st, st, cs)
        a("v_min_u32 v%d, ((L_code_end-%s+4095)>>12)-1, v0", vt, cs)
        a("v_lshl_add_u32 v%d, v%d, 7, s%d", vt, vt, st)
        a("v_min_u32 v%d, L_code_end-%s-4, v%d", vt, cs, vt)
        a("global_load_dword v%d, v%d, s[%d:%d]", vd, vt, sb, sb + 1)
    if CPF & 4: code_pf(76, T0, V_PFD, S_T)
    labs = [a.newlab("L_g1_w") for _ in range(4)]
    for w in range(1, 4):
        a("s_cmp_eq_u32 s%d, %d", S_W, w)
        a("s_cbranch_scc1 %s", labs[w])

    SPINS = []
    EP0 = [0]
    HALO = [None]; HSPIN = []
    def weave(w):
        wn = w >> 1
        E = a.l[EP0[0]:]; del a.l[EP0[0]:]
        n = len(E)
        last = {}
        for k, ln in enumerate(E):
            for kind, r_ in hazard.regs_of(ln):
                if kind == 'a': last[r_] = k
        stores = [k for k, ln in enumerate(E) if ln.strip().startswith("buffer_store")]
        q = []
        def need(tags, upto=None):
            idx = [i for i, t in enumerate(q) if t in tags]
            return min(63, len(q) - 1 - max(idx))
        items = []
        WG_ = opt.get("wv_gap", 6)
        pos = opt.get("wv_w0", 4)
        for b in range(NPRE):
            j = p2.w_job(b)
            fr = max([last.get(r_, -1) for r_ in range(p2.SL[b], p2.SL[b] + 16)]) + 6
            pos = max(pos, fr)
            for part in (j[0:3], j[3:6]):
                items.append((pos, part)); pos += 2 * WG_
        WV2 = opt.get("wv2", 0)
        if not WV2:
            fP, fA = opt.get("wv_poll", [[0.62, 0.80], [0.62, 0.80]])[wn]
            items.append((int(n * fP), p2.poll_seq(0)))
            def chk():
                nst("ck0")
                a("s_waitcnt vmcnt(%d)", need([('PL', 0)]))
                nst("ck")
                for x_ in p2.poll_test(0): a(x_)
                a("s_cselect_b32 s%d, 0, 0x%x", p2.Q_A2 + 2, ACT_BYTES)
            pos = int(n * fA)
            items.append((pos, [chk]))
            AG_ = opt.get("wv_agap", 5)
            for s_ in range(8):
                items.append((pos, p2.a_job(s_, p2.Q_A2))); pos += 4 * AG_
        elif wn == 1:
            items.append((int(n * opt.get("wv_fp", 0.8)), p2.poll_seq(0)))
        def sig(t, nst_):
            def f():
                a("v_mov_b32 v%d, 1", T2)
                nst("sa%d" % t)
                a("s_waitcnt vmcnt(%d)", need([('AS', nst_)]))
                nst("sg%d" % t)
                a("s_mov_b64 exec, 1")
                a("buffer_store_dword v%d, off, s[%d:%d], s%d offset:%d sc1", T2, p2.Q_F, p2.Q_F + 3, p2.Q_FSIG, 4 * t); q.append(('SG', 0))
                a("s_mov_b64 exec, -1")
            return f
        SD_ = opt.get("wv_sd", 130)
        if wn == 1:
            items.append((stores[7] + SD_, [sig(0, 7)]))
            items.append((stores[15] + SD_, [sig(1, 15)]))
        items.sort(key=lambda t_: t_[0])
        def put(lst):
            for x_ in lst:
                if isinstance(x_, tuple): a(x_[0]); q.append(x_[1])
                elif callable(x_): x_()
                else: a(x_)
        ns = 0
        for k, ln in enumerate(E):
            op = ln.strip()
            prev = E[k - 1].strip() if k else ""
            ok = not op.startswith(("v_cndmask", "s_cselect", "s_addc", "s_memtime", "s_waitcnt")) and not prev.startswith(("s_cmp", "v_cmp", "s_memrealtime"))
            if ok and items and items[0][0] <= k: put(items.pop(0)[1])
            a.l.append(ln)
            if op.startswith("buffer_store"):
                q.append(('AS', ns)); ns += 1
        for it in items: put(it[1])
        a("s_add_u32 s%d, s%d, %d", p2.Q_FSIG, p2.Q_FSIG, 8 if wn == 1 else 12)
        if WV2 and wn == 1:
            l1 = a.newlab("L_wv_sp"); l2 = a.newlab("L_wv_ok")
            nst("ck0")
            a("s_waitcnt vmcnt(%d)", need([('PL', 0)]))
            nst("ck")
            for x_ in p2.poll_test(0): a(x_)
            a("s_cbranch_scc0 %s", l2)
            a("v_mov_b32 v%d, 1", T2)
            a("s_waitcnt vmcnt(0)")
            nst("sl1")
            a("s_mov_b64 exec, 1")
            a("buffer_store_dword v%d, off, s[%d:%d], s%d sc1", T2, p2.Q_F, p2.Q_F + 3, p2.Q_FSIG)
            a("s_mov_b64 exec, -1")
            a.label(l1)
            if opt.get("wv_sleep"): a("s_sleep %d", opt["wv_sleep"])
            p2.poll_emit(a, 0)
            a("s_waitcnt vmcnt(0)")
            for x_ in p2.poll_test(0): a(x_)
            a("s_cbranch_scc1 %s", l1)
            nst("sl2")
            a.label(l2)
            for s_ in range(WV2):
                put(p2.a_job(s_))
                put(p2.a_job(s_, None, True))
        QENT.append([('AS', 0) if t[0] == 'AS' else t for t in q])
    def weave2(w):
        wn = w >> 1
        E = a.l[EP0[0]:]; del a.l[EP0[0]:]
        n = len(E)
        last = {}
        for k, ln in enumerate(E):
            for kr in hazard.regs_of(ln): last[kr] = k
        stores = [k for k, ln in enumerate(E) if ln.strip().startswith("buffer_store")]
        q = [('XL', 0)] * (8 if XE else 0)
        def need(tags):
            idx = [i for i, t in enumerate(q) if t in tags]
            return min(63, len(q) - 1 - max(idx))
        items = []
        def per(name, dflt):
            v = opt.get(name, dflt)
            return v[wn] if isinstance(v, list) else v
        free = {b: max([last.get(('a', r_), -1) for r_ in range(p2.SL[b], p2.SL[b] + 16)]) + 6 for b in range(16)}
        if XE:
            xp = max([last.get(('v', r_), -1) for r_ in range(p2.XL, p2.XL + 16)] + [int(n * per("wv_xf", 0.3))]) + 4
            items.append((xp, [lambda: a("s_waitcnt vmcnt(%d)", need([('XL', 0)]))]))
            for i in range(0, 16, 4):
                items.append((xp + 1 + i, ["v_accvgpr_read_b32 v%d, a%d" % (p2.XL + i + z, p2.SL[XE] + i + z) for z in range(4)]))
            free[XE] = xp + 24
        WG_ = per("wv_gap", 6)
        pos = opt.get("wv_w0", 4)
        V_L16_ = p2.V_L16
        for nb_, b in enumerate(sorted(range(NPRE), key=lambda b_: (max(free[b_], 0), b_))):
            j = p2.w_job(b)
            if b in WST:
                o_ = WSB[WST.index(b)] + w * 4096; ad = V_L16_; p_ = free[b]
                if o_ >= 65536:
                    o_ -= 65536; ad = p2.V_POLL
                    items.append((p_, ["v_add_u32 v%d, 65536, v%d" % (ad, V_L16_)])); p_ += 1
                for i in range(4):
                    items.append((p_ + 2 * i, ["ds_read_b128 %s, v%d offset:%d" % (p2.wfrag(b, i >> 1, i & 1), ad, o_ + 1024 * i)]))
                assert p_ + 20 < int(n * opt.get("wv_poll", [[0.5, 0.7], [0.5, 0.7]])[wn][0]), (p_, n)
                continue
            pos = max(pos, free[b])
            if opt.get("pf2") == nb_:
                def pfl(so): return ("buffer_load_dword a%d, v%d, s[%d:%d], s%d offen sc1" % (p2.SL[b], T5, p2.Q_W, p2.Q_W + 3, so), ('P', 0))
                items.append((pos, ["v_lshlrev_b32 v%d, 7, v0" % T5, "s_mov_b64 exec, 0xffffffff", pfl(78), "s_mov_b64 exec, -1"])); pos += WG_
                items.append((pos, [pfl(S_C0)])); pos += WG_
                items.append((pos, [pfl(S_C1)])); pos += WG_
            if opt.get("wv_one"):
                for part in (j[0:2], j[2:3], j[3:5], j[5:6]):
                    items.append((pos, part)); pos += WG_
                continue
            for part in (j[0:3], j[3:6]):
                items.append((pos, part)); pos += 2 * WG_
        fP, fA = opt.get("wv_poll", [[0.5, 0.7], [0.5, 0.7]])[wn]
        items.append((int(n * fP), p2.poll_seq(0)))
        def chk():
            nst("ck0")
            a("s_waitcnt vmcnt(%d)", need([('PL', 0)]))
            nst("ck")
            for x_ in p2.poll_test(0): a(x_)
            a("s_cselect_b32 s%d, 0, 0x%x", p2.Q_A2 + 2, ACT_BYTES)
            if WST: a("s_waitcnt lgkmcnt(0)")
        pos = int(n * fA)
        items.append((pos, [chk]))
        AG_ = per("wv_agap", 8)
        for s_ in range(opt.get("wv_na", 8)):
            j = p2.a_job(s_, p2.Q_A2)
            if opt.get("wv_one"):
                for part in (j[0:3], j[3:4], j[4:5], j[5:6]):
                    items.append((pos, part)); pos += AG_
                continue
            items.append((pos, j)); pos += 4 * AG_
        NS1 = 10 if (CSD and wn == 0 and not (H2 and w == 0)) else 7
        if H2 and wn == 0:
            hw = [k for k, ln in enumerate(E) if ln.strip() == "HALOWAIT"][0]
            hl_ = int(n * opt.get("h2_at", fP)) + 2
            assert hl_ > stores[NS1] + per("wv_sd", 100) + 8
            if w == 0:
                for i, x_ in enumerate(HALO[0]): items.append((hl_ + 2 * i, [x_]))
            else: items.append((hw - 40, HALO[0]))
        elif CSD and wn == 0:
            hw = [k for k, ln in enumerate(E) if ln.strip() == "HALOWAIT"][0]
            hpoll = ["s_mov_b64 exec, 1", ("buffer_load_dword v%d, off, s[%d:%d], s%d sc1" % (TV, p2.Q_F, p2.Q_F + 3, S_C0), ('HP', 0)), "s_mov_b64 exec, -1"]
            def hchk():
                l1 = a.newlab("L_h_sp"); l2 = a.newlab("L_h_ok")
                nst("h0")
                a("s_waitcnt vmcnt(%d)", need([('HP', 0)]))
                a("v_readfirstlane_b32 s%d, v%d", S_OK, TV)
                a("s_cmp_eq_u32 s%d, 0", S_OK)
                a("s_cbranch_scc1 %s", l1)
                a.label(l2)
                nst("h1")
                HSPIN.append((l1, l2, hpoll))
            hp_, hc_ = opt.get("h_at", [330, 170])
            assert hw - hp_ > stores[NS1] and hw - hc_ > stores[NS1] + per("wv_sd", 100) + 8, (hw, last[('v', T1)], stores[NS1])
            if not opt.get("nohalo"):
                items.append((hw - hp_, hpoll))
                items.append((hw - hc_, [hchk]))
                for i, x_ in enumerate(HALO[0]): items.append((hw - hc_ + 2 + 6 * i, [x_]))
        def sig():
            a("v_mov_b32 v%d, 1", T2)
            nst("sa0")
            a("s_waitcnt vmcnt(%d)", need([('AS', NS1)]))
            nst("sg0")
            a("s_mov_b64 exec, 1")
            a("buffer_store_dword v%d, off, s[%d:%d], s%d sc1", T2, p2.Q_F, p2.Q_F + 3, p2.Q_FSIG); q.append(('SG', 0))
            a("s_mov_b64 exec, -1")
        items.append((stores[NS1] + per("wv_sd", 100), [sig]))
        items.sort(key=lambda t_: t_[0])
        def put(lst):
            for x_ in lst:
                if isinstance(x_, tuple): a(x_[0]); q.append(x_[1])
                elif callable(x_): x_()
                else: a(x_)
        ns = 0
        for k, ln in enumerate(E):
            op = ln.strip()
            if op == "HALOWAIT":
                if opt.get("nohalo"): continue
                if H2:
                    l1 = a.newlab("L_h_sp"); l2 = a.newlab("L_h_ok")
                    nst("h2")
                    if w == 0:
                        assert q.count(('HL', 0)) == 3
                        a("s_waitcnt vmcnt(%d)", need([('HL', 0)]))
                        r_ = HALO[-1]
                        a("v_max3_u32 v239, v%d, v%d, v%d", r_[0], r_[1], r_[2])
                        a("v_max3_u32 v238, v%d, v%d, v%d", r_[3], r_[4], r_[5])
                        a("v_max3_u32 v239, v239, v%d, v%d", r_[6], r_[7])
                        a("v_max_u32 v239, v239, v238")
                        a("v_cmp_eq_u32 vcc, -1, v239")
                        a("s_cmp_lg_u64 vcc, 0")
                        a("s_cbranch_scc1 %s", l1)
                    else:
                        a("s_waitcnt lgkmcnt(0)")
                        a("v_readfirstlane_b32 s%d, v239", S_OK)
                        a("s_cmp_eq_u32 s%d, 0", S_OK)
                        a("s_cbranch_scc1 %s", l1)
                    a.label(l2)
                    nst("h3")
                    HSPIN.append((l1, l2, HALO[0]))
                    continue
                assert q.count(('HL', 0)) == 3
                nst("h2")
                a("s_waitcnt vmcnt(%d)", need([('HL', 0)]))
                nst("h3")
                continue
            prev = E[k - 1].strip() if k else ""
            ok = not op.startswith(("v_cndmask", "s_cselect", "s_addc", "s_memtime", "s_waitcnt")) and not prev.startswith(("s_cmp", "v_cmp", "s_memrealtime"))
            if ok and items and items[0][0] <= k: put(items.pop(0)[1])
            a.l.append(ln)
            if op.startswith("buffer_store"):
                q.append(('AS', ns)); ns += 1
        for it in items: put(it[1])
        QENT.append([('AS', 0) if t[0] == 'AS' else t for t in q])
    def variant(w):
        wm, wn = w & 1, w >> 1
        tiles = {}
        if EP2:
            VPB = None
            if wn == 0:
                arch = [(nf, mf) for mf in range(8) for nf in (6, 7, 8, 9)] + [(nf, mf) for mf in (6, 7) for nf in range(6)]
                acc = [(nf, mf) for mf in range(6) for nf in range(6)]
                areg = list(range(TV, 256, 4))
            else:
                allt = [(nf, mf) for g in ((0, 1, 2, 3), (4, 5, 6, 7)) for mf in range(8) for nf in g] + [(nf, mf) for mf in range(8) for nf in (8, 9)]
                g0 = 4 * opt.get("w1_g0", 5)
                arch = allt[:g0] + allt[g0 + 36:]; acc = allt[g0:g0 + 36]
                areg = list(range(TV, TV + 32, 4)) + list(range(240, 256, 4)) + list(range(TV + 32, 240, 4))
            for t, r_ in zip(arch, areg): tiles[t] = R('v', r_, 4)
            for i, t in enumerate(acc): tiles[t] = R('a', 4 * i, 4)
            assert len(arch) == 44 and len(tiles) == 80
            order = []; nv = 256
        elif wn == 0:
            VPB = [TV, TV + 34]
            for f in range(2):
                for mf in range(8): tiles[(4 + f, mf)] = R('v', VPB[f] + 2 + 4 * mf, 4)
            order = [(nf, mf) for nf in (2, 3, 0, 1) for mf in range(8)] + [(nf, mf) for mf in range(8) for nf in (6, 7, 8, 9)]
            nv = TV + 68
        else:
            order = [(nf, mf) for g in ((0, 1, 2, 3), (4, 5, 6, 7)) for mf in range(8) for nf in g] + [(nf, mf) for mf in range(8) for nf in (8, 9)]
            nv = TV
        na = 0
        for t in order:
            if nv + 4 <= 256:
                tiles[t] = R('v', nv, 4); nv += 4
            else:
                tiles[t] = R('a', na, 4); na += 4
        assert na <= 148, na
        hset = {0: [2, 3, 4, 5, 0], 1: [1, 6, 7, 8, 9], 2: [0, 2, 4, 6, 8], 3: [1, 3, 5, 7, 9]}[w]
        if NOCS: hset = [] if NOCS == 9 else hset[:NOCS - 1] if w else hset[:4]
        def isV(nf): return wn == 0 and nf in (4, 5)
        def mm(d, wf, xf, c, nf):
            if isV(nf) or opt.get("swapab"): return "v_mfma_f32_16x16x32_bf16 %s, %s, %s, %s" % (d, xf, wf, c)
            return "v_mfma_f32_16x16x32_bf16 %s, %s, %s, %s" % (d, wf, xf, c)

        a.label(labs[w])
        q = []
        if CPF & 1 and w == 2:
            code_pf(76, T0, V_PFD, S_T); q.append(('P', 0))
        if CPF & 4: q.append(('P', 0))
        a("v_lshrrev_b32 v%d, 4, v0", T0)
        if wm: a("v_add_u32 v%d, 4, v%d", T0, T0)
        a("v_and_b32 v%d, 7, v0", T1)
        a("v_xor_b32 v%d, v%d, v%d", T0, T0, T1)
        a("v_lshlrev_b32 v%d, 4, v%d", T0, T0)
        a("v_lshrrev_b32 v%d, 3, v0", T1)
        a("v_lshl_add_u32 v%d, v%d, 11, v%d", V_XDMA, T1, T0)
        a("s_add_u32 s%d, s%d, %d", S_XK, S_M0, 8 * w)
        a("s_lshl_b32 s%d, s%d, 11", S_XK, S_XK)
        if not CSD:
            a("s_max_u32 s%d, s%d, 16", S_T, S_M0)
            a("s_sub_u32 s%d, s%d, %d", S_XH, S_T, 16 - 8 * wm)
            a("s_lshl_b32 s%d, s%d, 11", S_XH, S_XH)
        if KROT:
            a("s_lshl_b32 s%d, s%d, 8", S_T, S_ROT)
            a("s_add_u32 s%d, s%d, s%d", S_XK, S_XK, S_T)
            if not CSD: a("s_add_u32 s%d, s%d, s%d", S_XH, S_XH, S_T)
        a("s_lshl_b32 s%d, s%d, 3", S_T2, S_J)
        a("s_add_u32 s%d, s%d, s%d", S_T2, S_T2, S_M0)
        a("s_add_u32 s%d, s%d, %d", S_T2, S_T2, 2 * w)
        a("s_lshl_b32 s%d, s%d, 11", S_T3, S_T2)
        wjobs = [("G", w), ("U", w), ("Q", w)] + ([("G", 4 + w), ("U", 4 + w)] if w < 3 else [("Q", 4), ("Q", 5)])
        wreg = {}
        def gu_off(dst, job):
            a("v_add_u32 v%d, %d, v0", T0, job * 64)
            a("v_mul_u32_u24 v%d, 4682, v%d", T1, T0)
            a("v_lshrrev_b32 v%d, 16, v%d", T1, T1)
            a("v_mul_u32_u24 v%d, 14, v%d", T2, T1)
            a("v_sub_u32 v%d, v%d, v%d", T2, T0, T2)
            a("v_bfe_u32 v%d, v%d, 3, 1", T3, T1)
            a("v_lshlrev_b32 v%d, 2, v%d", T3, T3)
            a("v_xor_b32 v%d, v%d, v%d", T1, T1, T3)
            a("v_mul_u32_u24 v%d, 7168, v%d", T1, T1)
            a("v_lshl_add_u32 v%d, v%d, 4, v%d", dst, T2, T1)
        def q_off(dst, job):
            a("v_add_u32 v%d, %d, v0", T0, job * 64)
            a("v_mul_u32_u24 v%d, 5462, v%d", T1, T0)
            a("v_lshrrev_b32 v%d, 16, v%d", T1, T1)
            a("v_mul_u32_u24 v%d, 12, v%d", T2, T1)
            a("v_sub_u32 v%d, v%d, v%d", T2, T0, T2)
            a("v_bfe_u32 v%d, v%d, 3, 1", T3, T1)
            a("v_lshlrev_b32 v%d, 1, v%d", T3, T3)
            a("v_xor_b32 v%d, v%d, v%d", T2, T2, T3)
            a("v_mul_u32_u24 v%d, 6144, v%d", T1, T1)
            a("v_lshrrev_b32 v%d, 2, v%d", T3, T2)
            a("v_lshl_add_u32 v%d, v%d, 11, v%d", T1, T3, T1)
            a("v_and_b32 v%d, 3, v%d", T2, T2)
            a("v_lshl_add_u32 v%d, v%d, 4, v%d", dst, T2, T1)
        nreg = 0
        late = []
        for kind, job in wjobs:
            key = ("GU" if kind != "Q" else "Q", job)
            if key not in wreg:
                wreg[key] = V_WDMA[nreg]; nreg += 1
                late.append((key, wreg[key]))
        for key, dst in late:
            (gu_off if key[0] == "GU" else q_off)(dst, key[1])
            if opt.get("wlin"):
                a("v_lshlrev_b32 v%d, 4, v0", dst)
                a("v_add_u32 v%d, %d, v%d", dst, key[1] * (7168 * 4 if key[0] == "GU" else 6144 * 5), dst)
        a("s_waitcnt lgkmcnt(0)")
        make_srd(a, S_X, P_X, 2048 * 2048)
        make_srd(a, S_G, P_G, 1024 * 7168)
        make_srd(a, S_U, P_U, 1024 * 7168)
        make_srd(a, S_Q, P_Q, 1024 * 6144)
        def dup(jobs):
            if wn != opt["dma2"] - 1: return []
            out = []
            for pre, main in jobs:
                out.append((list(pre), main[:1])); out.append((pre, main))
            return out
        def x_jobs(t):
            slot = t & 1
            jobs = []
            for i in range(8):
                jobs.append((["s_mov_b32 m0, %d" % (slot * XSLOT + (w + 4 * i) * 1024),
                              "s_add_u32 s%d, s%d, %d" % (S_T, S_XK, i * 65536)],
                             ["buffer_load_dwordx4 v%d, s[%d:%d], s%d offen%s lds" % (V_XDMA, S_X, S_X + 3, S_T, " nt" if t < opt.get("nt_x", 0) else "")]))
            jobs[-1][1].append("s_add_u32 s%d, s%d, 128" % (S_XK, S_XK))
            if wn == slot and not CSD:
                jobs.append((["s_mov_b32 m0, %d" % (slot * XSLOT + 32768 + wm * 1024)],
                             ["buffer_load_dwordx4 v%d, s[%d:%d], s%d offen lds" % (V_XDMA, S_X, S_X + 3, S_XH)]))
            if not CSD: jobs[-1][1].append("s_add_u32 s%d, s%d, 128" % (S_XH, S_XH))
            if opt.get("dma2") and t >= 2: jobs = dup(jobs)
            return [(j, ('X', t)) for j in jobs]
        def w_jobs(s):
            stage = s & 3
            jobs = []
            for kind, job in wjobs:
                srd = {"G": S_G, "U": S_U, "Q": S_Q}[kind]; off = {"G": WG_OFF, "U": WU_OFF, "Q": WQ_OFF}[kind]
                vo = wreg[("GU" if kind != "Q" else "Q", job)]
                jobs.append((["s_mov_b32 m0, %d" % (WBASE + stage * WSTAGE + off + job * 1024)],
                             ["buffer_load_dwordx4 v%d, s[%d:%d], s%d offen%s lds" % (vo, srd, srd + 3, S_QOFF if kind == "Q" else S_GOFF, " nt" if s < opt.get("nt_w", 0) else "")]))
            if not opt.get("samew"):
                jobs[-1][1].append("s_add_u32 s%d, s%d, %d" % (S_GOFF, S_GOFF, 32 * 7168))
                jobs[-1][1].append("s_add_u32 s%d, s%d, %d" % (S_QOFF, S_QOFF, 32 * 6144))
            if opt.get("dma2") and s >= 3: jobs = dup(jobs)
            return [(j, ('W', s)) for j in jobs]
        def emit_now(jobs):
            for (pre, main), tag in jobs:
                for s_ in pre + main: a(s_)
                q.append(tag)
        def need_count(tags):
            idx = [i for i, t in enumerate(q) if t in tags]
            if not idx: return 63
            return len(q) - 1 - max(idx)
        PSPLIT = opt.get("pro_split", 0); S_AT = opt.get("s_at", -1); WO_AT = opt.get("wo_at", -1)
        PF_C0 = opt.get("pf_c0", 1); PF_PRO = opt.get("pf_pro", 2); PF_X = opt.get("pf_x", [])
        PRO_A = opt.get("pro_a", 2)
        pro_list = [w_jobs(0), x_jobs(0), w_jobs(1), x_jobs(1), w_jobs(2)]
        for l_ in pro_list[:PRO_A]: emit_now(l_)
        SA = ST; SB = ST + 8
        def s_loads():
            for i in range(4):
                a("buffer_load_dwordx4 v[%d:%d], v%d, s[%d:%d], s%d offen offset:%d", SA + 4 * i, SA + 4 * i + 3, T5, S_X, S_X + 3, S_T3, 1024 * i)
                q.append(('S', 0))
        def wo_pf():
            if w != 3 or not PFD or W2P: return
            a("v_lshlrev_b32 v%d, 7, v0", ST + 50)
            a("s_lshl_b32 s%d, s2, 13", S_T)
            a("buffer_load_dword v%d, v%d, s[76:79], s%d offen", V_PFD, ST + 50, S_T); q.append(('P', 0))
        def pro2():
            for l_ in pro_list[PRO_A:]: emit_now(l_)
            if S_AT < 0: s_loads()
        def pro3():
            if WO_AT < 0: wo_pf()
            if PFD and w < 3:
                for i in range(PF_PRO): emit_now([pf_job()])
        if PSPLIT == 0: pro2()
        PFD = opt.get("pf_d", 384)
        if PFD:
            a("s_lshr_b32 s%d, s2, 3", S_T)
            a("s_and_b32 s%d, s2, 7", S_K1)
            RG = opt.get("rot_mt", 0)
            PSH = 4 if RG == 3 else 5
            if RG == 3: a("s_and_b32 s%d, s%d, 15", S_T, S_T)
            S_PR = S_ROT
            if RG >= 4:
                S_PR = S_K2
                a("s_add_u32 s%d, s%d, %d", S_PR, S_K1, RG - 3)
                a("s_and_b32 s%d, s%d, 7", S_PR, S_PR)
            if w < 2:
                a("v_min_u32 v%d, %d, v0", T0, 55 if RG == 3 else 27)
                a("v_mul_u32_u24 v%d, 9363, v%d", T1, T0)
                a("v_lshrrev_b32 v%d, 16, v%d", T1, T1)
                a("v_mul_u32_u24 v%d, 7, v%d", T2, T1)
                a("v_sub_u32 v%d, v%d, v%d", T2, T0, T2)
                a("v_lshlrev_b32 v%d, %d, v%d", T1, PSH, T1)
                a("v_add_u32 v%d, s%d, v%d", T1, S_T, T1)
                a("v_mul_u32_u24 v%d, 7168, v%d", T1, T1)
                a("v_lshl_add_u32 v%d, v%d, 7, v%d", V_PF, T2, T1)
                make_srd(a, S_PF, P_G if w == 0 else P_U, 1024 * 7168)
                a("s_mul_i32 s%d, s%d, 896", S_PFOFF, S_K1)
                a("s_add_u32 s%d, s%d, %d", S_PFOFF, S_PFOFF, PF_C0 * 128 * 7168)
                if KROT:
                    a("s_mul_i32 s%d, s%d, %d", S_T, S_PR, 128 * 7168)
                    a("s_add_u32 s%d, s%d, s%d", S_PFOFF, S_PFOFF, S_T)
                a("s_mov_b32 s%d, %d", S_PFSTR, 128 * 7168)
            elif w == 2:
                a("v_min_u32 v%d, %d, v0", T0, 47 if RG == 3 else 23)
                a("v_mul_u32_u24 v%d, 10923, v%d", T1, T0)
                a("v_lshrrev_b32 v%d, 16, v%d", T1, T1)
                a("v_mul_u32_u24 v%d, 6, v%d", T2, T1)
                a("v_sub_u32 v%d, v%d, v%d", T2, T0, T2)
                a("v_lshlrev_b32 v%d, %d, v%d", T1, PSH, T1)
                a("v_add_u32 v%d, s%d, v%d", T1, S_T, T1)
                a("v_mul_u32_u24 v%d, 6144, v%d", T1, T1)
                a("v_lshrrev_b32 v%d, 1, v%d", T3, T2)
                a("v_lshl_add_u32 v%d, v%d, 11, v%d", T1, T3, T1)
                a("v_and_b32 v%d, 1, v%d", T2, T2)
                a("v_lshl_add_u32 v%d, v%d, 7, v%d", V_PF, T2, T1)
                make_srd(a, S_PF, P_Q, 1024 * 6144)
                a("s_lshl_b32 s%d, s%d, 8", S_PFOFF, S_K1)
                a("s_add_u32 s%d, s%d, %d", S_PFOFF, S_PFOFF, PF_C0 * 128 * 6144)
                if KROT:
                    a("s_mul_i32 s%d, s%d, %d", S_T, S_PR, 128 * 6144)
                    a("s_add_u32 s%d, s%d, s%d", S_PFOFF, S_PFOFF, S_T)
                a("s_mov_b32 s%d, %d", S_PFSTR, 128 * 6144)
            else:
                make_srd(a, 76, P_WO, 1024 * 2048)
                a("v_lshlrev_b32 v%d, 7, v0", V_PF)
                a("v_min_u32 v%d, %d, v%d", V_PF, 31 * 128, V_PF)
                make_srd(a, S_PF, P_WD, 3584 * 2048)
                a("s_mul_i32 s%d, s2, 28672", S_PFOFF)
                a("s_mov_b32 s%d, 4096", S_PFSTR)
        def pf_job():
            pre = []
            if KROT and w < 3:
                pre = ["s_cmp_ge_u32 s%d, %d" % (S_PFOFF, 1024 * (7168 if w < 2 else 6144)),
                       "s_cselect_b32 s%d, %d, 0" % (S_T, 1024 * (7168 if w < 2 else 6144)),
                       "s_sub_u32 s%d, s%d, s%d" % (S_PFOFF, S_PFOFF, S_T)]
            return ((pre, ["buffer_load_dword v%d, v%d, s[%d:%d], s%d offen%s" % (V_PFD, V_PF, S_PF, S_PF + 3, S_PFOFF, " nt" if opt.get("nt_pf") else ""),
                          "s_add_u32 s%d, s%d, s%d" % (S_PFOFF, S_PFOFF, S_PFSTR)]), ('P', 0))
        if PSPLIT == 0: pro3()
        make_srd(a, S_ACT, P_WS, ACT_BYTES + (8 * ACT_KB if CSD else 0), WS_ACT2)
        make_srd(a, S_ST, P_WS, 65536 if CSD else 2048 * 8, WS_STATS)
        make_srd(a, S_DBG, P_DBG, 256)
        a("v_and_b32 v%d, 15, v0", T0)
        a("v_lshrrev_b32 v%d, 4, v0", T1)
        a("v_lshrrev_b32 v%d, 1, v%d", T2, T0)
        a("v_xor_b32 v%d, v%d, v%d", T2, T2, T1)
        a("v_lshlrev_b32 v%d, 4, v%d", T2, T2)
        a("v_lshl_add_u32 v%d, v%d, 7, v%d", T3, T0, T2)
        a("v_add_u32 v%d, %d, v%d", V_XR[0], wm * 16384, T3)
        a("v_xor_b32 v%d, 64, v%d", V_XR[1], V_XR[0])
        if CSD:
            a("v_mov_b32 v%d, 0x3f803f80", T4)
            for z in range(2):
                a("v_cmp_eq_u32 vcc, %d, v%d", z, T0)
                a("v_cndmask_b32 v%d, 0, v%d, vcc", T2, T4)
                for i in range(4): a("v_accvgpr_write_b32 %s, v%d", HX(z).sub(i), T2)
        else:
            a("v_add_u32 v%d, 32768, v%d", V_HX[0], T3)
            a("v_add_u32 v%d, %d, v%d", T4, 32768 + 2048, T3)
            a("v_cmp_eq_u32 vcc, 0, v%d", T0)
            a("v_cndmask_b32 v%d, v%d, v%d, vcc", V_HX[0], V_HX[0], T4)
            a("v_xor_b32 v%d, 64, v%d", V_HX[1], V_HX[0])
        a("v_lshrrev_b32 v%d, 2, v%d", T2, T0)
        a("v_lshl_add_u32 v%d, v%d, 3, v%d", T2, T1, T2)
        a("v_and_b32 v%d, 3, v0", T3)
        a("v_lshlrev_b32 v%d, 3, v%d", T3, T3)
        a("v_and_b32 v%d, 1, v%d", T1, T1)
        a("v_lshl_add_u32 v%d, v%d, 2, v%d", T4, T1, T2)
        a("v_mul_u32_u24 v%d, 224, v%d", V_WRD[0], T4)
        a("v_xor_b32 v%d, 4, v%d", T4, T4)
        a("v_mul_u32_u24 v%d, 224, v%d", V_WRD[1], T4)
        if CSD and w:
            F_, G_, H_ = S_K1, S_K2, S_STO
            a("s_mul_i32 s%d, s%d, 3", F_, S_MT)
            a("s_add_u32 s%d, s%d, %d", F_, F_, w - 1)
            a("s_cmp_lt_u32 s%d, 20", F_)
            a("s_cselect_b32 s%d, 0xffff, 0", S_CSM)
            a("s_min_u32 s%d, s%d, 19", F_, F_)
            a("s_mul_i32 s%d, s%d, 1536", S_CSW, S_J)
            a("s_lshl_b32 s%d, s%d, 2", G_, F_)
            a("s_add_u32 s%d, s%d, s%d", S_CSW, S_CSW, G_)
            a("s_cmp_ge_u32 s%d, 10", F_)
            a("s_cselect_b32 s%d, %d, 0", G_, 768 - 40)
            a("s_add_u32 s%d, s%d, s%d", S_CSW, S_CSW, G_)
            a("s_add_u32 s%d, s%d, %d", S_CSW, S_CSW, CS_OFF)
            a("s_sub_u32 s%d, s%d, 6", G_, F_)
            a("s_lshr_b32 s%d, s%d, 1", G_, G_)
            a("s_add_u32 s%d, s%d, s%d", G_, G_, S_ODD)
            a("s_cmp_eq_u32 s%d, 7", G_)
            a("s_cselect_b32 s%d, 0, s%d", G_, G_)
            a("s_lshl_b32 s%d, s%d, 5", G_, G_)
            a("s_and_b32 s%d, s%d, 1", H_, F_)
            a("s_mul_i32 s%d, s%d, %d", S_T, H_, WU_OFF)
            a("s_add_u32 s%d, s%d, s%d", G_, G_, S_T)
            a("s_add_u32 s%d, s%d, %d", G_, G_, WBASE)
            for h in range(2): a("v_add3_u32 v%d, v%d, v%d, s%d", V_HX[h], V_WRD[h], T3, G_)
            a("s_lshl_b32 s%d, s%d, 5", H_, H_)
            a("s_lshr_b32 s%d, s%d, 1", G_, F_)
            a("s_lshl_b32 s%d, s%d, 6", G_, G_)
            a("s_add_u32 s%d, s%d, %d", G_, G_, WBASE + WQ_OFF)
            a("v_mul_u32_u24 v%d, 192, v%d", T4, T2)
            a("v_lshl_add_u32 v%d, v%d, 5, v%d", T4, T1, T4)
            a("v_xor_b32 v%d, s%d, v%d", T4, H_, T4)
            a("v_add3_u32 v%d, v%d, v%d, s%d", T4, T4, T3, G_)
            a("s_cmp_lt_u32 s%d, 6", F_)
            a("s_cselect_b64 vcc, -1, 0")
            a("v_cndmask_b32 v%d, v%d, v%d, vcc", V_HX[0], V_HX[0], T4)
            a("v_add_u32 v%d, 768, v%d", T4, T4)
            a("v_cndmask_b32 v%d, v%d, v%d, vcc", V_HX[1], V_HX[1], T4)
        a("s_lshl_b32 s%d, s%d, 5", S_T, S_ODD)
        a("s_add_u32 s%d, s%d, %d", S_T, S_T, WBASE)
        if wn == 1:
            a("s_mul_i32 s%d, s%d, 192", S_K1, S_ODD)
            a("s_sub_u32 s%d, %d, s%d", S_K1, WBASE + 192, S_K1)
            for h in range(2):
                a("v_add3_u32 v%d, v%d, v%d, s%d", V_WRD[2 + h], V_WRD[h], T3, S_K1)
        else:
            a("v_mul_u32_u24 v%d, 192, v%d", T4, T2)
            a("v_lshl_add_u32 v%d, v%d, 5, v%d", T4, T1, T4)
            a("v_add_u32 v%d, v%d, v%d", T4, T4, T3)
            a("v_add_u32 v%d, %d, v%d", V_WRD[2], WBASE, T4)
            a("v_xor_b32 v%d, 32, v%d", T4, T4)
            a("v_add_u32 v%d, %d, v%d", V_WRD[3], WBASE, T4)
        for h in range(2):
            a("v_add3_u32 v%d, v%d, v%d, s%d", V_WRD[h], V_WRD[h], T3, S_T)
        for i in range(4):
            a("v_add_u32 v%d, %d, v%d", V_WRD[4 + i], 2 * WSTAGE, V_WRD[i])
        def cs_store(val):
            a("v_mul_u32_u24 v%d, 48, v0", T1)
            a("s_mov_b32 exec_lo, s%d", S_CSM)
            a("s_mov_b32 exec_hi, 0")
            a("buffer_store_dword v%d, v%d, s[%d:%d], s%d offen sc1", val, T1, S_ST, S_ST + 3, S_CSW); q.append(('Z', 0))
            a("s_mov_b64 exec, -1")
        if CSD and w:
            a("v_mov_b32 v%d, 0", T0)
            cs_store(T0)
        if H2 and w == 1:
            a("s_lshl_b32 s%d, s%d, 16", S_T, S_MT)
            a("s_lshl_b32 s%d, s%d, 11", S_K2, S_J)
            a("s_add_u32 s%d, s%d, s%d", S_T, S_T, S_K2)
            a("s_add_u32 s%d, s%d, %d", S_T, S_T, ACT_BYTES)
            for i in range(4): a("v_mov_b32 v%d, -1", ST + 32 + i)
            for i in range(2):
                a("buffer_store_dwordx4 v[%d:%d], v%d, s[%d:%d], s%d offen offset:%d sc1", ST + 32, ST + 35, T5, S_ACT, S_ACT + 3, S_T, 1024 * i); q.append(('Z', 0))
        if H2 and w == 0:
            a("v_mov_b32 v%d, 0", T0)
            a("v_mov_b32 v%d, %d", T1, L_HF)
            a("ds_write_b32 v%d, v%d", T1, T0)
        if w == 0 and not CSD:
            a("v_mov_b32 v%d, 0x3f803f80", T0)
            a("v_lshlrev_b32 v%d, 2, v0", T1)
            a("v_and_b32 v%d, 127, v%d", T1, T1)
            a("ds_write_b32 v%d, v%d offset:%d", T1, T0, 272 * 128)
            a("v_add_u32 v%d, %d, v%d", T1, XSLOT, T1)
            a("ds_write_b32 v%d, v%d offset:%d", T1, T0, 272 * 128)
        if w == 1 and FUSE:
            make_srd(a, 76, P_WS, FLG_BYTES, WS_FLAGS)
            a("s_mul_i32 s%d, s2, 48", S_T)
            for i in range(4): a("v_mov_b32 v%d, 0", T0 + i)
            a("s_mov_b64 exec, 7")
            a("buffer_store_dwordx4 v[%d:%d], v%d, s[76:79], s%d offen sc1", T0, T3, T5, S_T); q.append(('Z', 0))
            a("s_mov_b64 exec, -1")
        elif w == 1:
            make_srd(a, S_PF if not PFD else 76, P_WS, 4096, WS_FLAGS)
            sf = S_PF if not PFD else 76
            a("s_lshl_b32 s%d, s2, 4", S_T)
            for i in range(4): a("v_mov_b32 v%d, 0", T0 + i)
            a("s_mov_b64 exec, 1")
            a("buffer_store_dwordx4 v[%d:%d], v%d, s[%d:%d], s%d offen", T0, T3, T0, sf, sf + 3, S_T); q.append(('Z', 0))
            a("s_mov_b64 exec, -1")
        a("s_mov_b32 s%d, 0xffff0000", S_K1)
        RD = ST + 50
        spins = SPINS
        if FS:
            a("v_mov_b32 v%d, 0", V_FS)
            a("v_mov_b32 v%d, %d", V_FA, L_FLG + 4 * w)
            a("v_and_b32 v%d, 3, v0", V_FR)
            a("v_lshlrev_b32 v%d, 2, v%d", V_FR, V_FR)
            a("v_add_u32 v%d, %d, v%d", V_FR, L_FLG, V_FR)
            a("ds_write_b32 v%d, v%d", V_FA, V_FS)
        V_CSRC = V_PF if w == 3 else V_WDMA[3]; V_CRD = T4; V_CST = T5
        if W2P:
            make_srd(a, S_CS, P_WO, 1024 * 2048)
            make_srd(a, S_CD, P_WS, 4608 * 2048, WS_W2P)
            a("s_lshr_b32 s%d, s2, 4", S_T)
            a("s_lshl_b32 s%d, s%d, 16", S_T, S_T)
            a("s_and_b32 s%d, s2, 15", S_CDO)
            a("s_lshl_b32 s%d, s%d, 7", S_CSO, S_CDO)
            a("s_lshl_b32 s%d, s%d, 12", S_CDO, S_CDO)
            a("s_add_u32 s%d, s%d, s%d", S_CSO, S_CSO, S_T)
            a("s_add_u32 s%d, s%d, s%d", S_CDO, S_CDO, S_T)
            a("s_add_u32 s%d, s%d, %d", S_CSO, S_CSO, [0, 4, 16, 20][w] * 2048)
            a("s_add_u32 s%d, s%d, %d", S_CDO, S_CDO, w * 256)
            a("v_lshrrev_b32 v%d, 3, v0", RD)
            a("v_lshrrev_b32 v%d, 5, v0", RD + 1)
            a("v_lshl_add_u32 v%d, v%d, 2, v%d", RD, RD + 1, RD)
            a("v_and_b32 v%d, 7, v0", RD + 1)
            a("v_lshlrev_b32 v%d, 4, v%d", RD + 1, RD + 1)
            a("v_lshl_add_u32 v%d, v%d, 11, v%d", V_CSRC, RD, RD + 1)
            a("v_bfe_u32 v%d, v0, 2, 2", RD)
            a("v_lshlrev_b32 v%d, 7, v%d", RD, RD)
            a("v_lshrrev_b32 v%d, 4, v0", RD + 1)
            a("v_lshl_add_u32 v%d, v%d, 5, v%d", RD, RD + 1, RD)
            a("v_and_b32 v%d, 3, v0", RD + 1)
            a("v_lshl_add_u32 v%d, v%d, 3, v%d", RD, RD + 1, RD)
            a("v_add_u32 v%d, %d, v%d", V_CRD, L_KV + w * 1024, RD)
        def r_job(s, area):
            post = ["s_add_u32 s%d, s%d, 0x100000" % (S_CSO, S_CSO)]
            if area == 0 and s == 0:
                post = ["s_sub_u32 s%d, s%d, 0x100000" % (S_CSO, S_CSO), "s_mov_b32 s%d, s%d" % (S_CS, P_WD), "s_mov_b32 s%d, s%d" % (S_CS + 1, P_WD + 1),
                        "s_mov_b32 s%d, 0x%x" % (S_CS + 2, 3584 * 2048)]
            return ((["s_mov_b32 m0, %d" % ((L_STG if area else L_KV) + w * 1024)],
                     ["buffer_load_dwordx4 v%d, s[%d:%d], s%d offen%s lds" % (V_CSRC, S_CS, S_CS + 3, S_CSO, " nt" if opt.get("nt_r") else "")] + post), ('R', s + 1 - area))
        def r_read(s, area):
            o = (L_STG - L_KV) if area else 0
            lds("ds_read_b64_tr_b16 v[%d:%d], v%d offset:%d" % (RD, RD + 1, V_CRD, o), ('R', s, 0))
            lds("ds_read_b64_tr_b16 v[%d:%d], v%d offset:%d" % (RD + 2, RD + 3, V_CRD, o + 512), ('R', s, 0))
        def r_store(s):
            lwait([('R', s, 0)])
            if opt.get("w2rr") and s > 3:
                a("s_sub_u32 s%d, s%d, 0x100000", S_T, S_CDO)
                a("buffer_load_dword v%d, v%d, s[%d:%d], s%d offen%s", V_PFD, V_CST, S_CD, S_CD + 3, S_T, opt["w2rr"]); q.append(('P', 0))
            a("buffer_store_dwordx4 v[%d:%d], v%d, s[%d:%d], s%d offen%s", RD, RD + 3, V_CST, S_CD, S_CD + 3, S_CDO, opt.get("w2st", " sc1")); q.append(('RS', 0))
            a("s_add_u32 s%d, s%d, 0x100000", S_CDO, S_CDO)
        a("s_lshl_b32 s%d, s%d, 3", S_T2, S_T2)
        def stat_row(b, onm, osd):
            L = []
            X = ST + 16; Y = X; Z = ST + 48
            for i in range(8):
                L.append("v_lshlrev_b32 v%d, 16, v%d" % (X + 2 * i, b + i))
                L.append("v_and_b32 v%d, s%d, v%d" % (X + 2 * i + 1, S_K1, b + i))
            def red(src, dst):
                for i in range(8): L.append("v_add_f32 v%d, v%d, v%d" % (b + i, src + 2 * i, src + 2 * i + 1))
                for i in range(4): L.append("v_add_f32 v%d, v%d, v%d" % (b + i, b + 2 * i, b + 2 * i + 1))
                L.append("v_add_f32 v%d, v%d, v%d" % (b, b, b + 1))
                L.append("v_add_f32 v%d, v%d, v%d" % (b + 2, b + 2, b + 3))
                L.append("v_add_f32 v%d, v%d, v%d" % (dst, b, b + 2))
                for m_ in ("quad_perm:[1,0,3,2]", "quad_perm:[2,3,0,1]", "row_half_mirror", "row_mirror"):
                    L.append("v_add_f32_dpp v%d, v%d, v%d %s row_mask:0xf bank_mask:0xf" % (dst, dst, dst, m_))
                for sw in ("16", "32"):
                    L.append("v_mov_b32 v%d, v%d" % (b, dst))
                    L.append("v_permlane%s_swap_b32 v%d, v%d" % (sw, dst, b))
                    L.append("v_add_f32 v%d, v%d, v%d" % (dst, dst, b))
                L.append("v_mul_f32 v%d, 0x3a800000, v%d" % (dst, dst))
            red(X, Z)
            for i in range(16): L.append("v_sub_f32 v%d, v%d, v%d" % (Y + i, X + i, Z))
            for i in range(16): L.append("v_mul_f32 v%d, v%d, v%d" % (Y + i, Y + i, Y + i))
            red(Y, Z + 1)
            L.append("v_cvt_pk_bf16_f32 v%d, v%d, v%d" % (onm, Z, Z))
            L.append("v_xor_b32 v%d, 0x80008000, v%d" % (onm, onm))
            L.append("v_cvt_pk_bf16_f32 v%d, v%d, v%d" % (Z + 1, Z + 1, Z + 1))
            L.append("v_and_b32 v%d, s%d, v%d" % (Z + 1, S_K1, Z + 1))
            L.append("v_add_f32 v%d, 0x3727c5ac, v%d" % (Z + 1, Z + 1))
            L.append("v_cvt_pk_bf16_f32 v%d, v%d, v%d" % (Z + 1, Z + 1, Z + 1))
            L.append("v_and_b32 v%d, s%d, v%d" % (Z + 1, S_K1, Z + 1))
            L.append("v_sqrt_f32 v%d, v%d" % (Z + 1, Z + 1))
            L.append("v_cvt_pk_bf16_f32 v%d, v%d, v%d" % (Z + 1, Z + 1, Z + 1))
            L.append("v_and_b32 v%d, s%d, v%d" % (osd, S_K1, Z + 1))
            return L
        SS0 = opt.get("ss0", 2)
        side = {0: [], 1: [], 2: [], 3: [], 28: ["v_mov_b32 v%d, 0" % r_ for r_ in range(ST, CST + 24) if not (W2P and not FUSE and RD <= r_ < RD + 4) and not (FS and r_ in (V_FS, V_FA, V_FR, V_FD))]}
        if W2P:
            assert S_AT < 2
            side[2] += ["v_lshrrev_b32 v%d, 4, v0" % RD, "v_lshlrev_b32 v%d, 10, v%d" % (RD, RD), "v_and_b32 v%d, 15, v0" % (RD + 1),
                        "v_lshl_add_u32 v%d, v%d, 4, v%d" % (V_CST, RD + 1, RD)]
        if CPF & 2 and w == 2: side[28].insert(0, "CPF")
        W2L2 = opt.get("w2l2", 0)
        if W2L2:
            L = ["s_lshr_b32 s%d, s2, 3" % S_K2, "s_mul_i32 s%d, s%d, 11" % (S_K2, S_K2),
                 "s_and_b32 s%d, s2, 1" % S_STO, "s_mul_i32 s%d, s%d, %d" % (S_STO, S_STO, 56 * 65536),
                 "s_bfe_u32 s%d, s2, 0x10002" % S_AB, "s_lshl_b32 s%d, s%d, 15" % (S_AB, S_AB), "s_add_u32 s%d, s%d, s%d" % (S_AB, S_AB, S_STO),
                 "v_lshlrev_b32 v%d, 7, v0" % V_PF]
            for n_ in range(w, 11, 4):
                L += ["s_add_u32 s%d, s%d, %d" % (S_STO, S_K2, n_), "s_and_b32 s%d, s%d, 3" % (S_PFOFF, S_STO), "s_lshl_b32 s%d, s%d, 13" % (S_PFOFF, S_PFOFF),
                      "s_lshr_b32 s%d, s%d, 2" % (S_STO, S_STO), "s_lshl_b32 s%d, s%d, 16" % (S_STO, S_STO),
                      "s_add_u32 s%d, s%d, s%d" % (S_PFOFF, S_PFOFF, S_STO), "s_add_u32 s%d, s%d, s%d" % (S_PFOFF, S_PFOFF, S_AB), "W2PF"]
            side.setdefault(W2L2, []).extend(L)
        if FUSE:
            side[30] = p2.setup_s() + ["s_lshl_b32 s%d, s%d, 10" % (p2.Q_FSIG, S_MT), "s_lshl_b32 s%d, s%d, 4" % (p2.Q_T, S_J),
                                       "s_add_u32 s%d, s%d, s%d" % (p2.Q_FSIG, p2.Q_FSIG, p2.Q_T), "s_add_u32 s%d, s%d, %d" % (p2.Q_FSIG, p2.Q_FSIG, FLG_ACT + wm * 512 + (4 * (1 - wn) if EP2 else 0))]
            if opt.get("pf2") is not None:
                A_, B_, C_, D_ = S_C0, S_C1, 78, p2.Q_T
                side[30] += ["s_lshr_b32 s%d, s2, 4" % A_, "s_and_b32 s%d, s%d, 7" % (A_, A_), "s_mul_i32 s%d, s%d, 7" % (A_, A_),
                             "s_bfe_u32 s%d, s2, 0x10003" % D_, "s_lshl_b32 s%d, s%d, 2" % (D_, D_), "s_add_u32 s%d, s%d, s%d" % (A_, A_, D_),
                             "s_mul_i32 s%d, s%d, 56" % (C_, p2.Q_KS), "s_add_u32 s%d, s%d, 34" % (C_, C_), "s_add_u32 s%d, s%d, s%d" % (A_, A_, C_),
                             "s_bfe_u32 s%d, s2, 0x40003" % B_, "s_lshl_b32 s%d, s%d, 4" % (D_, p2.Q_KS), "s_add_u32 s%d, s%d, s%d" % (B_, B_, D_),
                             ["s_cmp_lt_u32 s2, 128", "s_cselect_b32 s%d, s%d, s%d" % (A_, A_, B_)],
                             "s_lshl_b32 s%d, s%d, 16" % (A_, A_), "s_add_u32 s%d, s%d, %d" % (A_, A_, w * 16384), "s_add_u32 s%d, s%d, 8192" % (B_, A_),
                             "s_mul_i32 s%d, s%d, 7" % (D_, S_MT), "s_add_u32 s%d, s%d, s%d" % (C_, C_, D_), "s_add_u32 s%d, s%d, 1" % (C_, C_),
                             "s_lshl_b32 s%d, s%d, 16" % (C_, C_), "s_bfe_u32 s%d, s2, 0x20003" % D_, "s_lshl_b32 s%d, s%d, 14" % (D_, D_),
                             "s_add_u32 s%d, s%d, s%d" % (C_, C_, D_), "s_add_u32 s%d, s%d, %d" % (C_, C_, w * 4096)]
            if XE:
                XA_ = p2.SL[XE]
                side[31] = ["v_and_b32 v%d, 15, v0" % T4, "v_lshrrev_b32 v%d, 4, v0" % T5, "v_lshlrev_b32 v%d, 11, v%d" % (T4, T4), "v_lshl_add_u32 v%d, v%d, 3, v%d" % (T4, T5, T4)]
                for mf in range(4):
                    side[31] += ["s_add_u32 s%d, s%d, %d" % (p2.Q_T2, p2.Q_XROW, mf * 32768)]
                    for nf in range(2):
                        r_ = XA_ + (mf * 2 + nf) * 2
                        side[31] += [("XLD", "buffer_load_dwordx2 a[%d:%d], v%d, s[%d:%d], s%d offen offset:%d" % (r_, r_ + 1, T4, S_X, S_X + 3, p2.Q_T2, nf * 32))]
                if WST:
                    k_ = side[30].index("s_mov_b32 s%d, s%d" % (p2.Q_O, p2.P_OUT))
                    side[31] += side[30][k_:k_ + 14] + [None] * 16
                    del side[30][k_:k_ + 14]
                else: side[31] += [None] * 30
        if S_AT >= 0: side[S_AT].append("SLOAD")
        if WO_AT >= 0: side[WO_AT].append("WOPF")
        for s_ in PF_X: side[s_].append("PFJ")
        if SS0 < 3:
            side[SS0] += ["WAITS"] + stat_row(SA, T0, T1); side[SS0 + 1] += stat_row(SB, T2, T3) + ["SSTORE"]
        else:
            side[3] += ["WAITS"] + stat_row(SA, T0, T1) + stat_row(SB, T2, T3) + ["SSTORE"]
        def side_emit(x_):
            if x_ is None: return
            if isinstance(x_, tuple): a(x_[1]); q.append(('XL', 0))
            elif isinstance(x_, list):
                for y_ in x_: a(y_)
            elif x_ == "WAITS": a("s_waitcnt vmcnt(%d)", need_count([('S', 0)]))
            elif x_ == "CPF": code_pf(76, T0, V_PFD, S_T); q.append(('P', 0))
            elif x_ == "W2PF":
                a("buffer_load_dword v%d, v%d, s[%d:%d], s%d offen", V_PFD, V_PF, S_CD, S_CD + 3, S_PFOFF); q.append(('P', 0))
            elif x_ == "SLOAD": s_loads()
            elif x_ == "WOPF": wo_pf()
            elif x_ == "PFJ":
                if PFD and w < 3: emit_now([pf_job()])
            elif x_ == "SSTORE":
                a("s_mov_b64 exec, 1")
                a("buffer_store_dwordx4 v[%d:%d], off, s[%d:%d], s%d sc1", T0, T3, S_ST, S_ST + 3, S_T2); q.append(('SS', 0))
                a("s_mov_b64 exec, -1")
            else: a(x_)
        a("s_lshl_b32 s%d, s%d, 2", S_C1, S_MT)
        if not CSD:
            a("s_max_u32 s%d, s%d, 4", S_C0, S_C1)
            a("s_sub_u32 s%d, s%d, 4", S_C0, S_C0)
        a("s_mov_b32 s%d, 0", S_OK)

        lq = []
        def lds(instr, tag):
            if opt.get("nolds") and tag[1] > 0 and (opt["nolds"] == 1 or (opt["nolds"] == 2) == (tag[0] == 'W')): return
            a(instr); lq.append(tag)
        def lwait(tags):
            idx = [i for i, t in enumerate(lq) if t in tags]
            if not idx: return
            n = len(lq) - 1 - max(idx)
            a("s_waitcnt lgkmcnt(%d)", min(n, 15))
            del lq[:len(lq) - min(n, 15)]
        def w_reads(s, nf):
            stage = s & 3; hi = (stage >> 1) * 4; so = (stage & 1) * WSTAGE
            dst = WR(10 * s + nf)
            out = []
            for h in range(2):
                if wn == 0 and nf < 6:
                    ad = V_WRD[hi + 2 + (nf & 1)]; off = so + WQ_OFF + h * 768 + (nf >> 1) * 64
                else:
                    k = nf - 6 if wn == 0 else nf
                    slot = (k >> 1) + (0 if wn == 0 else 2); isu = k & 1
                    if slot == 6: ad = V_WRD[hi + 2 + h]; off = so + isu * WU_OFF
                    else: ad = V_WRD[hi + h]; off = so + isu * WU_OFF + slot * 32
                out.append(("ds_read_b64_tr_b16 %s, v%d offset:%d" % (dst.sub(2 * h, 2), ad, off), ('W', s, nf)))
            return out
        def x_reads(s):
            xs = (s >> 1) & 1; kk = s & 1
            out = [("ds_read_b128 %s, v%d offset:%d" % (XF(s & 1, mf), V_XR[kk], xs * XSLOT + mf * 2048), ('X', s, mf)) for mf in range(8)]
            if not CSD: out.append(("ds_read_b128 %s, v%d offset:%d" % (HX(s & 1), V_HX[kk], xs * XSLOT), ('H', s)))
            return out
        def wst_jobs(idx, srd):
            jobs = []
            for i in idx:
                if i >= len(WST): continue
                base, kb, d = p2.w_kbs(WST[i])
                assert base == p2.Q_WG
                for kk in range(2):
                    for nf in range(2):
                        pre = ["s_mov_b32 m0, %d" % (WSB[i] + w * 4096 + kk * 2048), "s_add_u32 s%d, s%d, %d" % (S_T, S_WSB, (kb + kk * d) * 65536)] if nf == 0 else []
                        jobs.append(((pre, ["buffer_load_dwordx4 v%d, s[%d:%d], s%d offen offset:%d sc1 lds" % (V_WDMA[0], srd, srd + 3, S_T, nf * 1024)]), ('WS', 0)))
            return jobs
        pend = []
        gapc = [0, 0]
        def step(s, waits=None, emit=True, hooks=None):
            last = s == NSTEP - 1
            ms = []
            for nf in range(10):
                mfs = range(8) if nf % 2 == 0 else range(7, -1, -1)
                grp = [(nf, mf) for mf in mfs]
                if CSD:
                    if s > CSD: grp.insert(4, (nf, -1))
                    elif w and nf == BAR + 3 and s + 1 <= CSD: grp.insert(4, (nf, -2))
                    elif w and nf == 2 and s == 0: grp.insert(4, (nf, -3))
                elif nf in hset and not (opt.get("cs4") and s >= 4): grp.insert(4, (nf, -1))
                ms += grp
            xr = x_reads(s + 1) if not last else []
            first_of = {}
            for i, (nf, mf) in enumerate(ms): first_of.setdefault(nf, i)
            x0 = first_of[BAR] + 2 if (s & 1) else first_of[opt.get("xr_even", 2)] + 2
            xend = len(ms) - opt.get("xr_tail", 10)
            xpos = [x0 + ((xend - x0) * i) // len(xr) for i in range(len(xr))] if xr else []
            sd_ = list(side.get(s, [])) if (emit and (s < 4 or s >= NSTEP - 4)) else []
            s_hi = 66 if s == 28 else len(ms) - 2
            spos = [2 + ((s_hi - 2) * i) // len(sd_) for i in range(len(sd_))] if sd_ else []
            for i, (nf, mf) in enumerate(ms):
                post = []
                if i == first_of[nf] and nf == (FS[0] if FS else BAR) and not last:
                    tags = [('W', s + 1)]
                    if (s + 1) % 2 == 0: tags.append(('X', (s + 1) // 2))
                    n = min(63, need_count(tags))
                    if waits is not None:
                        if emit: n = waits[s & 3]
                        else: waits[s & 3] = min(waits.get(s & 3, 63), n)
                    if FS:
                        assert not any(t in tags for _, t in pend)
                        a("v_add_u32 v%d, 1, v%d", V_FS, V_FS)
                        lwait([('X', s, m_) for m_ in range(8)] + [('H', s)] + [('W', s - 1, n_) for n_ in range(10)])
                    if not opt.get("nodma") and not opt.get("nowait"): a("s_waitcnt vmcnt(%d)", n)
                    if FS: lds("ds_write_b32 v%d, v%d" % (V_FA, V_FS), ('F', s, 0))
                if FS and i == first_of[BAR] - FSL and not last:
                    lds("ds_read_b32 v%d, v%d" % (V_FD, V_FR), ('F', s, 1))
                if i == first_of[nf] and nf == BAR and not last:
                    if FS:
                        lwait([('F', s, 1)])
                        l1 = a.newlab("L_g1_fs"); l2 = a.newlab("L_g1_fr")
                        a("v_cmp_lt_u32 vcc, v%d, v%d", V_FD, V_FS)
                        a("s_cbranch_vccnz %s", l1)
                        a.label(l2)
                        if emit: spins.append((l1, l2))
                    elif not opt.get("nobar"): a("s_barrier")
                    assert not pend, "DMA jobs not drained"
                    if (s & 1) and (s + 3) // 2 < NSTEP // 2: pend.extend(x_jobs((s + 3) // 2))
                    if s + 3 < NSTEP: pend.extend(w_jobs(s + 3))
                    if WST and s == 29: pend.extend(wst_jobs([0, 1, 2], S_G))
                    if WST and s == 30: pend.extend(wst_jobs([3], S_G))
                    if PFD and (s & 3) == 0 and s < NSTEP - 4 and not (W2P and w == 3): pend.append(pf_job())
                    if W2P and (s & 3) == 0 and not (FUSE and s >= 28):
                        pend.append(r_job(s, 1))
                        if s == 0 or FUSE: pend.append(r_job(s, 0))
                    if KROT and (s & 3) == 1 and s < NSTEP - 4:
                        a("s_sub_u32 s%d, s%d, 1", S_RC, S_RC)
                        a("s_cmp_eq_u32 s%d, 0", S_RC)
                        a("s_cselect_b32 s%d, %d, 0", S_K2, 1024 * 7168)
                        a("s_cselect_b32 s%d, %d, 0", S_STO, 1024 * 6144)
                        a("s_cselect_b32 s%d, 2048, 0", S_T)
                        if not opt.get("samew"):
                            a("s_sub_u32 s%d, s%d, s%d", S_GOFF, S_GOFF, S_K2)
                            a("s_sub_u32 s%d, s%d, s%d", S_QOFF, S_QOFF, S_STO)
                        a("s_sub_u32 s%d, s%d, s%d", S_XK, S_XK, S_T)
                        if not CSD: a("s_sub_u32 s%d, s%d, s%d", S_XH, S_XH, S_T)
                    gapc[0] = 0; gapc[1] = s & 1
                    if hooks and 'bar' in hooks: hooks['bar']()
                job = None
                de = DE
                g0_ = 1 + DST[w]
                if isinstance(DE, list): de = DE[0] if gapc[1] else DE[1]
                if opt.get("dma2"): de = opt.get("de2", 2)
                if pend and gapc[0] >= g0_ and (gapc[0] - g0_) % de == 0:
                    job = pend.pop(0)
                    for x_ in job[0][0]: a(x_)
                gapc[0] += 1
                lwait([('W', s, nf), ('X', s, mf) if mf >= 0 else ('H', s) if mf == -1 else ('D', s, mf)])
                wf = WR(10 * s + nf)
                if mf >= 0 and opt.get("m32") and (wn == 1 or opt["m32"] == 2):
                    if mf & 1:
                        b_ = (nf // 2) * 4 + mf // 2
                        t = R('v', 80 + 16 * b_, 16) if b_ < 11 else R('a', 16 * (b_ - 11), 16)
                        a("v_mfma_f32_32x32x16_bf16 %s, %s, %s, %s" % (t, wf, XF(s & 1, mf), t if s else "0"))
                elif mf >= 0:
                    t = tiles[(nf, mf)]
                    a(mm(t, wf, XF(s & 1, mf), t if s else "0", nf))
                elif CSD and mf == -1:
                    t = HACC(nf >> 1)
                    a("v_mfma_f32_16x16x32_bf16 %s, %s, %s, %s", t, HX(nf & 1), wf, "0" if (s == CSD + 1 and nf % 2 == 0) else t)
                elif CSD:
                    a("v_mfma_f32_16x16x32_bf16 %s, %s, %s, %s", DACC, HX(0), DWF, "0" if mf == -3 else DACC)
                else:
                    t = HACC(hset.index(nf))
                    a(mm(t, wf, HX(s & 1), t if s else "0", nf))
                if job:
                    for x_ in job[0][1]:
                        if opt.get("nodma") and x_.startswith("buffer_load"): continue
                        if opt.get("dma_only") and x_.startswith("buffer_load") and job[1][0] not in opt["dma_only"]: continue
                        if opt.get("dma_reg") and x_.endswith(" lds") and 4 <= s < 28 and job[1][0] in opt["dma_reg"]:
                            x_ = x_[:-4].replace("buffer_load_dwordx4 ", "buffer_load_dwordx4 v[24:27], ")
                            if opt.get("dma_x1"): x_ = x_.replace("dwordx4 v[24:27]", "dword v24")
                        a(x_)
                    q.append(job[1])
                k = i - first_of[nf]
                if k < 2:
                    s2_, nf2 = (s, nf + LA) if nf + LA < 10 else (s + 1, nf + LA - 10)
                    if s2_ < NSTEP:
                        ins, tag = w_reads(s2_, nf2)[k]
                        lds(ins, tag)
                if CSD and w and k in (3, 5):
                    st_ = None
                    if nf == BAR + 1 and s + 1 <= CSD: st_, tg = s + 1, -2
                    if nf == 0 and s == 0: st_, tg = 0, -3
                    if st_ is not None:
                        h = (k - 3) // 2
                        lds("ds_read_b64_tr_b16 %s, v%d offset:%d" % (DWF.sub(2 * h, 2), V_HX[h], (st_ & 3) * WSTAGE), ('D', s, tg))
                while xpos and xpos[0] <= i:
                    xpos.pop(0); ins, tag = xr.pop(0); lds(ins, tag)
                while spos and spos[0] <= i:
                    spos.pop(0); side_emit(sd_.pop(0))
                if W2P and (s & 3) == 3 and not (FUSE and s >= 28):
                    r0 = first_of[FS[0] if FS else BAR] + 4
                    if i == r0:
                        if last: a("s_waitcnt vmcnt(%d)", need_count([('R', s - 3)]))
                        r_read(s, 1)
                    if i == r0 + 12: r_store(s)
                    if (s == 3 or FUSE) and i == r0 + 16: r_read(s, 0)
                    if (s == 3 or FUSE) and i == r0 + 28: r_store(s)
                    if last and i == r0 + 20:
                        for r_ in range(RD, RD + 4): a("v_mov_b32 v%d, 0", r_)
                if hooks and i in hooks: hooks[i]()

        if PSPLIT == 1: pro2(); pro3()
        a("s_waitcnt vmcnt(%d)", need_count([('X', 0), ('W', 0)]))
        a("s_waitcnt lgkmcnt(0)")
        a("s_barrier")
        nst("pro")
        if PSPLIT == 2: pro2(); pro3()
        for nf in range(LA):
            for ins, tag in w_reads(0, nf): lds(ins, tag)
            if nf == 0:
                for ins, tag in x_reads(0): lds(ins, tag)
        a("s_waitcnt lgkmcnt(0)"); del lq[:]
        waits = {}
        saved = a.l; q0 = list(q); a.l = []
        for s in range(NSTEP - 4): step(s, waits, emit=False)
        q_after = list(q); lq_after = list(lq); pend_after = list(pend); gap_after = list(gapc)
        a.l = saved; q[:] = q0; del lq[:]; del pend[:]; gapc[:] = [0, 0]
        head = []
        peel = True
        def signal():
            a("v_mov_b32 v%d, 1", T0)
            a("v_mov_b32 v%d, 0", T1)
            a("s_mov_b64 exec, 1")
            a("buffer_atomic_add v%d, v%d, s[%d:%d], s%d offen sc1", T0, T1, S_DBG, S_DBG + 3, S_C1); q.append(('A', 0))
            a("s_mov_b64 exec, -1")
        nit = NSTEP // 4 - 1
        if peel:
            for s in range(4):
                step(s, waits, emit=True)
                nst("s%d" % s)
            nit -= 1
        loop = a.newlab("L_g1_loop")
        a("s_mov_b32 s%d, %d", S_LOOP, nit)
        lq_ss = [(t[0], t[1] - 24) + tuple(t[2:]) for t in lq_after]
        assert lq_ss[len(lq_ss) - len(lq):] == lq, (lq_ss, lq)
        lq[:] = lq_ss
        lq_in = [(t[0], t[1] - 4) + tuple(t[2:]) for t in lq]
        a.label(loop)
        def sig_cond():
            l_ = a.newlab("L_g1_sig")
            a("s_cmp_lg_u32 s%d, %d", S_LOOP, nit - 4 if FUSE else nit)
            a("s_cbranch_scc1 %s", l_)
            signal()
            a.label(l_)
        for s in range(4, 8):
            step(s, waits, emit=True, hooks=({'bar': sig_cond} if (w == 0 and s == 7) else None))
        lq_out = [(t[0], t[1] - 8) + tuple(t[2:]) for t in lq]
        if peel: assert lq_in == lq_out, (lq_in, lq_out)
        else:
            a("s_waitcnt lgkmcnt(0)"); del lq[:]
        a("s_sub_u32 s%d, s%d, 1", S_LOOP, S_LOOP)
        a("s_cmp_lg_u32 s%d, 0", S_LOOP)
        a("s_cbranch_scc1 %s", loop)
        a.c("waits %s" % waits)
        q[:] = q_after; pend[:] = pend_after; gapc[:] = gap_after
        lq[:] = lq_after if peel else []
        nb = 9 if wn == 0 else 8
        def poll():
            if FUSE:
                a("v_min_u32 v%d, 7, v0", T2)
                a("v_lshlrev_b32 v%d, 2, v%d", T2, T2)
                a("buffer_load_dword v%d, v%d, s[%d:%d], 0 offen sc1", T0, T2, S_DBG, S_DBG + 3); q.append(('C', 0))
                return
            a("v_mov_b32 v%d, 0", T2)
            a("buffer_load_dword v%d, v%d, s[%d:%d], s%d offen sc1", T0, T2, S_DBG, S_DBG + 3, S_C0); q.append(('C', 0))
            a("buffer_load_dword v%d, v%d, s[%d:%d], s%d offen sc1", T1, T2, S_DBG, S_DBG + 3, S_C1); q.append(('C', 0))
        def check():
            a("s_waitcnt vmcnt(%d)", need_count([('C', 0)]))
            okval()
        def okval():
            if FUSE:
                a("v_cmp_gt_u32 vcc, 32, v%d", T0)
                a("s_cmp_eq_u64 vcc, 0")
                a("s_cselect_b32 s%d, 32, 0", S_OK)
                return
            a("v_min_u32 v%d, v%d, v%d", T0, T0, T1)
            a("s_nop 1")
            a("v_readfirstlane_b32 s%d, v%d", S_OK, T0)
        def st_loads():
            a("v_and_b32 v%d, 15, v0", T2)
            a("v_lshlrev_b32 v%d, 3, v%d", T2, T2)
            a("s_add_u32 s%d, s%d, %d", S_STO, S_M0, 128 * wm)
            a("s_lshl_b32 s%d, s%d, 3", S_STO, S_STO)
            for b in range(nb):
                bb = b - 1 if wn == 0 else b
                if bb < 0 and CSD: continue
                if bb < 0:
                    a("s_max_u32 s%d, s%d, 128", S_K2, S_STO)
                    a("s_sub_u32 s%d, s%d, 128", S_K2, S_K2)
                    a("buffer_load_dwordx2 v[%d:%d], v%d, s[%d:%d], s%d offen sc1", ST + 2 * b, ST + 2 * b + 1, T2, S_ST, S_ST + 3, S_K2)
                else:
                    a("buffer_load_dwordx2 v[%d:%d], v%d, s[%d:%d], s%d offen offset:%d sc1", ST + 2 * b, ST + 2 * b + 1, T2, S_ST, S_ST + 3, S_STO, bb * 128)
                q.append(('R', 0))
        def check_and_load():
            check(); st_loads()
        nst("s27")
        hk29 = {60: check_and_load}
        NPF = opt.get("w2pf", 0)
        if FUSE and NPF:
            def pf_set():
                a("s_lshr_b32 s%d, s2, 4", S_T)
                a("s_and_b32 s%d, s%d, 7", S_T2, S_T)
                a("s_mul_i32 s%d, s%d, 7", S_T2, S_T2)
                a("s_lshr_b32 s%d, s%d, 3", S_T, S_T)
                a("s_add_u32 s%d, s%d, 33", S_T2, S_T2)
                a("%s s%d, s%d, s%d", "s_sub_u32" if EP2 else "s_add_u32", S_T2, S_T2, S_T)
                a("s_bfe_u32 s%d, s2, 0x10003", S_T)
                a("s_lshl_b32 s%d, s%d, 2", S_T, S_T)
                a("s_add_u32 s%d, s%d, s%d", S_T2, S_T2, S_T)
                a("s_and_b32 s%d, s2, 1", S_T)
                a("s_mul_i32 s%d, s%d, 56", S_T, S_T)
                a("s_add_u32 s%d, s%d, s%d", S_T2, S_T2, S_T)
                a("s_lshl_b32 s%d, s%d, 16", S_T2, S_T2)
                a("s_add_u32 s%d, s%d, %d", S_T2, S_T2, w * 16384)
            def pf_set2():
                a("s_mov_b32 s%d, s%d", S_G, S_CD); a("s_mov_b32 s%d, s%d", S_G + 1, S_CD + 1)
                a("s_cmp_ge_u32 s%d, 32", S_OK)
                a("s_cselect_b32 s%d, s%d, 0", S_G + 2, S_CD + 2)
                a("v_lshlrev_b32 v%d, 7, v0", V_PF)
                a("s_add_u32 s%d, s%d, 8192", S_T3, S_T2)
            def pf_ld(so):
                def f():
                    a("buffer_load_dword v%d, v%d, s[%d:%d], s%d offen sc1", V_PFD, V_PF, S_G, S_G + 3, so); q.append(('P', 0))
                return f
            hk29.update({56: pf_set, 64: pf_set2, 68: pf_ld(S_T2), 72: pf_ld(S_T3)})
        HK = {28: {70: poll}, 29: hk29, 30: {}, 31: {}}
        if opt.get("early_poll"):
            HK[28] = {opt["early_poll"][0]: poll}
            HK[29] = {k_ - opt["early_poll"][1]: v_ for k_, v_ in hk29.items()}
        def wst_set():
            a("s_and_b32 s%d, s2, 1", S_WSB)
            a("s_mul_i32 s%d, s%d, %d", S_WSB, S_WSB, 56 * 65536)
            a("s_bfe_u32 s%d, s2, 0x30003", S_T)
            a("s_lshl_b32 s%d, s%d, 13", S_T, S_T)
            a("s_add_u32 s%d, s%d, s%d", S_WSB, S_WSB, S_T)
            a("s_add_u32 s%d, s%d, %d", S_WSB, S_WSB, 32 * 65536 + w * 2048)
            a("v_lshlrev_b32 v%d, 4, v0", V_WDMA[0])
        if WST:
            assert max(HK[29]) < 8 * BAR - 6 and NPF
            HK[29][8 * BAR - 4] = wst_set
        def cs_pub():
            a("v_accvgpr_read_b32 v%d, %s", T3, DACC.sub(0))
            a("v_or_b32 v%d, 1, v%d", T3, T3)
            cs_store(T3)
        def cs_loads():
            a("v_mul_u32_u24 v%d, 48, v0", T1)
            a("s_mul_i32 s%d, s%d, 1536", S_STO, S_J)
            a("s_add_u32 s%d, s%d, %d", S_STO, S_STO, CS_OFF + wn * 768)
            a("s_mov_b64 exec, 0xffff")
            for o_, n_ in ((0, 4), (4, 4), (8, 2)):
                a("buffer_load_dwordx%d v[%d:%d], v%d, s[%d:%d], s%d offen offset:%d sc1", n_, CSR + o_, CSR + o_ + n_ - 1, T1, S_ST, S_ST + 3, S_STO, 4 * o_); q.append(('R', 0))
            a("s_mov_b64 exec, -1")
        def cs_test():
            a("v_min3_u32 v%d, v%d, v%d, v%d", T0, CSR, CSR + 1, CSR + 2)
            a("v_min3_u32 v%d, v%d, v%d, v%d", T1, CSR + 3, CSR + 4, CSR + 5)
            a("v_min3_u32 v%d, v%d, v%d, v%d", T0, T0, CSR + 6, CSR + 7)
            a("v_min3_u32 v%d, v%d, v%d, v%d", T1, T1, CSR + 8, CSR + 9)
            a("v_min_u32 v%d, v%d, v%d", T0, T0, T1)
            a("v_cmp_eq_u32 vcc, 0, v%d", T0)
            a("s_and_b32 s%d, vcc_lo, 0xffff", S_T)
        if CSD:
            if w:
                if CSD <= 28: HK[28][3] = cs_pub
                else: HK[CSD - 1][8 * (BAR + 3) + 9] = cs_pub
            cl_ = opt.get("cs_ld", [31, 1])
            assert cl_[1] not in HK[cl_[0]]
            HK[cl_[0]][cl_[1]] = cs_loads
        for s_ in range(28, 32): step(s_, hooks=HK[s_])
        assert not pend
        n_after = need_count([('R', 0), ('P', 0), ('C', 0)]) if XE else 0
        assert n_after in (0, 8)
        nst("loop")
        lok = a.newlab("L_g1_ok"); lsp = a.newlab("L_g1_spin")
        if CSD:
            a("s_waitcnt vmcnt(%d)", n_after)
            cs_test()
            a("s_cselect_b32 s%d, 0, s%d", S_OK, S_OK)
        a("s_cmp_ge_u32 s%d, 32", S_OK)
        a("s_cbranch_scc1 %s", lok)
        a.label(lsp)
        a("s_sleep 4")
        poll()
        a("s_waitcnt vmcnt(0)")
        okval()
        a("s_nop 1")
        a("s_cmp_lt_u32 s%d, 32", S_OK)
        a("s_cbranch_scc1 %s", lsp)
        st_loads()
        if CSD: cs_loads()
        if WST: emit_now(wst_jobs(range(4), S_CD))
        if XE: a("s_waitcnt vmcnt(0)")
        if CSD:
            cs_test()
            a("s_cbranch_scc1 %s", lsp)
        a.label(lok)
        a("s_nop 7")
        RR = 1
        CG = 10
        V_L16 = 18; V_SGL = 19
        boff = 1 if wn == 0 else 0
        def stt(mf): return "v[%d:%d]" % (ST + 2 * (mf + boff), ST + 2 * (mf + boff) + 3)
        def SD(mf): return ST + 2 * (mf + boff) + 1
        def cst(i): return "v[%d:%d]" % (CST + 4 * i, CST + 4 * i + 3)
        if CSD: hs_ = len(a.l)
        a("v_lshrrev_b32 v%d, 4, v0", T0)
        a("v_lshlrev_b32 v%d, 4, v%d", T0, T0)
        a("v_add_u32 v%d, %d, v%d", T0, L_CS, T0)
        a("v_lshlrev_b32 v%d, 2, v0", T1)
        a("v_add_u32 v%d, %d, v%d", T1, L_CS, T1)
        a("v_lshlrev_b32 v%d, 4, v0", V_L16)
        a("s_mov_b32 s%d, 0x00010001", S_MSK); a("s_mov_b32 s%d, 0x00010001", S_MSK + 1)
        a("s_mov_b64 exec, s[%d:%d]", S_MSK, S_MSK + 1)
        for i, nf in enumerate(hset):
            if not isV(nf): a("ds_write_b128 v%d, %s offset:%d", T0, HACC(i), (wn * 10 + nf) * 64)
        a("s_mov_b64 exec, 0xffff")
        for i, nf in enumerate(hset):
            if isV(nf): a("ds_write_b32 v%d, %s offset:%d", T1, HACC(i).sub(0), (wn * 10 + nf) * 64)
        a("s_mov_b64 exec, -1")
        if w == 0:
            a("v_add_u32 v%d, %d, v%d", T2, L_KV, V_L16)
            for i in range(4): a("ds_write_b128 v%d, %s offset:%d", T2, tiles[(2 + i, 7)], i * 1024)
        a("s_waitcnt vmcnt(%d)", n_after)
        b0 = 0
        if CSD:
            del a.l[hs_:]
            a("v_lshlrev_b32 v%d, 4, v0", V_L16)
            nst("e1")
            b0 = boff
            EP0[0] = len(a.l)
        for b in range(b0, nb): a("v_rcp_f32 v%d, v%d", RR + b, ST + 2 * b + 1)
        if wn == 0:
            a("v_and_b32 v%d, 15, v0", T3)
            a("v_lshlrev_b32 v%d, 2, v%d", T3, T3)
            a("v_add_u32 v%d, %d, v%d", T3, L_RT + w * 640, T3)
            for b in range(b0, nb): a("ds_write_b32 v%d, v%d offset:%d", T3, RR + b, b * 64)
        for mf in range(8): a("v_mul_f32 v%d, %s, v%d", CG + mf, f32(-LOG2E), RR + mf + boff)
        a("s_lshl_b32 s%d, s%d, 14", S_AB, S_MT)
        if wm: a("s_add_u32 s%d, s%d, 8192", S_AB, S_AB)
        a("s_lshr_b32 s%d, s%d, 1", S_T, S_J)
        a("s_mul_i32 s%d, s%d, 7", S_T, S_T)
        a("s_add_u32 s%d, s%d, 32", S_T, S_T)
        a("s_lshl_b32 s%d, s%d, 2", S_T2, S_ODD)
        a("s_add_u32 s%d, s%d, s%d", S_T2, S_T2, S_T)
        a("s_mul_i32 s%d, s%d, %d", S_K1, S_T2, ACT_KB)
        a("s_add_u32 s%d, s%d, s%d", S_K1, S_K1, S_AB)
        a("s_add_u32 s%d, s%d, 3", S_T, S_T)
        a("s_mul_i32 s%d, s%d, %d", S_K2, S_T, ACT_KB)
        a("s_add_u32 s%d, s%d, s%d", S_K2, S_K2, S_AB)
        a("s_lshl_b32 s%d, s%d, 9", S_T, S_ODD)
        a("s_add_u32 s%d, s%d, s%d", S_K2, S_K2, S_T)
        a("s_mul_i32 s%d, s%d, %d", S_T, S_J, ACT_KB)
        a("s_add_u32 s%d, s%d, s%d", S_AB, S_AB, S_T)
        a("v_lshrrev_b32 v%d, 5, v0", T2)
        a("v_lshl_add_u32 v%d, v%d, 9, v%d", V_SGL, T2, V_L16)
        if not CSD:
            a("s_waitcnt lgkmcnt(0)")
            nst("e0")
            a("s_barrier")
            nst("e1")
            a("s_mov_b64 exec, 0xffff")
            for nf in range(10): a("ds_read_b32 v%d, v%d offset:%d", CSR + nf, T1, (wn * 10 + nf) * 64)
            a("s_mov_b64 exec, -1")
            if w == 1:
                a("v_add_u32 v%d, %d, v%d", T2, L_KV, V_L16)
                for i in range(4): a("ds_read_b128 %s, v%d offset:%d", HACC(i), T2, i * 1024)
            EP0[0] = len(a.l)
        a("s_mov_b32 s%d, 0xffff0000", S_T3)
        if not CSD: a("s_waitcnt lgkmcnt(0)")
        for nf in range(0, 10, 2):
            if CSD and CSD < 31:
                for z in range(2): a("v_accvgpr_read_b32 v%d, %s", T0 + z, HACC(nf >> 1).sub(z))
                for z in range(2): a("v_add_f32 v%d, v%d, v%d", CSR + nf + z, CSR + nf + z, T0 + z)
            for z in range(2): a("v_cvt_pk_bf16_f32 v%d, v%d, v%d", T2 + z, CSR + nf + z, CSR + nf + z)
            for z in range(2): a("v_and_b32 v%d, s%d, v%d", T2 + z, S_T3, T2 + z)
            for z in range(2): a("v_sub_f32 v%d, v%d, v%d", T2 + z, CSR + nf + z, T2 + z)
            for z in range(2): a("v_cvt_pk_bf16_f32 v%d, v%d, v%d", CSR + nf + z, CSR + nf + z, T2 + z)
        def corr(t, nf, mf, ci):
            if isV(nf): return "v_mfma_f32_16x16x32_bf16 %s, %s, %s, %s" % (t, stt(mf), cst(ci), t)
            return "v_mfma_f32_16x16x32_bf16 %s, %s, %s, %s" % (t, cst(ci), stt(mf), t)
        def fetch(t, tmp, L):
            if t.kind == 'v': return t.base
            for i in range(4): L.append("v_accvgpr_read_b32 v%d, %s" % (tmp + i, t.sub(i)))
            return tmp
        def mul4(L, d, s_, m):
            if PK:
                mb = m & ~1; sel = m & 1
                for i in (0, 2):
                    L.append("v_pk_mul_f32 v[%d:%d], v[%d:%d], v[%d:%d] op_sel:[0,%d] op_sel_hi:[1,%d]" % (d + i, d + i + 1, s_ + i, s_ + i + 1, mb, mb + 1, sel, sel))
            else:
                for i in range(4): L.append("v_mul_f32 v%d, v%d, v%d" % (d + i, s_ + i, m))
        def mul44(L, d, s_, m):
            if PK:
                for i in (0, 2):
                    L.append("v_pk_mul_f32 v[%d:%d], v[%d:%d], v[%d:%d]" % (d + i, d + i + 1, s_ + i, s_ + i + 1, m + i, m + i + 1))
            else:
                for i in range(4): L.append("v_mul_f32 v%d, v%d, v%d" % (d + i, s_ + i, m + i))
        def glu_half(g, u, mf, o):
            L = []
            mul4(L, g, g, CG + mf)
            for i in range(4): L.append("v_exp_f32 v%d, v%d" % (g + i, g + i))
            sd = SD(mf)
            if PK:
                for i in (0, 2):
                    L.append("v_pk_fma_f32 v[%d:%d], v[%d:%d], v[%d:%d], v[%d:%d] op_sel:[0,1,1] op_sel_hi:[1,1,1]" % (g + i, g + i + 1, g + i, g + i + 1, sd - 1, sd, sd - 1, sd))
            else:
                for i in range(4): L.append("v_fma_f32 v%d, v%d, v%d, v%d" % (g + i, g + i, sd, sd))
            for i in range(4): L.append("v_rcp_f32 v%d, v%d" % (g + i, g + i))
            mul44(L, u, u, g)
            return L
        def glu_group(grp, tmp, sbase, soff, vaddr):
            F = []
            (ga, ua, ma), (gb, ub, mb) = grp
            ra = fetch(ga, tmp, F); rua = fetch(ua, tmp + 4, F); rb = fetch(gb, tmp + 8, F); rub = fetch(ub, tmp + 12, F)
            L = F + zipl(glu_half(ra, rua, ma, 0), glu_half(rb, rub, mb, 0))
            L.append("s_add_u32 s%d, s%d, %d" % (S_T, sbase, soff))
            L.append("v_cvt_pk_bf16_f32 v%d, v%d, v%d" % (ra, rua, rua + 1))
            L.append("v_cvt_pk_bf16_f32 v%d, v%d, v%d" % (ra + 2, rub, rub + 1))
            L.append("v_cvt_pk_bf16_f32 v%d, v%d, v%d" % (ra + 1, rua + 2, rua + 3))
            L.append("v_cvt_pk_bf16_f32 v%d, v%d, v%d" % (ra + 3, rub + 2, rub + 3))
            L.append("v_permlane32_swap_b32 v%d, v%d" % (ra, ra + 2))
            L.append("v_permlane32_swap_b32 v%d, v%d" % (ra + 1, ra + 3))
            L.append("buffer_store_dwordx4 v[%d:%d], v%d, s[%d:%d], s%d offen%s" % (ra, ra + 3, vaddr, S_ACT, S_ACT + 3, S_T, STM))
            return L
        def run_groups(groups):
            for x_ in groups[0][0] + groups[0][1]: a(x_)
            for k, (pre, cl, vl) in enumerate(groups):
                nxt = (groups[k + 1][0] + groups[k + 1][1]) if k + 1 < len(groups) else []
                for x_ in spread(vl, nxt, 0.05, 0.6): a(x_)
        def glu_groups(pairs, tmps):
            G = []
            for (na_, nb_, sbase, kboff) in pairs:
                if nb_ is not None:
                    for mf in range(8):
                        pre = []
                        if mf == 0:
                            pre = ["v_mov_b32 v%d, v%d" % (CST + 4 * i, CSR + nf) for i, nf in enumerate((na_, na_ + 1, nb_, nb_ + 1))]
                        cl = [corr(tiles[(nf, mf)], nf, mf, i) for i, nf in enumerate((na_, na_ + 1, nb_, nb_ + 1))]
                        vl = glu_group([(tiles[(na_, mf)], tiles[(na_ + 1, mf)], mf), (tiles[(nb_, mf)], tiles[(nb_ + 1, mf)], mf)],
                                       tmps[len(G) & 1], sbase, kboff + mf * 1024, V_L16)
                        G.append((pre, cl, vl))
                else:
                    for mf in range(0, 8, 2):
                        pre = []
                        if mf == 0:
                            pre = ["v_mov_b32 v%d, v%d" % (CST + 4 * i, CSR + nf) for i, nf in enumerate((na_, na_ + 1))]
                        cl = [corr(tiles[(na_ + z, mf + y)], na_ + z, mf + y, z) for y in range(2) for z in range(2)]
                        vl = glu_group([(tiles[(na_, mf)], tiles[(na_ + 1, mf)], mf), (tiles[(na_, mf + 1)], tiles[(na_ + 1, mf + 1)], mf + 1)],
                                       tmps[len(G) & 1], sbase, kboff + mf * 1024, V_SGL)
                        G.append((pre, cl, vl))
            return G
        if wn == 1:
            run_groups(glu_groups([(0, 2, S_K1, 1 * ACT_KB), (4, 6, S_K1, 2 * ACT_KB), (8, None, S_K2, 0)], [TV, TV + 16]))
            if FUSE: (weave2 if EP2 else weave)(w)
            a("s_branch %s", fin)
            return
        if EP2:
            conv2(a, w, wm, tiles, [HACC(0), HACC(1)], [HACC(2), HACC(3)], locals())
            return
        a("v_lshrrev_b32 v%d, 4, v0", T3)
        a("v_lshlrev_b32 v%d, 4, v%d", T3, T3)
        a("v_add_u32 v%d, %d, v%d", T3, L_RT + w * 640, T3)
        RV = [CSR + 0, CSR + 0]
        prevK = [HACC(0), HACC(1)]; prevV = [HACC(2), HACC(3)]
        return_tiles = None
        conv(a, w, wm, tiles, VPB, prevK, prevV, locals())

    def conv2(a, w, wm, tiles, prevK, prevV, env):
        (corr, fetch, mul4, mul44, run_groups, glu_groups, stt, cst, SD, RR, CG, V_L16, V_SGL) = [env[k] for k in
            ("corr", "fetch", "mul4", "mul44", "run_groups", "glu_groups", "stt", "cst", "SD", "RR", "CG", "V_L16", "V_SGL")]
        RA = V_SGL
        a("v_lshrrev_b32 v%d, 4, v0", RA)
        a("v_lshlrev_b32 v%d, 4, v%d", RA, RA)
        a("v_add_u32 v%d, %d, v%d", RA, L_RT + w * 640, RA)
        def KP(b): return 80 + 4 * (b + 1)
        def QP(b): return 116 + 4 * b
        VA = [148, 166]
        FT = [184, 188, 196, 200, 204, 192]
        RVB = [10, 14]
        RQ = T3
        groups = glu_groups([(6, 8, S_K1, 0)], [TV, TV + 16])
        border = [7, 0, 1, 2, 3, 4, 5, 6] if CSD else list(range(-1, 8))
        if H2:
            a("s_lshl_b32 s%d, s%d, 16", S_STO, S_MT)
            a("s_lshl_b32 s%d, s%d, 11", S_T2, S_J)
            a("s_add_u32 s%d, s%d, %d", S_T2, S_T2, ACT_BYTES)
            a("s_add_u32 s%d, s%d, s%d", S_STO, S_STO, S_T2)
            a("v_lshlrev_b32 v%d, 3, v0", T5)
            if wm == 0:
                a("s_min_u32 s%d, s%d, 1", S_T, S_MT)
                a("s_lshl_b32 s%d, s%d, 16", S_T2, S_T)
                a("s_sub_u32 s%d, s%d, s%d", S_C1, S_STO, S_T2)
                a("s_lshl_b32 s%d, s%d, 10", S_T2, S_T)
                a("s_sub_u32 s%d, s%d, s%d", S_C0, p2.Q_FSIG, S_T2)
                a("s_add_u32 s%d, s%d, 512", S_C0, S_C0)
                HALO[0] = [("buffer_load_dwordx4 v[%d:%d], v%d, s[%d:%d], s%d offen sc1" % (KP(-1), KP(-1) + 3, V_L16, S_ACT, S_ACT + 3, S_C1), ('HL', 0))] + \
                          [("buffer_load_dwordx2 v[%d:%d], v%d, s[%d:%d], s%d offen offset:%d sc1" % (VA[f], VA[f] + 1, T5, S_ACT, S_ACT + 3, S_C1, 1024 + 512 * f), ('HL', 0)) for f in range(2)]
            else:
                HALO[0] = ["ds_read_b32 v239, v238", "ds_read_b128 v[%d:%d], v236" % (KP(-1), KP(-1) + 3)] + \
                          ["ds_read_b64 v[%d:%d], v237 offset:%d" % (VA[f], VA[f] + 1, 512 * f) for f in range(2)]
            HALO.append([KP(-1) + i for i in range(4)] + [VA[0], VA[0] + 1, VA[1], VA[1] + 1])
        elif CSD:
            a("s_lshl_b32 s%d, s%d, 1", S_T, S_MT)
            if wm: a("s_add_u32 s%d, s%d, 1", S_T, S_T)
            a("s_lshl_b32 s%d, s%d, 16", S_STO, S_T)
            a("s_lshl_b32 s%d, s%d, 11", S_T2, S_J)
            a("s_add_u32 s%d, s%d, %d", S_T2, S_T2, ACT_BYTES)
            a("s_add_u32 s%d, s%d, s%d", S_STO, S_STO, S_T2)
            a("s_min_u32 s%d, s%d, 1", S_T, S_T)
            a("s_lshl_b32 s%d, s%d, 16", S_T2, S_T)
            a("s_sub_u32 s%d, s%d, s%d", S_C1, S_STO, S_T2)
            a("s_lshl_b32 s%d, s%d, 9", S_T2, S_T)
            a("s_sub_u32 s%d, s%d, s%d", S_C0, p2.Q_FSIG, S_T2)
            a("v_lshlrev_b32 v%d, 3, v0", T5)
            HALO[0] = [("buffer_load_dwordx4 v[%d:%d], v%d, s[%d:%d], s%d offen sc1" % (KP(-1), KP(-1) + 3, V_L16, S_ACT, S_ACT + 3, S_C1), ('HL', 0))] + \
                      [("buffer_load_dwordx2 v[%d:%d], v%d, s[%d:%d], s%d offen offset:%d sc1" % (VA[f], VA[f] + 1, T5, S_ACT, S_ACT + 3, S_C1, 1024 + 512 * f), ('HL', 0)) for f in range(2)]
        for gi, b in enumerate(border):
            rvb = RVB[gi & 1]
            pre = ["ds_read_b128 v[%d:%d], v%d offset:%d" % (rvb, rvb + 3, RA, (b + 1) * 64)]
            if gi == 0: pre += ["v_mov_b32 v%d, v%d" % (CST + 4 * i, CSR + i) for i in (2, 3, 4, 5, 0, 1)]
            tl = {}
            for nf in (2, 3, 0, 1, 4, 5):
                if b < 0:
                    if nf >= 2: tl[nf] = (prevK + prevV)[nf - 2]
                else: tl[nf] = tiles[(nf, b)]
            cl = [corr(t, nf, b, nf) for nf, t in tl.items()]
            L = []; ft = list(FT)
            r_ = RR + b + 1
            AT2 = opt.get("at2", 0)
            if b >= 0 and not AT2:
                L.append("v_mul_f32 v%d, %s, v%d" % (RQ, f32(LOG2E * 32 ** -0.5), r_))
            def two(ts, mulf, dsts):
                Ls = []
                for t, d in zip(ts, dsts):
                    l_ = []
                    s_ = fetch(t, ft.pop(0), l_)
                    mulf(l_, s_)
                    l_.append("v_cvt_pk_bf16_f32 v%d, v%d, v%d" % (d, s_, s_ + 1))
                    l_.append("v_cvt_pk_bf16_f32 v%d, v%d, v%d" % (d + 1, s_ + 2, s_ + 3))
                    Ls.append(l_)
                return zipl(*Ls)
            L += two([tl[2], tl[3]], lambda l_, s_: mul4(l_, s_, s_, r_), [KP(b), KP(b) + 2])
            if b >= 0: L += two([tl[0], tl[1]], (lambda l_, s_: None) if AT2 else (lambda l_, s_: mul4(l_, s_, s_, RQ)), [QP(b), QP(b) + 2])
            if b >= 0 and AT2: L.append("v_mul_f32 v%d, %s, v%d" % (r_, f32(LOG2E * 32 ** -0.5), r_))
            L.append("s_waitcnt lgkmcnt(%d)" % (1 if gi + 1 < len(border) else 0))
            L += two([tl[4], tl[5]], lambda l_, s_: mul44(l_, s_, s_, rvb), [VA[0] + 2 * (b + 1), VA[1] + 2 * (b + 1)])
            if H2 and b == 7:
                L += ["v_add_u32 v236, %d, v%d" % (L_KV, V_L16), "v_add_u32 v237, %d, v%d" % (L_KV + 1024, T5), "v_mov_b32 v238, %d" % L_HF]
            if H2 and b == 7 and wm == 0:
                L.append("ds_write_b128 v236, v[%d:%d]" % (KP(7), KP(7) + 3))
                for f in range(2): L.append("ds_write_b64 v237, v[%d:%d] offset:%d" % (VA[f] + 16, VA[f] + 17, 512 * f))
                L.append("ds_write_b32 v238, v238")
            elif CSD and b == 7:
                L.append("buffer_store_dwordx4 v[%d:%d], v%d, s[%d:%d], s%d offen sc1" % (KP(7), KP(7) + 3, V_L16, S_ACT, S_ACT + 3, S_STO))
                for f in range(2):
                    L.append("buffer_store_dwordx2 v[%d:%d], v%d, s[%d:%d], s%d offen offset:%d sc1" % (VA[f] + 16, VA[f] + 17, T5, S_ACT, S_ACT + 3, S_STO, 1024 + 512 * f))
            groups.append((pre, cl, L))
        run_groups(groups)
        nst("e2")
        BP, BC, BPF = 224, 228, 232
        a("v_and_b32 v%d, 15, v0", T0)
        a("v_lshrrev_b32 v%d, 4, v0", T1)
        a("v_lshlrev_b32 v%d, 2, v%d", T1, T1)
        a("v_sub_u32 v%d, v%d, v%d", T0, T0, T1)
        a("v_mov_b32 v%d, %s", T3, f32(-1e30))
        a("s_mov_b32 s%d, 0x80000001", S_T3)
        a("s_brev_b32 s%d, 1", S_T2)
        for i in range(4):
            a("v_subrev_u32 v%d, %d, v%d", T1, i, T0)
            a("v_and_b32 v%d, s%d, v%d", T1, S_T3, T1)
            a("v_cmp_eq_u32 vcc, 0, v%d", T1)
            a("v_cndmask_b32 v%d, v%d, 0, vcc", BC + i, T3)
            a("v_cmp_eq_u32 vcc, s%d, v%d", S_T2, T1)
            a("v_cndmask_b32 v%d, v%d, 0, vcc", BP + i, T3)
        if wm == 0:
            a("s_cmp_eq_u32 s%d, 0", S_M0)
            a("s_cselect_b64 vcc, -1, 0")
            for i in range(4): a("v_cndmask_b32 v%d, v%d, v%d, vcc", BPF + i, BP + i, T3)
        else: BPF = BP
        if opt.get("at2"): attn_all2(a, QP, KP, VA, BP, BC, BPF, mul4, V_L16, RR)
        else: attn_all(a, [(184, 216, 10), (200, 220, 14)], QP, KP, VA, BP, BC, BPF, mul4, V_L16)
        nst("e3")
        weave2(w)
        a("s_branch %s", fin)

    def attn_all2(a, QP, KP, VPB, BP, BC, BPF, mul4, V_L16, RR):
        NS = opt["at2"]
        MK, ONE = 40, 44
        sets = [184, 204, 20, 48][:NS]
        for i, src in enumerate((BP, BP + 2, BC, BC + 2)):
            a("v_cvt_pk_bf16_f32 v%d, v%d, v%d", MK + i, src, src + 1)
        for i in range(4):
            a("v_mov_b32 v%d, 0x3f803f80", ONE + i)
            a("v_pk_ashrrev_i16 v%d, 15, v%d op_sel_hi:[0,1]", MK + i, MK + i)
        sreg = [S_T, S_T2, S_T3, S_K2]
        def attn(b, k):
            base = sets[k]
            SP, SC, P, OS, M = base, base + 4, base + 8, base + 12, base + 16
            Tm = M + 1; A_ = M + 2; B_ = M + 3
            Qb = QP(b); Kb = KP(b); Kp = KP(b - 1)
            bp = BPF if b == 0 else BP
            rq = RR + b + 1
            L = []
            if CSD and b == 0: L.append("HALOWAIT")
            L.append("v_mfma_f32_16x16x32_bf16 v[%d:%d], v[%d:%d], v[%d:%d], v[%d:%d]" % (SP, SP + 3, Kp, Kp + 3, Qb, Qb + 3, bp, bp + 3))
            L.append("NOP")
            L.append("v_mfma_f32_16x16x32_bf16 v[%d:%d], v[%d:%d], v[%d:%d], v[%d:%d]" % (SC, SC + 3, Kb, Kb + 3, Qb, Qb + 3, BC, BC + 3))
            L += ["NOP"] * opt.get("at_n1", 3)
            L.append("v_max_f32 v%d, v%d, v%d" % (A_, SP, SP + 1))
            L.append("v_max_f32 v%d, v%d, v%d" % (B_, SP + 2, SP + 3))
            L.append("v_max3_f32 v%d, v%d, v%d, v%d" % (A_, A_, SC, SC + 1))
            L.append("v_max3_f32 v%d, v%d, v%d, v%d" % (B_, B_, SC + 2, SC + 3))
            L.append("v_max_f32 v%d, v%d, v%d" % (M, A_, B_))
            L.append("v_max_f32 v%d, v%d, v%d" % (Tm, A_, B_))
            for sw in ("16", "32"):
                L.append("v_permlane%s_swap_b32 v%d, v%d" % (sw, M, Tm))
                if sw == "16":
                    L.append("v_max_f32 v%d, v%d, v%d" % (SP, M, Tm))
                    L.append("v_max_f32 v%d, v%d, v%d" % (Tm, M, Tm))
                    L.append("v_permlane32_swap_b32 v%d, v%d" % (SP, Tm))
                    L.append("v_max_f32 v%d, v%d, v%d" % (M, SP, Tm))
                    break
            L.append("v_pk_add_f32 v[%d:%d], v[%d:%d], v[%d:%d] op_sel_hi:[1,0] neg_lo:[0,1] neg_hi:[0,1]" % (A_, B_, A_, B_, M, M + 1))
            mb = rq & ~1; sel = rq & 1
            L.append("v_pk_mul_f32 v[%d:%d], v[%d:%d], v[%d:%d] op_sel:[0,%d] op_sel_hi:[1,%d]" % (A_, B_, A_, B_, mb, mb + 1, sel, sel))
            L.append("v_exp_f32 v%d, v%d" % (A_, A_))
            L.append("v_exp_f32 v%d, v%d" % (B_, B_))
            L.append("v_cvt_pk_bf16_f32 v%d, v%d, v%d" % (A_, A_, A_))
            L.append("v_cvt_pk_bf16_f32 v%d, v%d, v%d" % (B_, B_, B_))
            for i in range(4): L.append("v_bfi_b32 v%d, v%d, 0, v%d" % (P + i, MK + i, B_ if i & 1 else A_))
            L.append("NOP")
            L.append("v_mfma_f32_16x16x32_bf16 v[%d:%d], v[%d:%d], v[%d:%d], 0" % (OS, OS + 3, ONE, ONE + 3, P, P + 3))
            for f, O in enumerate((SP, SC)):
                vb = VPB[f] + 2 * b
                L.append("NOP")
                L.append("v_mfma_f32_16x16x32_bf16 v[%d:%d], v[%d:%d], v[%d:%d], 0" % (O, O + 3, vb, vb + 3, P, P + 3))
            L.append("s_add_u32 s%d, s%d, %d" % (sreg[k], S_AB, b * 1024))
            L += ["NOP"] * opt.get("at_n2", 1)
            L.append("v_rcp_f32 v%d, v%d" % (M, OS))
            L += ["NOP"] * opt.get("at_n3", 1)
            mul4(L, SP, SP, M); mul4(L, SC, SC, M)
            L.append("v_cvt_pk_bf16_f32 v%d, v%d, v%d" % (P, SP, SP + 1))
            L.append("v_cvt_pk_bf16_f32 v%d, v%d, v%d" % (P + 2, SC, SC + 1))
            L.append("v_cvt_pk_bf16_f32 v%d, v%d, v%d" % (P + 1, SP + 2, SP + 3))
            L.append("v_cvt_pk_bf16_f32 v%d, v%d, v%d" % (P + 3, SC + 2, SC + 3))
            L.append("v_permlane32_swap_b32 v%d, v%d" % (P, P + 2))
            L.append("v_permlane32_swap_b32 v%d, v%d" % (P + 1, P + 3))
            L.append("buffer_store_dwordx4 v[%d:%d], v%d, s[%d:%d], s%d offen%s" % (P, P + 3, V_L16, S_ACT, S_ACT + 3, sreg[k], STM))
            return L
        order = [1, 2, 3, 4, 5, 6, 7, 0] if CSD else list(range(8))
        n1 = len(attn(0, 0))
        streams = []
        for k in range(NS):
            streams.append(["NOP"] * (n1 * k // NS) + sum((attn(b, k) for b in order[k::NS]), []))
        for x_ in zipl(*streams):
            if x_ != "NOP": a(x_)

    def attn_all(a, sets, QP, KP, VPB, BP, BC, BPF, mul4, V_L16):
        def attn(b):
            base, P, M = sets[b & 1]
            SP, SC, O0, O1 = base, base + 4, base + 8, base + 12
            Tm = M + 1; Sm = M + 2; S2 = M + 3
            Qb = QP(b); Kb = KP(b); Kp = KP(b - 1)
            bp = BPF if b == 0 else BP
            L = []
            L.append("v_mfma_f32_16x16x32_bf16 v[%d:%d], v[%d:%d], v[%d:%d], v[%d:%d]" % (SP, SP + 3, Kp, Kp + 3, Qb, Qb + 3, bp, bp + 3))
            L.append("v_mfma_f32_16x16x32_bf16 v[%d:%d], v[%d:%d], v[%d:%d], v[%d:%d]" % (SC, SC + 3, Kb, Kb + 3, Qb, Qb + 3, BC, BC + 3))
            L += ["NOP"] * 4
            L.append("v_max3_f32 v%d, v%d, v%d, v%d" % (M, SP, SP + 1, SP + 2))
            L.append("v_max3_f32 v%d, v%d, v%d, v%d" % (Tm, SP + 3, SC, SC + 1))
            L.append("v_max3_f32 v%d, v%d, v%d, v%d" % (M, M, SC + 2, SC + 3))
            L.append("v_max_f32 v%d, v%d, v%d" % (M, M, Tm))
            for sw in ("16", "32"):
                L.append("v_mov_b32 v%d, v%d" % (Tm, M))
                L.append("v_permlane%s_swap_b32 v%d, v%d" % (sw, M, Tm))
                L.append("v_max_f32 v%d, v%d, v%d" % (M, M, Tm))
            for i in range(8): L.append("v_sub_f32 v%d, v%d, v%d" % (SP + i, SP + i, M))
            for i in range(8): L.append("v_exp_f32 v%d, v%d" % (SP + i, SP + i))
            for i in range(4): L.append("v_cvt_pk_bf16_f32 v%d, v%d, v%d" % (P + i, SP + 2 * i, SP + 2 * i + 1))
            L.append("v_add_f32 v%d, v%d, v%d" % (Sm, SP, SP + 1))
            L.append("v_add_f32 v%d, v%d, v%d" % (S2, SP + 2, SP + 3))
            for f, O in enumerate((O0, O1)):
                vb = VPB[f] + 2 * b
                L.append("v_mfma_f32_16x16x32_bf16 v[%d:%d], v[%d:%d], v[%d:%d], 0" % (O, O + 3, vb, vb + 3, P, P + 3))
            L.append("v_add_f32 v%d, v%d, v%d" % (Sm, Sm, SP + 4))
            L.append("v_add_f32 v%d, v%d, v%d" % (S2, S2, SP + 5))
            L.append("v_add_f32 v%d, v%d, v%d" % (Sm, Sm, SP + 6))
            L.append("v_add_f32 v%d, v%d, v%d" % (S2, S2, SP + 7))
            L.append("v_add_f32 v%d, v%d, v%d" % (Sm, Sm, S2))
            for sw in ("16", "32"):
                L.append("v_mov_b32 v%d, v%d" % (Tm, Sm))
                L.append("v_permlane%s_swap_b32 v%d, v%d" % (sw, Sm, Tm))
                L.append("v_add_f32 v%d, v%d, v%d" % (Sm, Sm, Tm))
            L.append("v_rcp_f32 v%d, v%d" % (Sm, Sm))
            mul4(L, O0, O0, Sm); mul4(L, O1, O1, Sm)
            st_ = S_T if b & 1 else S_T2
            L.append("s_add_u32 s%d, s%d, %d" % (st_, S_AB, b * 1024))
            L.append("v_cvt_pk_bf16_f32 v%d, v%d, v%d" % (SP, O0, O0 + 1))
            L.append("v_cvt_pk_bf16_f32 v%d, v%d, v%d" % (SP + 2, O1, O1 + 1))
            L.append("v_cvt_pk_bf16_f32 v%d, v%d, v%d" % (SP + 1, O0 + 2, O0 + 3))
            L.append("v_cvt_pk_bf16_f32 v%d, v%d, v%d" % (SP + 3, O1 + 2, O1 + 3))
            L.append("v_permlane32_swap_b32 v%d, v%d" % (SP, SP + 2))
            L.append("v_permlane32_swap_b32 v%d, v%d" % (SP + 1, SP + 3))
            L.append("buffer_store_dwordx4 v[%d:%d], v%d, s[%d:%d], s%d offen%s" % (SP, SP + 3, V_L16, S_ACT, S_ACT + 3, st_, STM))
            return L
        SAa = sum((attn(b) for b in range(0, 8, 2)), [])
        SBb = sum((attn(b) for b in range(1, 8, 2)), [])
        sh = len(attn(0)) // 2
        for x_ in zipl(SAa + ["NOP"] * sh, ["NOP"] * sh + SBb):
            if x_ != "NOP": a(x_)

    def conv(a, w, wm, tiles, VPB, prevK, prevV, env):
        (corr, fetch, mul4, mul44, run_groups, glu_groups, stt, cst, SD, RR, CG, V_L16, V_SGL) = [env[k] for k in
            ("corr", "fetch", "mul4", "mul44", "run_groups", "glu_groups", "stt", "cst", "SD", "RR", "CG", "V_L16", "V_SGL")]
        FT = 10
        RVB = [14, 74]
        a("v_mov_b32 v%d, v%d", T5, T3)
        RA = T5
        KP = CST + 0
        for i in range(6): a("v_mov_b32 v%d, v%d", CST + 4 * i, CSR + i)
        KPK = CSR
        RQ = CSR + 4
        groups = []
        for b in range(-1, 8):
            pre = ["ds_read_b128 v[%d:%d], v%d offset:%d" % (RVB[(b + 1) & 1], RVB[(b + 1) & 1] + 3, RA, (b + 1) * 64)]
            tl = {}
            for nf in range(6):
                if b < 0:
                    if nf >= 2: tl[nf] = (prevK + prevV)[nf - 2]
                else: tl[nf] = tiles[(nf, b)]
            cl = [corr(t, nf, b, nf) for nf, t in tl.items()]
            L = []
            r_ = RR + b + 1
            if b >= 0:
                L.append("v_mul_f32 v%d, %s, v%d" % (RQ, f32(LOG2E * 32 ** -0.5), r_))
            for base_nf, mreg in ((2, r_), (0, RQ)):
                if base_nf not in tl: continue
                dst = KPK if b < 0 else tl[base_nf].base
                for f in range(2):
                    s_ = fetch(tl[base_nf + f], FT, L)
                    mul4(L, s_, s_, mreg)
                    L.append("v_cvt_pk_bf16_f32 v%d, v%d, v%d" % (dst + 2 * f, s_, s_ + 1))
                    L.append("v_cvt_pk_bf16_f32 v%d, v%d, v%d" % (dst + 2 * f + 1, s_ + 2, s_ + 3))
            L.append("s_waitcnt lgkmcnt(%d)" % (1 if b < 7 else 0))
            for f in range(2):
                s_ = fetch(tl[4 + f], FT, L)
                mul44(L, s_, s_, RVB[(b + 1) & 1])
                dst = VPB[f] + 2 * (b + 1)
                L.append("v_cvt_pk_bf16_f32 v%d, v%d, v%d" % (dst, s_, s_ + 1))
                L.append("v_cvt_pk_bf16_f32 v%d, v%d, v%d" % (dst + 1, s_ + 2, s_ + 3))
            groups.append((pre, cl, L))
        for x_ in groups[0][0] + groups[0][1]: a(x_)
        for k, (pre, cl, vl) in enumerate(groups):
            if k + 1 < len(groups):
                for x_ in groups[k + 1][0]: a(x_)
                for x_ in spread(vl, groups[k + 1][1], 0.05, 0.6): a(x_)
            else:
                for x_ in vl: a(x_)
        nst("e2")
        K1 = [tiles[(3, mf)].base for mf in range(8)]
        BP, BC, BPF = K1[0], K1[1], K1[2]
        a("v_and_b32 v%d, 15, v0", T0)
        a("v_lshrrev_b32 v%d, 4, v0", T1)
        a("v_lshlrev_b32 v%d, 2, v%d", T1, T1)
        a("v_sub_u32 v%d, v%d, v%d", T0, T0, T1)
        a("v_mov_b32 v%d, %s", T3, f32(-1e30))
        a("s_mov_b32 s%d, 0x80000001", S_T3)
        a("s_brev_b32 s%d, 1", S_T2)
        for i in range(4):
            a("v_subrev_u32 v%d, %d, v%d", T1, i, T0)
            a("v_and_b32 v%d, s%d, v%d", T1, S_T3, T1)
            a("v_cmp_eq_u32 vcc, 0, v%d", T1)
            a("v_cndmask_b32 v%d, v%d, 0, vcc", BC + i, T3)
            a("v_cmp_eq_u32 vcc, s%d, v%d", S_T2, T1)
            a("v_cndmask_b32 v%d, v%d, 0, vcc", BP + i, T3)
        if wm == 0:
            a("s_cmp_eq_u32 s%d, 0", S_M0)
            a("s_cselect_b64 vcc, -1, 0")
            for i in range(4): a("v_cndmask_b32 v%d, v%d, v%d, vcc", BPF + i, BP + i, T3)
        else: BPF = BP
        sets = [(VPB[0] + 18, K1[3], K1[4]), (VPB[1] + 18, K1[5], K1[6])]
        def attn(b):
            base, P, M = sets[b & 1]
            SP, SC, O0, O1 = base, base + 4, base + 8, base + 12
            Tm = M + 1; Sm = M + 2; S2 = M + 3
            Qb = tiles[(0, b)].base; Kb = tiles[(2, b)].base; Kp = KPK if b == 0 else tiles[(2, b - 1)].base
            bp = BPF if b == 0 else BP
            L = []
            L.append("v_mfma_f32_16x16x32_bf16 v[%d:%d], v[%d:%d], v[%d:%d], v[%d:%d]" % (SP, SP + 3, Kp, Kp + 3, Qb, Qb + 3, bp, bp + 3))
            L.append("v_mfma_f32_16x16x32_bf16 v[%d:%d], v[%d:%d], v[%d:%d], v[%d:%d]" % (SC, SC + 3, Kb, Kb + 3, Qb, Qb + 3, BC, BC + 3))
            L += ["NOP"] * 4
            L.append("v_max3_f32 v%d, v%d, v%d, v%d" % (M, SP, SP + 1, SP + 2))
            L.append("v_max3_f32 v%d, v%d, v%d, v%d" % (Tm, SP + 3, SC, SC + 1))
            L.append("v_max3_f32 v%d, v%d, v%d, v%d" % (M, M, SC + 2, SC + 3))
            L.append("v_max_f32 v%d, v%d, v%d" % (M, M, Tm))
            for sw in ("16", "32"):
                L.append("v_mov_b32 v%d, v%d" % (Tm, M))
                L.append("v_permlane%s_swap_b32 v%d, v%d" % (sw, M, Tm))
                L.append("v_max_f32 v%d, v%d, v%d" % (M, M, Tm))
            for i in range(8): L.append("v_sub_f32 v%d, v%d, v%d" % (SP + i, SP + i, M))
            for i in range(8): L.append("v_exp_f32 v%d, v%d" % (SP + i, SP + i))
            for i in range(4): L.append("v_cvt_pk_bf16_f32 v%d, v%d, v%d" % (P + i, SP + 2 * i, SP + 2 * i + 1))
            L.append("v_add_f32 v%d, v%d, v%d" % (Sm, SP, SP + 1))
            L.append("v_add_f32 v%d, v%d, v%d" % (S2, SP + 2, SP + 3))
            for f, O in enumerate((O0, O1)):
                vb = VPB[f] + 2 * b
                L.append("v_mfma_f32_16x16x32_bf16 v[%d:%d], v[%d:%d], v[%d:%d], 0" % (O, O + 3, vb, vb + 3, P, P + 3))
            L.append("v_add_f32 v%d, v%d, v%d" % (Sm, Sm, SP + 4))
            L.append("v_add_f32 v%d, v%d, v%d" % (S2, S2, SP + 5))
            L.append("v_add_f32 v%d, v%d, v%d" % (Sm, Sm, SP + 6))
            L.append("v_add_f32 v%d, v%d, v%d" % (S2, S2, SP + 7))
            L.append("v_add_f32 v%d, v%d, v%d" % (Sm, Sm, S2))
            for sw in ("16", "32"):
                L.append("v_mov_b32 v%d, v%d" % (Tm, Sm))
                L.append("v_permlane%s_swap_b32 v%d, v%d" % (sw, Sm, Tm))
                L.append("v_add_f32 v%d, v%d, v%d" % (Sm, Sm, Tm))
            L.append("v_rcp_f32 v%d, v%d" % (Sm, Sm))
            mul4(L, O0, O0, Sm); mul4(L, O1, O1, Sm)
            st_ = S_T if b & 1 else S_T2
            L.append("s_add_u32 s%d, s%d, %d" % (st_, S_AB, b * 1024))
            L.append("v_cvt_pk_bf16_f32 v%d, v%d, v%d" % (SP, O0, O0 + 1))
            L.append("v_cvt_pk_bf16_f32 v%d, v%d, v%d" % (SP + 2, O1, O1 + 1))
            L.append("v_cvt_pk_bf16_f32 v%d, v%d, v%d" % (SP + 1, O0 + 2, O0 + 3))
            L.append("v_cvt_pk_bf16_f32 v%d, v%d, v%d" % (SP + 3, O1 + 2, O1 + 3))
            L.append("v_permlane32_swap_b32 v%d, v%d" % (SP, SP + 2))
            L.append("v_permlane32_swap_b32 v%d, v%d" % (SP + 1, SP + 3))
            L.append("buffer_store_dwordx4 v[%d:%d], v%d, s[%d:%d], s%d offen%s" % (SP, SP + 3, V_L16, S_ACT, S_ACT + 3, st_, STM))
            return L
        SAa = sum((attn(b) for b in range(0, 8, 2)), [])
        SBb = sum((attn(b) for b in range(1, 8, 2)), [])
        sh = len(attn(0)) // 2
        for x_ in zipl(SAa + ["NOP"] * sh, ["NOP"] * sh + SBb):
            if x_ != "NOP": a(x_)
        nst("e3")
        for mf in range(8): a("v_mul_f32 v%d, %s, v%d", CG + mf, f32(-LOG2E), RR + mf + 1)
        run_groups(glu_groups([(6, 8, S_K1, 0)], [TV, TV + 16]))
        if FUSE: weave(w)
        a("s_branch %s", fin)

    for w in range(4):
        variant(w)
        a("s_nop 7"); a("s_nop 7")
        for l1, l2 in SPINS:
            a.label(l1)
            a("ds_read_b32 v%d, v%d", V_FD, V_FR)
            a("s_waitcnt lgkmcnt(0)")
            a("v_cmp_lt_u32 vcc, v%d, v%d", V_FD, V_FS)
            a("s_cbranch_vccnz %s", l1)
            a("s_branch %s", l2)
        del SPINS[:]
        for l1, l2, hpoll in HSPIN:
            a.label(l1)
            a("s_sleep 2")
            if H2 and w == 0:
                a("buffer_load_dword v239, off, s[%d:%d], s%d sc1", p2.Q_F, p2.Q_F + 3, S_C0)
                a("s_waitcnt vmcnt(0)")
                a("v_readfirstlane_b32 s%d, v239", S_OK)
                a("s_cmp_eq_u32 s%d, 0", S_OK)
                a("s_cbranch_scc1 %s", l1)
                for x_ in hpoll: a(x_[0])
                a("s_waitcnt vmcnt(0)")
                a("s_branch %s", l2)
                continue
            if H2:
                for x_ in hpoll: a(x_)
                a("s_waitcnt lgkmcnt(0)")
                a("v_readfirstlane_b32 s%d, v239", S_OK)
                a("s_cmp_eq_u32 s%d, 0", S_OK)
                a("s_cbranch_scc1 %s", l1)
                a("s_branch %s", l2)
                continue
            for x_ in hpoll: a(x_[0] if isinstance(x_, tuple) else x_)
            a("s_waitcnt vmcnt(0)")
            a("v_readfirstlane_b32 s%d, v%d", S_OK, TV)
            a("s_cmp_eq_u32 s%d, 0", S_OK)
            a("s_cbranch_scc1 %s", l1)
            a("s_branch %s", l2)
        del HSPIN[:]
    a.label(fin)
    nst("epi")
    if FUSE:
        lslow = a.newlab("L_p2_slow"); lback = a.newlab("L_p2_back")
        if not opt.get("wv2"):
            a("s_cmp_eq_u32 s%d, 0", p2.Q_A2 + 2)
            a("s_cbranch_scc1 %s", lslow)
        a.label(lback)
        if EP2: QENT.append([('A', s_) for s_ in range(opt.get("wv_na", 8)) for _ in range(4)])
        spins = p2.body(a, QENT, NPRE, True, lambda i: nst(["p0", "p20", "p28", "p36"][i]))
    if opt.get("prof"):
        a("s_waitcnt vmcnt(0)")
    stamp(a, opt, 4)
    stamp_store(a, opt, 5, P_WS, S_W, 1, 20)
    a.label(done)
    a("s_endpgm")
    if FUSE:
        a("s_nop 7")
        p2.spin_code(a, spins)
    if FUSE and not opt.get("wv2"):
        a.label(lslow)
        a("v_mov_b32 v%d, %d", T2, 2 if EP2 else 1)
        a("s_waitcnt vmcnt(0)")
        nst("sl1")
        a("s_mov_b64 exec, 1")
        a("buffer_store_dword v%d, off, s[%d:%d], s%d sc1", T2, p2.Q_F, p2.Q_F + 3, p2.Q_FSIG)
        a("s_mov_b64 exec, -1")
        lsl2 = a.newlab("L_p2_slow2")
        a.label(lsl2)
        if opt.get("wv_sleep"): a("s_sleep %d", opt["wv_sleep"])
        p2.poll_emit(a, 0)
        a("s_waitcnt vmcnt(0)")
        for x_ in p2.poll_test(0): a(x_)
        a("s_cbranch_scc1 %s", lsl2)
        nst("sl2")
        for s_ in range(opt.get("wv_na", 8) if EP2 else 8):
            for x_ in p2.a_job(s_): a(x_[0] if isinstance(x_, tuple) else x_)
        if not EP2: a("s_waitcnt vmcnt(%d)", 0)
        a("s_branch %s", lback)
    if FUSE:
        i0 = a.l.index(labs[3] + ":"); i1 = a.l.index(fin + ":")
        a.l = [".p2align 8", "L_code_start:"] + a.l[i0:i1] + a.l[:i0] + a.l[i1:]
    lines, added = hazard.fix(a.l)
    a0.l += lines
    a0._lab = a._lab
    return kernel_desc(name, 512, 256, 102 if FUSE else 100)
```

```python
from gen_common import *
import hazard

NSLOT = 9
FLG_ACT = 4096
FLG_BYTES = 4096 + 8192
SLOTB = [160, 176, 192, 208, 224, 240] + [16 * i for i in range(10)]

class P2:
    Q_X, Q_O, Q_P, Q_F, Q_A, Q_W, Q_A2 = 4, 8, 12, 16, 20, 64, 60
    Q_BA, Q_BC, Q_BT, Q_BP, Q_KD, Q_WG, Q_WT, Q_M0W = 32, 33, 34, 35, 36, 37, 38, 39
    Q_T, Q_T2, Q_OK = 46, 47, 48
    Q_XROW, Q_PSEND, Q_PRECV, Q_FSEND, Q_FRECV, Q_FPOLL, Q_FSIG, Q_KS, Q_MT, Q_NT = 68, 69, 70, 71, 72, 73, 74, 75, 76, 77
    P_OUT = 100
    V_L16 = 18; V_POLL = 78
    V_R = [18, 2, 3]; V_XL = 4; V_XO = 5; V_FL = 6; V_ONE = 7; V_ZERO = 8; T0, T1, T2, T3 = 9, 10, 11, 12
    XL = 20; RECV = 208

    def __init__(self, opt, S_W):
        self.opt = opt; self.S_W = S_W; self.nst = None
        self.EP2 = opt.get("ep2", 0); self.XE = opt.get("xe", 0)
        self.SL = list(SLOTB)
        if self.XE:
            self.SL = SLOTB[1:self.XE + 1] + SLOTB[:1] + SLOTB[self.XE + 1:]
            self.XL = 240
        self.AKB = opt.get("akb", 131072)
        self.amod = opt.get("p2_amod", " sc1"); self.wmod = opt.get("p2_wmod", " sc1")
    def acc(self, half, mf, nf): return R('v', 80 + half * 32 + (mf * 2 + nf) * 4, 4)
    def afrag(self, st, i): return R('v', 144 + st * 32 + i * 4, 4)
    def wfrag(self, b, kk, nf): return R('a', self.SL[b & 15] + (kk * 2 + nf) * 4, 4)

    def setup_s(self):
        p = self; L = []; AKB = p.AKB; W = p.S_W
        def e(s, *x): L.append(s % x if x else s)
        e("s_and_b32 s%d, s2, 1", p.Q_KS)
        e("s_bfe_u32 s%d, s2, 0x20001", p.Q_MT)
        e("s_lshl_b32 s%d, s%d, 2", p.Q_MT, p.Q_MT)
        e("s_lshr_b32 s%d, s2, 6", p.Q_T)
        e("s_add_u32 s%d, s%d, s%d", p.Q_MT, p.Q_MT, p.Q_T)
        e("s_bfe_u32 s%d, s2, 0x30003", p.Q_NT)
        e("s_lshl_b32 s%d, s%d, 12", p.Q_M0W, W)
        e("s_lshl_b32 s%d, s%d, 1", p.Q_T, p.Q_MT)
        e("s_add_u32 s%d, s%d, s%d", p.Q_T, p.Q_T, p.Q_KS)
        e("s_lshl_b32 s%d, s%d, 17", p.Q_XROW, p.Q_T)
        e("s_lshl_b32 s%d, s%d, 12", p.Q_T, p.Q_T)
        e("s_xor_b32 s%d, s%d, 4096", p.Q_T2, p.Q_T)
        e("s_sub_u32 s%d, s%d, s%d", p.Q_KD, p.Q_T, p.Q_T2)
        e("s_lshl_b32 s%d, s%d, 4", p.Q_BT, p.Q_KS)
        e("s_add_u32 s%d, s%d, s%d", p.Q_BT, p.Q_BT, W)
        e("s_mul_i32 s%d, s%d, %d", p.Q_BT, p.Q_BT, AKB)
        e("s_add_u32 s%d, s%d, s%d", p.Q_BT, p.Q_BT, p.Q_T2)
        e("s_mul_i32 s%d, s%d, 56", p.Q_WG, p.Q_KS)
        e("s_add_u32 s%d, s%d, 32", p.Q_WG, p.Q_WG)
        e("s_lshr_b32 s%d, s%d, 1", p.Q_BC, W)
        e("s_lshl_b32 s%d, s%d, 2", p.Q_BP, W)
        e("s_sub_u32 s%d, s%d, s%d", p.Q_BP, p.Q_BP, p.Q_BC)
        e("s_add_u32 s%d, s%d, s%d", p.Q_BP, p.Q_BP, p.Q_WG)
        e("s_mul_i32 s%d, s%d, %d", p.Q_BP, p.Q_BP, AKB)
        e("s_add_u32 s%d, s%d, s%d", p.Q_BP, p.Q_BP, p.Q_T2)
        e("s_and_b32 s%d, s%d, 1", p.Q_T2, W)
        e("s_lshl_b32 s%d, s%d, 12", p.Q_T2, p.Q_T2)
        e("s_xor_b32 s%d, s%d, s%d", p.Q_T, p.Q_T, p.Q_T2)
        e("s_lshl_b32 s%d, s%d, 2", p.Q_BA, p.Q_BC)
        e("s_add_u32 s%d, s%d, s%d", p.Q_BA, p.Q_BA, p.Q_WG)
        e("s_mul_i32 s%d, s%d, %d", p.Q_BA, p.Q_BA, AKB)
        e("s_add_u32 s%d, s%d, s%d", p.Q_BA, p.Q_BA, p.Q_T)
        e("s_mul_i32 s%d, s%d, 7", p.Q_BC, p.Q_BC)
        e("s_add_u32 s%d, s%d, s%d", p.Q_BC, p.Q_BC, p.Q_WG)
        e("s_mul_i32 s%d, s%d, %d", p.Q_BC, p.Q_BC, AKB)
        e("s_add_u32 s%d, s%d, s%d", p.Q_BC, p.Q_BC, p.Q_T)
        e("s_lshl_b32 s%d, s%d, 13", p.Q_T, p.Q_NT)
        e("s_lshl_b32 s%d, s%d, 11", p.Q_T2, W)
        e("s_add_u32 s%d, s%d, s%d", p.Q_T, p.Q_T, p.Q_T2)
        e("s_lshl_b32 s%d, s%d, 16", p.Q_WG, p.Q_WG)
        e("s_add_u32 s%d, s%d, s%d", p.Q_WG, p.Q_WG, p.Q_T)
        e("s_lshl_b32 s%d, s%d, 20", p.Q_WT, p.Q_KS)
        e("s_add_u32 s%d, s%d, s%d", p.Q_WT, p.Q_WT, p.Q_T)
        e("s_lshr_b32 s%d, s%d, 5", p.Q_T, p.Q_T)
        e("s_add_u32 s%d, s%d, s%d", p.Q_XROW, p.Q_XROW, p.Q_T)
        e("s_lshl_b32 s%d, s%d, 3", p.Q_T, p.Q_MT)
        e("s_add_u32 s%d, s%d, s%d", p.Q_T, p.Q_T, p.Q_NT)
        e("s_lshl_b32 s%d, s%d, 1", p.Q_T, p.Q_T)
        e("s_add_u32 s%d, s%d, s%d", p.Q_T, p.Q_T, p.Q_KS)
        e("s_lshl_b32 s%d, s%d, 2", p.Q_T, p.Q_T)
        e("s_add_u32 s%d, s%d, s%d", p.Q_T, p.Q_T, W)
        e("s_xor_b32 s%d, s%d, 4", p.Q_T2, p.Q_T)
        e("s_lshl_b32 s%d, s%d, 13", p.Q_PRECV, p.Q_T)
        e("s_lshl_b32 s%d, s%d, 13", p.Q_PSEND, p.Q_T2)
        e("s_lshl_b32 s%d, s%d, 2", p.Q_FRECV, p.Q_T)
        e("s_lshl_b32 s%d, s%d, 2", p.Q_FSEND, p.Q_T2)
        e("s_lshl_b32 s%d, s%d, 9", p.Q_FPOLL, p.Q_MT)
        e("s_lshl_b32 s%d, s%d, 8", p.Q_T, p.Q_KS)
        e("s_add_u32 s%d, s%d, s%d", p.Q_FPOLL, p.Q_FPOLL, p.Q_T)
        e("s_add_u32 s%d, s%d, %d", p.Q_FPOLL, p.Q_FPOLL, FLG_ACT)
        e("s_mov_b32 s%d, s%d", p.Q_O, p.P_OUT); e("s_mov_b32 s%d, s%d", p.Q_O + 1, p.P_OUT + 1)
        e("s_mov_b32 s%d, 0x%x", p.Q_O + 2, 2048 * 2048); e("s_mov_b32 s%d, 0x00020000", p.Q_O + 3)
        for d, off, nb in ((p.Q_P, WS_PART, 256 * 32768), (p.Q_F, WS_FLAGS, FLG_BYTES)):
            L.append(["s_add_u32 s%d, s%d, 0x%x" % (d, p.Q_A, off - WS_ACT2), "s_addc_u32 s%d, s%d, 0" % (d + 1, p.Q_A + 1)])
            e("s_mov_b32 s%d, 0x%x", d + 2, nb); e("s_mov_b32 s%d, 0x00020000", d + 3)
        e("s_mov_b32 s%d, s%d", p.Q_A2, p.Q_A); e("s_mov_b32 s%d, s%d", p.Q_A2 + 1, p.Q_A + 1)
        e("s_mov_b32 s%d, 0", p.Q_A2 + 2); e("s_mov_b32 s%d, 0x00020000", p.Q_A2 + 3)
        return L

    def a_job(self, s, srd=None, other=False):
        p = self; srd = p.Q_A if srd is None else srd
        if s < 8: base, kb = p.Q_BA, 7 * s + 1
        elif s < 16: base, kb = p.Q_BA, 7 * (s - 8) + (0 if p.EP2 else 2)
        elif s < 20: base, kb = p.Q_BC, 14 * (s - 16) + 3
        elif p.EP2:
            i = (s - 20) % 8
            base, kb = (p.Q_BP, 14 * i + 2) if i < 4 else (p.Q_BT, 4 * (i - 4))
        elif (s - 20) % 8 < 4: base, kb = p.Q_BT, 4 * ((s - 20) % 8)
        else: base, kb = p.Q_BP, 14 * ((s - 24) % 8)
        L = []
        if s == 28: L += ["s_add_u32 s%d, s%d, s%d" % (p.Q_BT, p.Q_BT, p.Q_KD), "s_add_u32 s%d, s%d, s%d" % (p.Q_BP, p.Q_BP, p.Q_KD)]
        if other: L += ["s_sub_u32 m0, m0, 8192", "s_sub_u32 s%d, s%d, %d" % (p.Q_T, p.Q_T, 4 * p.AKB)]
        else: L += ["s_add_u32 m0, s%d, %d" % (p.Q_M0W, (s % NSLOT) * 16384), "s_add_u32 s%d, s%d, %d" % (p.Q_T, base, kb * p.AKB)]
        for i in range(4):
            L.append(("buffer_load_dwordx4 v%d, s[%d:%d], s%d offen offset:%d%s lds" % (p.V_L16, srd, srd + 3, p.Q_T, 1024 * i, p.amod), ('A', s)))
        return L
    def w_kbs(self, b):
        if b < 8: return self.Q_WG, 7 * b + 1, 4
        if b < 16: return self.Q_WG, 7 * (b - 8) + (0 if self.EP2 else 2), 4
        if b < 20: return self.Q_WG, 14 * (b - 16) + 3, 7
        if self.EP2: return (self.Q_WG, 7 * (b - 20) + 2, 4) if b < 28 else (self.Q_WT, 2 * (b - 28), 1)
        if b < 28: return self.Q_WT, 2 * (b - 20), 1
        return self.Q_WG, 7 * (b - 28), 4
    def w_job(self, b):
        p = self; base, kb, d = p.w_kbs(b); L = []
        for kk in range(2):
            L.append("s_add_u32 s%d, s%d, %d" % (p.Q_T2, base, (kb + kk * d) * 65536))
            for nf in range(2):
                L.append(("buffer_load_dwordx4 %s, v%d, s[%d:%d], s%d offen offset:%d%s" % (p.wfrag(b, kk, nf), p.V_L16, p.Q_W, p.Q_W + 3, p.Q_T2, 1024 * nf, p.wmod), ('W', b)))
        return L
    def poll_ld(self, t):
        p = self
        return ("buffer_load_dword v%d, v%d, s[%d:%d], s%d offen offset:%d sc1" % (p.V_POLL, p.V_L16, p.Q_F, p.Q_F + 3, p.Q_FPOLL, 4 * (t & 1) if p.EP2 else 4 * t), ('PL', t))
    def poll_seq(self, t):
        if self.opt.get("p2_pl16"): return ["s_mov_b64 exec, 0xffff", self.poll_ld(t), "s_mov_b64 exec, -1"]
        return [self.poll_ld(t)]
    def poll_emit(self, a, t):
        for x in self.poll_seq(t): a(x[0] if isinstance(x, tuple) else x)
    def poll_test(self, t):
        if self.EP2: return ["v_cmp_gt_u32 vcc, %d, v%d" % (1 + (t >> 1), self.V_POLL), "s_and_b32 s%d, vcc_lo, 0xffff" % self.Q_T]
        return ["v_cmp_eq_u32 vcc, 0, v%d" % self.V_POLL, "s_and_b32 s%d, vcc_lo, 0xffff" % self.Q_T]

    def body(self, a, queues, npre, fused, stamp_fn=None):
        p = self; opt = p.opt
        qs = [list(q) for q in queues]
        def push(t):
            for q in qs: q.append(t)
        def need(tags):
            n = 63
            for q in qs:
                idx = [i for i, t in enumerate(q) if t in tags]
                if idx: n = min(n, len(q) - 1 - max(idx))
            return n
        def need1(q, tags):
            idx = [i for i, t in enumerate(q) if t in tags]
            return min(63, len(q) - 1 - max(idx)) if idx else 63
        def vwait(tags):
            if p.EP2:
                n0 = min(need1(q_, tags) for q_ in qs[:4]); n1 = need1(qs[4], tags)
                if n0 > n1 + 1:
                    l_ = a.newlab("L_p2_w")
                    a("s_cmp_lg_u32 s%d, 0", p.Q_A2 + 2)
                    a("s_cbranch_scc1 %s", l_)
                    a("s_waitcnt vmcnt(%d)", n1)
                    a.label(l_)
                    a("s_waitcnt vmcnt(%d)", n0)
                    return
            elif len(qs) == 4 and opt.get("wv2"):
                n0 = min(need1(qs[0], tags), need1(qs[1], tags)); n1 = min(need1(qs[2], tags), need1(qs[3], tags))
                if n0 > n1 + 1:
                    l_ = a.newlab("L_p2_w")
                    a("s_cmp_lt_u32 s%d, 2", p.S_W)
                    a("s_cbranch_scc1 %s", l_)
                    a("s_waitcnt vmcnt(%d)", n1)
                    a.label(l_)
                    a("s_waitcnt vmcnt(%d)", n0)
                    return
            a("s_waitcnt vmcnt(%d)", need(tags))
        lq = []
        def lwait(tags):
            idx = [i for i, t in enumerate(lq) if t in tags]
            if not idx: return
            n = len(lq) - 1 - max(idx)
            a("s_waitcnt lgkmcnt(%d)", min(n, 15))
            del lq[:len(lq) - min(n, 15)]
        spins = []
        def emit(x):
            if isinstance(x, tuple):
                if x[1][0] in opt.get("p2_skip", []): return
                a(x[0]); push(x[1])
            elif callable(x): x()
            else: a(x)
        def rd(n):
            c, u = n >> 1, n & 1
            out = []
            for i in range(8):
                off = (c % NSLOT) * 16384 + u * 8192 + i * 1024
                out.append(("ds_read_b128 %s, v%d offset:%d" % (p.afrag(u, i), p.V_R[off >> 16], off & 65535), ('L', n, i)))
            return out
        def wblocks(c): return [c] if c < 20 else [20 + 2 * ((c - 20) % 8), 21 + 2 * ((c - 20) % 8)]
        touched = set()
        def mf_list(n):
            c, u = n >> 1, n & 1
            out = []
            for i in range(8):
                for z in range(2):
                    nf = z ^ (i & 1)
                    if c < 20: t = p.acc(i >> 2, i & 3, nf); wf = p.wfrag(c, u, nf)
                    else: t = p.acc(1 if c < 28 else 0, i & 3, nf); wf = p.wfrag(wblocks(c)[u], i >> 2, nf)
                    if opt.get("p2_m32x"):
                        if z == 1: out.append(("", i)); continue
                        t = R('v', 80 + 16 * ((i & 3) if c < 20 else (2 + (i & 1)) if c < 28 else (i & 1)), 16)
                        first = t.base not in touched; touched.add(t.base)
                        out.append(("v_mfma_f32_32x32x16_bf16 %s, %s, %s, %s" % (t, wf, p.afrag(u, i), "0" if first else t), i))
                        continue
                    first = t.base not in touched; touched.add(t.base)
                    out.append(("v_mfma_f32_16x16x32_bf16 %s, %s, %s, %s" % (t, wf, p.afrag(u, i), "0" if first else t), i))
            return out
        a("v_add_u32 v%d, 65536, v%d", p.V_R[1], p.V_L16)
        a("v_add_u32 v%d, 131072, v%d", p.V_R[2], p.V_L16)
        vwait([('A', 0), ('W', 0)])
        a("s_barrier")
        if stamp_fn: stamp_fn(0)
        for ins, tag in rd(0): a(ins); lq.append(tag)
        T0, T1, T2, T3 = p.T0, p.T1, p.T2, p.T3
        misc = ["v_and_b32 v%d, 15, v0" % T0, "v_lshrrev_b32 v%d, 4, v0" % T1, "v_lshlrev_b32 v%d, 11, v%d" % (T0, T0),
                "v_lshl_add_u32 v%d, v%d, 3, v%d" % (p.V_XL, T1, T0),
                "v_and_b32 v%d, 1, v%d" % (T2, T1), "v_lshl_add_u32 v%d, v%d, 5, v%d" % (T2, T2, T0), "v_lshrrev_b32 v%d, 1, v%d" % (T3, T1),
                "v_lshl_add_u32 v%d, v%d, 4, v%d" % (p.V_XO, T3, T2), "v_mov_b32 v%d, %d" % (p.V_ONE, 2 if p.EP2 else 1), "v_mov_b32 v%d, 0" % p.V_ZERO]
        for x in misc: a(x)
        D0 = opt.get("p2_d0", 2) if fused else 0
        jobs = {c: [] for c in range(-1, 36)}
        NA0 = opt.get("wv2", 8) if fused else 8
        if p.EP2: NA0 = opt.get("wv_na", 8)
        CK = {8: 1, 16: 2, 24: 3} if p.EP2 else {8: 1, 16: 2, 20: 3}
        def check(t):
            def f():
                l1 = a.newlab("L_p2_sp"); l2 = a.newlab("L_p2_sr")
                if p.nst: p.nst("c%da" % t)
                a("s_waitcnt vmcnt(%d)", need([('PL', t)]))
                for x in p.poll_test(t): a(x)
                a("s_cbranch_scc1 %s", l1)
                a.label(l2)
                if p.nst: p.nst("c%db" % t)
                spins.append((l1, l2, t))
            return f
        dma_at = {s: max(s - 8, D0 + (s - 8) // 2, (s - NA0) // 2 - 1) for s in range(8, 36)}
        for s in range(NA0, 8): dma_at[s] = (s - NA0) // 2 - 1
        if opt.get("p2_ramp"):
            s = NA0; LAM = opt.get("p2_la", 8)
            for c in range(-1, 36):
                r_ = opt["p2_ramp"][c + 1] if c + 1 < len(opt["p2_ramp"]) else 1
                while r_ and s < 36 and s - LAM <= c:
                    dma_at[s] = c; s += 1; r_ -= 1
            assert s == 36
        nxtw = npre
        for c in range(-1, 36):
            for s in range(NA0, 36):
                if dma_at[s] == c:
                    if fused and s in CK: jobs[c].append([check(CK[s])])
                    j = p.a_job(s); k = len(j) - 4
                    jobs[c] += [j[:k + 1]] + [[x] for x in j[k + 1:]]
            nw = 0
            while c >= opt.get("p2_w0", 0) and nxtw < 36 and nxtw - 16 < c and nw < (opt["p2_wpat"][c % len(opt["p2_wpat"])] if opt.get("p2_wpat") else opt.get("p2_wps", 2)):
                j = p.w_job(nxtw); jobs[c] += [j[0:2], j[2:3], j[3:5], j[5:6]]; nxtw += 1; nw += 1
        if fused:
            for s, t in CK.items():
                c = dma_at[s] - 2
                if c >= 0: jobs[c].insert(0, p.poll_seq(t))
                else:
                    for x in p.poll_seq(t): emit(x)
            SG = opt.get("p2_sig", 2)
            def sig():
                if p.nst: p.nst("sga")
                a("s_waitcnt vmcnt(%d)", need([('AS', 0)]))
                if p.nst: p.nst("sgb")
                a("s_mov_b64 exec, 1")
                emit(("buffer_store_dword v%d, v%d, s[%d:%d], s%d offen sc1" % (p.V_ONE, p.V_ZERO, p.Q_F, p.Q_F + 3, p.Q_FSIG), ('SG', 0)))
                a("s_mov_b64 exec, -1")
            jobs[SG].insert(0, [sig])
        XLATE = opt.get("p2_xl", 0)
        XC = XLATE if XLATE else 10
        for mf in range(0 if p.XE else 4):
            jobs[XC + (mf >> 1 if XLATE else mf)].append(["s_add_u32 s%d, s%d, %d" % (p.Q_T2, p.Q_XROW, mf * 32768)] +
                                 [("buffer_load_dwordx2 v[%d:%d], v%d, s[%d:%d], s%d offen offset:%d" % (p.XL + (mf * 2 + nf) * 2, p.XL + (mf * 2 + nf) * 2 + 1, p.V_XL, p.Q_X, p.Q_X + 3, p.Q_T2, nf * 32), ('X', 0)) for nf in range(2)])
        valu = {c: [] for c in range(36)}
        XA = 33 if XLATE else 21
        valu[XA].append([lambda: a("s_waitcnt vmcnt(%d)", need([('X', 0), ('S', 0)])), "s_mov_b32 s%d, 0xffff0000" % p.Q_BA])
        for k in range(8):
            t = p.acc(0, k >> 1, k & 1); d = p.XL + 2 * k
            for h in range(2):
                if XLATE:
                    t = p.acc(1, k >> 1, k & 1)
                    valu[XA + k // 4].append(["v_lshlrev_b32 %s, 16, v%d" % (t.sub(2 * h), d + h), "v_and_b32 %s, s%d, v%d" % (t.sub(2 * h + 1), p.Q_BA, d + h)])
                    continue
                c = 21 + k // 2
                valu[c].append(["v_lshlrev_b32 v%d, 16, v%d" % (T0, d + h), "v_and_b32 v%d, s%d, v%d" % (T1, p.Q_BA, d + h)])
                valu[c].append(["v_add_f32 %s, %s, v%d" % (t.sub(2 * h), t.sub(2 * h), T0), "v_add_f32 %s, %s, v%d" % (t.sub(2 * h + 1), t.sub(2 * h + 1), T1)])
        FA = opt.get("p2_fa", 31); PA = opt.get("p2_pa", 33); RA = opt.get("p2_ra", 34)
        pre0 = {c: [] for c in range(36)}
        for k in range(8):
            t = p.acc(1, k >> 1, k & 1)
            pre0[28].append([("buffer_store_dwordx4 %s, v%d, s[%d:%d], s%d offen offset:%d sc1" % (t, p.V_L16, p.Q_P, p.Q_P + 3, p.Q_PSEND, (k & 3) * 1024), ('S', 0))]
                            + (["s_add_u32 s%d, s%d, 4096" % (p.Q_PSEND, p.Q_PSEND)] if k == 3 else []))
        def flag():
            a("s_waitcnt vmcnt(%d)", need([('S', 0)]))
            emit(("buffer_store_dword v%d, v%d, s[%d:%d], s%d offen sc1" % (p.V_ONE, p.V_ZERO, p.Q_F, p.Q_F + 3, p.Q_FSEND), ('F', 0)))
        jobs[FA].insert(0, [flag])
        jobs[PA].append([("buffer_load_dword v%d, v%d, s[%d:%d], s%d offen sc1" % (p.V_FL, p.V_ZERO, p.Q_F, p.Q_F + 3, p.Q_FRECV), ('FL', 0))])
        def rloads():
            return [("buffer_load_dwordx4 v[%d:%d], v%d, s[%d:%d], s%d offen offset:%d sc1" % (p.RECV + 4 * k, p.RECV + 4 * k + 3, p.V_L16, p.Q_P, p.Q_P + 3, p.Q_PRECV if k < 4 else p.Q_T2, (k & 3) * 1024), ('R', 0)) for k in range(8)]
        jobs[RA].append([lambda: a("s_waitcnt vmcnt(%d)", need([('FL', 0)])), "v_readfirstlane_b32 s%d, v%d" % (p.Q_OK, p.V_FL), "s_add_u32 s%d, s%d, 4096" % (p.Q_T2, p.Q_PRECV)])
        jobs[RA] += [[x] for x in rloads()]
        pend = list(jobs[-1]); gap = 0; step_ = 1
        JG = opt.get("p2_jg", 2)
        for n in range(72):
            c, u = n >> 1, n & 1
            ms = mf_list(n)
            nr = rd(n + 1) if n + 1 < 72 else []
            side = list(pre0[c]) if u == 0 else []
            vs = valu[c][u * 8:(u + 1) * 8] if len(valu[c]) <= 16 else None
            for k, (m, i) in enumerate(ms):
                LW = opt.get("p2_lw", 1) if n else 1
                lwait([('L', n, min(7, i // LW * LW + LW - 1))])
                if m: a(m)
                if k == 0 and u == 1:
                    if c < 35:
                        vwait([('A', c + 1)] + [('W', b) for b in wblocks(c + 1)])
                        if not opt.get("p2_nobar"): a("s_barrier")
                    assert not pend, (c, pend)
                    pend = list(jobs[c]); gap = 0
                    span = 30 if c < 35 else 14
                    step_ = max(1, min(JG + 1, span // max(1, len(pend))))
                    if opt.get("p2_even"):
                        step_ = 1
                        for st in (4, 2):
                            if 2 + (len(pend) - 1) * st <= span + 1: step_ = st; break
                        if step_ == 4 and opt["p2_even"] > 1 and pend:
                            np_ = []
                            for it in pend:
                                k_ = 0
                                while k_ < len(it) - 1 and isinstance(it[k_], str) and it[k_].startswith("s_add"): k_ += 1
                                np_ += [it[:k_], it[k_:]]
                            for x in np_.pop(0): emit(x)
                            pend = np_; step_ = 2
                if k % 2 == 0 and nr:
                    ins, tag = nr.pop(0)
                    if not opt.get("p2_nolds"): a(ins); lq.append(tag)
                elif side and k >= 1:
                    for x in side.pop(0): emit(x)
                elif vs:
                    for x in vs.pop(0): emit(x)
                if pend:
                    gap += 1
                    if gap >= 2 and (gap - 2) % step_ == 0:
                        for x in pend.pop(0): emit(x)
            assert not side and not vs
            if stamp_fn and n in (39, 55): stamp_fn(1 if n == 39 else 2)
            if p.nst and u == 1: p.nst("q%d" % (c + 1))
        assert not pend
        if stamp_fn: stamp_fn(3)
        if XLATE:
            a("s_nop 4")
            for k in range(8):
                t = p.acc(0, k >> 1, k & 1); x_ = p.acc(1, k >> 1, k & 1)
                for h in (0, 2): a("v_pk_add_f32 %s, %s, %s", t.sub(h, 2), t.sub(h, 2), x_.sub(h, 2))
        lok = a.newlab("L_p2_ok"); lsp = a.newlab("L_p2_spin")
        a("s_cmp_lg_u32 s%d, 0", p.Q_OK)
        a("s_cbranch_scc1 %s", lok)
        a.label(lsp)
        a("s_sleep 2")
        a("buffer_load_dword v%d, v%d, s[%d:%d], s%d offen sc1", p.V_FL, p.V_ZERO, p.Q_F, p.Q_F + 3, p.Q_FRECV)
        a("s_waitcnt vmcnt(0)")
        a("v_readfirstlane_b32 s%d, v%d", p.Q_OK, p.V_FL)
        a("s_nop 1")
        a("s_cmp_eq_u32 s%d, 0", p.Q_OK)
        a("s_cbranch_scc1 %s", lsp)
        for x in rloads(): a(x[0])
        a.label(lok)
        a("s_nop 4")
        for mf in range(4):
            pk = p.XL + mf * 4
            a("s_waitcnt vmcnt(%d)", 6 - mf)
            for nf in range(2):
                t = p.acc(0, mf, nf); rb = p.RECV + (mf * 2 + nf) * 4
                a("v_pk_add_f32 v[%d:%d], v[%d:%d], v[%d:%d]", t.base, t.base + 1, t.base, t.base + 1, rb, rb + 1)
                a("v_pk_add_f32 v[%d:%d], v[%d:%d], v[%d:%d]", t.base + 2, t.base + 3, t.base + 2, t.base + 3, rb + 2, rb + 3)
                a("v_cvt_pk_bf16_f32 v%d, v%d, v%d", pk + 2 * nf, t.base, t.base + 1)
                a("v_cvt_pk_bf16_f32 v%d, v%d, v%d", pk + 2 * nf + 1, t.base + 2, t.base + 3)
            a("s_add_u32 s%d, s%d, %d", p.Q_T, p.Q_XROW, mf * 32768)
            a("v_permlane16_swap_b32 v%d, v%d", pk, pk + 2)
            a("v_permlane16_swap_b32 v%d, v%d", pk + 1, pk + 3)
            a("buffer_store_dwordx4 v[%d:%d], v%d, s[%d:%d], s%d offen%s", pk, pk + 3, p.V_XO, p.Q_O, p.Q_O + 3, p.Q_T, opt.get("p2_omod", ""))
        return spins
    def spin_code(self, a, spins):
        for l1, l2, t in spins:
            a.label(l1)
            a("s_sleep 2")
            self.poll_emit(a, t)
            a("s_waitcnt vmcnt(0)")
            for x in self.poll_test(t): a(x)
            a("s_cbranch_scc1 %s", l1)
            a("s_branch %s", l2)

P2_LDS = NSLOT * 16384

def gen_p2k(a0, name="g2_kernel", opt=None):
    a = A(); a._lab = a0._lab + 5000
    S_W = 43
    p = P2(opt, S_W)
    kernel_header(a, name)
    done = a.newlab("L_p2_done")
    a("s_cmp_ge_u32 s2, 256")
    a("s_cbranch_scc1 %s", done)
    stamp(a, opt, 0)
    a("s_load_dwordx2 s[24:25], s[0:1], 0")
    a("s_load_dwordx2 s[100:101], s[0:1], 56")
    a("s_load_dwordx2 s[26:27], s[0:1], 72")
    a("v_lshrrev_b32 v1, 6, v0")
    a("v_and_b32 v0, 63, v0")
    a("v_readfirstlane_b32 s%d, v1", S_W)
    a("v_lshlrev_b32 v%d, 4, v0", p.V_L16)
    a("s_waitcnt lgkmcnt(0)")
    make_srd(a, p.Q_X, 24, 2048 * 2048)
    make_srd(a, p.Q_A, 26, 144 * p.AKB, WS_ACT2)
    make_srd(a, p.Q_W, 26, 4608 * 2048, WS_W2P)
    for x in p.setup_s():
        for y in (x if isinstance(x, list) else [x]): a(y)
    q = []
    NPRE = opt.get("p2_npre", 6)
    for s in range(8):
        for x in p.a_job(s) + (p.w_job(s) if s < NPRE else []):
            if isinstance(x, tuple): a(x[0]); q.append(x[1])
            else: a(x)
    def sf(i):
        if opt.get("p2_stp"):
            if i: stamp(a, opt, i)
        elif i != 2: stamp(a, opt, {0: 1, 1: 2, 3: 3}[i])
    spins = p.body(a, [q], NPRE, False, sf)
    if opt.get("prof"): a("s_waitcnt vmcnt(0)")
    stamp(a, opt, 4)
    stamp_store(a, opt, 5, 26, S_W, 2, 20)
    a.label(done)
    a("s_endpgm")
    lines, added = hazard.fix(a.l)
    a0.l += lines
    a0._lab = a._lab
    return kernel_desc(name, 512, 256, 102)
```

```python
from gen_common import *
import hazard, struct, re
from gen_p2 import P2, FLG_ACT, FLG_BYTES, SLOTB

XROWS = 273
XSLOT = XROWS * 128
WBASE = 2 * XSLOT
WSTAGE = 20480
WG_OFF, WU_OFF, WQ_OFF = 0, 7168, 14336
SCR = WBASE + 4 * WSTAGE
L_CS = SCR
L_KV = SCR + 1280
L_RT = SCR + 5376
L_STG = SCR + 5376 + 2560
G1B_LDS = L_STG + 4096
WS_STATS = 0
LOG2E = 1.4426950408889634
def f32(x): return "0x%08x" % struct.unpack("<I", struct.pack("<f", x))[0]

def zipl(*ls):
    out = []
    n = max(len(l) for l in ls)
    for i in range(n):
        for l in ls:
            if i < len(l): out.append(l[i])
    return out

def spread(main, extra, lo=0.0, hi=0.7):
    n = len(main); k = len(extra)
    if k == 0: return list(main)
    pos = [int(n * lo + (n * (hi - lo)) * i / k) for i in range(k)]
    out = []; j = 0
    for i, m in enumerate(main):
        while j < k and pos[j] <= i:
            if extra[j].startswith("v_mfma") and out and out[-1].startswith("v_pk_"): break
            out.append(extra[j]); j += 1
        out.append(m)
    out += extra[j:]
    return out

def gen_g1b(a0, name="g1_kernel", opt=None):
    opt = opt or {}
    a = A(); a._lab = a0._lab + 1000
    NSTEP = 32
    LA = opt.get("la", 3)
    BAR = opt.get("bar", 4)
    ACT_KB = opt.get("akb", 131072)
    ACT_BYTES = 144 * ACT_KB
    KROT = opt.get("krot", 0)
    FS = opt.get("fs")
    FSL = opt.get("fs_lead", 5)
    if FS: BAR = FS[1]
    V_FS, V_FA, V_FR, V_FD = 54, 58, 62, 66
    L_FLG = L_RT + 1280
    W2P = opt.get("w2p", 0)
    S_CS, S_CD, S_CSO, S_CDO = 60, 64, 68, 69
    DE = opt.get("de", 5)
    DST = opt.get("dst", [0, 0, 0, 0])
    PK = opt.get("pk", 1)
    STM = opt.get("stmod", " sc1")
    NOCS = opt.get("nocs", 0)
    assert BAR <= 10 - LA
    S_X, S_G, S_U, S_Q, S_ACT, S_ST, S_DBG, S_PF = 4, 8, 12, 16, 20, 24, 28, 32
    S_XK, S_XH, S_GOFF, S_QOFF, S_T, S_T2, S_T3, S_W, S_M0, S_J, S_LOOP = 36, 37, 38, 39, 40, 41, 42, 43, 44, 45, 46
    S_PFOFF, S_PFSTR, S_OK, S_C0, S_C1, S_STO, S_AB, S_ODD, S_MT = 47, 48, 49, 50, 51, 52, 53, 58, 59
    S_K1 = 54; S_K2 = 55; S_MSK = 56
    S_RC = 56; S_RP = 57; S_ROT = 3
    P_X, P_Q, P_G, P_U, P_WS, P_DBG, P_WO, P_WD = 60, 62, 64, 66, 68, 70, 72, 74
    V_XDMA = 1; V_WDMA = [2, 3, 4, 5]; V_XR = [6, 7]; V_HX = [8, 9]; V_WRD = list(range(10, 18)); V_PF = 18; V_PFD = 19
    ST = 20
    CSR = 40
    CST = 50
    T0, T1, T2, T3, T4, T5 = 74, 75, 76, 77, 78, 79
    TV = 80
    def XF(st, mf): return R('a', 148 + st * 32 + mf * 4, 4)
    def WR(i): return R('a', 212 + (i & 3) * 4, 4)
    def HX(st): return R('a', 228 + st * 4, 4)
    def HACC(i): return R('a', 236 + i * 4, 4)

    FUSE = opt.get("fuse", 0)
    EP2 = opt.get("ep2", 0)
    XE = opt.get("xe", 0)
    p2 = P2(opt, S_W)
    CSD = opt.get("cs2", 0)
    S_CSW, S_CSM = S_XH, S_C0
    DACC = R('a', 144, 4); DWF = HACC(4)
    CS_OFF = 16384
    H2 = opt.get("h2", 0)
    L_HF = L_CS
    WST = opt.get("wst", [])
    WSB = [0, 16384, WBASE, WBASE + 16384]
    S_WSB = 79
    NPRE = opt.get("p2_npre", 14)
    QENT = []
    STP = opt.get("stp", ["pro", "loop", "epi"])
    def nst(nm):
        if nm in STP: stamp(a, opt, 1 + STP.index(nm))
    p2.nst = nst
    kernel_header(a, name)
    done = a.newlab("L_g1_done"); fin = a.newlab("L_g1_fin")
    go = a.newlab("L_g1_go")
    a("s_cmp_ge_u32 s2, 256")
    a("s_cbranch_scc0 %s", go)
    a("s_endpgm")
    a.label(go)
    a("s_load_dwordx4 s[%d:%d], s[0:1], 0", P_X, P_X + 3)
    a("s_load_dwordx4 s[%d:%d], s[0:1], 32", P_G, P_G + 3)
    a("s_load_dwordx2 s[%d:%d], s[0:1], 72", P_WS, P_WS + 1)
    a("s_load_dwordx2 s[%d:%d], s[0:1], 64", P_DBG, P_DBG + 1)
    a("s_load_dwordx2 s[%d:%d], s[0:1], 16", P_WO, P_WO + 1)
    a("s_load_dwordx2 s[%d:%d], s[0:1], 48", P_WD, P_WD + 1)
    if FUSE: a("s_load_dwordx2 s[100:101], s[0:1], 56")
    stamp(a, opt, 0)
    if opt.get("prof"):
        for r_ in range(84, 96): a("s_mov_b32 s%d, 0", r_)
    a("v_lshrrev_b32 v%d, 6, v0", T0)
    a("v_and_b32 v0, 63, v0")
    a("v_readfirstlane_b32 s%d, v%d", S_W, T0)
    a("s_lshr_b32 s%d, s2, 5", S_MT)
    a("s_lshl_b32 s%d, s%d, 8", S_M0, S_MT)
    a("s_and_b32 s%d, s2, 7", S_J)
    a("s_lshl_b32 s%d, s%d, 2", S_J, S_J)
    a("s_bfe_u32 s%d, s2, 0x20003", S_T)
    a("s_add_u32 s%d, s%d, s%d", S_J, S_J, S_T)
    a("s_and_b32 s%d, s%d, 1", S_ODD, S_J)
    a("s_mul_i32 s%d, s%d, 224", S_GOFF, S_J)
    a("s_lshl_b32 s%d, s%d, 6", S_QOFF, S_J)
    if KROT:
        a("s_and_b32 s%d, s2, 7", S_ROT)
        if opt.get("rot_mt"):
            if opt["rot_mt"] == 2: a("s_mov_b32 s%d, 0", S_ROT)
            if opt["rot_mt"] == 3:
                a("s_and_b32 s%d, s%d, 4", S_T, S_MT)
                a("s_add_u32 s%d, s%d, s%d", S_ROT, S_ROT, S_T)
            elif opt["rot_mt"] >= 4:
                a("s_and_b32 s%d, s%d, 1", S_T, S_MT)
                a("s_mul_i32 s%d, s%d, %d", S_T, S_T, opt["rot_mt"] - 3)
                a("s_add_u32 s%d, s%d, s%d", S_ROT, S_ROT, S_T)
            else: a("s_add_u32 s%d, s%d, s%d", S_ROT, S_ROT, S_MT)
            a("s_and_b32 s%d, s%d, 7", S_ROT, S_ROT)
        if KROT > 1: a("s_and_b32 s%d, s%d, %d", S_ROT, S_ROT, (8 - KROT) & 7)
        a("s_mul_i32 s%d, s%d, %d", S_T, S_ROT, 128 * 7168)
        a("s_add_u32 s%d, s%d, s%d", S_GOFF, S_GOFF, S_T)
        a("s_mul_i32 s%d, s%d, %d", S_T, S_ROT, 128 * 6144)
        a("s_add_u32 s%d, s%d, s%d", S_QOFF, S_QOFF, S_T)
        a("s_sub_u32 s%d, 8, s%d", S_RC, S_ROT)
        a("s_sub_u32 s%d, %d, s%d", S_RP, 8 - opt.get("pf_c0", 1), S_ROT)
    a("v_lshlrev_b32 v%d, 4, v0", T5)
    CPF = opt.get("cpf", 0)
    def code_pf(sb, vt, vd, st):
        l_ = a.newlab("L_g1_pc")
        a("s_getpc_b64 s[%d:%d]", sb, sb + 1)
        a.label(l_)
        cs = "L_code_start" if FUSE else name
        a("s_sub_u32 s%d, s%d, %s-%s", sb, sb, l_, cs)
        a("s_subb_u32 s%d, s%d, 0", sb + 1, sb + 1)
        a("s_lshr_b32 s%d, s2, 3", st)
        a("s_mul_i32 s%d, s%d, ((L_code_end-%s+4095)>>12)<<7", st, st, cs)
        a("v_min_u32 v%d, ((L_code_end-%s+4095)>>12)-1, v0", vt, cs)
        a("v_lshl_add_u32 v%d, v%d, 7, s%d", vt, vt, st)
        a("v_min_u32 v%d, L_code_end-%s-4, v%d", vt, cs, vt)
        a("global_load_dword v%d, v%d, s[%d:%d]", vd, vt, sb, sb + 1)
    if CPF & 4: code_pf(76, T0, V_PFD, S_T)
    labs = [a.newlab("L_g1_w") for _ in range(4)]
    PG = opt.get("pg", 0)
    G_GO, G_QO, G_MB = S_AB, S_STO, S_LOOP
    def gu_off(dst, job):
        a("v_add_u32 v%d, %s, v0", T0, job)
        a("v_mul_u32_u24 v%d, 4682, v%d", T1, T0)
        a("v_lshrrev_b32 v%d, 16, v%d", T1, T1)
        a("v_mul_u32_u24 v%d, 14, v%d", T2, T1)
        a("v_sub_u32 v%d, v%d, v%d", T2, T0, T2)
        a("v_bfe_u32 v%d, v%d, 3, 1", T3, T1)
        a("v_lshlrev_b32 v%d, 2, v%d", T3, T3)
        a("v_xor_b32 v%d, v%d, v%d", T1, T1, T3)
        a("v_mul_u32_u24 v%d, 7168, v%d", T1, T1)
        a("v_lshl_add_u32 v%d, v%d, 4, v%d", dst, T2, T1)
    def q_off(dst, job):
        a("v_add_u32 v%d, %s, v0", T0, job)
        a("v_mul_u32_u24 v%d, 5462, v%d", T1, T0)
        a("v_lshrrev_b32 v%d, 16, v%d", T1, T1)
        a("v_mul_u32_u24 v%d, 12, v%d", T2, T1)
        a("v_sub_u32 v%d, v%d, v%d", T2, T0, T2)
        a("v_bfe_u32 v%d, v%d, 3, 1", T3, T1)
        a("v_lshlrev_b32 v%d, 1, v%d", T3, T3)
        a("v_xor_b32 v%d, v%d, v%d", T2, T2, T3)
        a("v_mul_u32_u24 v%d, 6144, v%d", T1, T1)
        a("v_lshrrev_b32 v%d, 2, v%d", T3, T2)
        a("v_lshl_add_u32 v%d, v%d, 11, v%d", T1, T3, T1)
        a("v_and_b32 v%d, 3, v%d", T2, T2)
        a("v_lshl_add_u32 v%d, v%d, 4, v%d", dst, T2, T1)
    def pg_stage(g):
        L = ["s_and_b32 s%d, s%d, %d" % (S_T, S_MT, opt.get("pg_m", 3) if PG == 1 else 1)]
        if g and PG == 3: L += ["s_xor_b32 s%d, s%d, %d" % (S_T, S_T, g)]
        elif g: L += ["s_cmp_le_u32 s%d, %d" % (S_T, g - 1), "s_cselect_b32 s%d, %d, %d" % (S_T, g, g - 1)]
        L += ["s_mul_i32 s%d, s%d, %d" % (G_GO, S_T, 32 * 7168), "s_add_u32 s%d, s%d, s%d" % (G_GO, G_GO, S_GOFF),
              "s_mul_i32 s%d, s%d, %d" % (G_QO, S_T, 32 * 6144), "s_add_u32 s%d, s%d, s%d" % (G_QO, G_QO, S_QOFF),
              "s_mul_i32 s%d, s%d, %d" % (G_MB, S_T, WSTAGE)]
        return L
    NTW = " nt" if opt.get("nt_w", 0) > 3 else ""
    if PG:
        assert CSD and KROT
        a("s_and_b32 s%d, s%d, 1", S_T, S_W)
        a("s_lshl_b32 s%d, s%d, 2", S_T, S_T)
        a("v_lshrrev_b32 v%d, 4, v0", T0)
        a("v_add_u32 v%d, s%d, v%d", T0, S_T, T0)
        a("v_and_b32 v%d, 7, v0", T1)
        a("v_xor_b32 v%d, v%d, v%d", T0, T0, T1)
        a("v_lshlrev_b32 v%d, 4, v%d", T0, T0)
        a("v_lshrrev_b32 v%d, 3, v0", T1)
        a("v_lshl_add_u32 v%d, v%d, 11, v%d", V_XDMA, T1, T0)
        a("s_lshl_b32 s%d, s%d, 11", S_XK, S_M0)
        a("s_lshl_b32 s%d, s%d, 8", S_T, S_ROT)
        a("s_add_u32 s%d, s%d, s%d", S_XK, S_XK, S_T)
        a("s_lshl_b32 s%d, s%d, 6", S_K1, S_W)
        gu_off(V_WDMA[0], "s%d" % S_K1)
        q_off(V_WDMA[1], "s%d" % S_K1)
        a("s_add_u32 s%d, s%d, 256", S_K1, S_K1)
        gu_off(V_WDMA[2], "s%d" % S_K1)
        q_off(T4, "256")
        q_off(V_WDMA[3], "320")
        a("s_cmp_eq_u32 s%d, 3", S_W)
        a("s_cselect_b64 vcc, -1, 0")
        a("v_cndmask_b32 v%d, v%d, v%d, vcc", V_WDMA[2], V_WDMA[2], T4)
        a("s_bfe_u32 s%d, s2, 0x20003", S_K2)
        a("s_lshl_b32 s%d, s%d, 13", S_K2, S_K2)
        a("s_lshl_b32 s%d, s%d, 10", S_K1, S_W)
        a("s_add_u32 s%d, s%d, s%d", S_K2, S_K2, S_K1)
        if PG != 2:
            for x_ in pg_stage(0): a(x_)
            a("s_add_u32 s%d, s%d, s%d", G_MB, G_MB, S_K1)
        else:
            G_GO, G_QO, G_MB = S_GOFF, S_QOFF, S_K1
        a("s_lshl4_add_u32 s%d, s%d, s%d", S_T, S_K2, S_XK)
        a("s_add_u32 s%d, s%d, 65536", S_T2, S_T)
        a("s_mov_b32 m0, s%d", S_K2)
        nst("k0")
        a("s_waitcnt lgkmcnt(0)")
        make_srd(a, S_X, P_X, 2048 * 2048)
        def xl(so, t): a("buffer_load_dwordx4 v%d, s[%d:%d], s%d offen offset:%d lds", V_XDMA, S_X, S_X + 3, so, 128 * t)
        def wl(vo, srd, off):
            a("s_add_u32 m0, s%d, %d", G_MB, WBASE + off)
            a("buffer_load_dwordx4 v%d, s[%d:%d], s%d offen%s lds", vo, srd, srd + 3, G_QO if srd == S_Q else G_GO, NTW)
        xl(S_T, 0)
        make_srd(a, S_G, P_G, 1024 * 7168)
        a("s_add_u32 m0, s%d, 4096", S_K2)
        xl(S_T2, 0)
        make_srd(a, S_U, P_U, 1024 * 7168)
        wl(V_WDMA[0], S_G, WG_OFF)
        make_srd(a, S_Q, P_Q, 1024 * 6144)
        wl(V_WDMA[0], S_U, WU_OFF)
        wl(V_WDMA[1], S_Q, WQ_OFF)
        l3 = a.newlab("L_g1_w3")
        def x1():
            if PG >= 2:
                for i in range(opt.get("pg_nx", 2)):
                    a("s_add_u32 s%d, s%d, %d", S_K2, S_K2, 4096 if i else 8192)
                    a("s_and_b32 s%d, s%d, 32767", S_K2, S_K2)
                    a("s_lshl4_add_u32 s%d, s%d, s%d", S_T, S_K2, S_XK)
                    a("s_mov_b32 m0, s%d", S_K2)
                    xl(S_T, 0)
                return
            a("s_add_u32 m0, s%d, %d", S_K2, XSLOT - 128)
            xl(S_T, 1)
            a("s_add_u32 m0, s%d, %d", S_K2, XSLOT - 128 + 4096)
            xl(S_T2, 1)
        a("s_cmp_eq_u32 s%d, 3", S_W)
        a("s_cbranch_scc1 %s", l3)
        wl(V_WDMA[2], S_G, WG_OFF + 4096)
        wl(V_WDMA[2], S_U, WU_OFF + 4096)
        x1()
        for w in range(1, 3):
            a("s_cmp_eq_u32 s%d, %d", S_W, w)
            a("s_cbranch_scc1 %s", labs[w])
        a("s_branch %s", labs[0])
        a.label(l3)
        wl(V_WDMA[2], S_Q, WQ_OFF + 1024)
        wl(V_WDMA[3], S_Q, WQ_OFF + 2048)
        x1()
        a("s_branch %s", labs[3])
    else:
        for w in range(1, 4):
            a("s_cmp_eq_u32 s%d, %d", S_W, w)
            a("s_cbranch_scc1 %s", labs[w])

    SPINS = []
    EP0 = [0]
    HALO = [None]; HSPIN = []
    def weave(w):
        wn = w >> 1
        E = a.l[EP0[0]:]; del a.l[EP0[0]:]
        n = len(E)
        last = {}
        for k, ln in enumerate(E):
            for kind, r_ in hazard.regs_of(ln):
                if kind == 'a': last[r_] = k
        stores = [k for k, ln in enumerate(E) if ln.strip().startswith("buffer_store")]
        q = []
        def need(tags, upto=None):
            idx = [i for i, t in enumerate(q) if t in tags]
            return min(63, len(q) - 1 - max(idx))
        items = []
        WG_ = opt.get("wv_gap", 6)
        pos = opt.get("wv_w0", 4)
        for b in range(NPRE):
            j = p2.w_job(b)
            fr = max([last.get(r_, -1) for r_ in range(p2.SL[b], p2.SL[b] + 16)]) + 6
            pos = max(pos, fr)
            for part in (j[0:3], j[3:6]):
                items.append((pos, part)); pos += 2 * WG_
        WV2 = opt.get("wv2", 0)
        if not WV2:
            fP, fA = opt.get("wv_poll", [[0.62, 0.80], [0.62, 0.80]])[wn]
            items.append((int(n * fP), p2.poll_seq(0)))
            def chk():
                nst("ck0")
                a("s_waitcnt vmcnt(%d)", need([('PL', 0)]))
                nst("ck")
                for x_ in p2.poll_test(0): a(x_)
                a("s_cselect_b32 s%d, 0, 0x%x", p2.Q_A2 + 2, ACT_BYTES)
            pos = int(n * fA)
            items.append((pos, [chk]))
            AG_ = opt.get("wv_agap", 5)
            for s_ in range(8):
                items.append((pos, p2.a_job(s_, p2.Q_A2))); pos += 4 * AG_
        elif wn == 1:
            items.append((int(n * opt.get("wv_fp", 0.8)), p2.poll_seq(0)))
        def sig(t, nst_):
            def f():
                a("v_mov_b32 v%d, 1", T2)
                nst("sa%d" % t)
                a("s_waitcnt vmcnt(%d)", need([('AS', nst_)]))
                nst("sg%d" % t)
                a("s_mov_b64 exec, 1")
                a("buffer_store_dword v%d, off, s[%d:%d], s%d offset:%d sc1", T2, p2.Q_F, p2.Q_F + 3, p2.Q_FSIG, 4 * t); q.append(('SG', 0))
                a("s_mov_b64 exec, -1")
            return f
        SD_ = opt.get("wv_sd", 130)
        if wn == 1:
            items.append((stores[7] + SD_, [sig(0, 7)]))
            items.append((stores[15] + SD_, [sig(1, 15)]))
        items.sort(key=lambda t_: t_[0])
        def put(lst):
            for x_ in lst:
                if isinstance(x_, tuple): a(x_[0]); q.append(x_[1])
                elif callable(x_): x_()
                else: a(x_)
        ns = 0
        for k, ln in enumerate(E):
            op = ln.strip()
            prev = E[k - 1].strip() if k else ""
            ok = not op.startswith(("v_cndmask", "s_cselect", "s_addc", "s_memtime", "s_waitcnt")) and not prev.startswith(("s_cmp", "v_cmp", "s_memrealtime"))
            if ok and items and items[0][0] <= k: put(items.pop(0)[1])
            a.l.append(ln)
            if op.startswith("buffer_store"):
                q.append(('AS', ns)); ns += 1
        for it in items: put(it[1])
        a("s_add_u32 s%d, s%d, %d", p2.Q_FSIG, p2.Q_FSIG, 8 if wn == 1 else 12)
        if WV2 and wn == 1:
            l1 = a.newlab("L_wv_sp"); l2 = a.newlab("L_wv_ok")
            nst("ck0")
            a("s_waitcnt vmcnt(%d)", need([('PL', 0)]))
            nst("ck")
            for x_ in p2.poll_test(0): a(x_)
            a("s_cbranch_scc0 %s", l2)
            a("v_mov_b32 v%d, 1", T2)
            a("s_waitcnt vmcnt(0)")
            nst("sl1")
            a("s_mov_b64 exec, 1")
            a("buffer_store_dword v%d, off, s[%d:%d], s%d sc1", T2, p2.Q_F, p2.Q_F + 3, p2.Q_FSIG)
            a("s_mov_b64 exec, -1")
            a.label(l1)
            if opt.get("wv_sleep"): a("s_sleep %d", opt["wv_sleep"])
            p2.poll_emit(a, 0)
            a("s_waitcnt vmcnt(0)")
            for x_ in p2.poll_test(0): a(x_)
            a("s_cbranch_scc1 %s", l1)
            nst("sl2")
            a.label(l2)
            for s_ in range(WV2):
                put(p2.a_job(s_))
                put(p2.a_job(s_, None, True))
        QENT.append([('AS', 0) if t[0] == 'AS' else t for t in q])
    def weave2(w):
        wn = w >> 1
        E = a.l[EP0[0]:]; del a.l[EP0[0]:]
        n = len(E)
        last = {}
        for k, ln in enumerate(E):
            for kr in hazard.regs_of(ln): last[kr] = k
        stores = [k for k, ln in enumerate(E) if ln.strip().startswith("buffer_store")]
        q = [('XL', 0)] * (8 if XE else 0)
        def need(tags):
            idx = [i for i, t in enumerate(q) if t in tags]
            return min(63, len(q) - 1 - max(idx))
        items = []
        def per(name, dflt):
            v = opt.get(name, dflt)
            return v[wn] if isinstance(v, list) else v
        free = {b: max([last.get(('a', r_), -1) for r_ in range(p2.SL[b], p2.SL[b] + 16)]) + 6 for b in range(16)}
        if XE:
            xp = max([last.get(('v', r_), -1) for r_ in range(p2.XL, p2.XL + 16)] + [int(n * per("wv_xf", 0.3))]) + 4
            items.append((xp, [lambda: a("s_waitcnt vmcnt(%d)", need([('XL', 0)]))]))
            for i in range(0, 16, 4):
                items.append((xp + 1 + i, ["v_accvgpr_read_b32 v%d, a%d" % (p2.XL + i + z, p2.SL[XE] + i + z) for z in range(4)]))
            free[XE] = xp + 24
        WG_ = per("wv_gap", 6)
        pos = opt.get("wv_w0", 4)
        V_L16_ = p2.V_L16
        for nb_, b in enumerate(sorted(range(NPRE), key=lambda b_: (max(free[b_], 0), b_))):
            j = p2.w_job(b)
            if b in WST:
                o_ = WSB[WST.index(b)] + w * 4096; ad = V_L16_; p_ = free[b]
                if o_ >= 65536:
                    o_ -= 65536; ad = p2.V_POLL
                    items.append((p_, ["v_add_u32 v%d, 65536, v%d" % (ad, V_L16_)])); p_ += 1
                for i in range(4):
                    items.append((p_ + 2 * i, ["ds_read_b128 %s, v%d offset:%d" % (p2.wfrag(b, i >> 1, i & 1), ad, o_ + 1024 * i)]))
                assert p_ + 20 < int(n * opt.get("wv_poll", [[0.5, 0.7], [0.5, 0.7]])[wn][0]), (p_, n)
                continue
            pos = max(pos, free[b])
            if opt.get("pf2") == nb_:
                def pfl(so): return ("buffer_load_dword a%d, v%d, s[%d:%d], s%d offen sc1" % (p2.SL[b], T5, p2.Q_W, p2.Q_W + 3, so), ('P', 0))
                items.append((pos, ["v_lshlrev_b32 v%d, 7, v0" % T5, "s_mov_b64 exec, 0xffffffff", pfl(78), "s_mov_b64 exec, -1"])); pos += WG_
                items.append((pos, [pfl(S_C0)])); pos += WG_
                items.append((pos, [pfl(S_C1)])); pos += WG_
            if opt.get("wv_one"):
                for part in (j[0:2], j[2:3], j[3:5], j[5:6]):
                    items.append((pos, part)); pos += WG_
                continue
            for part in (j[0:3], j[3:6]):
                items.append((pos, part)); pos += 2 * WG_
        fP, fA = opt.get("wv_poll", [[0.5, 0.7], [0.5, 0.7]])[wn]
        items.append((int(n * fP), p2.poll_seq(0)))
        def chk():
            nst("ck0")
            a("s_waitcnt vmcnt(%d)", need([('PL', 0)]))
            nst("ck")
            for x_ in p2.poll_test(0): a(x_)
            a("s_cselect_b32 s%d, 0, 0x%x", p2.Q_A2 + 2, ACT_BYTES)
            if WST: a("s_waitcnt lgkmcnt(0)")
        pos = int(n * fA)
        items.append((pos, [chk]))
        AG_ = per("wv_agap", 8)
        for s_ in range(opt.get("wv_na", 8)):
            j = p2.a_job(s_, p2.Q_A2)
            if opt.get("wv_one"):
                for part in (j[0:3], j[3:4], j[4:5], j[5:6]):
                    items.append((pos, part)); pos += AG_
                continue
            items.append((pos, j)); pos += 4 * AG_
        NS1 = 10 if (CSD and wn == 0 and not (H2 and w == 0)) else 7
        if H2 and wn == 0:
            hw = [k for k, ln in enumerate(E) if ln.strip() == "HALOWAIT"][0]
            hl_ = int(n * opt.get("h2_at", fP)) + 2
            assert hl_ > stores[NS1] + per("wv_sd", 100) + 8
            if w == 0:
                for i, x_ in enumerate(HALO[0]): items.append((hl_ + 2 * i, [x_]))
            else: items.append((hw - 40, HALO[0]))
        elif CSD and wn == 0:
            hw = [k for k, ln in enumerate(E) if ln.strip() == "HALOWAIT"][0]
            hpoll = ["s_mov_b64 exec, 1", ("buffer_load_dword v%d, off, s[%d:%d], s%d sc1" % (TV, p2.Q_F, p2.Q_F + 3, S_C0), ('HP', 0)), "s_mov_b64 exec, -1"]
            def hchk():
                l1 = a.newlab("L_h_sp"); l2 = a.newlab("L_h_ok")
                nst("h0")
                a("s_waitcnt vmcnt(%d)", need([('HP', 0)]))
                a("v_readfirstlane_b32 s%d, v%d", S_OK, TV)
                a("s_cmp_eq_u32 s%d, 0", S_OK)
                a("s_cbranch_scc1 %s", l1)
                a.label(l2)
                nst("h1")
                HSPIN.append((l1, l2, hpoll))
            hp_, hc_ = opt.get("h_at", [330, 170])
            assert hw - hp_ > stores[NS1] and hw - hc_ > stores[NS1] + per("wv_sd", 100) + 8, (hw, last[('v', T1)], stores[NS1])
            if not opt.get("nohalo"):
                items.append((hw - hp_, hpoll))
                items.append((hw - hc_, [hchk]))
                for i, x_ in enumerate(HALO[0]): items.append((hw - hc_ + 2 + 6 * i, [x_]))
        def sig():
            a("v_mov_b32 v%d, 1", T2)
            nst("sa0")
            a("s_waitcnt vmcnt(%d)", need([('AS', NS1)]))
            nst("sg0")
            a("s_mov_b64 exec, 1")
            a("buffer_store_dword v%d, off, s[%d:%d], s%d sc1", T2, p2.Q_F, p2.Q_F + 3, p2.Q_FSIG); q.append(('SG', 0))
            a("s_mov_b64 exec, -1")
        items.append((stores[NS1] + per("wv_sd", 100), [sig]))
        items.sort(key=lambda t_: t_[0])
        def put(lst):
            for x_ in lst:
                if isinstance(x_, tuple): a(x_[0]); q.append(x_[1])
                elif callable(x_): x_()
                else: a(x_)
        ns = 0
        for k, ln in enumerate(E):
            op = ln.strip()
            if op == "HALOWAIT":
                if opt.get("nohalo"): continue
                if H2:
                    l1 = a.newlab("L_h_sp"); l2 = a.newlab("L_h_ok")
                    nst("h2")
                    if w == 0:
                        assert q.count(('HL', 0)) == 3
                        a("s_waitcnt vmcnt(%d)", need([('HL', 0)]))
                        r_ = HALO[-1]
                        a("v_max3_u32 v239, v%d, v%d, v%d", r_[0], r_[1], r_[2])
                        a("v_max3_u32 v238, v%d, v%d, v%d", r_[3], r_[4], r_[5])
                        a("v_max3_u32 v239, v239, v%d, v%d", r_[6], r_[7])
                        a("v_max_u32 v239, v239, v238")
                        a("v_cmp_eq_u32 vcc, -1, v239")
                        a("s_cmp_lg_u64 vcc, 0")
                        a("s_cbranch_scc1 %s", l1)
                    else:
                        a("s_waitcnt lgkmcnt(0)")
                        a("v_readfirstlane_b32 s%d, v239", S_OK)
                        a("s_cmp_eq_u32 s%d, 0", S_OK)
                        a("s_cbranch_scc1 %s", l1)
                    a.label(l2)
                    nst("h3")
                    HSPIN.append((l1, l2, HALO[0]))
                    continue
                assert q.count(('HL', 0)) == 3
                nst("h2")
                a("s_waitcnt vmcnt(%d)", need([('HL', 0)]))
                nst("h3")
                continue
            prev = E[k - 1].strip() if k else ""
            ok = not op.startswith(("v_cndmask", "s_cselect", "s_addc", "s_memtime", "s_waitcnt")) and not prev.startswith(("s_cmp", "v_cmp", "s_memrealtime"))
            if ok and items and items[0][0] <= k: put(items.pop(0)[1])
            a.l.append(ln)
            if op.startswith("buffer_store"):
                q.append(('AS', ns)); ns += 1
        for it in items: put(it[1])
        QENT.append([('AS', 0) if t[0] == 'AS' else t for t in q])
    def variant(w):
        wm, wn = w & 1, w >> 1
        tiles = {}
        if EP2:
            VPB = None
            if wn == 0:
                arch = [(nf, mf) for mf in range(8) for nf in (6, 7, 8, 9)] + [(nf, mf) for mf in (6, 7) for nf in range(6)]
                acc = [(nf, mf) for mf in range(6) for nf in range(6)]
                areg = list(range(TV, 256, 4))
            else:
                allt = [(nf, mf) for g in ((0, 1, 2, 3), (4, 5, 6, 7)) for mf in range(8) for nf in g] + [(nf, mf) for mf in range(8) for nf in (8, 9)]
                g0 = 4 * opt.get("w1_g0", 5)
                arch = allt[:g0] + allt[g0 + 36:]; acc = allt[g0:g0 + 36]
                areg = list(range(TV, TV + 32, 4)) + list(range(240, 256, 4)) + list(range(TV + 32, 240, 4))
            for t, r_ in zip(arch, areg): tiles[t] = R('v', r_, 4)
            for i, t in enumerate(acc): tiles[t] = R('a', 4 * i, 4)
            assert len(arch) == 44 and len(tiles) == 80
            order = []; nv = 256
        elif wn == 0:
            VPB = [TV, TV + 34]
            for f in range(2):
                for mf in range(8): tiles[(4 + f, mf)] = R('v', VPB[f] + 2 + 4 * mf, 4)
            order = [(nf, mf) for nf in (2, 3, 0, 1) for mf in range(8)] + [(nf, mf) for mf in range(8) for nf in (6, 7, 8, 9)]
            nv = TV + 68
        else:
            order = [(nf, mf) for g in ((0, 1, 2, 3), (4, 5, 6, 7)) for mf in range(8) for nf in g] + [(nf, mf) for mf in range(8) for nf in (8, 9)]
            nv = TV
        na = 0
        for t in order:
            if nv + 4 <= 256:
                tiles[t] = R('v', nv, 4); nv += 4
            else:
                tiles[t] = R('a', na, 4); na += 4
        assert na <= 148, na
        hset = {0: [2, 3, 4, 5, 0], 1: [1, 6, 7, 8, 9], 2: [0, 2, 4, 6, 8], 3: [1, 3, 5, 7, 9]}[w]
        if NOCS: hset = [] if NOCS == 9 else hset[:NOCS - 1] if w else hset[:4]
        def isV(nf): return wn == 0 and nf in (4, 5)
        def mm(d, wf, xf, c, nf):
            if isV(nf) or opt.get("swapab"): return "v_mfma_f32_16x16x32_bf16 %s, %s, %s, %s" % (d, xf, wf, c)
            return "v_mfma_f32_16x16x32_bf16 %s, %s, %s, %s" % (d, wf, xf, c)

        a.label(labs[w])
        q = []
        if CPF & 1 and w == 2:
            code_pf(76, T0, V_PFD, S_T); q.append(('P', 0))
        if CPF & 4: q.append(('P', 0))
        pg0_ = len(a.l)
        a("v_lshrrev_b32 v%d, 4, v0", T0)
        if wm: a("v_add_u32 v%d, 4, v%d", T0, T0)
        a("v_and_b32 v%d, 7, v0", T1)
        a("v_xor_b32 v%d, v%d, v%d", T0, T0, T1)
        a("v_lshlrev_b32 v%d, 4, v%d", T0, T0)
        a("v_lshrrev_b32 v%d, 3, v0", T1)
        a("v_lshl_add_u32 v%d, v%d, 11, v%d", V_XDMA, T1, T0)
        a("s_add_u32 s%d, s%d, %d", S_XK, S_M0, 8 * w)
        a("s_lshl_b32 s%d, s%d, 11", S_XK, S_XK)
        if not CSD:
            a("s_max_u32 s%d, s%d, 16", S_T, S_M0)
            a("s_sub_u32 s%d, s%d, %d", S_XH, S_T, 16 - 8 * wm)
            a("s_lshl_b32 s%d, s%d, 11", S_XH, S_XH)
        if KROT:
            a("s_lshl_b32 s%d, s%d, 8", S_T, S_ROT)
            a("s_add_u32 s%d, s%d, s%d", S_XK, S_XK, S_T)
            if not CSD: a("s_add_u32 s%d, s%d, s%d", S_XH, S_XH, S_T)
        if PG:
            del a.l[pg0_:]
            nst("k1")
            for nm_, n_ in (("l0", 9), ("l1", 8), ("l2", 6), ("l3", 4), ("l4", 2), ("l5", 0)):
                if nm_ in STP:
                    a("s_waitcnt vmcnt(%d)", n_); nst(nm_)
            if w: a("s_add_u32 s%d, s%d, %d", S_XK, S_XK, w * 16384)
            q += [('X', 0)] * 2 + [('W', 0)] * 5 + ([('X', 1)] * 2 if PG == 1 else [('X', 0)] * opt.get("pg_nx", 2))
            if PG == 2:
                a("s_add_u32 s%d, s%d, %d", S_GOFF, S_GOFF, 32 * 7168)
                a("s_add_u32 s%d, s%d, %d", S_QOFF, S_QOFF, 32 * 6144)
                if w == 3 and opt.get("pg_pf", 3) & 2:
                    a("s_bfe_u32 s%d, s2, 0x20003", S_T)
                    a("s_lshl_b32 s%d, s%d, 17", S_T, S_T)
                    a("s_add_u32 s%d, s%d, s%d", S_T, S_T, S_XK)
                    a("s_sub_u32 s%d, s%d, %d", S_T, S_T, w * 16384)
                    a("v_lshlrev_b32 v%d, 11, v0", T0)
                    a("buffer_load_dword v%d, v%d, s[%d:%d], s%d offen offset:128", V_PFD, T0, S_X, S_X + 3, S_T); q.append(('P', 0))
        a("s_lshl_b32 s%d, s%d, 3", S_T2, S_J)
        a("s_add_u32 s%d, s%d, s%d", S_T2, S_T2, S_M0)
        a("s_add_u32 s%d, s%d, %d", S_T2, S_T2, 2 * w)
        a("s_lshl_b32 s%d, s%d, 11", S_T3, S_T2)
        wjobs = [("G", w), ("U", w), ("Q", w)] + ([("G", 4 + w), ("U", 4 + w)] if w < 3 else [("Q", 4), ("Q", 5)])
        wreg = {}
        nreg = 0
        late = []
        for kind, job in wjobs:
            key = ("GU" if kind != "Q" else "Q", job)
            if key not in wreg:
                wreg[key] = V_WDMA[nreg]; nreg += 1
                late.append((key, wreg[key]))
        pg0_ = len(a.l)
        for key, dst in late:
            (gu_off if key[0] == "GU" else q_off)(dst, str(key[1] * 64))
            if opt.get("wlin") == 2:
                pit = 7168 if key[0] == "GU" else 6144
                a("v_lshrrev_b32 v%d, 3, v0", T0)
                a("v_add_u32 v%d, %d, v%d", T0, 8 * (key[1] & 3), T0)
                a("v_mul_u32_u24 v%d, %d, v%d", T0, pit, T0)
                a("v_and_b32 v%d, 7, v0", T1)
                a("v_lshl_add_u32 v%d, v%d, 4, v%d", T0, T1, T0)
                a("s_and_b32 s%d, s%d, 127", S_T, S_GOFF if key[0] == "GU" else S_QOFF)
                a("v_subrev_u32 v%d, s%d, v%d", T0, S_T, T0)
                a("v_add_u32 v%d, %d, v%d", dst, 128 + (key[1] >> 2) * (128 if key[0] == "GU" else 2048), T0)
            elif opt.get("wlin"):
                a("v_lshlrev_b32 v%d, 4, v0", dst)
                a("v_add_u32 v%d, %d, v%d", dst, key[1] * (7168 * 4 if key[0] == "GU" else 6144 * 5), dst)
        nst("k0")
        a("s_waitcnt lgkmcnt(0)")
        make_srd(a, S_X, P_X, 2048 * 2048)
        make_srd(a, S_G, P_G, 1024 * 7168)
        make_srd(a, S_U, P_U, 1024 * 7168)
        make_srd(a, S_Q, P_Q, 1024 * 6144)
        if PG: del a.l[pg0_:]
        def dup(jobs):
            if wn != opt["dma2"] - 1: return []
            out = []
            for pre, main in jobs:
                out.append((list(pre), main[:1])); out.append((pre, main))
            return out
        def x_jobs(t):
            slot = t & 1
            jobs = []
            for i in range(8):
                jobs.append((["s_mov_b32 m0, %d" % (slot * XSLOT + (w + 4 * i) * 1024),
                              "s_add_u32 s%d, s%d, %d" % (S_T, S_XK, i * 65536)],
                             ["buffer_load_dwordx4 v%d, s[%d:%d], s%d offen%s lds" % (V_XDMA, S_X, S_X + 3, S_T, " nt" if t < opt.get("nt_x", 0) else "")]))
            jobs[-1][1].append("s_add_u32 s%d, s%d, 128" % (S_XK, S_XK))
            if wn == slot and not CSD:
                jobs.append((["s_mov_b32 m0, %d" % (slot * XSLOT + 32768 + wm * 1024)],
                             ["buffer_load_dwordx4 v%d, s[%d:%d], s%d offen lds" % (V_XDMA, S_X, S_X + 3, S_XH)]))
            if not CSD: jobs[-1][1].append("s_add_u32 s%d, s%d, 128" % (S_XH, S_XH))
            if opt.get("dma2") and t >= 2: jobs = dup(jobs)
            return [(j, ('X', t)) for j in jobs]
        def w_jobs(s):
            stage = s & 3
            jobs = []
            for kind, job in wjobs:
                srd = {"G": S_G, "U": S_U, "Q": S_Q}[kind]; off = {"G": WG_OFF, "U": WU_OFF, "Q": WQ_OFF}[kind]
                vo = wreg[("GU" if kind != "Q" else "Q", job)]
                jobs.append((["s_mov_b32 m0, %d" % (WBASE + stage * WSTAGE + off + job * 1024)],
                             ["buffer_load_dwordx4 v%d, s[%d:%d], s%d offen%s lds" % (vo, srd, srd + 3, S_QOFF if kind == "Q" else S_GOFF, " nt" if s < opt.get("nt_w", 0) else "")]))
            if not opt.get("samew"):
                jobs[-1][1].append("s_add_u32 s%d, s%d, %d" % (S_GOFF, S_GOFF, 32 * 7168))
                jobs[-1][1].append("s_add_u32 s%d, s%d, %d" % (S_QOFF, S_QOFF, 32 * 6144))
            if opt.get("dma2") and s >= 3: jobs = dup(jobs)
            return [(j, ('W', s)) for j in jobs]
        def emit_now(jobs):
            for (pre, main), tag in jobs:
                for s_ in pre + main: a(s_)
                q.append(tag)
        def need_count(tags):
            idx = [i for i, t in enumerate(q) if t in tags]
            if not idx: return 63
            return len(q) - 1 - max(idx)
        PSPLIT = opt.get("pro_split", 0); S_AT = opt.get("s_at", -1); WO_AT = opt.get("wo_at", -1)
        PF_C0 = opt.get("pf_c0", 1); PF_PRO = opt.get("pf_pro", 2); PF_X = opt.get("pf_x", [])
        PRO_A = opt.get("pro_a", 2)
        pro_list = [w_jobs(0), x_jobs(0), w_jobs(1), x_jobs(1), w_jobs(2)]
        pend0 = []
        if PG:
            def pg_w(g):
                jobs = []
                for kind, job in wjobs:
                    srd = {"G": S_G, "U": S_U, "Q": S_Q}[kind]; off = {"G": WG_OFF, "U": WU_OFF, "Q": WQ_OFF}[kind]
                    vo = wreg[("GU" if kind != "Q" else "Q", job)]
                    jobs.append((["s_add_u32 m0, s%d, %d" % (G_MB, WBASE + off + job * 1024)],
                                 ["buffer_load_dwordx4 v%d, s[%d:%d], s%d offen%s lds" % (vo, srd, srd + 3, G_QO if kind == "Q" else G_GO, NTW)]))
                jobs[0] = (pg_stage(g) + jobs[0][0], jobs[0][1])
                if g == 3: jobs[-1][1].extend(["s_add_u32 s%d, s%d, %d" % (S_GOFF, S_GOFF, 128 * 7168), "s_add_u32 s%d, s%d, %d" % (S_QOFF, S_QOFF, 128 * 6144)])
                return [(j, ('W', g - 1 if PG == 1 else g & 2)) for j in jobs]
            def pg_x(t, i0=2):
                jobs = []
                for i in range(i0, 8):
                    pre = ["s_bfe_u32 s%d, s2, 0x20003" % S_K2, "s_lshl_b32 s%d, s%d, 13" % (S_K2, S_K2)] if i == i0 else []
                    pre += ["s_add_u32 s%d, s%d, %d" % (S_K2, S_K2, 4096 * i0 if i == i0 else 4096), "s_and_b32 s%d, s%d, 32767" % (S_K2, S_K2),
                            "s_lshl4_add_u32 s%d, s%d, s%d" % (S_T, S_K2, S_XK), "s_add_u32 m0, s%d, %d" % (S_K2, t * (XSLOT - 128) + w * 1024)]
                    jobs.append((pre, ["buffer_load_dwordx4 v%d, s[%d:%d], s%d offen offset:%d lds" % (V_XDMA, S_X, S_X + 3, S_T, 128 * t)]))
                if t == 1: jobs[-1][1].append("s_add_u32 s%d, s%d, 256" % (S_XK, S_XK))
                return [(j, ('X', t)) for j in jobs]
            pro_list = [pg_w(1), pg_x(0), pg_w(2), pg_x(1), pg_w(3)]
            if PG == 2: pro_list = [pg_x(0, 2 + opt.get("pg_nx", 2)), w_jobs(1), pg_x(1, 0), w_jobs(2), w_jobs(3)]
            if PG == 3: pro_list = [pg_x(0, 2 + opt.get("pg_nx", 2)), pg_w(1), pg_x(1, 0)[:2], pg_w(2), pg_x(1), pg_w(3)]
            PRO_A = opt.get("pg_at", 0)
            PG_B = opt.get("pg_b2", 3)
            pend0 = sum(pro_list[PG_B:], []); pro_list = pro_list[:PG_B]
        if PG != 2:
            for l_ in pro_list[:PRO_A]: emit_now(l_)
        if not PG: nst("k1")
        SA = ST; SB = ST + 8
        def s_loads():
            for i in range(4):
                a("buffer_load_dwordx4 v[%d:%d], v%d, s[%d:%d], s%d offen offset:%d", SA + 4 * i, SA + 4 * i + 3, T5, S_X, S_X + 3, S_T3, 1024 * i)
                q.append(('S', 0))
        def wo_pf():
            if w != 3 or not PFD or W2P: return
            a("v_lshlrev_b32 v%d, 7, v0", ST + 50)
            a("s_lshl_b32 s%d, s2, 13", S_T)
            a("buffer_load_dword v%d, v%d, s[76:79], s%d offen", V_PFD, ST + 50, S_T); q.append(('P', 0))
        def pro2():
            for l_ in pro_list[PRO_A:]: emit_now(l_)
            if S_AT < 0: s_loads()
        def pro3():
            if WO_AT < 0: wo_pf()
            if PFD and w < 3:
                for i in range(PF_PRO): emit_now([pf_job()])
        if PSPLIT == 0: pro2()
        PFD = opt.get("pf_d", 384)
        if PFD:
            a("s_lshr_b32 s%d, s2, 3", S_T)
            a("s_and_b32 s%d, s2, 7", S_K1)
            RG = opt.get("rot_mt", 0)
            PSH = 4 if RG == 3 else 5
            if RG == 3: a("s_and_b32 s%d, s%d, 15", S_T, S_T)
            S_PR = S_ROT
            if RG >= 4:
                S_PR = S_K2
                a("s_add_u32 s%d, s%d, %d", S_PR, S_K1, RG - 3)
                a("s_and_b32 s%d, s%d, 7", S_PR, S_PR)
            if w < 2:
                a("v_min_u32 v%d, %d, v0", T0, 55 if RG == 3 else 27)
                a("v_mul_u32_u24 v%d, 9363, v%d", T1, T0)
                a("v_lshrrev_b32 v%d, 16, v%d", T1, T1)
                a("v_mul_u32_u24 v%d, 7, v%d", T2, T1)
                a("v_sub_u32 v%d, v%d, v%d", T2, T0, T2)
                a("v_lshlrev_b32 v%d, %d, v%d", T1, PSH, T1)
                a("v_add_u32 v%d, s%d, v%d", T1, S_T, T1)
                a("v_mul_u32_u24 v%d, 7168, v%d", T1, T1)
                a("v_lshl_add_u32 v%d, v%d, 7, v%d", V_PF, T2, T1)
                make_srd(a, S_PF, P_G if w == 0 else P_U, 1024 * 7168)
                a("s_mul_i32 s%d, s%d, 896", S_PFOFF, S_K1)
                a("s_add_u32 s%d, s%d, %d", S_PFOFF, S_PFOFF, PF_C0 * 128 * 7168)
                if KROT:
                    a("s_mul_i32 s%d, s%d, %d", S_T, S_PR, 128 * 7168)
                    a("s_add_u32 s%d, s%d, s%d", S_PFOFF, S_PFOFF, S_T)
                a("s_mov_b32 s%d, %d", S_PFSTR, 128 * 7168)
            elif w == 2:
                a("v_min_u32 v%d, %d, v0", T0, 47 if RG == 3 else 23)
                a("v_mul_u32_u24 v%d, 10923, v%d", T1, T0)
                a("v_lshrrev_b32 v%d, 16, v%d", T1, T1)
                a("v_mul_u32_u24 v%d, 6, v%d", T2, T1)
                a("v_sub_u32 v%d, v%d, v%d", T2, T0, T2)
                a("v_lshlrev_b32 v%d, %d, v%d", T1, PSH, T1)
                a("v_add_u32 v%d, s%d, v%d", T1, S_T, T1)
                a("v_mul_u32_u24 v%d, 6144, v%d", T1, T1)
                a("v_lshrrev_b32 v%d, 1, v%d", T3, T2)
                a("v_lshl_add_u32 v%d, v%d, 11, v%d", T1, T3, T1)
                a("v_and_b32 v%d, 1, v%d", T2, T2)
                a("v_lshl_add_u32 v%d, v%d, 7, v%d", V_PF, T2, T1)
                make_srd(a, S_PF, P_Q, 1024 * 6144)
                a("s_lshl_b32 s%d, s%d, 8", S_PFOFF, S_K1)
                a("s_add_u32 s%d, s%d, %d", S_PFOFF, S_PFOFF, PF_C0 * 128 * 6144)
                if KROT:
                    a("s_mul_i32 s%d, s%d, %d", S_T, S_PR, 128 * 6144)
                    a("s_add_u32 s%d, s%d, s%d", S_PFOFF, S_PFOFF, S_T)
                a("s_mov_b32 s%d, %d", S_PFSTR, 128 * 6144)
            else:
                make_srd(a, 76, P_WO, 1024 * 2048)
                a("v_lshlrev_b32 v%d, 7, v0", V_PF)
                a("v_min_u32 v%d, %d, v%d", V_PF, 31 * 128, V_PF)
                make_srd(a, S_PF, P_WD, 3584 * 2048)
                a("s_mul_i32 s%d, s2, 28672", S_PFOFF)
                a("s_mov_b32 s%d, 4096", S_PFSTR)
        def pf_job():
            pre = []
            if KROT and w < 3:
                pre = ["s_cmp_ge_u32 s%d, %d" % (S_PFOFF, 1024 * (7168 if w < 2 else 6144)),
                       "s_cselect_b32 s%d, %d, 0" % (S_T, 1024 * (7168 if w < 2 else 6144)),
                       "s_sub_u32 s%d, s%d, s%d" % (S_PFOFF, S_PFOFF, S_T)]
            return ((pre, ["buffer_load_dword v%d, v%d, s[%d:%d], s%d offen%s" % (V_PFD, V_PF, S_PF, S_PF + 3, S_PFOFF, " nt" if opt.get("nt_pf") else ""),
                          "s_add_u32 s%d, s%d, s%d" % (S_PFOFF, S_PFOFF, S_PFSTR)]), ('P', 0))
        if PSPLIT == 0: pro3()
        if PG == 2:
            if w < 3 and opt.get("pg_pf", 3) & 1:
                for c_ in range(opt.get("pg_pc", 1)):
                    if c_:
                        a("s_cmp_eq_u32 s%d, 7", S_ROT)
                        a("s_cselect_b32 s%d, %d, 0", S_T, 1024 * (7168 if w < 2 else 6144))
                        a("s_sub_u32 s%d, s%d, s%d", S_T, S_PFOFF, S_T)
                        a("s_sub_u32 s%d, s%d, %d", S_T, S_T, (PF_C0 - c_) * 128 * (7168 if w < 2 else 6144))
                    else: a("s_sub_u32 s%d, s%d, %d", S_T, S_PFOFF, PF_C0 * 128 * (7168 if w < 2 else 6144))
                    a("buffer_load_dword v%d, v%d, s[%d:%d], s%d offen", V_PFD, V_PF, S_PF, S_PF + 3, S_T); q.append(('P', 0))
            for l_ in pro_list[:PRO_A]: emit_now(l_)
        make_srd(a, S_ACT, P_WS, ACT_BYTES + (8 * ACT_KB if CSD else 0), WS_ACT2)
        make_srd(a, S_ST, P_WS, 65536 if CSD else 2048 * 8, WS_STATS)
        make_srd(a, S_DBG, P_DBG, 256)
        a("v_and_b32 v%d, 15, v0", T0)
        a("v_lshrrev_b32 v%d, 4, v0", T1)
        a("v_lshrrev_b32 v%d, 1, v%d", T2, T0)
        a("v_xor_b32 v%d, v%d, v%d", T2, T2, T1)
        a("v_lshlrev_b32 v%d, 4, v%d", T2, T2)
        a("v_lshl_add_u32 v%d, v%d, 7, v%d", T3, T0, T2)
        a("v_add_u32 v%d, %d, v%d", V_XR[0], wm * 16384, T3)
        a("v_xor_b32 v%d, 64, v%d", V_XR[1], V_XR[0])
        if CSD:
            a("v_mov_b32 v%d, 0x3f803f80", T4)
            for z in range(2):
                a("v_cmp_eq_u32 vcc, %d, v%d", z, T0)
                a("v_cndmask_b32 v%d, 0, v%d, vcc", T2, T4)
                for i in range(4): a("v_accvgpr_write_b32 %s, v%d", HX(z).sub(i), T2)
        else:
            a("v_add_u32 v%d, 32768, v%d", V_HX[0], T3)
            a("v_add_u32 v%d, %d, v%d", T4, 32768 + 2048, T3)
            a("v_cmp_eq_u32 vcc, 0, v%d", T0)
            a("v_cndmask_b32 v%d, v%d, v%d, vcc", V_HX[0], V_HX[0], T4)
            a("v_xor_b32 v%d, 64, v%d", V_HX[1], V_HX[0])
        a("v_lshrrev_b32 v%d, 2, v%d", T2, T0)
        a("v_lshl_add_u32 v%d, v%d, 3, v%d", T2, T1, T2)
        a("v_and_b32 v%d, 3, v0", T3)
        a("v_lshlrev_b32 v%d, 3, v%d", T3, T3)
        a("v_and_b32 v%d, 1, v%d", T1, T1)
        a("v_lshl_add_u32 v%d, v%d, 2, v%d", T4, T1, T2)
        a("v_mul_u32_u24 v%d, 224, v%d", V_WRD[0], T4)
        a("v_xor_b32 v%d, 4, v%d", T4, T4)
        a("v_mul_u32_u24 v%d, 224, v%d", V_WRD[1], T4)
        if CSD and w:
            F_, G_, H_ = S_K1, S_K2, S_STO
            a("s_mul_i32 s%d, s%d, 3", F_, S_MT)
            a("s_add_u32 s%d, s%d, %d", F_, F_, w - 1)
            a("s_cmp_lt_u32 s%d, 20", F_)
            a("s_cselect_b32 s%d, 0xffff, 0", S_CSM)
            a("s_min_u32 s%d, s%d, 19", F_, F_)
            a("s_mul_i32 s%d, s%d, 1536", S_CSW, S_J)
            a("s_lshl_b32 s%d, s%d, 2", G_, F_)
            a("s_add_u32 s%d, s%d, s%d", S_CSW, S_CSW, G_)
            a("s_cmp_ge_u32 s%d, 10", F_)
            a("s_cselect_b32 s%d, %d, 0", G_, 768 - 40)
            a("s_add_u32 s%d, s%d, s%d", S_CSW, S_CSW, G_)
            a("s_add_u32 s%d, s%d, %d", S_CSW, S_CSW, CS_OFF)
            a("s_sub_u32 s%d, s%d, 6", G_, F_)
            a("s_lshr_b32 s%d, s%d, 1", G_, G_)
            a("s_add_u32 s%d, s%d, s%d", G_, G_, S_ODD)
            a("s_cmp_eq_u32 s%d, 7", G_)
            a("s_cselect_b32 s%d, 0, s%d", G_, G_)
            a("s_lshl_b32 s%d, s%d, 5", G_, G_)
            a("s_and_b32 s%d, s%d, 1", H_, F_)
            a("s_mul_i32 s%d, s%d, %d", S_T, H_, WU_OFF)
            a("s_add_u32 s%d, s%d, s%d", G_, G_, S_T)
            a("s_add_u32 s%d, s%d, %d", G_, G_, WBASE)
            for h in range(2): a("v_add3_u32 v%d, v%d, v%d, s%d", V_HX[h], V_WRD[h], T3, G_)
            a("s_lshl_b32 s%d, s%d, 5", H_, H_)
            a("s_lshr_b32 s%d, s%d, 1", G_, F_)
            a("s_lshl_b32 s%d, s%d, 6", G_, G_)
            a("s_add_u32 s%d, s%d, %d", G_, G_, WBASE + WQ_OFF)
            a("v_mul_u32_u24 v%d, 192, v%d", T4, T2)
            a("v_lshl_add_u32 v%d, v%d, 5, v%d", T4, T1, T4)
            a("v_xor_b32 v%d, s%d, v%d", T4, H_, T4)
            a("v_add3_u32 v%d, v%d, v%d, s%d", T4, T4, T3, G_)
            a("s_cmp_lt_u32 s%d, 6", F_)
            a("s_cselect_b64 vcc, -1, 0")
            a("v_cndmask_b32 v%d, v%d, v%d, vcc", V_HX[0], V_HX[0], T4)
            a("v_add_u32 v%d, 768, v%d", T4, T4)
            a("v_cndmask_b32 v%d, v%d, v%d, vcc", V_HX[1], V_HX[1], T4)
        a("s_lshl_b32 s%d, s%d, 5", S_T, S_ODD)
        a("s_add_u32 s%d, s%d, %d", S_T, S_T, WBASE)
        if wn == 1:
            a("s_mul_i32 s%d, s%d, 192", S_K1, S_ODD)
            a("s_sub_u32 s%d, %d, s%d", S_K1, WBASE + 192, S_K1)
            for h in range(2):
                a("v_add3_u32 v%d, v%d, v%d, s%d", V_WRD[2 + h], V_WRD[h], T3, S_K1)
        else:
            a("v_mul_u32_u24 v%d, 192, v%d", T4, T2)
            a("v_lshl_add_u32 v%d, v%d, 5, v%d", T4, T1, T4)
            a("v_add_u32 v%d, v%d, v%d", T4, T4, T3)
            a("v_add_u32 v%d, %d, v%d", V_WRD[2], WBASE, T4)
            a("v_xor_b32 v%d, 32, v%d", T4, T4)
            a("v_add_u32 v%d, %d, v%d", V_WRD[3], WBASE, T4)
        for h in range(2):
            a("v_add3_u32 v%d, v%d, v%d, s%d", V_WRD[h], V_WRD[h], T3, S_T)
        for i in range(4):
            a("v_add_u32 v%d, %d, v%d", V_WRD[4 + i], 2 * WSTAGE, V_WRD[i])
        def cs_store(val):
            a("v_mul_u32_u24 v%d, 48, v0", T1)
            a("s_mov_b32 exec_lo, s%d", S_CSM)
            a("s_mov_b32 exec_hi, 0")
            a("buffer_store_dword v%d, v%d, s[%d:%d], s%d offen sc1", val, T1, S_ST, S_ST + 3, S_CSW); q.append(('Z', 0))
            a("s_mov_b64 exec, -1")
        if CSD and w:
            a("v_mov_b32 v%d, 0", T0)
            cs_store(T0)
        if H2 and w == 1:
            a("s_lshl_b32 s%d, s%d, 16", S_T, S_MT)
            a("s_lshl_b32 s%d, s%d, 11", S_K2, S_J)
            a("s_add_u32 s%d, s%d, s%d", S_T, S_T, S_K2)
            a("s_add_u32 s%d, s%d, %d", S_T, S_T, ACT_BYTES)
            for i in range(4): a("v_mov_b32 v%d, -1", ST + 32 + i)
            for i in range(2):
                a("buffer_store_dwordx4 v[%d:%d], v%d, s[%d:%d], s%d offen offset:%d sc1", ST + 32, ST + 35, T5, S_ACT, S_ACT + 3, S_T, 1024 * i); q.append(('Z', 0))
        if H2 and w == 0:
            a("v_mov_b32 v%d, 0", T0)
            a("v_mov_b32 v%d, %d", T1, L_HF)
            a("ds_write_b32 v%d, v%d", T1, T0)
        if w == 0 and not CSD:
            a("v_mov_b32 v%d, 0x3f803f80", T0)
            a("v_lshlrev_b32 v%d, 2, v0", T1)
            a("v_and_b32 v%d, 127, v%d", T1, T1)
            a("ds_write_b32 v%d, v%d offset:%d", T1, T0, 272 * 128)
            a("v_add_u32 v%d, %d, v%d", T1, XSLOT, T1)
            a("ds_write_b32 v%d, v%d offset:%d", T1, T0, 272 * 128)
        if w == 1 and FUSE:
            make_srd(a, 76, P_WS, FLG_BYTES, WS_FLAGS)
            a("s_mul_i32 s%d, s2, 48", S_T)
            for i in range(4): a("v_mov_b32 v%d, 0", T0 + i)
            a("s_mov_b64 exec, 7")
            a("buffer_store_dwordx4 v[%d:%d], v%d, s[76:79], s%d offen sc1", T0, T3, T5, S_T); q.append(('Z', 0))
            a("s_mov_b64 exec, -1")
        elif w == 1:
            make_srd(a, S_PF if not PFD else 76, P_WS, 4096, WS_FLAGS)
            sf = S_PF if not PFD else 76
            a("s_lshl_b32 s%d, s2, 4", S_T)
            for i in range(4): a("v_mov_b32 v%d, 0", T0 + i)
            a("s_mov_b64 exec, 1")
            a("buffer_store_dwordx4 v[%d:%d], v%d, s[%d:%d], s%d offen", T0, T3, T0, sf, sf + 3, S_T); q.append(('Z', 0))
            a("s_mov_b64 exec, -1")
        a("s_mov_b32 s%d, 0xffff0000", S_K1)
        RD = ST + 50
        spins = SPINS
        if FS:
            a("v_mov_b32 v%d, 0", V_FS)
            a("v_mov_b32 v%d, %d", V_FA, L_FLG + 4 * w)
            a("v_and_b32 v%d, 3, v0", V_FR)
            a("v_lshlrev_b32 v%d, 2, v%d", V_FR, V_FR)
            a("v_add_u32 v%d, %d, v%d", V_FR, L_FLG, V_FR)
            a("ds_write_b32 v%d, v%d", V_FA, V_FS)
        V_CSRC = V_PF if w == 3 else V_WDMA[3]; V_CRD = T4; V_CST = T5
        if W2P:
            make_srd(a, S_CS, P_WO, 1024 * 2048)
            make_srd(a, S_CD, P_WS, 4608 * 2048, WS_W2P)
            a("s_lshr_b32 s%d, s2, 4", S_T)
            a("s_lshl_b32 s%d, s%d, 16", S_T, S_T)
            a("s_and_b32 s%d, s2, 15", S_CDO)
            a("s_lshl_b32 s%d, s%d, 7", S_CSO, S_CDO)
            a("s_lshl_b32 s%d, s%d, 12", S_CDO, S_CDO)
            a("s_add_u32 s%d, s%d, s%d", S_CSO, S_CSO, S_T)
            a("s_add_u32 s%d, s%d, s%d", S_CDO, S_CDO, S_T)
            a("s_add_u32 s%d, s%d, %d", S_CSO, S_CSO, [0, 4, 16, 20][w] * 2048)
            a("s_add_u32 s%d, s%d, %d", S_CDO, S_CDO, w * 256)
            a("v_lshrrev_b32 v%d, 3, v0", RD)
            a("v_lshrrev_b32 v%d, 5, v0", RD + 1)
            a("v_lshl_add_u32 v%d, v%d, 2, v%d", RD, RD + 1, RD)
            a("v_and_b32 v%d, 7, v0", RD + 1)
            a("v_lshlrev_b32 v%d, 4, v%d", RD + 1, RD + 1)
            a("v_lshl_add_u32 v%d, v%d, 11, v%d", V_CSRC, RD, RD + 1)
            a("v_bfe_u32 v%d, v0, 2, 2", RD)
            a("v_lshlrev_b32 v%d, 7, v%d", RD, RD)
            a("v_lshrrev_b32 v%d, 4, v0", RD + 1)
            a("v_lshl_add_u32 v%d, v%d, 5, v%d", RD, RD + 1, RD)
            a("v_and_b32 v%d, 3, v0", RD + 1)
            a("v_lshl_add_u32 v%d, v%d, 3, v%d", RD, RD + 1, RD)
            a("v_add_u32 v%d, %d, v%d", V_CRD, L_KV + w * 1024, RD)
        def r_job(s, area):
            post = ["s_add_u32 s%d, s%d, 0x100000" % (S_CSO, S_CSO)]
            if area == 0 and s == 0:
                post = ["s_sub_u32 s%d, s%d, 0x100000" % (S_CSO, S_CSO), "s_mov_b32 s%d, s%d" % (S_CS, P_WD), "s_mov_b32 s%d, s%d" % (S_CS + 1, P_WD + 1),
                        "s_mov_b32 s%d, 0x%x" % (S_CS + 2, 3584 * 2048)]
            return ((["s_mov_b32 m0, %d" % ((L_STG if area else L_KV) + w * 1024)],
                     ["buffer_load_dwordx4 v%d, s[%d:%d], s%d offen%s lds" % (V_CSRC, S_CS, S_CS + 3, S_CSO, " nt" if opt.get("nt_r") else "")] + post), ('R', s + 1 - area))
        def r_read(s, area):
            o = (L_STG - L_KV) if area else 0
            lds("ds_read_b64_tr_b16 v[%d:%d], v%d offset:%d" % (RD, RD + 1, V_CRD, o), ('R', s, 0))
            lds("ds_read_b64_tr_b16 v[%d:%d], v%d offset:%d" % (RD + 2, RD + 3, V_CRD, o + 512), ('R', s, 0))
        def r_store(s):
            lwait([('R', s, 0)])
            if opt.get("w2rr") and s > 3:
                a("s_sub_u32 s%d, s%d, 0x100000", S_T, S_CDO)
                a("buffer_load_dword v%d, v%d, s[%d:%d], s%d offen%s", V_PFD, V_CST, S_CD, S_CD + 3, S_T, opt["w2rr"]); q.append(('P', 0))
            a("buffer_store_dwordx4 v[%d:%d], v%d, s[%d:%d], s%d offen%s", RD, RD + 3, V_CST, S_CD, S_CD + 3, S_CDO, opt.get("w2st", " sc1")); q.append(('RS', 0))
            a("s_add_u32 s%d, s%d, 0x100000", S_CDO, S_CDO)
        a("s_lshl_b32 s%d, s%d, 3", S_T2, S_T2)
        def stat_row(b, onm, osd):
            L = []
            X = ST + 16; Y = X; Z = ST + 48
            for i in range(8):
                L.append("v_lshlrev_b32 v%d, 16, v%d" % (X + 2 * i, b + i))
                L.append("v_and_b32 v%d, s%d, v%d" % (X + 2 * i + 1, S_K1, b + i))
            def red(src, dst):
                for i in range(8): L.append("v_add_f32 v%d, v%d, v%d" % (b + i, src + 2 * i, src + 2 * i + 1))
                for i in range(4): L.append("v_add_f32 v%d, v%d, v%d" % (b + i, b + 2 * i, b + 2 * i + 1))
                L.append("v_add_f32 v%d, v%d, v%d" % (b, b, b + 1))
                L.append("v_add_f32 v%d, v%d, v%d" % (b + 2, b + 2, b + 3))
                L.append("v_add_f32 v%d, v%d, v%d" % (dst, b, b + 2))
                for m_ in ("quad_perm:[1,0,3,2]", "quad_perm:[2,3,0,1]", "row_half_mirror", "row_mirror"):
                    L.append("v_add_f32_dpp v%d, v%d, v%d %s row_mask:0xf bank_mask:0xf" % (dst, dst, dst, m_))
                for sw in ("16", "32"):
                    L.append("v_mov_b32 v%d, v%d" % (b, dst))
                    L.append("v_permlane%s_swap_b32 v%d, v%d" % (sw, dst, b))
                    L.append("v_add_f32 v%d, v%d, v%d" % (dst, dst, b))
                L.append("v_mul_f32 v%d, 0x3a800000, v%d" % (dst, dst))
            red(X, Z)
            for i in range(16): L.append("v_sub_f32 v%d, v%d, v%d" % (Y + i, X + i, Z))
            for i in range(16): L.append("v_mul_f32 v%d, v%d, v%d" % (Y + i, Y + i, Y + i))
            red(Y, Z + 1)
            L.append("v_cvt_pk_bf16_f32 v%d, v%d, v%d" % (onm, Z, Z))
            L.append("v_xor_b32 v%d, 0x80008000, v%d" % (onm, onm))
            L.append("v_cvt_pk_bf16_f32 v%d, v%d, v%d" % (Z + 1, Z + 1, Z + 1))
            L.append("v_and_b32 v%d, s%d, v%d" % (Z + 1, S_K1, Z + 1))
            L.append("v_add_f32 v%d, 0x3727c5ac, v%d" % (Z + 1, Z + 1))
            L.append("v_cvt_pk_bf16_f32 v%d, v%d, v%d" % (Z + 1, Z + 1, Z + 1))
            L.append("v_and_b32 v%d, s%d, v%d" % (Z + 1, S_K1, Z + 1))
            L.append("v_sqrt_f32 v%d, v%d" % (Z + 1, Z + 1))
            L.append("v_cvt_pk_bf16_f32 v%d, v%d, v%d" % (Z + 1, Z + 1, Z + 1))
            L.append("v_and_b32 v%d, s%d, v%d" % (osd, S_K1, Z + 1))
            return L
        SS0 = opt.get("ss0", 2)
        side = {0: [], 1: [], 2: [], 3: [], 28: ["v_mov_b32 v%d, 0" % r_ for r_ in range(ST, CST + 24) if not (W2P and not FUSE and RD <= r_ < RD + 4) and not (FS and r_ in (V_FS, V_FA, V_FR, V_FD))]}
        if W2P:
            assert S_AT < 2
            side[2] += ["v_lshrrev_b32 v%d, 4, v0" % RD, "v_lshlrev_b32 v%d, 10, v%d" % (RD, RD), "v_and_b32 v%d, 15, v0" % (RD + 1),
                        "v_lshl_add_u32 v%d, v%d, 4, v%d" % (V_CST, RD + 1, RD)]
        if CPF & 2 and w == 2: side[28].insert(0, "CPF")
        W2L2 = opt.get("w2l2", 0)
        if W2L2:
            L = ["s_lshr_b32 s%d, s2, 3" % S_K2, "s_mul_i32 s%d, s%d, 11" % (S_K2, S_K2),
                 "s_and_b32 s%d, s2, 1" % S_STO, "s_mul_i32 s%d, s%d, %d" % (S_STO, S_STO, 56 * 65536),
                 "s_bfe_u32 s%d, s2, 0x10002" % S_AB, "s_lshl_b32 s%d, s%d, 15" % (S_AB, S_AB), "s_add_u32 s%d, s%d, s%d" % (S_AB, S_AB, S_STO),
                 "v_lshlrev_b32 v%d, 7, v0" % V_PF]
            for n_ in range(w, 11, 4):
                L += ["s_add_u32 s%d, s%d, %d" % (S_STO, S_K2, n_), "s_and_b32 s%d, s%d, 3" % (S_PFOFF, S_STO), "s_lshl_b32 s%d, s%d, 13" % (S_PFOFF, S_PFOFF),
                      "s_lshr_b32 s%d, s%d, 2" % (S_STO, S_STO), "s_lshl_b32 s%d, s%d, 16" % (S_STO, S_STO),
                      "s_add_u32 s%d, s%d, s%d" % (S_PFOFF, S_PFOFF, S_STO), "s_add_u32 s%d, s%d, s%d" % (S_PFOFF, S_PFOFF, S_AB), "W2PF"]
            side.setdefault(W2L2, []).extend(L)
        if FUSE:
            side[30] = p2.setup_s() + ["s_lshl_b32 s%d, s%d, 10" % (p2.Q_FSIG, S_MT), "s_lshl_b32 s%d, s%d, 4" % (p2.Q_T, S_J),
                                       "s_add_u32 s%d, s%d, s%d" % (p2.Q_FSIG, p2.Q_FSIG, p2.Q_T), "s_add_u32 s%d, s%d, %d" % (p2.Q_FSIG, p2.Q_FSIG, FLG_ACT + wm * 512 + (4 * (1 - wn) if EP2 else 0))]
            if opt.get("pf2") is not None:
                A_, B_, C_, D_ = S_C0, S_C1, 78, p2.Q_T
                side[30] += ["s_lshr_b32 s%d, s2, 4" % A_, "s_and_b32 s%d, s%d, 7" % (A_, A_), "s_mul_i32 s%d, s%d, 7" % (A_, A_),
                             "s_bfe_u32 s%d, s2, 0x10003" % D_, "s_lshl_b32 s%d, s%d, 2" % (D_, D_), "s_add_u32 s%d, s%d, s%d" % (A_, A_, D_),
                             "s_mul_i32 s%d, s%d, 56" % (C_, p2.Q_KS), "s_add_u32 s%d, s%d, 34" % (C_, C_), "s_add_u32 s%d, s%d, s%d" % (A_, A_, C_),
                             "s_bfe_u32 s%d, s2, 0x40003" % B_, "s_lshl_b32 s%d, s%d, 4" % (D_, p2.Q_KS), "s_add_u32 s%d, s%d, s%d" % (B_, B_, D_),
                             ["s_cmp_lt_u32 s2, 128", "s_cselect_b32 s%d, s%d, s%d" % (A_, A_, B_)],
                             "s_lshl_b32 s%d, s%d, 16" % (A_, A_), "s_add_u32 s%d, s%d, %d" % (A_, A_, w * 16384), "s_add_u32 s%d, s%d, 8192" % (B_, A_),
                             "s_mul_i32 s%d, s%d, 7" % (D_, S_MT), "s_add_u32 s%d, s%d, s%d" % (C_, C_, D_), "s_add_u32 s%d, s%d, 1" % (C_, C_),
                             "s_lshl_b32 s%d, s%d, 16" % (C_, C_), "s_bfe_u32 s%d, s2, 0x20003" % D_, "s_lshl_b32 s%d, s%d, 14" % (D_, D_),
                             "s_add_u32 s%d, s%d, s%d" % (C_, C_, D_), "s_add_u32 s%d, s%d, %d" % (C_, C_, w * 4096)]
            if XE:
                XA_ = p2.SL[XE]
                side[31] = ["v_and_b32 v%d, 15, v0" % T4, "v_lshrrev_b32 v%d, 4, v0" % T5, "v_lshlrev_b32 v%d, 11, v%d" % (T4, T4), "v_lshl_add_u32 v%d, v%d, 3, v%d" % (T4, T5, T4)]
                for mf in range(4):
                    side[31] += ["s_add_u32 s%d, s%d, %d" % (p2.Q_T2, p2.Q_XROW, mf * 32768)]
                    for nf in range(2):
                        r_ = XA_ + (mf * 2 + nf) * 2
                        side[31] += [("XLD", "buffer_load_dwordx2 a[%d:%d], v%d, s[%d:%d], s%d offen offset:%d" % (r_, r_ + 1, T4, S_X, S_X + 3, p2.Q_T2, nf * 32))]
                if WST:
                    k_ = side[30].index("s_mov_b32 s%d, s%d" % (p2.Q_O, p2.P_OUT))
                    side[31] += side[30][k_:k_ + 14] + [None] * 16
                    del side[30][k_:k_ + 14]
                else: side[31] += [None] * 30
        if S_AT >= 0: side[S_AT].append("SLOAD")
        if WO_AT >= 0: side[WO_AT].append("WOPF")
        for s_ in PF_X: side[s_].append("PFJ")
        if SS0 < 3:
            side[SS0] += ["WAITS"] + stat_row(SA, T0, T1); side[SS0 + 1] += stat_row(SB, T2, T3) + ["SSTORE"]
        else:
            side[3] += ["WAITS"] + stat_row(SA, T0, T1) + stat_row(SB, T2, T3) + ["SSTORE"]
        def side_emit(x_):
            if x_ is None: return
            if isinstance(x_, tuple): a(x_[1]); q.append(('XL', 0))
            elif isinstance(x_, list):
                for y_ in x_: a(y_)
            elif x_ == "WAITS": a("s_waitcnt vmcnt(%d)", need_count([('S', 0)]))
            elif x_ == "CPF": code_pf(76, T0, V_PFD, S_T); q.append(('P', 0))
            elif x_ == "W2PF":
                a("buffer_load_dword v%d, v%d, s[%d:%d], s%d offen", V_PFD, V_PF, S_CD, S_CD + 3, S_PFOFF); q.append(('P', 0))
            elif x_ == "SLOAD": s_loads()
            elif x_ == "WOPF": wo_pf()
            elif x_ == "PFJ":
                if PFD and w < 3: emit_now([pf_job()])
            elif x_ == "SSTORE":
                a("s_mov_b64 exec, 1")
                a("buffer_store_dwordx4 v[%d:%d], off, s[%d:%d], s%d sc1", T0, T3, S_ST, S_ST + 3, S_T2); q.append(('SS', 0))
                a("s_mov_b64 exec, -1")
            else: a(x_)
        a("s_lshl_b32 s%d, s%d, 2", S_C1, S_MT)
        if not CSD:
            a("s_max_u32 s%d, s%d, 4", S_C0, S_C1)
            a("s_sub_u32 s%d, s%d, 4", S_C0, S_C0)
        a("s_mov_b32 s%d, 0", S_OK)

        lq = []
        def lds(instr, tag):
            if opt.get("nolds") and tag[1] > 0 and (opt["nolds"] == 1 or (opt["nolds"] == 2) == (tag[0] == 'W')): return
            a(instr); lq.append(tag)
        def lwait(tags):
            idx = [i for i, t in enumerate(lq) if t in tags]
            if not idx: return
            n = len(lq) - 1 - max(idx)
            a("s_waitcnt lgkmcnt(%d)", min(n, 15))
            del lq[:len(lq) - min(n, 15)]
        def w_reads(s, nf):
            stage = s & 3; hi = (stage >> 1) * 4; so = (stage & 1) * WSTAGE
            dst = WR(10 * s + nf)
            out = []
            for h in range(2):
                if wn == 0 and nf < 6:
                    ad = V_WRD[hi + 2 + (nf & 1)]; off = so + WQ_OFF + h * 768 + (nf >> 1) * 64
                else:
                    k = nf - 6 if wn == 0 else nf
                    slot = (k >> 1) + (0 if wn == 0 else 2); isu = k & 1
                    if slot == 6: ad = V_WRD[hi + 2 + h]; off = so + isu * WU_OFF
                    else: ad = V_WRD[hi + h]; off = so + isu * WU_OFF + slot * 32
                out.append(("ds_read_b64_tr_b16 %s, v%d offset:%d" % (dst.sub(2 * h, 2), ad, off), ('W', s, nf)))
            return out
        def x_reads(s):
            xs = (s >> 1) & 1; kk = s & 1
            out = [("ds_read_b128 %s, v%d offset:%d" % (XF(s & 1, mf), V_XR[kk], xs * XSLOT + mf * 2048), ('X', s, mf)) for mf in range(8)]
            if not CSD: out.append(("ds_read_b128 %s, v%d offset:%d" % (HX(s & 1), V_HX[kk], xs * XSLOT), ('H', s)))
            return out
        def wst_jobs(idx, srd):
            jobs = []
            for i in idx:
                if i >= len(WST): continue
                base, kb, d = p2.w_kbs(WST[i])
                assert base == p2.Q_WG
                for kk in range(2):
                    for nf in range(2):
                        pre = ["s_mov_b32 m0, %d" % (WSB[i] + w * 4096 + kk * 2048), "s_add_u32 s%d, s%d, %d" % (S_T, S_WSB, (kb + kk * d) * 65536)] if nf == 0 else []
                        jobs.append(((pre, ["buffer_load_dwordx4 v%d, s[%d:%d], s%d offen offset:%d sc1 lds" % (V_WDMA[0], srd, srd + 3, S_T, nf * 1024)]), ('WS', 0)))
            return jobs
        pend = []
        gapc = [0, 0]
        def step(s, waits=None, emit=True, hooks=None):
            last = s == NSTEP - 1
            ms = []
            for nf in range(10):
                mfs = range(8) if nf % 2 == 0 else range(7, -1, -1)
                grp = [(nf, mf) for mf in mfs]
                if CSD:
                    if s > CSD: grp.insert(4, (nf, -1))
                    elif w and nf == BAR + 3 and s + 1 <= CSD: grp.insert(4, (nf, -2))
                    elif w and nf == 2 and s == 0: grp.insert(4, (nf, -3))
                elif nf in hset and not (opt.get("cs4") and s >= 4): grp.insert(4, (nf, -1))
                ms += grp
            if s == 0 and pend0: pend.extend(pend0)
            xr = x_reads(s + 1) if not last else []
            first_of = {}
            for i, (nf, mf) in enumerate(ms): first_of.setdefault(nf, i)
            x0 = first_of[BAR] + 2 if (s & 1) else first_of[opt.get("xr_even", 2)] + 2
            xend = len(ms) - opt.get("xr_tail", 10)
            xpos = [x0 + ((xend - x0) * i) // len(xr) for i in range(len(xr))] if xr else []
            sd_ = list(side.get(s, [])) if (emit and (s < 4 or s >= NSTEP - 4)) else []
            s_hi = 66 if s == 28 else len(ms) - 2
            spos = [2 + ((s_hi - 2) * i) // len(sd_) for i in range(len(sd_))] if sd_ else []
            for i, (nf, mf) in enumerate(ms):
                post = []
                if i == first_of[nf] and nf == (FS[0] if FS else BAR) and not last:
                    tags = [('W', s + 1)]
                    if (s + 1) % 2 == 0: tags.append(('X', (s + 1) // 2))
                    n = min(63, need_count(tags))
                    if waits is not None and not (opt.get("xw") and s < 4):
                        if emit: n = waits[s & 3]
                        else: waits[s & 3] = min(waits.get(s & 3, 63), n)
                    if FS:
                        assert not any(t in tags for _, t in pend)
                        a("v_add_u32 v%d, 1, v%d", V_FS, V_FS)
                        lwait([('X', s, m_) for m_ in range(8)] + [('H', s)] + [('W', s - 1, n_) for n_ in range(10)])
                    if emit and s < 4: nst("b%da" % s)
                    if not opt.get("nodma") and not opt.get("nowait"): a("s_waitcnt vmcnt(%d)", n)
                    if emit and s < 4: nst("b%db" % s)
                    if FS: lds("ds_write_b32 v%d, v%d" % (V_FA, V_FS), ('F', s, 0))
                if FS and i == first_of[BAR] - FSL and not last:
                    lds("ds_read_b32 v%d, v%d" % (V_FD, V_FR), ('F', s, 1))
                if i == first_of[nf] and nf == BAR and not last:
                    if FS:
                        lwait([('F', s, 1)])
                        l1 = a.newlab("L_g1_fs"); l2 = a.newlab("L_g1_fr")
                        a("v_cmp_lt_u32 vcc, v%d, v%d", V_FD, V_FS)
                        a("s_cbranch_vccnz %s", l1)
                        a.label(l2)
                        if emit: spins.append((l1, l2))
                    elif not opt.get("nobar"): a("s_barrier")
                    if emit and s < 4: nst("b%dc" % s)
                    assert not pend, "DMA jobs not drained"
                    if (s & 1) and (s + 3) // 2 < NSTEP // 2: pend.extend(x_jobs((s + 3) // 2))
                    if s + 3 < NSTEP and not (PG and s == 0): pend.extend(w_jobs(s + 3))
                    if WST and s == 29: pend.extend(wst_jobs([0, 1, 2], S_G))
                    if WST and s == 30: pend.extend(wst_jobs([3], S_G))
                    if PFD and (s & 3) == 0 and s < NSTEP - 4 and not (W2P and w == 3): pend.append(pf_job())
                    if W2P and (s & 3) == 0 and not (FUSE and s >= 28):
                        pend.append(r_job(s, 1))
                        if s == 0 or FUSE: pend.append(r_job(s, 0))
                    if KROT and (s & 3) == 1 and s < NSTEP - 4:
                        a("s_sub_u32 s%d, s%d, 1", S_RC, S_RC)
                        a("s_cmp_eq_u32 s%d, 0", S_RC)
                        a("s_cselect_b32 s%d, %d, 0", S_K2, 1024 * 7168)
                        a("s_cselect_b32 s%d, %d, 0", S_STO, 1024 * 6144)
                        a("s_cselect_b32 s%d, 2048, 0", S_T)
                        if not opt.get("samew"):
                            a("s_sub_u32 s%d, s%d, s%d", S_GOFF, S_GOFF, S_K2)
                            a("s_sub_u32 s%d, s%d, s%d", S_QOFF, S_QOFF, S_STO)
                        a("s_sub_u32 s%d, s%d, s%d", S_XK, S_XK, S_T)
                        if not CSD: a("s_sub_u32 s%d, s%d, s%d", S_XH, S_XH, S_T)
                    gapc[0] = 0; gapc[1] = s & 1
                    if hooks and 'bar' in hooks: hooks['bar']()
                job = None
                de = DE
                g0_ = 1 + DST[w]
                if isinstance(DE, list): de = DE[0] if gapc[1] else DE[1]
                if opt.get("dma2"): de = opt.get("de2", 2)
                if s == 0 and nf < BAR: de = opt.get("pg_de", 2); g0_ = 0
                if pend and gapc[0] >= g0_ and (gapc[0] - g0_) % de == 0:
                    job = pend.pop(0)
                    for x_ in job[0][0]: a(x_)
                gapc[0] += 1
                lwait([('W', s, nf), ('X', s, mf) if mf >= 0 else ('H', s) if mf == -1 else ('D', s, mf)])
                wf = WR(10 * s + nf)
                if mf >= 0 and opt.get("m32") and (wn == 1 or opt["m32"] == 2):
                    if mf & 1:
                        b_ = (nf // 2) * 4 + mf // 2
                        t = R('v', 80 + 16 * b_, 16) if b_ < 11 else R('a', 16 * (b_ - 11), 16)
                        a("v_mfma_f32_32x32x16_bf16 %s, %s, %s, %s" % (t, wf, XF(s & 1, mf), t if s else "0"))
                elif mf >= 0:
                    t = tiles[(nf, mf)]
                    a(mm(t, wf, XF(s & 1, mf), t if s else "0", nf))
                elif CSD and mf == -1:
                    t = HACC(nf >> 1)
                    a("v_mfma_f32_16x16x32_bf16 %s, %s, %s, %s", t, HX(nf & 1), wf, "0" if (s == CSD + 1 and nf % 2 == 0) else t)
                elif CSD:
                    a("v_mfma_f32_16x16x32_bf16 %s, %s, %s, %s", DACC, HX(0), DWF, "0" if mf == -3 else DACC)
                else:
                    t = HACC(hset.index(nf))
                    a(mm(t, wf, HX(s & 1), t if s else "0", nf))
                if job:
                    for x_ in job[0][1]:
                        if opt.get("nodma") and x_.startswith("buffer_load"): continue
                        if opt.get("dma_only") and x_.startswith("buffer_load") and job[1][0] not in opt["dma_only"]: continue
                        if opt.get("dma_reg") and x_.endswith(" lds") and 4 <= s < 28 and job[1][0] in opt["dma_reg"]:
                            x_ = x_[:-4].replace("buffer_load_dwordx4 ", "buffer_load_dwordx4 v[24:27], ")
                            if opt.get("dma_x1"): x_ = x_.replace("dwordx4 v[24:27]", "dword v24")
                        a(x_)
                    q.append(job[1])
                k = i - first_of[nf]
                if k < 2:
                    s2_, nf2 = (s, nf + LA) if nf + LA < 10 else (s + 1, nf + LA - 10)
                    if s2_ < NSTEP:
                        ins, tag = w_reads(s2_, nf2)[k]
                        lds(ins, tag)
                if CSD and w and k in (3, 5):
                    st_ = None
                    if nf == BAR + 1 and s + 1 <= CSD: st_, tg = s + 1, -2
                    if nf == 0 and s == 0: st_, tg = 0, -3
                    if st_ is not None:
                        h = (k - 3) // 2
                        lds("ds_read_b64_tr_b16 %s, v%d offset:%d" % (DWF.sub(2 * h, 2), V_HX[h], (st_ & 3) * WSTAGE), ('D', s, tg))
                while xpos and xpos[0] <= i:
                    xpos.pop(0); ins, tag = xr.pop(0); lds(ins, tag)
                while spos and spos[0] <= i:
                    spos.pop(0); side_emit(sd_.pop(0))
                if W2P and (s & 3) == 3 and not (FUSE and s >= 28):
                    r0 = first_of[FS[0] if FS else BAR] + 4
                    if i == r0:
                        if last: a("s_waitcnt vmcnt(%d)", need_count([('R', s - 3)]))
                        r_read(s, 1)
                    if i == r0 + 12: r_store(s)
                    if (s == 3 or FUSE) and i == r0 + 16: r_read(s, 0)
                    if (s == 3 or FUSE) and i == r0 + 28: r_store(s)
                    if last and i == r0 + 20:
                        for r_ in range(RD, RD + 4): a("v_mov_b32 v%d, 0", r_)
                if hooks and i in hooks: hooks[i]()
                if opt.get("dv") and emit and 4 <= s < 8:
                    nd = opt["dv"]
                    for z in range(i * nd // len(ms), (i + 1) * nd // len(ms)):
                        sr = 36 + (z * 6) % 16; d_ = 20 + (z * 2) % 16
                        a(["v_pk_mul_f32 v[%d:%d], v[%d:%d], v[%d:%d]" % (d_, d_ + 1, sr, sr + 1, sr + 2, sr + 3), "v_exp_f32 v%d, v%d" % (d_, sr), "v_rcp_f32 v%d, v%d" % (d_, sr + 1),
                           "v_accvgpr_read_b32 v%d, a%d" % (d_, 148 + z % 32), "v_exp_f32 v%d, v%d" % (d_, sr + 1), "v_cvt_pk_bf16_f32 v%d, v%d, v%d" % (d_, sr, sr + 1), "v_rcp_f32 v%d, v%d" % (d_, sr + 2),
                           "v_mul_f32 v%d, v%d, v%d" % (d_, sr, sr + 1)][z % 8])

        nst("k2")
        if PSPLIT == 1: pro2(); pro3()
        nst("k3")
        a("s_waitcnt vmcnt(%d)", need_count([('X', 0), ('W', 0)]))
        nst("k4")
        a("s_waitcnt lgkmcnt(0)")
        a("s_barrier")
        nst("pro")
        if PSPLIT == 2: pro2(); pro3()
        for nf in range(LA):
            for ins, tag in w_reads(0, nf): lds(ins, tag)
            if nf == 0:
                for ins, tag in x_reads(0): lds(ins, tag)
        a("s_waitcnt lgkmcnt(0)"); del lq[:]
        waits = {}
        saved = a.l; q0 = list(q); a.l = []
        for s in range(NSTEP - 4): step(s, waits, emit=False)
        q_after = list(q); lq_after = list(lq); pend_after = list(pend); gap_after = list(gapc)
        a.l = saved; q[:] = q0; del lq[:]; del pend[:]; gapc[:] = [0, 0]
        head = []
        peel = True
        def signal():
            a("v_mov_b32 v%d, 1", T0)
            a("v_mov_b32 v%d, 0", T1)
            a("s_mov_b64 exec, 1")
            a("buffer_atomic_add v%d, v%d, s[%d:%d], s%d offen sc1", T0, T1, S_DBG, S_DBG + 3, S_C1); q.append(('A', 0))
            a("s_mov_b64 exec, -1")
        nit = NSTEP // 4 - 1
        if peel:
            for s in range(4):
                step(s, waits, emit=True)
                nst("s%d" % s)
            nit -= 1
        loop = a.newlab("L_g1_loop")
        a("s_mov_b32 s%d, %d", S_LOOP, nit)
        lq_ss = [(t[0], t[1] - 24) + tuple(t[2:]) for t in lq_after]
        assert lq_ss[len(lq_ss) - len(lq):] == lq, (lq_ss, lq)
        lq[:] = lq_ss
        lq_in = [(t[0], t[1] - 4) + tuple(t[2:]) for t in lq]
        a.label(loop)
        def sig_cond():
            l_ = a.newlab("L_g1_sig")
            a("s_cmp_lg_u32 s%d, %d", S_LOOP, nit - 4 if FUSE else nit)
            a("s_cbranch_scc1 %s", l_)
            signal()
            a.label(l_)
        for s in range(4, 8):
            step(s, waits, emit=True, hooks=({'bar': sig_cond} if (w == 0 and s == 7) else None))
        if opt.get("dv2"):
            k0 = max(k_ for k_, l_ in enumerate(a.l) if l_.strip().startswith(loop))
            B_ = a.l[k0:]; del a.l[k0:]
            gaps_ = [k_ for k_ in range(1, len(B_)) if B_[k_].strip().startswith("v_mfma") and B_[k_ - 1].strip().startswith("v_mfma")]
            nd = min(len(gaps_), 4 * opt["dv2"])
            sel = set(gaps_[(z * len(gaps_)) // nd] for z in range(nd))
            print("empty gaps", len(gaps_), "filled", len(sel))
            z = 0
            for k_, l_ in enumerate(B_):
                if k_ in sel:
                    sr = 36 + (z * 6) % 16; d_ = 20 + (z * 2) % 16
                    for x_ in [["v_pk_mul_f32 v[%d:%d], v[%d:%d], v[%d:%d]" % (d_, d_ + 1, sr, sr + 1, sr + 2, sr + 3), "v_accvgpr_read_b32 v%d, a%d" % (d_ + 2, 148 + z % 32)], ["v_exp_f32 v%d, v%d" % (d_, sr)], ["v_rcp_f32 v%d, v%d" % (d_, sr + 1)],
                               ["v_exp_f32 v%d, v%d" % (d_, sr + 1)], ["v_cvt_pk_bf16_f32 v%d, v%d, v%d" % (d_, sr, sr + 1), "v_mul_f32 v%d, v%d, v%d" % (d_ + 1, sr, sr + 1)], ["v_rcp_f32 v%d, v%d" % (d_, sr + 2)]][z % 6]: a(x_)
                    z += 1
                a.l.append(l_)
        lq_out = [(t[0], t[1] - 8) + tuple(t[2:]) for t in lq]
        if peel: assert lq_in == lq_out, (lq_in, lq_out)
        else:
            a("s_waitcnt lgkmcnt(0)"); del lq[:]
        a("s_sub_u32 s%d, s%d, 1", S_LOOP, S_LOOP)
        a("s_cmp_lg_u32 s%d, 0", S_LOOP)
        a("s_cbranch_scc1 %s", loop)
        a.c("waits %s" % waits)
        q[:] = q_after; pend[:] = pend_after; gapc[:] = gap_after
        lq[:] = lq_after if peel else []
        nb = 9 if wn == 0 else 8
        def poll():
            if FUSE:
                a("v_min_u32 v%d, 7, v0", T2)
                a("v_lshlrev_b32 v%d, 2, v%d", T2, T2)
                a("buffer_load_dword v%d, v%d, s[%d:%d], 0 offen sc1", T0, T2, S_DBG, S_DBG + 3); q.append(('C', 0))
                return
            a("v_mov_b32 v%d, 0", T2)
            a("buffer_load_dword v%d, v%d, s[%d:%d], s%d offen sc1", T0, T2, S_DBG, S_DBG + 3, S_C0); q.append(('C', 0))
            a("buffer_load_dword v%d, v%d, s[%d:%d], s%d offen sc1", T1, T2, S_DBG, S_DBG + 3, S_C1); q.append(('C', 0))
        def check():
            a("s_waitcnt vmcnt(%d)", need_count([('C', 0)]))
            okval()
        def okval():
            if FUSE:
                a("v_cmp_gt_u32 vcc, 32, v%d", T0)
                a("s_cmp_eq_u64 vcc, 0")
                a("s_cselect_b32 s%d, 32, 0", S_OK)
                return
            a("v_min_u32 v%d, v%d, v%d", T0, T0, T1)
            a("s_nop 1")
            a("v_readfirstlane_b32 s%d, v%d", S_OK, T0)
        def st_loads():
            a("v_and_b32 v%d, 15, v0", T2)
            a("v_lshlrev_b32 v%d, 3, v%d", T2, T2)
            a("s_add_u32 s%d, s%d, %d", S_STO, S_M0, 128 * wm)
            a("s_lshl_b32 s%d, s%d, 3", S_STO, S_STO)
            for b in range(nb):
                bb = b - 1 if wn == 0 else b
                if bb < 0 and CSD: continue
                if bb < 0:
                    a("s_max_u32 s%d, s%d, 128", S_K2, S_STO)
                    a("s_sub_u32 s%d, s%d, 128", S_K2, S_K2)
                    a("buffer_load_dwordx2 v[%d:%d], v%d, s[%d:%d], s%d offen sc1", ST + 2 * b, ST + 2 * b + 1, T2, S_ST, S_ST + 3, S_K2)
                else:
                    a("buffer_load_dwordx2 v[%d:%d], v%d, s[%d:%d], s%d offen offset:%d sc1", ST + 2 * b, ST + 2 * b + 1, T2, S_ST, S_ST + 3, S_STO, bb * 128)
                q.append(('R', 0))
        def check_and_load():
            check(); st_loads()
        nst("s27")
        hk29 = {60: check_and_load}
        NPF = opt.get("w2pf", 0)
        if FUSE and NPF:
            def pf_set():
                a("s_lshr_b32 s%d, s2, 4", S_T)
                a("s_and_b32 s%d, s%d, 7", S_T2, S_T)
                a("s_mul_i32 s%d, s%d, 7", S_T2, S_T2)
                a("s_lshr_b32 s%d, s%d, 3", S_T, S_T)
                a("s_add_u32 s%d, s%d, 33", S_T2, S_T2)
                a("%s s%d, s%d, s%d", "s_sub_u32" if EP2 else "s_add_u32", S_T2, S_T2, S_T)
                a("s_bfe_u32 s%d, s2, 0x10003", S_T)
                a("s_lshl_b32 s%d, s%d, 2", S_T, S_T)
                a("s_add_u32 s%d, s%d, s%d", S_T2, S_T2, S_T)
                a("s_and_b32 s%d, s2, 1", S_T)
                a("s_mul_i32 s%d, s%d, 56", S_T, S_T)
                a("s_add_u32 s%d, s%d, s%d", S_T2, S_T2, S_T)
                a("s_lshl_b32 s%d, s%d, 16", S_T2, S_T2)
                a("s_add_u32 s%d, s%d, %d", S_T2, S_T2, w * 16384)
            def pf_set2():
                a("s_mov_b32 s%d, s%d", S_G, S_CD); a("s_mov_b32 s%d, s%d", S_G + 1, S_CD + 1)
                a("s_cmp_ge_u32 s%d, 32", S_OK)
                a("s_cselect_b32 s%d, s%d, 0", S_G + 2, S_CD + 2)
                a("v_lshlrev_b32 v%d, 7, v0", V_PF)
                a("s_add_u32 s%d, s%d, 8192", S_T3, S_T2)
            def pf_ld(so):
                def f():
                    a("buffer_load_dword v%d, v%d, s[%d:%d], s%d offen sc1", V_PFD, V_PF, S_G, S_G + 3, so); q.append(('P', 0))
                return f
            hk29.update({56: pf_set, 64: pf_set2, 68: pf_ld(S_T2), 72: pf_ld(S_T3)})
        HK = {28: {70: poll}, 29: hk29, 30: {}, 31: {}}
        if opt.get("early_poll"):
            HK[28] = {opt["early_poll"][0]: poll}
            HK[29] = {k_ - opt["early_poll"][1]: v_ for k_, v_ in hk29.items()}
        def wst_set():
            a("s_and_b32 s%d, s2, 1", S_WSB)
            a("s_mul_i32 s%d, s%d, %d", S_WSB, S_WSB, 56 * 65536)
            a("s_bfe_u32 s%d, s2, 0x30003", S_T)
            a("s_lshl_b32 s%d, s%d, 13", S_T, S_T)
            a("s_add_u32 s%d, s%d, s%d", S_WSB, S_WSB, S_T)
            a("s_add_u32 s%d, s%d, %d", S_WSB, S_WSB, 32 * 65536 + w * 2048)
            a("v_lshlrev_b32 v%d, 4, v0", V_WDMA[0])
        if WST:
            assert max(HK[29]) < 8 * BAR - 6 and NPF
            HK[29][8 * BAR - 4] = wst_set
        def cs_pub():
            a("v_accvgpr_read_b32 v%d, %s", T3, DACC.sub(0))
            a("v_or_b32 v%d, 1, v%d", T3, T3)
            cs_store(T3)
        def cs_loads():
            a("v_mul_u32_u24 v%d, 48, v0", T1)
            a("s_mul_i32 s%d, s%d, 1536", S_STO, S_J)
            a("s_add_u32 s%d, s%d, %d", S_STO, S_STO, CS_OFF + wn * 768)
            a("s_mov_b64 exec, 0xffff")
            for o_, n_ in ((0, 4), (4, 4), (8, 2)):
                a("buffer_load_dwordx%d v[%d:%d], v%d, s[%d:%d], s%d offen offset:%d sc1", n_, CSR + o_, CSR + o_ + n_ - 1, T1, S_ST, S_ST + 3, S_STO, 4 * o_); q.append(('R', 0))
            a("s_mov_b64 exec, -1")
        def cs_test():
            a("v_min3_u32 v%d, v%d, v%d, v%d", T0, CSR, CSR + 1, CSR + 2)
            a("v_min3_u32 v%d, v%d, v%d, v%d", T1, CSR + 3, CSR + 4, CSR + 5)
            a("v_min3_u32 v%d, v%d, v%d, v%d", T0, T0, CSR + 6, CSR + 7)
            a("v_min3_u32 v%d, v%d, v%d, v%d", T1, T1, CSR + 8, CSR + 9)
            a("v_min_u32 v%d, v%d, v%d", T0, T0, T1)
            a("v_cmp_eq_u32 vcc, 0, v%d", T0)
            a("s_and_b32 s%d, vcc_lo, 0xffff", S_T)
        if CSD:
            if w:
                if CSD <= 28: HK[28][3] = cs_pub
                else: HK[CSD - 1][8 * (BAR + 3) + 9] = cs_pub
            cl_ = opt.get("cs_ld", [31, 1])
            assert cl_[1] not in HK[cl_[0]]
            HK[cl_[0]][cl_[1]] = cs_loads
        for s_ in range(28, 32): step(s_, hooks=HK[s_])
        assert not pend
        n_after = need_count([('R', 0), ('P', 0), ('C', 0)]) if XE else 0
        assert n_after in (0, 8)
        nst("loop")
        lok = a.newlab("L_g1_ok"); lsp = a.newlab("L_g1_spin")
        if CSD:
            a("s_waitcnt vmcnt(%d)", n_after)
            cs_test()
            a("s_cselect_b32 s%d, 0, s%d", S_OK, S_OK)
        a("s_cmp_ge_u32 s%d, 32", S_OK)
        a("s_cbranch_scc1 %s", lok)
        a.label(lsp)
        a("s_sleep 4")
        poll()
        a("s_waitcnt vmcnt(0)")
        okval()
        a("s_nop 1")
        a("s_cmp_lt_u32 s%d, 32", S_OK)
        a("s_cbranch_scc1 %s", lsp)
        st_loads()
        if CSD: cs_loads()
        if WST: emit_now(wst_jobs(range(4), S_CD))
        if XE: a("s_waitcnt vmcnt(0)")
        if CSD:
            cs_test()
            a("s_cbranch_scc1 %s", lsp)
        a.label(lok)
        a("s_nop 7")
        RR = 1
        CG = 10
        V_L16 = 18; V_SGL = 19
        boff = 1 if wn == 0 else 0
        def stt(mf): return "v[%d:%d]" % (ST + 2 * (mf + boff), ST + 2 * (mf + boff) + 3)
        def SD(mf): return ST + 2 * (mf + boff) + 1
        def cst(i): return "v[%d:%d]" % (CST + 4 * i, CST + 4 * i + 3)
        if CSD: hs_ = len(a.l)
        a("v_lshrrev_b32 v%d, 4, v0", T0)
        a("v_lshlrev_b32 v%d, 4, v%d", T0, T0)
        a("v_add_u32 v%d, %d, v%d", T0, L_CS, T0)
        a("v_lshlrev_b32 v%d, 2, v0", T1)
        a("v_add_u32 v%d, %d, v%d", T1, L_CS, T1)
        a("v_lshlrev_b32 v%d, 4, v0", V_L16)
        a("s_mov_b32 s%d, 0x00010001", S_MSK); a("s_mov_b32 s%d, 0x00010001", S_MSK + 1)
        a("s_mov_b64 exec, s[%d:%d]", S_MSK, S_MSK + 1)
        for i, nf in enumerate(hset):
            if not isV(nf): a("ds_write_b128 v%d, %s offset:%d", T0, HACC(i), (wn * 10 + nf) * 64)
        a("s_mov_b64 exec, 0xffff")
        for i, nf in enumerate(hset):
            if isV(nf): a("ds_write_b32 v%d, %s offset:%d", T1, HACC(i).sub(0), (wn * 10 + nf) * 64)
        a("s_mov_b64 exec, -1")
        if w == 0:
            a("v_add_u32 v%d, %d, v%d", T2, L_KV, V_L16)
            for i in range(4): a("ds_write_b128 v%d, %s offset:%d", T2, tiles[(2 + i, 7)], i * 1024)
        a("s_waitcnt vmcnt(%d)", n_after)
        b0 = 0
        if CSD:
            del a.l[hs_:]
            a("v_lshlrev_b32 v%d, 4, v0", V_L16)
            nst("e1")
            b0 = boff
            EP0[0] = len(a.l)
        for b in range(b0, nb): a("v_rcp_f32 v%d, v%d", RR + b, ST + 2 * b + 1)
        if wn == 0:
            a("v_and_b32 v%d, 15, v0", T3)
            a("v_lshlrev_b32 v%d, 2, v%d", T3, T3)
            a("v_add_u32 v%d, %d, v%d", T3, L_RT + w * 640, T3)
            for b in range(b0, nb): a("ds_write_b32 v%d, v%d offset:%d", T3, RR + b, b * 64)
        for mf in range(8): a("v_mul_f32 v%d, %s, v%d", CG + mf, f32(-LOG2E), RR + mf + boff)
        a("s_lshl_b32 s%d, s%d, 14", S_AB, S_MT)
        if wm: a("s_add_u32 s%d, s%d, 8192", S_AB, S_AB)
        a("s_lshr_b32 s%d, s%d, 1", S_T, S_J)
        a("s_mul_i32 s%d, s%d, 7", S_T, S_T)
        a("s_add_u32 s%d, s%d, 32", S_T, S_T)
        a("s_lshl_b32 s%d, s%d, 2", S_T2, S_ODD)
        a("s_add_u32 s%d, s%d, s%d", S_T2, S_T2, S_T)
        a("s_mul_i32 s%d, s%d, %d", S_K1, S_T2, ACT_KB)
        a("s_add_u32 s%d, s%d, s%d", S_K1, S_K1, S_AB)
        a("s_add_u32 s%d, s%d, 3", S_T, S_T)
        a("s_mul_i32 s%d, s%d, %d", S_K2, S_T, ACT_KB)
        a("s_add_u32 s%d, s%d, s%d", S_K2, S_K2, S_AB)
        a("s_lshl_b32 s%d, s%d, 9", S_T, S_ODD)
        a("s_add_u32 s%d, s%d, s%d", S_K2, S_K2, S_T)
        a("s_mul_i32 s%d, s%d, %d", S_T, S_J, ACT_KB)
        a("s_add_u32 s%d, s%d, s%d", S_AB, S_AB, S_T)
        a("v_lshrrev_b32 v%d, 5, v0", T2)
        a("v_lshl_add_u32 v%d, v%d, 9, v%d", V_SGL, T2, V_L16)
        if not CSD:
            a("s_waitcnt lgkmcnt(0)")
            nst("e0")
            a("s_barrier")
            nst("e1")
            a("s_mov_b64 exec, 0xffff")
            for nf in range(10): a("ds_read_b32 v%d, v%d offset:%d", CSR + nf, T1, (wn * 10 + nf) * 64)
            a("s_mov_b64 exec, -1")
            if w == 1:
                a("v_add_u32 v%d, %d, v%d", T2, L_KV, V_L16)
                for i in range(4): a("ds_read_b128 %s, v%d offset:%d", HACC(i), T2, i * 1024)
            EP0[0] = len(a.l)
        a("s_mov_b32 s%d, 0xffff0000", S_T3)
        if not CSD: a("s_waitcnt lgkmcnt(0)")
        for nf in range(0, 10, 2):
            if CSD and CSD < 31:
                for z in range(2): a("v_accvgpr_read_b32 v%d, %s", T0 + z, HACC(nf >> 1).sub(z))
                for z in range(2): a("v_add_f32 v%d, v%d, v%d", CSR + nf + z, CSR + nf + z, T0 + z)
            for z in range(2): a("v_cvt_pk_bf16_f32 v%d, v%d, v%d", T2 + z, CSR + nf + z, CSR + nf + z)
            for z in range(2): a("v_and_b32 v%d, s%d, v%d", T2 + z, S_T3, T2 + z)
            for z in range(2): a("v_sub_f32 v%d, v%d, v%d", T2 + z, CSR + nf + z, T2 + z)
            for z in range(2): a("v_cvt_pk_bf16_f32 v%d, v%d, v%d", CSR + nf + z, CSR + nf + z, T2 + z)
        def corr(t, nf, mf, ci):
            if isV(nf): return "v_mfma_f32_16x16x32_bf16 %s, %s, %s, %s" % (t, stt(mf), cst(ci), t)
            return "v_mfma_f32_16x16x32_bf16 %s, %s, %s, %s" % (t, cst(ci), stt(mf), t)
        def fetch(t, tmp, L):
            if t.kind == 'v': return t.base
            for i in range(4): L.append("v_accvgpr_read_b32 v%d, %s" % (tmp + i, t.sub(i)))
            return tmp
        def mul4(L, d, s_, m):
            if PK:
                mb = m & ~1; sel = m & 1
                for i in (0, 2):
                    L.append("v_pk_mul_f32 v[%d:%d], v[%d:%d], v[%d:%d] op_sel:[0,%d] op_sel_hi:[1,%d]" % (d + i, d + i + 1, s_ + i, s_ + i + 1, mb, mb + 1, sel, sel))
            else:
                for i in range(4): L.append("v_mul_f32 v%d, v%d, v%d" % (d + i, s_ + i, m))
        def mul44(L, d, s_, m):
            if PK:
                for i in (0, 2):
                    L.append("v_pk_mul_f32 v[%d:%d], v[%d:%d], v[%d:%d]" % (d + i, d + i + 1, s_ + i, s_ + i + 1, m + i, m + i + 1))
            else:
                for i in range(4): L.append("v_mul_f32 v%d, v%d, v%d" % (d + i, s_ + i, m + i))
        def glu_half(g, u, mf, o):
            L = []
            mul4(L, g, g, CG + mf)
            for i in range(4): L.append("v_exp_f32 v%d, v%d" % (g + i, g + i))
            sd = SD(mf)
            if PK:
                for i in (0, 2):
                    L.append("v_pk_fma_f32 v[%d:%d], v[%d:%d], v[%d:%d], v[%d:%d] op_sel:[0,1,1] op_sel_hi:[1,1,1]" % (g + i, g + i + 1, g + i, g + i + 1, sd - 1, sd, sd - 1, sd))
            else:
                for i in range(4): L.append("v_fma_f32 v%d, v%d, v%d, v%d" % (g + i, g + i, sd, sd))
            for i in range(4): L.append("v_rcp_f32 v%d, v%d" % (g + i, g + i))
            mul44(L, u, u, g)
            return L
        def glu_group(grp, tmp, sbase, soff, vaddr):
            F = []
            (ga, ua, ma), (gb, ub, mb) = grp
            ra = fetch(ga, tmp, F); rua = fetch(ua, tmp + 4, F); rb = fetch(gb, tmp + 8, F); rub = fetch(ub, tmp + 12, F)
            L = F + zipl(glu_half(ra, rua, ma, 0), glu_half(rb, rub, mb, 0))
            L.append("s_add_u32 s%d, s%d, %d" % (S_T, sbase, soff))
            L.append("v_cvt_pk_bf16_f32 v%d, v%d, v%d" % (ra, rua, rua + 1))
            L.append("v_cvt_pk_bf16_f32 v%d, v%d, v%d" % (ra + 2, rub, rub + 1))
            L.append("v_cvt_pk_bf16_f32 v%d, v%d, v%d" % (ra + 1, rua + 2, rua + 3))
            L.append("v_cvt_pk_bf16_f32 v%d, v%d, v%d" % (ra + 3, rub + 2, rub + 3))
            L.append("v_permlane32_swap_b32 v%d, v%d" % (ra, ra + 2))
            L.append("v_permlane32_swap_b32 v%d, v%d" % (ra + 1, ra + 3))
            L.append("buffer_store_dwordx4 v[%d:%d], v%d, s[%d:%d], s%d offen%s" % (ra, ra + 3, vaddr, S_ACT, S_ACT + 3, S_T, STM))
            return L
        def run_groups(groups):
            for x_ in groups[0][0] + groups[0][1]: a(x_)
            for k, (pre, cl, vl) in enumerate(groups):
                nxt = (groups[k + 1][0] + groups[k + 1][1]) if k + 1 < len(groups) else []
                for x_ in spread(vl, nxt, 0.05, 0.6): a(x_)
        def glu_groups(pairs, tmps):
            G = []
            for (na_, nb_, sbase, kboff) in pairs:
                if nb_ is not None:
                    for mf in range(8):
                        pre = []
                        if mf == 0:
                            pre = ["v_mov_b32 v%d, v%d" % (CST + 4 * i, CSR + nf) for i, nf in enumerate((na_, na_ + 1, nb_, nb_ + 1))]
                        cl = [corr(tiles[(nf, mf)], nf, mf, i) for i, nf in enumerate((na_, na_ + 1, nb_, nb_ + 1))]
                        vl = glu_group([(tiles[(na_, mf)], tiles[(na_ + 1, mf)], mf), (tiles[(nb_, mf)], tiles[(nb_ + 1, mf)], mf)],
                                       tmps[len(G) & 1], sbase, kboff + mf * 1024, V_L16)
                        G.append((pre, cl, vl))
                else:
                    for mf in range(0, 8, 2):
                        pre = []
                        if mf == 0:
                            pre = ["v_mov_b32 v%d, v%d" % (CST + 4 * i, CSR + nf) for i, nf in enumerate((na_, na_ + 1))]
                        cl = [corr(tiles[(na_ + z, mf + y)], na_ + z, mf + y, z) for y in range(2) for z in range(2)]
                        vl = glu_group([(tiles[(na_, mf)], tiles[(na_ + 1, mf)], mf), (tiles[(na_, mf + 1)], tiles[(na_ + 1, mf + 1)], mf + 1)],
                                       tmps[len(G) & 1], sbase, kboff + mf * 1024, V_SGL)
                        G.append((pre, cl, vl))
            return G
        if wn == 1:
            run_groups(glu_groups([(0, 2, S_K1, 1 * ACT_KB), (4, 6, S_K1, 2 * ACT_KB), (8, None, S_K2, 0)], [TV, TV + 16]))
            if FUSE: (weave2 if EP2 else weave)(w)
            a("s_branch %s", fin)
            return
        if EP2:
            conv2(a, w, wm, tiles, [HACC(0), HACC(1)], [HACC(2), HACC(3)], locals())
            return
        a("v_lshrrev_b32 v%d, 4, v0", T3)
        a("v_lshlrev_b32 v%d, 4, v%d", T3, T3)
        a("v_add_u32 v%d, %d, v%d", T3, L_RT + w * 640, T3)
        RV = [CSR + 0, CSR + 0]
        prevK = [HACC(0), HACC(1)]; prevV = [HACC(2), HACC(3)]
        return_tiles = None
        conv(a, w, wm, tiles, VPB, prevK, prevV, locals())

    def conv2(a, w, wm, tiles, prevK, prevV, env):
        (corr, fetch, mul4, mul44, run_groups, glu_groups, stt, cst, SD, RR, CG, V_L16, V_SGL) = [env[k] for k in
            ("corr", "fetch", "mul4", "mul44", "run_groups", "glu_groups", "stt", "cst", "SD", "RR", "CG", "V_L16", "V_SGL")]
        RA = V_SGL
        a("v_lshrrev_b32 v%d, 4, v0", RA)
        a("v_lshlrev_b32 v%d, 4, v%d", RA, RA)
        a("v_add_u32 v%d, %d, v%d", RA, L_RT + w * 640, RA)
        def KP(b): return 80 + 4 * (b + 1)
        def QP(b): return 116 + 4 * b
        VA = [148, 166]
        FT = [184, 188, 196, 200, 204, 192]
        RVB = [10, 14]
        RQ = T3
        groups = glu_groups([(6, 8, S_K1, 0)], [TV, TV + 16])
        border = [7, 0, 1, 2, 3, 4, 5, 6] if CSD else list(range(-1, 8))
        if H2:
            a("s_lshl_b32 s%d, s%d, 16", S_STO, S_MT)
            a("s_lshl_b32 s%d, s%d, 11", S_T2, S_J)
            a("s_add_u32 s%d, s%d, %d", S_T2, S_T2, ACT_BYTES)
            a("s_add_u32 s%d, s%d, s%d", S_STO, S_STO, S_T2)
            a("v_lshlrev_b32 v%d, 3, v0", T5)
            if wm == 0:
                a("s_min_u32 s%d, s%d, 1", S_T, S_MT)
                a("s_lshl_b32 s%d, s%d, 16", S_T2, S_T)
                a("s_sub_u32 s%d, s%d, s%d", S_C1, S_STO, S_T2)
                a("s_lshl_b32 s%d, s%d, 10", S_T2, S_T)
                a("s_sub_u32 s%d, s%d, s%d", S_C0, p2.Q_FSIG, S_T2)
                a("s_add_u32 s%d, s%d, 512", S_C0, S_C0)
                HALO[0] = [("buffer_load_dwordx4 v[%d:%d], v%d, s[%d:%d], s%d offen sc1" % (KP(-1), KP(-1) + 3, V_L16, S_ACT, S_ACT + 3, S_C1), ('HL', 0))] + \
                          [("buffer_load_dwordx2 v[%d:%d], v%d, s[%d:%d], s%d offen offset:%d sc1" % (VA[f], VA[f] + 1, T5, S_ACT, S_ACT + 3, S_C1, 1024 + 512 * f), ('HL', 0)) for f in range(2)]
            else:
                HALO[0] = ["ds_read_b32 v239, v238", "ds_read_b128 v[%d:%d], v236" % (KP(-1), KP(-1) + 3)] + \
                          ["ds_read_b64 v[%d:%d], v237 offset:%d" % (VA[f], VA[f] + 1, 512 * f) for f in range(2)]
            HALO.append([KP(-1) + i for i in range(4)] + [VA[0], VA[0] + 1, VA[1], VA[1] + 1])
        elif CSD:
            a("s_lshl_b32 s%d, s%d, 1", S_T, S_MT)
            if wm: a("s_add_u32 s%d, s%d, 1", S_T, S_T)
            a("s_lshl_b32 s%d, s%d, 16", S_STO, S_T)
            a("s_lshl_b32 s%d, s%d, 11", S_T2, S_J)
            a("s_add_u32 s%d, s%d, %d", S_T2, S_T2, ACT_BYTES)
            a("s_add_u32 s%d, s%d, s%d", S_STO, S_STO, S_T2)
            a("s_min_u32 s%d, s%d, 1", S_T, S_T)
            a("s_lshl_b32 s%d, s%d, 16", S_T2, S_T)
            a("s_sub_u32 s%d, s%d, s%d", S_C1, S_STO, S_T2)
            a("s_lshl_b32 s%d, s%d, 9", S_T2, S_T)
            a("s_sub_u32 s%d, s%d, s%d", S_C0, p2.Q_FSIG, S_T2)
            a("v_lshlrev_b32 v%d, 3, v0", T5)
            HALO[0] = [("buffer_load_dwordx4 v[%d:%d], v%d, s[%d:%d], s%d offen sc1" % (KP(-1), KP(-1) + 3, V_L16, S_ACT, S_ACT + 3, S_C1), ('HL', 0))] + \
                      [("buffer_load_dwordx2 v[%d:%d], v%d, s[%d:%d], s%d offen offset:%d sc1" % (VA[f], VA[f] + 1, T5, S_ACT, S_ACT + 3, S_C1, 1024 + 512 * f), ('HL', 0)) for f in range(2)]
        for gi, b in enumerate(border):
            rvb = RVB[gi & 1]
            pre = ["ds_read_b128 v[%d:%d], v%d offset:%d" % (rvb, rvb + 3, RA, (b + 1) * 64)]
            if gi == 0: pre += ["v_mov_b32 v%d, v%d" % (CST + 4 * i, CSR + i) for i in (2, 3, 4, 5, 0, 1)]
            tl = {}
            for nf in (2, 3, 0, 1, 4, 5):
                if b < 0:
                    if nf >= 2: tl[nf] = (prevK + prevV)[nf - 2]
                else: tl[nf] = tiles[(nf, b)]
            cl = [corr(t, nf, b, nf) for nf, t in tl.items()]
            L = []; ft = list(FT)
            r_ = RR + b + 1
            AT2 = opt.get("at2", 0)
            if b >= 0 and not AT2:
                L.append("v_mul_f32 v%d, %s, v%d" % (RQ, f32(LOG2E * 32 ** -0.5), r_))
            def two(ts, mulf, dsts):
                Ls = []
                for t, d in zip(ts, dsts):
                    l_ = []
                    s_ = fetch(t, ft.pop(0), l_)
                    mulf(l_, s_)
                    l_.append("v_cvt_pk_bf16_f32 v%d, v%d, v%d" % (d, s_, s_ + 1))
                    l_.append("v_cvt_pk_bf16_f32 v%d, v%d, v%d" % (d + 1, s_ + 2, s_ + 3))
                    Ls.append(l_)
                return zipl(*Ls)
            L += two([tl[2], tl[3]], lambda l_, s_: mul4(l_, s_, s_, r_), [KP(b), KP(b) + 2])
            if b >= 0: L += two([tl[0], tl[1]], (lambda l_, s_: None) if AT2 else (lambda l_, s_: mul4(l_, s_, s_, RQ)), [QP(b), QP(b) + 2])
            if b >= 0 and AT2: L.append("v_mul_f32 v%d, %s, v%d" % (r_, f32(LOG2E * 32 ** -0.5), r_))
            L.append("s_waitcnt lgkmcnt(%d)" % (1 if gi + 1 < len(border) else 0))
            L += two([tl[4], tl[5]], lambda l_, s_: mul44(l_, s_, s_, rvb), [VA[0] + 2 * (b + 1), VA[1] + 2 * (b + 1)])
            if H2 and b == 7:
                L += ["v_add_u32 v236, %d, v%d" % (L_KV, V_L16), "v_add_u32 v237, %d, v%d" % (L_KV + 1024, T5), "v_mov_b32 v238, %d" % L_HF]
            if H2 and b == 7 and wm == 0:
                L.append("ds_write_b128 v236, v[%d:%d]" % (KP(7), KP(7) + 3))
                for f in range(2): L.append("ds_write_b64 v237, v[%d:%d] offset:%d" % (VA[f] + 16, VA[f] + 17, 512 * f))
                L.append("ds_write_b32 v238, v238")
            elif CSD and b == 7:
                L.append("buffer_store_dwordx4 v[%d:%d], v%d, s[%d:%d], s%d offen sc1" % (KP(7), KP(7) + 3, V_L16, S_ACT, S_ACT + 3, S_STO))
                for f in range(2):
                    L.append("buffer_store_dwordx2 v[%d:%d], v%d, s[%d:%d], s%d offen offset:%d sc1" % (VA[f] + 16, VA[f] + 17, T5, S_ACT, S_ACT + 3, S_STO, 1024 + 512 * f))
            groups.append((pre, cl, L))
        run_groups(groups)
        nst("e2")
        BP, BC, BPF = 224, 228, 232
        a("v_and_b32 v%d, 15, v0", T0)
        a("v_lshrrev_b32 v%d, 4, v0", T1)
        a("v_lshlrev_b32 v%d, 2, v%d", T1, T1)
        a("v_sub_u32 v%d, v%d, v%d", T0, T0, T1)
        a("v_mov_b32 v%d, %s", T3, f32(-1e30))
        a("s_mov_b32 s%d, 0x80000001", S_T3)
        a("s_brev_b32 s%d, 1", S_T2)
        for i in range(4):
            a("v_subrev_u32 v%d, %d, v%d", T1, i, T0)
            a("v_and_b32 v%d, s%d, v%d", T1, S_T3, T1)
            a("v_cmp_eq_u32 vcc, 0, v%d", T1)
            a("v_cndmask_b32 v%d, v%d, 0, vcc", BC + i, T3)
            a("v_cmp_eq_u32 vcc, s%d, v%d", S_T2, T1)
            a("v_cndmask_b32 v%d, v%d, 0, vcc", BP + i, T3)
        if wm == 0:
            a("s_cmp_eq_u32 s%d, 0", S_M0)
            a("s_cselect_b64 vcc, -1, 0")
            for i in range(4): a("v_cndmask_b32 v%d, v%d, v%d, vcc", BPF + i, BP + i, T3)
        else: BPF = BP
        if opt.get("at2"): attn_all2(a, QP, KP, VA, BP, BC, BPF, mul4, V_L16, RR)
        else: attn_all(a, [(184, 216, 10), (200, 220, 14)], QP, KP, VA, BP, BC, BPF, mul4, V_L16)
        nst("e3")
        weave2(w)
        a("s_branch %s", fin)

    def attn_all2(a, QP, KP, VPB, BP, BC, BPF, mul4, V_L16, RR):
        NS = opt["at2"]
        MK, ONE = 40, 44
        sets = [184, 204, 20, 48][:NS]
        for i, src in enumerate((BP, BP + 2, BC, BC + 2)):
            a("v_cvt_pk_bf16_f32 v%d, v%d, v%d", MK + i, src, src + 1)
        for i in range(4):
            a("v_mov_b32 v%d, 0x3f803f80", ONE + i)
            a("v_pk_ashrrev_i16 v%d, 15, v%d op_sel_hi:[0,1]", MK + i, MK + i)
        sreg = [S_T, S_T2, S_T3, S_K2]
        def attn(b, k):
            base = sets[k]
            SP, SC, P, OS, M = base, base + 4, base + 8, base + 12, base + 16
            Tm = M + 1; A_ = M + 2; B_ = M + 3
            Qb = QP(b); Kb = KP(b); Kp = KP(b - 1)
            bp = BPF if b == 0 else BP
            rq = RR + b + 1
            L = []
            if CSD and b == 0: L.append("HALOWAIT")
            L.append("v_mfma_f32_16x16x32_bf16 v[%d:%d], v[%d:%d], v[%d:%d], v[%d:%d]" % (SP, SP + 3, Kp, Kp + 3, Qb, Qb + 3, bp, bp + 3))
            L.append("NOP")
            L.append("v_mfma_f32_16x16x32_bf16 v[%d:%d], v[%d:%d], v[%d:%d], v[%d:%d]" % (SC, SC + 3, Kb, Kb + 3, Qb, Qb + 3, BC, BC + 3))
            L += ["NOP"] * opt.get("at_n1", 3)
            L.append("v_max_f32 v%d, v%d, v%d" % (A_, SP, SP + 1))
            L.append("v_max_f32 v%d, v%d, v%d" % (B_, SP + 2, SP + 3))
            L.append("v_max3_f32 v%d, v%d, v%d, v%d" % (A_, A_, SC, SC + 1))
            L.append("v_max3_f32 v%d, v%d, v%d, v%d" % (B_, B_, SC + 2, SC + 3))
            L.append("v_max_f32 v%d, v%d, v%d" % (M, A_, B_))
            L.append("v_max_f32 v%d, v%d, v%d" % (Tm, A_, B_))
            for sw in ("16", "32"):
                L.append("v_permlane%s_swap_b32 v%d, v%d" % (sw, M, Tm))
                if sw == "16":
                    L.append("v_max_f32 v%d, v%d, v%d" % (SP, M, Tm))
                    L.append("v_max_f32 v%d, v%d, v%d" % (Tm, M, Tm))
                    L.append("v_permlane32_swap_b32 v%d, v%d" % (SP, Tm))
                    L.append("v_max_f32 v%d, v%d, v%d" % (M, SP, Tm))
                    break
            L.append("v_pk_add_f32 v[%d:%d], v[%d:%d], v[%d:%d] op_sel_hi:[1,0] neg_lo:[0,1] neg_hi:[0,1]" % (A_, B_, A_, B_, M, M + 1))
            mb = rq & ~1; sel = rq & 1
            L.append("v_pk_mul_f32 v[%d:%d], v[%d:%d], v[%d:%d] op_sel:[0,%d] op_sel_hi:[1,%d]" % (A_, B_, A_, B_, mb, mb + 1, sel, sel))
            L.append("v_exp_f32 v%d, v%d" % (A_, A_))
            L.append("v_exp_f32 v%d, v%d" % (B_, B_))
            L.append("v_cvt_pk_bf16_f32 v%d, v%d, v%d" % (A_, A_, A_))
            L.append("v_cvt_pk_bf16_f32 v%d, v%d, v%d" % (B_, B_, B_))
            for i in range(4): L.append("v_bfi_b32 v%d, v%d, 0, v%d" % (P + i, MK + i, B_ if i & 1 else A_))
            L.append("NOP")
            L.append("v_mfma_f32_16x16x32_bf16 v[%d:%d], v[%d:%d], v[%d:%d], 0" % (OS, OS + 3, ONE, ONE + 3, P, P + 3))
            for f, O in enumerate((SP, SC)):
                vb = VPB[f] + 2 * b
                L.append("NOP")
                L.append("v_mfma_f32_16x16x32_bf16 v[%d:%d], v[%d:%d], v[%d:%d], 0" % (O, O + 3, vb, vb + 3, P, P + 3))
            L.append("s_add_u32 s%d, s%d, %d" % (sreg[k], S_AB, b * 1024))
            L += ["NOP"] * opt.get("at_n2", 1)
            L.append("v_rcp_f32 v%d, v%d" % (M, OS))
            L += ["NOP"] * opt.get("at_n3", 1)
            mul4(L, SP, SP, M); mul4(L, SC, SC, M)
            L.append("v_cvt_pk_bf16_f32 v%d, v%d, v%d" % (P, SP, SP + 1))
            L.append("v_cvt_pk_bf16_f32 v%d, v%d, v%d" % (P + 2, SC, SC + 1))
            L.append("v_cvt_pk_bf16_f32 v%d, v%d, v%d" % (P + 1, SP + 2, SP + 3))
            L.append("v_cvt_pk_bf16_f32 v%d, v%d, v%d" % (P + 3, SC + 2, SC + 3))
            L.append("v_permlane32_swap_b32 v%d, v%d" % (P, P + 2))
            L.append("v_permlane32_swap_b32 v%d, v%d" % (P + 1, P + 3))
            L.append("buffer_store_dwordx4 v[%d:%d], v%d, s[%d:%d], s%d offen%s" % (P, P + 3, V_L16, S_ACT, S_ACT + 3, sreg[k], STM))
            return L
        order = [1, 2, 3, 4, 5, 6, 7, 0] if CSD else list(range(8))
        n1 = len(attn(0, 0))
        streams = []
        for k in range(NS):
            streams.append(["NOP"] * (n1 * k // NS) + sum((attn(b, k) for b in order[k::NS]), []))
        for x_ in zipl(*streams):
            if x_ != "NOP": a(x_)

    def attn_all(a, sets, QP, KP, VPB, BP, BC, BPF, mul4, V_L16):
        def attn(b):
            base, P, M = sets[b & 1]
            SP, SC, O0, O1 = base, base + 4, base + 8, base + 12
            Tm = M + 1; Sm = M + 2; S2 = M + 3
            Qb = QP(b); Kb = KP(b); Kp = KP(b - 1)
            bp = BPF if b == 0 else BP
            L = []
            L.append("v_mfma_f32_16x16x32_bf16 v[%d:%d], v[%d:%d], v[%d:%d], v[%d:%d]" % (SP, SP + 3, Kp, Kp + 3, Qb, Qb + 3, bp, bp + 3))
            L.append("v_mfma_f32_16x16x32_bf16 v[%d:%d], v[%d:%d], v[%d:%d], v[%d:%d]" % (SC, SC + 3, Kb, Kb + 3, Qb, Qb + 3, BC, BC + 3))
            L += ["NOP"] * 4
            L.append("v_max3_f32 v%d, v%d, v%d, v%d" % (M, SP, SP + 1, SP + 2))
            L.append("v_max3_f32 v%d, v%d, v%d, v%d" % (Tm, SP + 3, SC, SC + 1))
            L.append("v_max3_f32 v%d, v%d, v%d, v%d" % (M, M, SC + 2, SC + 3))
            L.append("v_max_f32 v%d, v%d, v%d" % (M, M, Tm))
            for sw in ("16", "32"):
                L.append("v_mov_b32 v%d, v%d" % (Tm, M))
                L.append("v_permlane%s_swap_b32 v%d, v%d" % (sw, M, Tm))
                L.append("v_max_f32 v%d, v%d, v%d" % (M, M, Tm))
            for i in range(8): L.append("v_sub_f32 v%d, v%d, v%d" % (SP + i, SP + i, M))
            for i in range(8): L.append("v_exp_f32 v%d, v%d" % (SP + i, SP + i))
            for i in range(4): L.append("v_cvt_pk_bf16_f32 v%d, v%d, v%d" % (P + i, SP + 2 * i, SP + 2 * i + 1))
            L.append("v_add_f32 v%d, v%d, v%d" % (Sm, SP, SP + 1))
            L.append("v_add_f32 v%d, v%d, v%d" % (S2, SP + 2, SP + 3))
            for f, O in enumerate((O0, O1)):
                vb = VPB[f] + 2 * b
                L.append("v_mfma_f32_16x16x32_bf16 v[%d:%d], v[%d:%d], v[%d:%d], 0" % (O, O + 3, vb, vb + 3, P, P + 3))
            L.append("v_add_f32 v%d, v%d, v%d" % (Sm, Sm, SP + 4))
            L.append("v_add_f32 v%d, v%d, v%d" % (S2, S2, SP + 5))
            L.append("v_add_f32 v%d, v%d, v%d" % (Sm, Sm, SP + 6))
            L.append("v_add_f32 v%d, v%d, v%d" % (S2, S2, SP + 7))
            L.append("v_add_f32 v%d, v%d, v%d" % (Sm, Sm, S2))
            for sw in ("16", "32"):
                L.append("v_mov_b32 v%d, v%d" % (Tm, Sm))
                L.append("v_permlane%s_swap_b32 v%d, v%d" % (sw, Sm, Tm))
                L.append("v_add_f32 v%d, v%d, v%d" % (Sm, Sm, Tm))
            L.append("v_rcp_f32 v%d, v%d" % (Sm, Sm))
            mul4(L, O0, O0, Sm); mul4(L, O1, O1, Sm)
            st_ = S_T if b & 1 else S_T2
            L.append("s_add_u32 s%d, s%d, %d" % (st_, S_AB, b * 1024))
            L.append("v_cvt_pk_bf16_f32 v%d, v%d, v%d" % (SP, O0, O0 + 1))
            L.append("v_cvt_pk_bf16_f32 v%d, v%d, v%d" % (SP + 2, O1, O1 + 1))
            L.append("v_cvt_pk_bf16_f32 v%d, v%d, v%d" % (SP + 1, O0 + 2, O0 + 3))
            L.append("v_cvt_pk_bf16_f32 v%d, v%d, v%d" % (SP + 3, O1 + 2, O1 + 3))
            L.append("v_permlane32_swap_b32 v%d, v%d" % (SP, SP + 2))
            L.append("v_permlane32_swap_b32 v%d, v%d" % (SP + 1, SP + 3))
            L.append("buffer_store_dwordx4 v[%d:%d], v%d, s[%d:%d], s%d offen%s" % (SP, SP + 3, V_L16, S_ACT, S_ACT + 3, st_, STM))
            return L
        SAa = sum((attn(b) for b in range(0, 8, 2)), [])
        SBb = sum((attn(b) for b in range(1, 8, 2)), [])
        sh = len(attn(0)) // 2
        for x_ in zipl(SAa + ["NOP"] * sh, ["NOP"] * sh + SBb):
            if x_ != "NOP": a(x_)

    def conv(a, w, wm, tiles, VPB, prevK, prevV, env):
        (corr, fetch, mul4, mul44, run_groups, glu_groups, stt, cst, SD, RR, CG, V_L16, V_SGL) = [env[k] for k in
            ("corr", "fetch", "mul4", "mul44", "run_groups", "glu_groups", "stt", "cst", "SD", "RR", "CG", "V_L16", "V_SGL")]
        FT = 10
        RVB = [14, 74]
        a("v_mov_b32 v%d, v%d", T5, T3)
        RA = T5
        KP = CST + 0
        for i in range(6): a("v_mov_b32 v%d, v%d", CST + 4 * i, CSR + i)
        KPK = CSR
        RQ = CSR + 4
        groups = []
        for b in range(-1, 8):
            pre = ["ds_read_b128 v[%d:%d], v%d offset:%d" % (RVB[(b + 1) & 1], RVB[(b + 1) & 1] + 3, RA, (b + 1) * 64)]
            tl = {}
            for nf in range(6):
                if b < 0:
                    if nf >= 2: tl[nf] = (prevK + prevV)[nf - 2]
                else: tl[nf] = tiles[(nf, b)]
            cl = [corr(t, nf, b, nf) for nf, t in tl.items()]
            L = []
            r_ = RR + b + 1
            if b >= 0:
                L.append("v_mul_f32 v%d, %s, v%d" % (RQ, f32(LOG2E * 32 ** -0.5), r_))
            for base_nf, mreg in ((2, r_), (0, RQ)):
                if base_nf not in tl: continue
                dst = KPK if b < 0 else tl[base_nf].base
                for f in range(2):
                    s_ = fetch(tl[base_nf + f], FT, L)
                    mul4(L, s_, s_, mreg)
                    L.append("v_cvt_pk_bf16_f32 v%d, v%d, v%d" % (dst + 2 * f, s_, s_ + 1))
                    L.append("v_cvt_pk_bf16_f32 v%d, v%d, v%d" % (dst + 2 * f + 1, s_ + 2, s_ + 3))
            L.append("s_waitcnt lgkmcnt(%d)" % (1 if b < 7 else 0))
            for f in range(2):
                s_ = fetch(tl[4 + f], FT, L)
                mul44(L, s_, s_, RVB[(b + 1) & 1])
                dst = VPB[f] + 2 * (b + 1)
                L.append("v_cvt_pk_bf16_f32 v%d, v%d, v%d" % (dst, s_, s_ + 1))
                L.append("v_cvt_pk_bf16_f32 v%d, v%d, v%d" % (dst + 1, s_ + 2, s_ + 3))
            groups.append((pre, cl, L))
        for x_ in groups[0][0] + groups[0][1]: a(x_)
        for k, (pre, cl, vl) in enumerate(groups):
            if k + 1 < len(groups):
                for x_ in groups[k + 1][0]: a(x_)
                for x_ in spread(vl, groups[k + 1][1], 0.05, 0.6): a(x_)
            else:
                for x_ in vl: a(x_)
        nst("e2")
        K1 = [tiles[(3, mf)].base for mf in range(8)]
        BP, BC, BPF = K1[0], K1[1], K1[2]
        a("v_and_b32 v%d, 15, v0", T0)
        a("v_lshrrev_b32 v%d, 4, v0", T1)
        a("v_lshlrev_b32 v%d, 2, v%d", T1, T1)
        a("v_sub_u32 v%d, v%d, v%d", T0, T0, T1)
        a("v_mov_b32 v%d, %s", T3, f32(-1e30))
        a("s_mov_b32 s%d, 0x80000001", S_T3)
        a("s_brev_b32 s%d, 1", S_T2)
        for i in range(4):
            a("v_subrev_u32 v%d, %d, v%d", T1, i, T0)
            a("v_and_b32 v%d, s%d, v%d", T1, S_T3, T1)
            a("v_cmp_eq_u32 vcc, 0, v%d", T1)
            a("v_cndmask_b32 v%d, v%d, 0, vcc", BC + i, T3)
            a("v_cmp_eq_u32 vcc, s%d, v%d", S_T2, T1)
            a("v_cndmask_b32 v%d, v%d, 0, vcc", BP + i, T3)
        if wm == 0:
            a("s_cmp_eq_u32 s%d, 0", S_M0)
            a("s_cselect_b64 vcc, -1, 0")
            for i in range(4): a("v_cndmask_b32 v%d, v%d, v%d, vcc", BPF + i, BP + i, T3)
        else: BPF = BP
        sets = [(VPB[0] + 18, K1[3], K1[4]), (VPB[1] + 18, K1[5], K1[6])]
        def attn(b):
            base, P, M = sets[b & 1]
            SP, SC, O0, O1 = base, base + 4, base + 8, base + 12
            Tm = M + 1; Sm = M + 2; S2 = M + 3
            Qb = tiles[(0, b)].base; Kb = tiles[(2, b)].base; Kp = KPK if b == 0 else tiles[(2, b - 1)].base
            bp = BPF if b == 0 else BP
            L = []
            L.append("v_mfma_f32_16x16x32_bf16 v[%d:%d], v[%d:%d], v[%d:%d], v[%d:%d]" % (SP, SP + 3, Kp, Kp + 3, Qb, Qb + 3, bp, bp + 3))
            L.append("v_mfma_f32_16x16x32_bf16 v[%d:%d], v[%d:%d], v[%d:%d], v[%d:%d]" % (SC, SC + 3, Kb, Kb + 3, Qb, Qb + 3, BC, BC + 3))
            L += ["NOP"] * 4
            L.append("v_max3_f32 v%d, v%d, v%d, v%d" % (M, SP, SP + 1, SP + 2))
            L.append("v_max3_f32 v%d, v%d, v%d, v%d" % (Tm, SP + 3, SC, SC + 1))
            L.append("v_max3_f32 v%d, v%d, v%d, v%d" % (M, M, SC + 2, SC + 3))
            L.append("v_max_f32 v%d, v%d, v%d" % (M, M, Tm))
            for sw in ("16", "32"):
                L.append("v_mov_b32 v%d, v%d" % (Tm, M))
                L.append("v_permlane%s_swap_b32 v%d, v%d" % (sw, M, Tm))
                L.append("v_max_f32 v%d, v%d, v%d" % (M, M, Tm))
            for i in range(8): L.append("v_sub_f32 v%d, v%d, v%d" % (SP + i, SP + i, M))
            for i in range(8): L.append("v_exp_f32 v%d, v%d" % (SP + i, SP + i))
            for i in range(4): L.append("v_cvt_pk_bf16_f32 v%d, v%d, v%d" % (P + i, SP + 2 * i, SP + 2 * i + 1))
            L.append("v_add_f32 v%d, v%d, v%d" % (Sm, SP, SP + 1))
            L.append("v_add_f32 v%d, v%d, v%d" % (S2, SP + 2, SP + 3))
            for f, O in enumerate((O0, O1)):
                vb = VPB[f] + 2 * b
                L.append("v_mfma_f32_16x16x32_bf16 v[%d:%d], v[%d:%d], v[%d:%d], 0" % (O, O + 3, vb, vb + 3, P, P + 3))
            L.append("v_add_f32 v%d, v%d, v%d" % (Sm, Sm, SP + 4))
            L.append("v_add_f32 v%d, v%d, v%d" % (S2, S2, SP + 5))
            L.append("v_add_f32 v%d, v%d, v%d" % (Sm, Sm, SP + 6))
            L.append("v_add_f32 v%d, v%d, v%d" % (S2, S2, SP + 7))
            L.append("v_add_f32 v%d, v%d, v%d" % (Sm, Sm, S2))
            for sw in ("16", "32"):
                L.append("v_mov_b32 v%d, v%d" % (Tm, Sm))
                L.append("v_permlane%s_swap_b32 v%d, v%d" % (sw, Sm, Tm))
                L.append("v_add_f32 v%d, v%d, v%d" % (Sm, Sm, Tm))
            L.append("v_rcp_f32 v%d, v%d" % (Sm, Sm))
            mul4(L, O0, O0, Sm); mul4(L, O1, O1, Sm)
            st_ = S_T if b & 1 else S_T2
            L.append("s_add_u32 s%d, s%d, %d" % (st_, S_AB, b * 1024))
            L.append("v_cvt_pk_bf16_f32 v%d, v%d, v%d" % (SP, O0, O0 + 1))
            L.append("v_cvt_pk_bf16_f32 v%d, v%d, v%d" % (SP + 2, O1, O1 + 1))
            L.append("v_cvt_pk_bf16_f32 v%d, v%d, v%d" % (SP + 1, O0 + 2, O0 + 3))
            L.append("v_cvt_pk_bf16_f32 v%d, v%d, v%d" % (SP + 3, O1 + 2, O1 + 3))
            L.append("v_permlane32_swap_b32 v%d, v%d" % (SP, SP + 2))
            L.append("v_permlane32_swap_b32 v%d, v%d" % (SP + 1, SP + 3))
            L.append("buffer_store_dwordx4 v[%d:%d], v%d, s[%d:%d], s%d offen%s" % (SP, SP + 3, V_L16, S_ACT, S_ACT + 3, st_, STM))
            return L
        SAa = sum((attn(b) for b in range(0, 8, 2)), [])
        SBb = sum((attn(b) for b in range(1, 8, 2)), [])
        sh = len(attn(0)) // 2
        for x_ in zipl(SAa + ["NOP"] * sh, ["NOP"] * sh + SBb):
            if x_ != "NOP": a(x_)
        nst("e3")
        for mf in range(8): a("v_mul_f32 v%d, %s, v%d", CG + mf, f32(-LOG2E), RR + mf + 1)
        run_groups(glu_groups([(6, 8, S_K1, 0)], [TV, TV + 16]))
        if FUSE: weave(w)
        a("s_branch %s", fin)

    for w in range(4):
        variant(w)
        a("s_nop 7"); a("s_nop 7")
        for l1, l2 in SPINS:
            a.label(l1)
            a("ds_read_b32 v%d, v%d", V_FD, V_FR)
            a("s_waitcnt lgkmcnt(0)")
            a("v_cmp_lt_u32 vcc, v%d, v%d", V_FD, V_FS)
            a("s_cbranch_vccnz %s", l1)
            a("s_branch %s", l2)
        del SPINS[:]
        for l1, l2, hpoll in HSPIN:
            a.label(l1)
            a("s_sleep 2")
            if H2 and w == 0:
                a("buffer_load_dword v239, off, s[%d:%d], s%d sc1", p2.Q_F, p2.Q_F + 3, S_C0)
                a("s_waitcnt vmcnt(0)")
                a("v_readfirstlane_b32 s%d, v239", S_OK)
                a("s_cmp_eq_u32 s%d, 0", S_OK)
                a("s_cbranch_scc1 %s", l1)
                for x_ in hpoll: a(x_[0])
                a("s_waitcnt vmcnt(0)")
                a("s_branch %s", l2)
                continue
            if H2:
                for x_ in hpoll: a(x_)
                a("s_waitcnt lgkmcnt(0)")
                a("v_readfirstlane_b32 s%d, v239", S_OK)
                a("s_cmp_eq_u32 s%d, 0", S_OK)
                a("s_cbranch_scc1 %s", l1)
                a("s_branch %s", l2)
                continue
            for x_ in hpoll: a(x_[0] if isinstance(x_, tuple) else x_)
            a("s_waitcnt vmcnt(0)")
            a("v_readfirstlane_b32 s%d, v%d", S_OK, TV)
            a("s_cmp_eq_u32 s%d, 0", S_OK)
            a("s_cbranch_scc1 %s", l1)
            a("s_branch %s", l2)
        del HSPIN[:]
    a.label(fin)
    nst("epi")
    if FUSE:
        lslow = a.newlab("L_p2_slow"); lback = a.newlab("L_p2_back")
        if not opt.get("wv2"):
            a("s_cmp_eq_u32 s%d, 0", p2.Q_A2 + 2)
            a("s_cbranch_scc1 %s", lslow)
        a.label(lback)
        if EP2: QENT.append([('A', s_) for s_ in range(opt.get("wv_na", 8)) for _ in range(4)])
        spins = p2.body(a, QENT, NPRE, True, lambda i: nst(["p0", "p20", "p28", "p36"][i]))
    if opt.get("prof"):
        a("s_waitcnt vmcnt(0)")
    stamp(a, opt, 4)
    stamp_store(a, opt, 5, P_WS, S_W, 1, 20)
    a.label(done)
    a("s_endpgm")
    if FUSE:
        a("s_nop 7")
        p2.spin_code(a, spins)
    if FUSE and not opt.get("wv2"):
        a.label(lslow)
        a("v_mov_b32 v%d, %d", T2, 2 if EP2 else 1)
        a("s_waitcnt vmcnt(0)")
        nst("sl1")
        a("s_mov_b64 exec, 1")
        a("buffer_store_dword v%d, off, s[%d:%d], s%d sc1", T2, p2.Q_F, p2.Q_F + 3, p2.Q_FSIG)
        a("s_mov_b64 exec, -1")
        lsl2 = a.newlab("L_p2_slow2")
        a.label(lsl2)
        if opt.get("wv_sleep"): a("s_sleep %d", opt["wv_sleep"])
        p2.poll_emit(a, 0)
        a("s_waitcnt vmcnt(0)")
        for x_ in p2.poll_test(0): a(x_)
        a("s_cbranch_scc1 %s", lsl2)
        nst("sl2")
        for s_ in range(opt.get("wv_na", 8) if EP2 else 8):
            for x_ in p2.a_job(s_): a(x_[0] if isinstance(x_, tuple) else x_)
        if not EP2: a("s_waitcnt vmcnt(%d)", 0)
        a("s_branch %s", lback)
    if FUSE:
        i0 = a.l.index(labs[3] + ":"); i1 = a.l.index(fin + ":")
        a.l = [".p2align 8", "L_code_start:"] + a.l[i0:i1] + a.l[:i0] + a.l[i1:]
    lines, added = hazard.fix(a.l)
    a0.l += lines
    a0._lab = a._lab
    return kernel_desc(name, 512, 256, 102 if FUSE else 100)
```

```python
import sys, collections
def kind(l):
    op = l.split()[0]
    if op.startswith("v_mfma"): return 'M'
    if op.startswith("ds_"): return 't'
    if op.startswith(("buffer_", "global_")): return 'L'
    if op.startswith("s_waitcnt"): return 'w'
    if op.startswith("s_nop"): return 'n'
    if op.startswith("s_barrier"): return 'B'
    if op.startswith(("s_cbranch", "s_branch")): return 'b'
    if op.startswith("s_"): return 's'
    if op.startswith(("v_exp", "v_rcp", "v_rsq", "v_sqrt", "v_log")): return 'e'
    if op.startswith("v_"): return 'v'
    return '?'
def cost(g):
    t = 4; ls = -99; ll = -99; lv = -99
    for c in g:
        if c in 'swnBb':
            if c == 's': ls = t
            t += 8 if c == 'B' else 4
        elif c == 't':
            i = max(t, 8, ll + 8, lv + 12); ll = i; t = i + 4
        elif c == 'L':
            i = max(t, 8, ls + 8); t = i + 8
        elif c == 'v': lv = max(t, 8); t = lv + 4
        elif c == 'e': lv = max(t, 8); t = lv + 8
    return max(0, t - 16)
def gaps_of(body):
    gaps = []; cur = ""
    for l in body:
        if l.endswith(":") or l.startswith("."): continue
        k = kind(l)
        if k == 'M': gaps.append(cur); cur = ""
        else: cur += k
    gaps.append(cur)
    return gaps
if __name__ == "__main__":
    L = [l.strip() for l in open(sys.argv[1])]
    starts = [i for i, l in enumerate(L) if l.startswith("L_g1_loop_")]
    for st in starts:
        body = []
        for l in L[st + 1:]:
            body.append(l)
            if l.startswith("s_cbranch_scc1 L_g1_loop"): break
        g = gaps_of(body)
        g = [g[-1] + g[0]] + g[1:-1]
        h = collections.Counter(g)
        tot = sum(cost(x) for x in g)
        print(L[st], "mfma", len(g), "over", tot, "per step", tot / 4, "pred", (len(g) * 16 + tot) / 4)
        print("   ", " ".join("%s:%dx%d" % (k, v, cost(k)) for k, v in sorted(h.items(), key=lambda t: -cost(t[0]) * t[1]) if cost(k)))
    def rep(nm, body):
        g = gaps_of(body)[1:-1]
        h = collections.Counter(g)
        tot = sum(cost(x) for x in g)
        nv = sum(1 for x in g if 'v' in x or 'e' in x)
        print(nm, "mfma", len(g), "over", tot, "gaps with valu", nv)
        print("   ", " ".join("%s:%dx%d" % (k, v, cost(k)) for k, v in sorted(h.items(), key=lambda t: -cost(t[0]) * t[1]) if cost(k)))
    if len(sys.argv) > 2:
        for st in starts:
            b0 = max(i for i, l in enumerate(L[:st]) if l.startswith("L_g1_w_"))
            rep("head " + L[b0], L[b0:st])
            e0 = [i for i, l in enumerate(L) if l.startswith("s_cbranch_scc1 " + L[st][:-1])][0]
            e1 = min(i for i, l in enumerate(L) if i > e0 and l.startswith("L_g1_spin"))
            rep("tail", L[e0:e1])
    st = [i for i, l in enumerate(L) if l.startswith("L_p2_back")][0]
    en = [i for i, l in enumerate(L) if l.startswith("L_p2_spin")][0]
    g = gaps_of(L[st:en])[1:-1]
    h = collections.Counter(g)
    tot = sum(cost(x) for x in g)
    print("P2 mfma", len(g), "over", tot, "pred", len(g) * 16 + tot)
    print("   ", " ".join("%s:%dx%d" % (k, v, cost(k)) for k, v in sorted(h.items(), key=lambda t: -cost(t[0]) * t[1]) if cost(k)))
```

```python
from gen_common import *
import hazard, struct, re
from gen_p2 import P2, FLG_ACT, FLG_BYTES, SLOTB

XROWS = 273
XSLOT = XROWS * 128
WBASE = 2 * XSLOT
WSTAGE = 20480
WG_OFF, WU_OFF, WQ_OFF = 0, 7168, 14336
SCR = WBASE + 4 * WSTAGE
L_CS = SCR
L_KV = SCR + 1280
L_RT = SCR + 5376
L_STG = SCR + 5376 + 2560
G1B_LDS = L_STG + 4096
WS_STATS = 0
LOG2E = 1.4426950408889634
def f32(x): return "0x%08x" % struct.unpack("<I", struct.pack("<f", x))[0]

def zipl(*ls):
    out = []
    n = max(len(l) for l in ls)
    for i in range(n):
        for l in ls:
            if i < len(l): out.append(l[i])
    return out

def spread(main, extra, lo=0.0, hi=0.7):
    n = len(main); k = len(extra)
    if k == 0: return list(main)
    pos = [int(n * lo + (n * (hi - lo)) * i / k) for i in range(k)]
    out = []; j = 0
    for i, m in enumerate(main):
        while j < k and pos[j] <= i:
            if extra[j].startswith("v_mfma") and out and out[-1].startswith("v_pk_"): break
            out.append(extra[j]); j += 1
        out.append(m)
    out += extra[j:]
    return out

def gen_g1b(a0, name="g1_kernel", opt=None):
    opt = opt or {}
    a = A(); a._lab = a0._lab + 1000
    NSTEP = 32
    LA = opt.get("la", 3)
    BAR = opt.get("bar", 4)
    ACT_KB = opt.get("akb", 131072)
    ACT_BYTES = 144 * ACT_KB
    KROT = opt.get("krot", 0)
    FS = opt.get("fs")
    FSL = opt.get("fs_lead", 5)
    if FS: BAR = FS[1]
    V_FS, V_FA, V_FR, V_FD = 54, 58, 62, 66
    L_FLG = L_RT + 1280
    W2P = opt.get("w2p", 0)
    S_CS, S_CD, S_CSO, S_CDO = 60, 64, 68, 69
    DE = opt.get("de", 5)
    DST = opt.get("dst", [0, 0, 0, 0])
    PK = opt.get("pk", 1)
    GA = opt.get("ga", 0)
    S_TX, S_TK = (79, 78) if GA else (40, 40)
    STM = opt.get("stmod", " sc1")
    NOCS = opt.get("nocs", 0)
    assert BAR <= 10 - LA
    S_X, S_G, S_U, S_Q, S_ACT, S_ST, S_DBG, S_PF = 4, 8, 12, 16, 20, 24, 28, 32
    S_XK, S_XH, S_GOFF, S_QOFF, S_T, S_T2, S_T3, S_W, S_M0, S_J, S_LOOP = 36, 37, 38, 39, 40, 41, 42, 43, 44, 45, 46
    S_PFOFF, S_PFSTR, S_OK, S_C0, S_C1, S_STO, S_AB, S_ODD, S_MT = 47, 48, 49, 50, 51, 52, 53, 58, 59
    S_K1 = 54; S_K2 = 55; S_MSK = 56
    S_RC = 56; S_RP = 57; S_ROT = 3
    P_X, P_Q, P_G, P_U, P_WS, P_DBG, P_WO, P_WD = 60, 62, 64, 66, 68, 70, 72, 74
    V_XDMA = 1; V_WDMA = [2, 3, 4, 5]; V_XR = [6, 7]; V_HX = [8, 9]; V_WRD = list(range(10, 18)); V_PF = 18; V_PFD = 19
    ST = 20
    CSR = 40
    CST = 50
    T0, T1, T2, T3, T4, T5 = 74, 75, 76, 77, 78, 79
    TV = 80
    def XF(st, mf): return R('a', 148 + st * 32 + mf * 4, 4)
    def WR(i): return R('a', 212 + (i & 3) * 4, 4)
    def HX(st): return R('a', 228 + st * 4, 4)
    def HACC(i): return R('a', 236 + i * 4, 4)

    FUSE = opt.get("fuse", 0)
    EP2 = opt.get("ep2", 0)
    XE = opt.get("xe", 0)
    p2 = P2(opt, S_W)
    CSD = opt.get("cs2", 0)
    S_CSW, S_CSM = S_XH, S_C0
    DACC = R('a', 144, 4); DWF = HACC(4)
    CS_OFF = 16384
    H2 = opt.get("h2", 0)
    L_HF = L_CS
    WST = opt.get("wst", [])
    WSB = [0, 16384, WBASE, WBASE + 16384]
    S_WSB = 79
    NPRE = opt.get("p2_npre", 14)
    QENT = []
    STP = opt.get("stp", ["pro", "loop", "epi"])
    def nst(nm):
        if nm in STP: stamp(a, opt, 1 + STP.index(nm))
    p2.nst = nst
    kernel_header(a, name)
    done = a.newlab("L_g1_done"); fin = a.newlab("L_g1_fin")
    go = a.newlab("L_g1_go")
    a("s_cmp_ge_u32 s2, 256")
    a("s_cbranch_scc0 %s", go)
    a("s_endpgm")
    a.label(go)
    a("s_load_dwordx4 s[%d:%d], s[0:1], 0", P_X, P_X + 3)
    a("s_load_dwordx4 s[%d:%d], s[0:1], 32", P_G, P_G + 3)
    a("s_load_dwordx2 s[%d:%d], s[0:1], 72", P_WS, P_WS + 1)
    a("s_load_dwordx2 s[%d:%d], s[0:1], 64", P_DBG, P_DBG + 1)
    a("s_load_dwordx2 s[%d:%d], s[0:1], 16", P_WO, P_WO + 1)
    a("s_load_dwordx2 s[%d:%d], s[0:1], 48", P_WD, P_WD + 1)
    if FUSE: a("s_load_dwordx2 s[100:101], s[0:1], 56")
    stamp(a, opt, 0)
    if opt.get("prof"):
        for r_ in range(84, 96): a("s_mov_b32 s%d, 0", r_)
    a("v_lshrrev_b32 v%d, 6, v0", T0)
    a("v_and_b32 v0, 63, v0")
    a("v_readfirstlane_b32 s%d, v%d", S_W, T0)
    a("s_lshr_b32 s%d, s2, 5", S_MT)
    a("s_lshl_b32 s%d, s%d, 8", S_M0, S_MT)
    a("s_and_b32 s%d, s2, 7", S_J)
    a("s_lshl_b32 s%d, s%d, 2", S_J, S_J)
    a("s_bfe_u32 s%d, s2, 0x20003", S_T)
    a("s_add_u32 s%d, s%d, s%d", S_J, S_J, S_T)
    a("s_and_b32 s%d, s%d, 1", S_ODD, S_J)
    a("s_mul_i32 s%d, s%d, 224", S_GOFF, S_J)
    a("s_lshl_b32 s%d, s%d, 6", S_QOFF, S_J)
    if KROT:
        a("s_and_b32 s%d, s2, 7", S_ROT)
        if opt.get("rot_mt"):
            if opt["rot_mt"] == 2: a("s_mov_b32 s%d, 0", S_ROT)
            if opt["rot_mt"] == 3:
                a("s_and_b32 s%d, s%d, 4", S_T, S_MT)
                a("s_add_u32 s%d, s%d, s%d", S_ROT, S_ROT, S_T)
            elif opt["rot_mt"] >= 4:
                a("s_and_b32 s%d, s%d, 1", S_T, S_MT)
                a("s_mul_i32 s%d, s%d, %d", S_T, S_T, opt["rot_mt"] - 3)
                a("s_add_u32 s%d, s%d, s%d", S_ROT, S_ROT, S_T)
            else: a("s_add_u32 s%d, s%d, s%d", S_ROT, S_ROT, S_MT)
            a("s_and_b32 s%d, s%d, 7", S_ROT, S_ROT)
        if KROT > 1: a("s_and_b32 s%d, s%d, %d", S_ROT, S_ROT, (8 - KROT) & 7)
        a("s_mul_i32 s%d, s%d, %d", S_T, S_ROT, 128 * 7168)
        a("s_add_u32 s%d, s%d, s%d", S_GOFF, S_GOFF, S_T)
        a("s_mul_i32 s%d, s%d, %d", S_T, S_ROT, 128 * 6144)
        a("s_add_u32 s%d, s%d, s%d", S_QOFF, S_QOFF, S_T)
        a("s_sub_u32 s%d, 8, s%d", S_RC, S_ROT)
        a("s_sub_u32 s%d, %d, s%d", S_RP, 8 - opt.get("pf_c0", 1), S_ROT)
    a("v_lshlrev_b32 v%d, 4, v0", T5)
    CPF = opt.get("cpf", 0)
    def code_pf(sb, vt, vd, st):
        l_ = a.newlab("L_g1_pc")
        a("s_getpc_b64 s[%d:%d]", sb, sb + 1)
        a.label(l_)
        cs = "L_code_start" if FUSE else name
        a("s_sub_u32 s%d, s%d, %s-%s", sb, sb, l_, cs)
        a("s_subb_u32 s%d, s%d, 0", sb + 1, sb + 1)
        a("s_lshr_b32 s%d, s2, 3", st)
        a("s_mul_i32 s%d, s%d, ((L_code_end-%s+4095)>>12)<<7", st, st, cs)
        a("v_min_u32 v%d, ((L_code_end-%s+4095)>>12)-1, v0", vt, cs)
        a("v_lshl_add_u32 v%d, v%d, 7, s%d", vt, vt, st)
        a("v_min_u32 v%d, L_code_end-%s-4, v%d", vt, cs, vt)
        a("global_load_dword v%d, v%d, s[%d:%d]", vd, vt, sb, sb + 1)
    if CPF & 4: code_pf(76, T0, V_PFD, S_T)
    labs = [a.newlab("L_g1_w") for _ in range(4)]
    PG = opt.get("pg", 0)
    G_GO, G_QO, G_MB = S_AB, S_STO, S_LOOP
    def gu_off(dst, job):
        a("v_add_u32 v%d, %s, v0", T0, job)
        a("v_mul_u32_u24 v%d, 4682, v%d", T1, T0)
        a("v_lshrrev_b32 v%d, 16, v%d", T1, T1)
        a("v_mul_u32_u24 v%d, 14, v%d", T2, T1)
        a("v_sub_u32 v%d, v%d, v%d", T2, T0, T2)
        a("v_bfe_u32 v%d, v%d, 3, 1", T3, T1)
        a("v_lshlrev_b32 v%d, 2, v%d", T3, T3)
        a("v_xor_b32 v%d, v%d, v%d", T1, T1, T3)
        a("v_mul_u32_u24 v%d, 7168, v%d", T1, T1)
        a("v_lshl_add_u32 v%d, v%d, 4, v%d", dst, T2, T1)
    def q_off(dst, job):
        a("v_add_u32 v%d, %s, v0", T0, job)
        a("v_mul_u32_u24 v%d, 5462, v%d", T1, T0)
        a("v_lshrrev_b32 v%d, 16, v%d", T1, T1)
        a("v_mul_u32_u24 v%d, 12, v%d", T2, T1)
        a("v_sub_u32 v%d, v%d, v%d", T2, T0, T2)
        a("v_bfe_u32 v%d, v%d, 3, 1", T3, T1)
        a("v_lshlrev_b32 v%d, 1, v%d", T3, T3)
        a("v_xor_b32 v%d, v%d, v%d", T2, T2, T3)
        a("v_mul_u32_u24 v%d, 6144, v%d", T1, T1)
        a("v_lshrrev_b32 v%d, 2, v%d", T3, T2)
        a("v_lshl_add_u32 v%d, v%d, 11, v%d", T1, T3, T1)
        a("v_and_b32 v%d, 3, v%d", T2, T2)
        a("v_lshl_add_u32 v%d, v%d, 4, v%d", dst, T2, T1)
    def pg_stage(g, S_T=S_T):
        L = ["s_and_b32 s%d, s%d, %d" % (S_T, S_MT, opt.get("pg_m", 3) if PG == 1 else 1)]
        if g and PG == 3: L += ["s_xor_b32 s%d, s%d, %d" % (S_T, S_T, g)]
        elif g: L += ["s_cmp_le_u32 s%d, %d" % (S_T, g - 1), "s_cselect_b32 s%d, %d, %d" % (S_T, g, g - 1)]
        L += ["s_mul_i32 s%d, s%d, %d" % (G_GO, S_T, 32 * 7168), "s_add_u32 s%d, s%d, s%d" % (G_GO, G_GO, S_GOFF),
              "s_mul_i32 s%d, s%d, %d" % (G_QO, S_T, 32 * 6144), "s_add_u32 s%d, s%d, s%d" % (G_QO, G_QO, S_QOFF),
              "s_mul_i32 s%d, s%d, %d" % (G_MB, S_T, WSTAGE)]
        return L
    NTW = " nt" if opt.get("nt_w", 0) > 3 else ""
    if PG:
        assert CSD and KROT
        a("s_and_b32 s%d, s%d, 1", S_T, S_W)
        a("s_lshl_b32 s%d, s%d, 2", S_T, S_T)
        a("v_lshrrev_b32 v%d, 4, v0", T0)
        a("v_add_u32 v%d, s%d, v%d", T0, S_T, T0)
        a("v_and_b32 v%d, 7, v0", T1)
        a("v_xor_b32 v%d, v%d, v%d", T0, T0, T1)
        a("v_lshlrev_b32 v%d, 4, v%d", T0, T0)
        a("v_lshrrev_b32 v%d, 3, v0", T1)
        a("v_lshl_add_u32 v%d, v%d, 11, v%d", V_XDMA, T1, T0)
        a("s_lshl_b32 s%d, s%d, 11", S_XK, S_M0)
        a("s_lshl_b32 s%d, s%d, 8", S_T, S_ROT)
        a("s_add_u32 s%d, s%d, s%d", S_XK, S_XK, S_T)
        a("s_lshl_b32 s%d, s%d, 6", S_K1, S_W)
        gu_off(V_WDMA[0], "s%d" % S_K1)
        q_off(V_WDMA[1], "s%d" % S_K1)
        a("s_add_u32 s%d, s%d, 256", S_K1, S_K1)
        gu_off(V_WDMA[2], "s%d" % S_K1)
        q_off(T4, "256")
        q_off(V_WDMA[3], "320")
        if opt.get("wlin") == 2:
            a("s_lshl_b32 s%d, s%d, 3", S_K1, S_W)
            a("v_lshrrev_b32 v%d, 3, v0", T0)
            a("v_add_u32 v%d, s%d, v%d", T0, S_K1, T0)
            a("v_and_b32 v%d, 7, v0", T1)
            a("v_lshlrev_b32 v%d, 4, v%d", T1, T1)
            a("s_and_b32 s%d, s%d, 127", S_T, S_GOFF)
            a("s_sub_u32 s%d, s%d, s%d", S_GOFF, S_GOFF, S_T)
            a("s_and_b32 s%d, s%d, 127", S_T, S_QOFF)
            a("s_sub_u32 s%d, s%d, s%d", S_QOFF, S_QOFF, S_T)
            a("v_mul_u32_u24 v%d, 7168, v%d", T2, T0)
            a("v_add_u32 v%d, v%d, v%d", V_WDMA[0], T2, T1)
            a("v_add_u32 v%d, 128, v%d", V_WDMA[2], V_WDMA[0])
            a("v_mul_u32_u24 v%d, 6144, v%d", T2, T0)
            a("v_add_u32 v%d, v%d, v%d", V_WDMA[1], T2, T1)
            a("v_add_u32 v%d, 2048, v%d", T4, V_WDMA[1])
            a("v_add_u32 v%d, 4096, v%d", V_WDMA[3], V_WDMA[1])
        a("s_cmp_eq_u32 s%d, 3", S_W)
        a("s_cselect_b64 vcc, -1, 0")
        a("v_cndmask_b32 v%d, v%d, v%d, vcc", V_WDMA[2], V_WDMA[2], T4)
        a("s_bfe_u32 s%d, s2, 0x20003", S_K2)
        a("s_lshl_b32 s%d, s%d, 13", S_K2, S_K2)
        a("s_lshl_b32 s%d, s%d, 10", S_K1, S_W)
        a("s_add_u32 s%d, s%d, s%d", S_K2, S_K2, S_K1)
        if PG != 2:
            for x_ in pg_stage(0): a(x_)
            a("s_add_u32 s%d, s%d, s%d", G_MB, G_MB, S_K1)
        else:
            G_GO, G_QO, G_MB = S_GOFF, S_QOFF, S_K1
        a("s_lshl4_add_u32 s%d, s%d, s%d", S_T, S_K2, S_XK)
        a("s_add_u32 s%d, s%d, 65536", S_T2, S_T)
        a("s_mov_b32 m0, s%d", S_K2)
        nst("k0")
        a("s_waitcnt lgkmcnt(0)")
        make_srd(a, S_X, P_X, 2048 * 2048)
        def xl(so, t): a("buffer_load_dwordx4 v%d, s[%d:%d], s%d offen offset:%d lds", V_XDMA, S_X, S_X + 3, so, 128 * t)
        def wl(vo, srd, off):
            a("s_add_u32 m0, s%d, %d", G_MB, WBASE + off)
            a("buffer_load_dwordx4 v%d, s[%d:%d], s%d offen%s lds", vo, srd, srd + 3, G_QO if srd == S_Q else G_GO, NTW)
        xl(S_T, 0)
        make_srd(a, S_G, P_G, 1024 * 7168)
        a("s_add_u32 m0, s%d, 4096", S_K2)
        xl(S_T2, 0)
        make_srd(a, S_U, P_U, 1024 * 7168)
        wl(V_WDMA[0], S_G, WG_OFF)
        make_srd(a, S_Q, P_Q, 1024 * 6144)
        wl(V_WDMA[0], S_U, WU_OFF)
        wl(V_WDMA[1], S_Q, WQ_OFF)
        l3 = a.newlab("L_g1_w3")
        def x1():
            if PG >= 2:
                for i in range(opt.get("pg_nx", 2)):
                    a("s_add_u32 s%d, s%d, %d", S_K2, S_K2, 4096 if i else 8192)
                    a("s_and_b32 s%d, s%d, 32767", S_K2, S_K2)
                    a("s_lshl4_add_u32 s%d, s%d, s%d", S_T, S_K2, S_XK)
                    a("s_mov_b32 m0, s%d", S_K2)
                    xl(S_T, 0)
                return
            a("s_add_u32 m0, s%d, %d", S_K2, XSLOT - 128)
            xl(S_T, 1)
            a("s_add_u32 m0, s%d, %d", S_K2, XSLOT - 128 + 4096)
            xl(S_T2, 1)
        a("s_cmp_eq_u32 s%d, 3", S_W)
        a("s_cbranch_scc1 %s", l3)
        wl(V_WDMA[2], S_G, WG_OFF + 4096)
        wl(V_WDMA[2], S_U, WU_OFF + 4096)
        x1()
        for w in range(1, 3):
            a("s_cmp_eq_u32 s%d, %d", S_W, w)
            a("s_cbranch_scc1 %s", labs[w])
        a("s_branch %s", labs[0])
        a.label(l3)
        wl(V_WDMA[2], S_Q, WQ_OFF + 1024)
        wl(V_WDMA[3], S_Q, WQ_OFF + 2048)
        x1()
        a("s_branch %s", labs[3])
    else:
        for w in range(1, 4):
            a("s_cmp_eq_u32 s%d, %d", S_W, w)
            a("s_cbranch_scc1 %s", labs[w])

    SPINS = []; SIGS = []
    EP0 = [0]; EPT = [0]
    HALO = [None]; HSPIN = []
    def weave(w):
        wn = w >> 1
        E = a.l[EP0[0]:]; del a.l[EP0[0]:]
        n = len(E)
        last = {}
        for k, ln in enumerate(E):
            for kind, r_ in hazard.regs_of(ln):
                if kind == 'a': last[r_] = k
        stores = [k for k, ln in enumerate(E) if ln.strip().startswith("buffer_store")]
        q = []
        def need(tags, upto=None):
            idx = [i for i, t in enumerate(q) if t in tags]
            return min(63, len(q) - 1 - max(idx))
        items = []
        WG_ = opt.get("wv_gap", 6)
        pos = opt.get("wv_w0", 4)
        for b in range(NPRE):
            j = p2.w_job(b)
            fr = max([last.get(r_, -1) for r_ in range(p2.SL[b], p2.SL[b] + 16)]) + 6
            pos = max(pos, fr)
            for part in (j[0:3], j[3:6]):
                items.append((pos, part)); pos += 2 * WG_
        WV2 = opt.get("wv2", 0)
        if not WV2:
            fP, fA = opt.get("wv_poll", [[0.62, 0.80], [0.62, 0.80]])[wn]
            items.append((int(n * fP), p2.poll_seq(0)))
            def chk():
                nst("ck0")
                a("s_waitcnt vmcnt(%d)", need([('PL', 0)]))
                nst("ck")
                for x_ in p2.poll_test(0): a(x_)
                a("s_cselect_b32 s%d, 0, 0x%x", p2.Q_A2 + 2, ACT_BYTES)
            pos = int(n * fA)
            items.append((pos, [chk]))
            AG_ = opt.get("wv_agap", 5)
            for s_ in range(8):
                items.append((pos, p2.a_job(s_, p2.Q_A2))); pos += 4 * AG_
        elif wn == 1:
            items.append((int(n * opt.get("wv_fp", 0.8)), p2.poll_seq(0)))
        def sig(t, nst_):
            def f():
                a("v_mov_b32 v%d, 1", T2)
                nst("sa%d" % t)
                a("s_waitcnt vmcnt(%d)", need([('AS', nst_)]))
                nst("sg%d" % t)
                a("s_mov_b64 exec, 1")
                a("buffer_store_dword v%d, off, s[%d:%d], s%d offset:%d sc1", T2, p2.Q_F, p2.Q_F + 3, p2.Q_FSIG, 4 * t); q.append(('SG', 0))
                a("s_mov_b64 exec, -1")
            return f
        SD_ = opt.get("wv_sd", 130)
        if wn == 1:
            items.append((stores[7] + SD_, [sig(0, 7)]))
            items.append((stores[15] + SD_, [sig(1, 15)]))
        items.sort(key=lambda t_: t_[0])
        def put(lst):
            for x_ in lst:
                if isinstance(x_, tuple): a(x_[0]); q.append(x_[1])
                elif callable(x_): x_()
                else: a(x_)
        ns = 0
        for k, ln in enumerate(E):
            op = ln.strip()
            prev = E[k - 1].strip() if k else ""
            ok = not op.startswith(("v_cndmask", "s_cselect", "s_addc", "s_memtime", "s_waitcnt")) and not prev.startswith(("s_cmp", "v_cmp", "s_memrealtime"))
            if ok and items and items[0][0] <= k: put(items.pop(0)[1])
            a.l.append(ln)
            if op.startswith("buffer_store"):
                q.append(('AS', ns)); ns += 1
        for it in items: put(it[1])
        a("s_add_u32 s%d, s%d, %d", p2.Q_FSIG, p2.Q_FSIG, 8 if wn == 1 else 12)
        if WV2 and wn == 1:
            l1 = a.newlab("L_wv_sp"); l2 = a.newlab("L_wv_ok")
            nst("ck0")
            a("s_waitcnt vmcnt(%d)", need([('PL', 0)]))
            nst("ck")
            for x_ in p2.poll_test(0): a(x_)
            a("s_cbranch_scc0 %s", l2)
            a("v_mov_b32 v%d, 1", T2)
            a("s_waitcnt vmcnt(0)")
            nst("sl1")
            a("s_mov_b64 exec, 1")
            a("buffer_store_dword v%d, off, s[%d:%d], s%d sc1", T2, p2.Q_F, p2.Q_F + 3, p2.Q_FSIG)
            a("s_mov_b64 exec, -1")
            a.label(l1)
            if opt.get("wv_sleep"): a("s_sleep %d", opt["wv_sleep"])
            p2.poll_emit(a, 0)
            a("s_waitcnt vmcnt(0)")
            for x_ in p2.poll_test(0): a(x_)
            a("s_cbranch_scc1 %s", l1)
            nst("sl2")
            a.label(l2)
            for s_ in range(WV2):
                put(p2.a_job(s_))
                put(p2.a_job(s_, None, True))
        QENT.append([('AS', 0) if t[0] == 'AS' else t for t in q])
    def weave2(w):
        wn = w >> 1
        E = a.l[EP0[0]:]; del a.l[EP0[0]:]
        n = len(E)
        last = {}
        for k, ln in enumerate(E):
            for kr in hazard.regs_of(ln): last[kr] = k
        stores = [k for k, ln in enumerate(E) if ln.strip().startswith("buffer_store")]
        q = [('XL', 0)] * (8 if XE else 0)
        def need(tags):
            idx = [i for i, t in enumerate(q) if t in tags]
            return min(63, len(q) - 1 - max(idx))
        items = []
        def per(name, dflt):
            v = opt.get(name, dflt)
            return v[wn] if isinstance(v, list) else v
        free = {b: max([last.get(('a', r_), -1) for r_ in range(p2.SL[b], p2.SL[b] + 16)]) + 6 for b in range(16)}
        if XE:
            xp = max([last.get(('v', r_), -1) for r_ in range(p2.XL, p2.XL + 16)] + [int(n * per("wv_xf", 0.3))]) + 4
            items.append((xp, [lambda: a("s_waitcnt vmcnt(%d)", need([('XL', 0)]))]))
            for i in range(0, 16, 4):
                items.append((xp + 1 + i, ["v_accvgpr_read_b32 v%d, a%d" % (p2.XL + i + z, p2.SL[XE] + i + z) for z in range(4)]))
            free[XE] = xp + 24
        WG_ = per("wv_gap", 6)
        pos = opt.get("wv_w0", 4)
        V_L16_ = p2.V_L16
        if opt.get("dbg_free"): print("free", w, n, sorted(free.items(), key=lambda t_: t_[1]))
        for nb_, b in enumerate(sorted(range(NPRE), key=lambda b_: (max(free[b_], 0), b_))):
            j = p2.w_job(b)
            if b in WST:
                o_ = WSB[WST.index(b)] + w * 4096; ad = V_L16_; p_ = free[b]
                if o_ >= 65536:
                    o_ -= 65536; ad = p2.V_POLL
                    items.append((p_, ["v_add_u32 v%d, 65536, v%d" % (ad, V_L16_)])); p_ += 1
                for i in range(4):
                    items.append((p_ + 2 * i, ["ds_read_b128 %s, v%d offset:%d" % (p2.wfrag(b, i >> 1, i & 1), ad, o_ + 1024 * i)]))
                assert p_ + 20 < int(n * opt.get("wv_poll", [[0.5, 0.7], [0.5, 0.7]])[wn][0 if ad == p2.V_POLL else 1]), (p_, n)
                continue
            pos = max(pos, free[b])
            if opt.get("pf2") == nb_:
                def pfl(so): return ("buffer_load_dword a%d, v%d, s[%d:%d], s%d offen sc1" % (p2.SL[b], T5, p2.Q_W, p2.Q_W + 3, so), ('P', 0))
                items.append((pos, ["v_lshlrev_b32 v%d, 7, v0" % T5, "s_mov_b64 exec, 0xffffffff", pfl(78), "s_mov_b64 exec, -1"])); pos += WG_
                items.append((pos, [pfl(S_C0)])); pos += WG_
                items.append((pos, [pfl(S_C1)])); pos += WG_
            if opt.get("wv_one"):
                for part in (j[0:2], j[2:3], j[3:5], j[5:6]):
                    items.append((pos, part)); pos += WG_
                continue
            for part in (j[0:3], j[3:6]):
                items.append((pos, part)); pos += 2 * WG_
        fP, fA = opt.get("wv_poll", [[0.5, 0.7], [0.5, 0.7]])[wn]
        items.append((int(n * fP), p2.poll_seq(0)))
        def chk():
            nst("ck0")
            a("s_waitcnt vmcnt(%d)", need([('PL', 0)]))
            nst("ck")
            for x_ in p2.poll_test(0): a(x_)
            a("s_cselect_b32 s%d, 0, 0x%x", p2.Q_A2 + 2, ACT_BYTES)
            if WST: a("s_waitcnt lgkmcnt(0)")
        pos = int(n * fA)
        items.append((pos, [chk]))
        AG_ = per("wv_agap", 8)
        for s_ in range(opt.get("wv_na", 8)):
            j = p2.a_job(s_, p2.Q_A2)
            if opt.get("wv_one"):
                for part in (j[0:3], j[3:4], j[4:5], j[5:6]):
                    items.append((pos, part)); pos += AG_
                continue
            items.append((pos, j)); pos += 4 * AG_
        NS1 = 10 if (CSD and wn == 0 and not (H2 and w == 0)) else 7
        if H2 and wn == 0:
            hw = [k for k, ln in enumerate(E) if ln.strip() == "HALOWAIT"][0]
            hl_ = int(n * opt.get("h2_at", fP)) + 2
            assert hl_ > stores[NS1] + per("wv_sd", 100) + 8
            if w == 0:
                for i, x_ in enumerate(HALO[0]): items.append((hl_ + 2 * i, [x_]))
            else: items.append((hw - 40, HALO[0]))
        elif CSD and wn == 0:
            hw = [k for k, ln in enumerate(E) if ln.strip() == "HALOWAIT"][0]
            hpoll = ["s_mov_b64 exec, 1", ("buffer_load_dword v%d, off, s[%d:%d], s%d sc1" % (TV, p2.Q_F, p2.Q_F + 3, S_C0), ('HP', 0)), "s_mov_b64 exec, -1"]
            def hchk():
                l1 = a.newlab("L_h_sp"); l2 = a.newlab("L_h_ok")
                nst("h0")
                a("s_waitcnt vmcnt(%d)", need([('HP', 0)]))
                a("v_readfirstlane_b32 s%d, v%d", S_OK, TV)
                a("s_cmp_eq_u32 s%d, 0", S_OK)
                a("s_cbranch_scc1 %s", l1)
                a.label(l2)
                nst("h1")
                HSPIN.append((l1, l2, hpoll))
            hp_, hc_ = opt.get("h_at", [330, 170])
            assert hw - hp_ > stores[NS1] and hw - hc_ > stores[NS1] + per("wv_sd", 100) + 8, (hw, last[('v', T1)], stores[NS1])
            if not opt.get("nohalo"):
                items.append((hw - hp_, hpoll))
                items.append((hw - hc_, [hchk]))
                for i, x_ in enumerate(HALO[0]): items.append((hw - hc_ + 2 + 6 * i, [x_]))
        def sig():
            a("v_mov_b32 v%d, 1", T2)
            nst("sa0")
            a("s_waitcnt vmcnt(%d)", need([('AS', NS1)]))
            nst("sg0")
            a("s_mov_b64 exec, 1")
            a("buffer_store_dword v%d, off, s[%d:%d], s%d sc1", T2, p2.Q_F, p2.Q_F + 3, p2.Q_FSIG); q.append(('SG', 0))
            a("s_mov_b64 exec, -1")
        items.append((stores[NS1] + per("wv_sd", 100), [sig]))
        items.sort(key=lambda t_: t_[0])
        def put(lst):
            for x_ in lst:
                if isinstance(x_, tuple): a(x_[0]); q.append(x_[1])
                elif callable(x_): x_()
                else: a(x_)
        ns = 0
        for k, ln in enumerate(E):
            op = ln.strip()
            if op == "HALOWAIT":
                if opt.get("nohalo"): continue
                if H2:
                    l1 = a.newlab("L_h_sp"); l2 = a.newlab("L_h_ok")
                    nst("h2")
                    if w == 0:
                        assert q.count(('HL', 0)) == 3
                        a("s_waitcnt vmcnt(%d)", need([('HL', 0)]))
                        r_ = HALO[-1]
                        a("v_max3_u32 v239, v%d, v%d, v%d", r_[0], r_[1], r_[2])
                        a("v_max3_u32 v238, v%d, v%d, v%d", r_[3], r_[4], r_[5])
                        a("v_max3_u32 v239, v239, v%d, v%d", r_[6], r_[7])
                        a("v_max_u32 v239, v239, v238")
                        a("v_cmp_eq_u32 vcc, -1, v239")
                        a("s_cmp_lg_u64 vcc, 0")
                        a("s_cbranch_scc1 %s", l1)
                    else:
                        a("s_waitcnt lgkmcnt(0)")
                        a("v_readfirstlane_b32 s%d, v239", S_OK)
                        a("s_cmp_eq_u32 s%d, 0", S_OK)
                        a("s_cbranch_scc1 %s", l1)
                    a.label(l2)
                    nst("h3")
                    HSPIN.append((l1, l2, HALO[0]))
                    continue
                assert q.count(('HL', 0)) == 3
                nst("h2")
                a("s_waitcnt vmcnt(%d)", need([('HL', 0)]))
                nst("h3")
                continue
            prev = E[k - 1].strip() if k else ""
            ok = not op.startswith(("v_cndmask", "s_cselect", "s_addc", "s_memtime", "s_waitcnt")) and not prev.startswith(("s_cmp", "v_cmp", "s_memrealtime"))
            if ok and items and items[0][0] <= k: put(items.pop(0)[1])
            a.l.append(ln)
            if op.startswith("buffer_store"):
                q.append(('AS', ns)); ns += 1
        for it in items: put(it[1])
        if opt.get("ep_abl"):
            E2 = a.l[EP0[0]:]; del a.l[EP0[0]:]
            for ln in E2:
                op = ln.strip()
                if "w" in opt["ep_abl"] and op.startswith("buffer_load_dwordx4 a["): continue
                if "s" in opt["ep_abl"] and op.startswith("buffer_store_dwordx4"): continue
                if "m" in opt["ep_abl"] and op.startswith("v_mfma"): continue
                if "t" in opt["ep_abl"] and op.startswith(("v_exp", "v_rcp")): continue
                if "p" in opt["ep_abl"] and op.startswith("v_pk_"): continue
                if "a" in opt["ep_abl"] and op.startswith("v_accvgpr"): continue
                a.l.append(ln)
        if opt.get("ep_twice"):
            l_ = a.newlab("L_ept2")
            a("s_cmp_eq_u32 s79, 1")
            a("s_cbranch_scc1 %s", l_)
            a("s_mov_b32 s79, 1")
            nst("t1")
            if opt["ep_twice"] == 2: a("s_waitcnt vmcnt(0)"); a("s_barrier"); nst("t2")
            a("s_branch %s", EPT[0])
            a.label(l_)
        QENT.append([('AS', 0) if t[0] == 'AS' else t for t in q])
    def variant(w):
        wm, wn = w & 1, w >> 1
        tiles = {}
        if EP2:
            VPB = None
            if wn == 0:
                arch = [(nf, mf) for mf in range(8) for nf in (6, 7, 8, 9)] + [(nf, mf) for mf in (6, 7) for nf in range(6)]
                acc = [(nf, mf) for mf in range(6) for nf in range(6)]
                areg = list(range(TV, 256, 4))
            else:
                allt = [(nf, mf) for g in ((0, 1, 2, 3), (4, 5, 6, 7)) for mf in range(8) for nf in g] + [(nf, mf) for mf in range(8) for nf in (8, 9)]
                g0 = 4 * opt.get("w1_g0", 5)
                arch = allt[:g0] + allt[g0 + 36:]; acc = allt[g0:g0 + 36]
                areg = list(range(TV, TV + 32, 4)) + list(range(240, 256, 4)) + list(range(TV + 32, 240, 4))
            for t, r_ in zip(arch, areg): tiles[t] = R('v', r_, 4)
            for i, t in enumerate(acc): tiles[t] = R('a', 4 * i, 4)
            assert len(arch) == 44 and len(tiles) == 80
            order = []; nv = 256
        elif wn == 0:
            VPB = [TV, TV + 34]
            for f in range(2):
                for mf in range(8): tiles[(4 + f, mf)] = R('v', VPB[f] + 2 + 4 * mf, 4)
            order = [(nf, mf) for nf in (2, 3, 0, 1) for mf in range(8)] + [(nf, mf) for mf in range(8) for nf in (6, 7, 8, 9)]
            nv = TV + 68
        else:
            order = [(nf, mf) for g in ((0, 1, 2, 3), (4, 5, 6, 7)) for mf in range(8) for nf in g] + [(nf, mf) for mf in range(8) for nf in (8, 9)]
            nv = TV
        na = 0
        for t in order:
            if nv + 4 <= 256:
                tiles[t] = R('v', nv, 4); nv += 4
            else:
                tiles[t] = R('a', na, 4); na += 4
        assert na <= 148, na
        hset = {0: [2, 3, 4, 5, 0], 1: [1, 6, 7, 8, 9], 2: [0, 2, 4, 6, 8], 3: [1, 3, 5, 7, 9]}[w]
        if NOCS: hset = [] if NOCS == 9 else hset[:NOCS - 1] if w else hset[:4]
        def isV(nf): return wn == 0 and nf in (4, 5)
        def mm(d, wf, xf, c, nf):
            if isV(nf) or opt.get("swapab"): return "v_mfma_f32_16x16x32_bf16 %s, %s, %s, %s" % (d, xf, wf, c)
            return "v_mfma_f32_16x16x32_bf16 %s, %s, %s, %s" % (d, wf, xf, c)

        a.label(labs[w])
        q = []
        if CPF & 1 and w == 2:
            code_pf(76, T0, V_PFD, S_T); q.append(('P', 0))
        if CPF & 4: q.append(('P', 0))
        pg0_ = len(a.l)
        a("v_lshrrev_b32 v%d, 4, v0", T0)
        if wm: a("v_add_u32 v%d, 4, v%d", T0, T0)
        a("v_and_b32 v%d, 7, v0", T1)
        a("v_xor_b32 v%d, v%d, v%d", T0, T0, T1)
        a("v_lshlrev_b32 v%d, 4, v%d", T0, T0)
        a("v_lshrrev_b32 v%d, 3, v0", T1)
        a("v_lshl_add_u32 v%d, v%d, 11, v%d", V_XDMA, T1, T0)
        a("s_add_u32 s%d, s%d, %d", S_XK, S_M0, 8 * w)
        a("s_lshl_b32 s%d, s%d, 11", S_XK, S_XK)
        if not CSD:
            a("s_max_u32 s%d, s%d, 16", S_T, S_M0)
            a("s_sub_u32 s%d, s%d, %d", S_XH, S_T, 16 - 8 * wm)
            a("s_lshl_b32 s%d, s%d, 11", S_XH, S_XH)
        if KROT:
            a("s_lshl_b32 s%d, s%d, 8", S_T, S_ROT)
            a("s_add_u32 s%d, s%d, s%d", S_XK, S_XK, S_T)
            if not CSD: a("s_add_u32 s%d, s%d, s%d", S_XH, S_XH, S_T)
        if PG:
            del a.l[pg0_:]
            nst("k1")
            for nm_, n_ in (("l0", 9), ("l1", 8), ("l2", 6), ("l3", 4), ("l4", 2), ("l5", 0)):
                if nm_ in STP:
                    a("s_waitcnt vmcnt(%d)", n_); nst(nm_)
            if w: a("s_add_u32 s%d, s%d, %d", S_XK, S_XK, w * 16384)
            q += [('X', 0)] * 2 + [('W', 0)] * 5 + ([('X', 1)] * 2 if PG == 1 else [('X', 0)] * opt.get("pg_nx", 2))
            if PG == 2:
                a("s_add_u32 s%d, s%d, %d", S_GOFF, S_GOFF, 32 * 7168)
                a("s_add_u32 s%d, s%d, %d", S_QOFF, S_QOFF, 32 * 6144)
                if w == 3 and opt.get("pg_pf", 3) & 2:
                    a("s_bfe_u32 s%d, s2, 0x20003", S_T)
                    a("s_lshl_b32 s%d, s%d, 17", S_T, S_T)
                    a("s_add_u32 s%d, s%d, s%d", S_T, S_T, S_XK)
                    a("s_sub_u32 s%d, s%d, %d", S_T, S_T, w * 16384)
                    a("v_lshlrev_b32 v%d, 11, v0", T0)
                    a("buffer_load_dword v%d, v%d, s[%d:%d], s%d offen offset:128", V_PFD, T0, S_X, S_X + 3, S_T); q.append(('P', 0))
        a("s_lshl_b32 s%d, s%d, 3", S_T2, S_J)
        a("s_add_u32 s%d, s%d, s%d", S_T2, S_T2, S_M0)
        a("s_add_u32 s%d, s%d, %d", S_T2, S_T2, 2 * w)
        a("s_lshl_b32 s%d, s%d, 11", S_T3, S_T2)
        wjobs = [("G", w), ("U", w), ("Q", w)] + ([("G", 4 + w), ("U", 4 + w)] if w < 3 else [("Q", 4), ("Q", 5)])
        wreg = {}
        nreg = 0
        late = []
        for kind, job in wjobs:
            key = ("GU" if kind != "Q" else "Q", job)
            if key not in wreg:
                wreg[key] = V_WDMA[nreg]; nreg += 1
                late.append((key, wreg[key]))
        pg0_ = len(a.l)
        for key, dst in late:
            (gu_off if key[0] == "GU" else q_off)(dst, str(key[1] * 64))
            if opt.get("wlin") == 2:
                pit = 7168 if key[0] == "GU" else 6144
                a("v_lshrrev_b32 v%d, 3, v0", T0)
                a("v_add_u32 v%d, %d, v%d", T0, 8 * (key[1] & 3), T0)
                a("v_mul_u32_u24 v%d, %d, v%d", T0, pit, T0)
                a("v_and_b32 v%d, 7, v0", T1)
                a("v_lshl_add_u32 v%d, v%d, 4, v%d", T0, T1, T0)
                a("s_and_b32 s%d, s%d, 127", S_T, S_GOFF if key[0] == "GU" else S_QOFF)
                a("v_subrev_u32 v%d, s%d, v%d", T0, S_T, T0)
                a("v_add_u32 v%d, %d, v%d", dst, 128 + (key[1] >> 2) * (128 if key[0] == "GU" else 2048), T0)
            elif opt.get("wlin"):
                a("v_lshlrev_b32 v%d, 4, v0", dst)
                a("v_add_u32 v%d, %d, v%d", dst, key[1] * (7168 * 4 if key[0] == "GU" else 6144 * 5), dst)
        nst("k0")
        a("s_waitcnt lgkmcnt(0)")
        make_srd(a, S_X, P_X, 2048 * 2048)
        make_srd(a, S_G, P_G, 1024 * 7168)
        make_srd(a, S_U, P_U, 1024 * 7168)
        make_srd(a, S_Q, P_Q, 1024 * 6144)
        if PG: del a.l[pg0_:]
        def dup(jobs):
            if wn != opt["dma2"] - 1: return []
            out = []
            for pre, main in jobs:
                out.append((list(pre), main[:1])); out.append((pre, main))
            return out
        def x_jobs(t):
            slot = t & 1
            jobs = []
            for i in range(8):
                jobs.append((["s_mov_b32 m0, %d" % (slot * XSLOT + (w + 4 * i) * 1024),
                              "s_add_u32 s%d, s%d, %d" % (S_TX, S_XK, i * 65536)],
                             ["buffer_load_dwordx4 v%d, s[%d:%d], s%d offen%s lds" % (V_XDMA, S_X, S_X + 3, S_TX, " nt" if t < opt.get("nt_x", 0) else "")]))
            if not opt.get("samex"): jobs[-1][1].append("s_add_u32 s%d, s%d, 128" % (S_XK, S_XK))
            if wn == slot and not CSD:
                jobs.append((["s_mov_b32 m0, %d" % (slot * XSLOT + 32768 + wm * 1024)],
                             ["buffer_load_dwordx4 v%d, s[%d:%d], s%d offen lds" % (V_XDMA, S_X, S_X + 3, S_XH)]))
            if not CSD: jobs[-1][1].append("s_add_u32 s%d, s%d, 128" % (S_XH, S_XH))
            if opt.get("dma2") and t >= 2: jobs = dup(jobs)
            return [(j, ('X', t)) for j in jobs]
        def w_jobs(s):
            stage = s & 3
            jobs = []
            for kind, job in wjobs:
                srd = {"G": S_G, "U": S_U, "Q": S_Q}[kind]; off = {"G": WG_OFF, "U": WU_OFF, "Q": WQ_OFF}[kind]
                vo = wreg[("GU" if kind != "Q" else "Q", job)]
                jobs.append((["s_mov_b32 m0, %d" % (WBASE + stage * WSTAGE + off + job * 1024)],
                             ["buffer_load_dwordx4 v%d, s[%d:%d], s%d offen%s lds" % (vo, srd, srd + 3, S_QOFF if kind == "Q" else S_GOFF, " nt" if s < opt.get("nt_w", 0) else "")]))
            if not opt.get("samew"):
                jobs[-1][1].append("s_add_u32 s%d, s%d, %d" % (S_GOFF, S_GOFF, 32 * 7168))
                jobs[-1][1].append("s_add_u32 s%d, s%d, %d" % (S_QOFF, S_QOFF, 32 * 6144))
            if opt.get("dma2") and s >= 3: jobs = dup(jobs)
            return [(j, ('W', s)) for j in jobs]
        def emit_now(jobs):
            for (pre, main), tag in jobs:
                for s_ in pre + main: a(s_)
                q.append(tag)
        def need_count(tags):
            idx = [i for i, t in enumerate(q) if t in tags]
            if not idx: return 63
            return len(q) - 1 - max(idx)
        PSPLIT = opt.get("pro_split", 0); S_AT = opt.get("s_at", -1); WO_AT = opt.get("wo_at", -1)
        PF_C0 = opt.get("pf_c0", 1); PF_PRO = opt.get("pf_pro", 2); PF_X = opt.get("pf_x", [])
        PRO_A = opt.get("pro_a", 2)
        pro_list = [w_jobs(0), x_jobs(0), w_jobs(1), x_jobs(1), w_jobs(2)]
        pend0 = []
        if PG:
            def pg_w(g):
                jobs = []
                for kind, job in wjobs:
                    srd = {"G": S_G, "U": S_U, "Q": S_Q}[kind]; off = {"G": WG_OFF, "U": WU_OFF, "Q": WQ_OFF}[kind]
                    vo = wreg[("GU" if kind != "Q" else "Q", job)]
                    jobs.append((["s_add_u32 m0, s%d, %d" % (G_MB, WBASE + off + job * 1024)],
                                 ["buffer_load_dwordx4 v%d, s[%d:%d], s%d offen%s lds" % (vo, srd, srd + 3, G_QO if kind == "Q" else G_GO, NTW)]))
                jobs[0] = (pg_stage(g, S_TK) + jobs[0][0], jobs[0][1])
                if g == 3: jobs[-1][1].extend(["s_add_u32 s%d, s%d, %d" % (S_GOFF, S_GOFF, 128 * 7168), "s_add_u32 s%d, s%d, %d" % (S_QOFF, S_QOFF, 128 * 6144)])
                return [(j, ('W', g - 1 if PG == 1 else g & 2)) for j in jobs]
            def pg_x(t, i0=2):
                jobs = []
                for i in range(i0, 8):
                    pre = ["s_bfe_u32 s%d, s2, 0x20003" % S_K2, "s_lshl_b32 s%d, s%d, 13" % (S_K2, S_K2)] if i == i0 else []
                    pre += ["s_add_u32 s%d, s%d, %d" % (S_K2, S_K2, 4096 * i0 if i == i0 else 4096), "s_and_b32 s%d, s%d, 32767" % (S_K2, S_K2),
                            "s_lshl4_add_u32 s%d, s%d, s%d" % (S_TX, S_K2, S_XK), "s_add_u32 m0, s%d, %d" % (S_K2, t * (XSLOT - 128) + w * 1024)]
                    jobs.append((pre, ["buffer_load_dwordx4 v%d, s[%d:%d], s%d offen offset:%d lds" % (V_XDMA, S_X, S_X + 3, S_TX, 128 * t)]))
                if t == 1: jobs[-1][1].append("s_add_u32 s%d, s%d, 256" % (S_XK, S_XK))
                return [(j, ('X', t)) for j in jobs]
            pro_list = [pg_w(1), pg_x(0), pg_w(2), pg_x(1), pg_w(3)]
            if PG == 2: pro_list = [pg_x(0, 2 + opt.get("pg_nx", 2)), w_jobs(1), pg_x(1, 0), w_jobs(2), w_jobs(3)]
            if PG == 3: pro_list = [pg_x(0, 2 + opt.get("pg_nx", 2)), pg_w(1), pg_x(1, 0)[:2], pg_w(2), pg_x(1), pg_w(3)]
            PRO_A = opt.get("pg_at", 0)
            PG_B = opt.get("pg_b2", 3)
            pend0 = sum(pro_list[PG_B:], []); pro_list = pro_list[:PG_B]
        if PG != 2:
            for l_ in pro_list[:PRO_A]: emit_now(l_)
        if not PG: nst("k1")
        SA = ST; SB = ST + 8
        ST2 = opt.get("st2", 0); V_SA = ST + 48
        def s_load(i):
            return "buffer_load_dwordx4 v[%d:%d], v%d, s[%d:%d], s%d offen offset:%d" % (SA + 4 * i, SA + 4 * i + 3, V_SA if ST2 else T5, S_X, S_X + 3, S_T3, (512 if ST2 else 1024) * i)
        def s_loads():
            for i in range(4):
                a(s_load(i)); q.append(('S', 0))
        SE = opt.get("se")
        if SE: s_loads()
        def wo_pf():
            if w != 3 or not PFD or W2P: return
            a("v_lshlrev_b32 v%d, 7, v0", ST + 50)
            a("s_lshl_b32 s%d, s2, 13", S_T)
            a("buffer_load_dword v%d, v%d, s[76:79], s%d offen", V_PFD, ST + 50, S_T); q.append(('P', 0))
        def pro2():
            if SE:
                st_ = ["WAITS"] + stat_row(SA, T0, T1) + stat_row(SB, T2, T3) + ["SSTORE"]
                for k_, j_ in enumerate(sum(pro_list[PRO_A:], [])):
                    emit_now([j_])
                    if k_ >= SE[0]:
                        for x_ in st_[:SE[1]]: side_emit(x_)
                        del st_[:SE[1]]
                for x_ in st_: side_emit(x_)
                return
            for l_ in pro_list[PRO_A:]: emit_now(l_)
            if S_AT < 0: s_loads()
        def pro3():
            if WO_AT < 0: wo_pf()
            if PFD and w < 3:
                for i in range(PF_PRO): emit_now([pf_job()])
        if PSPLIT == 0: pro2()
        PFD = opt.get("pf_d", 384)
        if PFD:
            a("s_lshr_b32 s%d, s2, 3", S_T)
            a("s_and_b32 s%d, s2, 7", S_K1)
            RG = opt.get("rot_mt", 0)
            PSH = 4 if RG == 3 else 5
            if RG == 3: a("s_and_b32 s%d, s%d, 15", S_T, S_T)
            S_PR = S_ROT
            if RG >= 4:
                S_PR = S_K2
                a("s_add_u32 s%d, s%d, %d", S_PR, S_K1, RG - 3)
                a("s_and_b32 s%d, s%d, 7", S_PR, S_PR)
            if w < 2:
                a("v_min_u32 v%d, %d, v0", T0, 55 if RG == 3 else 27)
                a("v_mul_u32_u24 v%d, 9363, v%d", T1, T0)
                a("v_lshrrev_b32 v%d, 16, v%d", T1, T1)
                a("v_mul_u32_u24 v%d, 7, v%d", T2, T1)
                a("v_sub_u32 v%d, v%d, v%d", T2, T0, T2)
                a("v_lshlrev_b32 v%d, %d, v%d", T1, PSH, T1)
                a("v_add_u32 v%d, s%d, v%d", T1, S_T, T1)
                a("v_mul_u32_u24 v%d, 7168, v%d", T1, T1)
                a("v_lshl_add_u32 v%d, v%d, 7, v%d", V_PF, T2, T1)
                make_srd(a, S_PF, P_G if w == 0 else P_U, 1024 * 7168)
                a("s_mul_i32 s%d, s%d, 896", S_PFOFF, S_K1)
                a("s_add_u32 s%d, s%d, %d", S_PFOFF, S_PFOFF, PF_C0 * 128 * 7168)
                if KROT:
                    a("s_mul_i32 s%d, s%d, %d", S_T, S_PR, 128 * 7168)
                    a("s_add_u32 s%d, s%d, s%d", S_PFOFF, S_PFOFF, S_T)
                a("s_mov_b32 s%d, %d", S_PFSTR, 128 * 7168)
            elif w == 2:
                a("v_min_u32 v%d, %d, v0", T0, 47 if RG == 3 else 23)
                a("v_mul_u32_u24 v%d, 10923, v%d", T1, T0)
                a("v_lshrrev_b32 v%d, 16, v%d", T1, T1)
                a("v_mul_u32_u24 v%d, 6, v%d", T2, T1)
                a("v_sub_u32 v%d, v%d, v%d", T2, T0, T2)
                a("v_lshlrev_b32 v%d, %d, v%d", T1, PSH, T1)
                a("v_add_u32 v%d, s%d, v%d", T1, S_T, T1)
                a("v_mul_u32_u24 v%d, 6144, v%d", T1, T1)
                a("v_lshrrev_b32 v%d, 1, v%d", T3, T2)
                a("v_lshl_add_u32 v%d, v%d, 11, v%d", T1, T3, T1)
                a("v_and_b32 v%d, 1, v%d", T2, T2)
                a("v_lshl_add_u32 v%d, v%d, 7, v%d", V_PF, T2, T1)
                make_srd(a, S_PF, P_Q, 1024 * 6144)
                a("s_lshl_b32 s%d, s%d, 8", S_PFOFF, S_K1)
                a("s_add_u32 s%d, s%d, %d", S_PFOFF, S_PFOFF, PF_C0 * 128 * 6144)
                if KROT:
                    a("s_mul_i32 s%d, s%d, %d", S_T, S_PR, 128 * 6144)
                    a("s_add_u32 s%d, s%d, s%d", S_PFOFF, S_PFOFF, S_T)
                a("s_mov_b32 s%d, %d", S_PFSTR, 128 * 6144)
            else:
                make_srd(a, 76, P_WO, 1024 * 2048)
                a("v_lshlrev_b32 v%d, 7, v0", V_PF)
                a("v_min_u32 v%d, %d, v%d", V_PF, 31 * 128, V_PF)
                make_srd(a, S_PF, P_WD, 3584 * 2048)
                a("s_mul_i32 s%d, s2, 28672", S_PFOFF)
                a("s_mov_b32 s%d, 4096", S_PFSTR)
        def pf_job():
            pre = []
            if KROT and w < 3:
                pre = ["s_cmp_ge_u32 s%d, %d" % (S_PFOFF, 1024 * (7168 if w < 2 else 6144)),
                       "s_cselect_b32 s%d, %d, 0" % (S_TK, 1024 * (7168 if w < 2 else 6144)),
                       "s_sub_u32 s%d, s%d, s%d" % (S_PFOFF, S_PFOFF, S_TK)]
            return ((pre, ["buffer_load_dword v%d, v%d, s[%d:%d], s%d offen%s" % (V_PFD, V_PF, S_PF, S_PF + 3, S_PFOFF, " nt" if opt.get("nt_pf") else ""),
                          "s_add_u32 s%d, s%d, s%d" % (S_PFOFF, S_PFOFF, S_PFSTR)]), ('P', 0))
        if PSPLIT == 0: pro3()
        if PG == 2:
            if w < 3 and opt.get("pg_pf", 3) & 1:
                for c_ in range(opt.get("pg_pc", 1)):
                    if c_:
                        a("s_cmp_eq_u32 s%d, 7", S_ROT)
                        a("s_cselect_b32 s%d, %d, 0", S_T, 1024 * (7168 if w < 2 else 6144))
                        a("s_sub_u32 s%d, s%d, s%d", S_T, S_PFOFF, S_T)
                        a("s_sub_u32 s%d, s%d, %d", S_T, S_T, (PF_C0 - c_) * 128 * (7168 if w < 2 else 6144))
                    else: a("s_sub_u32 s%d, s%d, %d", S_T, S_PFOFF, PF_C0 * 128 * (7168 if w < 2 else 6144))
                    a("buffer_load_dword v%d, v%d, s[%d:%d], s%d offen", V_PFD, V_PF, S_PF, S_PF + 3, S_T); q.append(('P', 0))
            for l_ in pro_list[:PRO_A]: emit_now(l_)
        make_srd(a, S_ACT, P_WS, ACT_BYTES + (8 * ACT_KB if CSD else 0), WS_ACT2)
        make_srd(a, S_ST, P_WS, 65536 if CSD else 2048 * 8, WS_STATS)
        make_srd(a, S_DBG, P_DBG, 256)
        a("v_and_b32 v%d, 15, v0", T0)
        a("v_lshrrev_b32 v%d, 4, v0", T1)
        a("v_lshrrev_b32 v%d, 1, v%d", T2, T0)
        a("v_xor_b32 v%d, v%d, v%d", T2, T2, T1)
        a("v_lshlrev_b32 v%d, 4, v%d", T2, T2)
        a("v_lshl_add_u32 v%d, v%d, 7, v%d", T3, T0, T2)
        a("v_add_u32 v%d, %d, v%d", V_XR[0], wm * 16384, T3)
        a("v_xor_b32 v%d, 64, v%d", V_XR[1], V_XR[0])
        if CSD:
            a("v_mov_b32 v%d, 0x3f803f80", T4)
            for z in range(2):
                a("v_cmp_eq_u32 vcc, %d, v%d", z, T0)
                a("v_cndmask_b32 v%d, 0, v%d, vcc", T2, T4)
                for i in range(4): a("v_accvgpr_write_b32 %s, v%d", HX(z).sub(i), T2)
        else:
            a("v_add_u32 v%d, 32768, v%d", V_HX[0], T3)
            a("v_add_u32 v%d, %d, v%d", T4, 32768 + 2048, T3)
            a("v_cmp_eq_u32 vcc, 0, v%d", T0)
            a("v_cndmask_b32 v%d, v%d, v%d, vcc", V_HX[0], V_HX[0], T4)
            a("v_xor_b32 v%d, 64, v%d", V_HX[1], V_HX[0])
        a("v_lshrrev_b32 v%d, 2, v%d", T2, T0)
        a("v_lshl_add_u32 v%d, v%d, 3, v%d", T2, T1, T2)
        a("v_and_b32 v%d, 3, v0", T3)
        a("v_lshlrev_b32 v%d, 3, v%d", T3, T3)
        a("v_and_b32 v%d, 1, v%d", T1, T1)
        a("v_lshl_add_u32 v%d, v%d, 2, v%d", T4, T1, T2)
        a("v_mul_u32_u24 v%d, 224, v%d", V_WRD[0], T4)
        a("v_xor_b32 v%d, 4, v%d", T4, T4)
        a("v_mul_u32_u24 v%d, 224, v%d", V_WRD[1], T4)
        if CSD and w:
            F_, G_, H_ = S_K1, S_K2, S_STO
            a("s_mul_i32 s%d, s%d, 3", F_, S_MT)
            a("s_add_u32 s%d, s%d, %d", F_, F_, w - 1)
            a("s_cmp_lt_u32 s%d, 20", F_)
            a("s_cselect_b32 s%d, 0xffff, 0", S_CSM)
            a("s_min_u32 s%d, s%d, 19", F_, F_)
            a("s_mul_i32 s%d, s%d, 1536", S_CSW, S_J)
            a("s_lshl_b32 s%d, s%d, 2", G_, F_)
            a("s_add_u32 s%d, s%d, s%d", S_CSW, S_CSW, G_)
            a("s_cmp_ge_u32 s%d, 10", F_)
            a("s_cselect_b32 s%d, %d, 0", G_, 768 - 40)
            a("s_add_u32 s%d, s%d, s%d", S_CSW, S_CSW, G_)
            a("s_add_u32 s%d, s%d, %d", S_CSW, S_CSW, CS_OFF)
            a("s_sub_u32 s%d, s%d, 6", G_, F_)
            a("s_lshr_b32 s%d, s%d, 1", G_, G_)
            a("s_add_u32 s%d, s%d, s%d", G_, G_, S_ODD)
            a("s_cmp_eq_u32 s%d, 7", G_)
            a("s_cselect_b32 s%d, 0, s%d", G_, G_)
            a("s_lshl_b32 s%d, s%d, 5", G_, G_)
            a("s_and_b32 s%d, s%d, 1", H_, F_)
            a("s_mul_i32 s%d, s%d, %d", S_T, H_, WU_OFF)
            a("s_add_u32 s%d, s%d, s%d", G_, G_, S_T)
            a("s_add_u32 s%d, s%d, %d", G_, G_, WBASE)
            for h in range(2): a("v_add3_u32 v%d, v%d, v%d, s%d", V_HX[h], V_WRD[h], T3, G_)
            a("s_lshl_b32 s%d, s%d, 5", H_, H_)
            a("s_lshr_b32 s%d, s%d, 1", G_, F_)
            a("s_lshl_b32 s%d, s%d, 6", G_, G_)
            a("s_add_u32 s%d, s%d, %d", G_, G_, WBASE + WQ_OFF)
            a("v_mul_u32_u24 v%d, 192, v%d", T4, T2)
            a("v_lshl_add_u32 v%d, v%d, 5, v%d", T4, T1, T4)
            a("v_xor_b32 v%d, s%d, v%d", T4, H_, T4)
            a("v_add3_u32 v%d, v%d, v%d, s%d", T4, T4, T3, G_)
            a("s_cmp_lt_u32 s%d, 6", F_)
            a("s_cselect_b64 vcc, -1, 0")
            a("v_cndmask_b32 v%d, v%d, v%d, vcc", V_HX[0], V_HX[0], T4)
            a("v_add_u32 v%d, 768, v%d", T4, T4)
            a("v_cndmask_b32 v%d, v%d, v%d, vcc", V_HX[1], V_HX[1], T4)
        a("s_lshl_b32 s%d, s%d, 5", S_T, S_ODD)
        a("s_add_u32 s%d, s%d, %d", S_T, S_T, WBASE)
        if wn == 1:
            a("s_mul_i32 s%d, s%d, 192", S_K1, S_ODD)
            a("s_sub_u32 s%d, %d, s%d", S_K1, WBASE + 192, S_K1)
            for h in range(2):
                a("v_add3_u32 v%d, v%d, v%d, s%d", V_WRD[2 + h], V_WRD[h], T3, S_K1)
        else:
            a("v_mul_u32_u24 v%d, 192, v%d", T4, T2)
            a("v_lshl_add_u32 v%d, v%d, 5, v%d", T4, T1, T4)
            a("v_add_u32 v%d, v%d, v%d", T4, T4, T3)
            a("v_add_u32 v%d, %d, v%d", V_WRD[2], WBASE, T4)
            a("v_xor_b32 v%d, 32, v%d", T4, T4)
            a("v_add_u32 v%d, %d, v%d", V_WRD[3], WBASE, T4)
        for h in range(2):
            a("v_add3_u32 v%d, v%d, v%d, s%d", V_WRD[h], V_WRD[h], T3, S_T)
        for i in range(4):
            a("v_add_u32 v%d, %d, v%d", V_WRD[4 + i], 2 * WSTAGE, V_WRD[i])
        def cs_store(val):
            a("v_mul_u32_u24 v%d, 48, v0", T1)
            a("s_mov_b32 exec_lo, s%d", S_CSM)
            a("s_mov_b32 exec_hi, 0")
            a("buffer_store_dword v%d, v%d, s[%d:%d], s%d offen sc1", val, T1, S_ST, S_ST + 3, S_CSW); q.append(('Z', 0))
            a("s_mov_b64 exec, -1")
        if CSD and w:
            a("v_mov_b32 v%d, 0", T0)
            cs_store(T0)
        if H2 and w == 1:
            a("s_lshl_b32 s%d, s%d, 16", S_T, S_MT)
            a("s_lshl_b32 s%d, s%d, 11", S_K2, S_J)
            a("s_add_u32 s%d, s%d, s%d", S_T, S_T, S_K2)
            a("s_add_u32 s%d, s%d, %d", S_T, S_T, ACT_BYTES)
            for i in range(4): a("v_mov_b32 v%d, -1", ST + 32 + i)
            for i in range(2):
                a("buffer_store_dwordx4 v[%d:%d], v%d, s[%d:%d], s%d offen offset:%d sc1", ST + 32, ST + 35, T5, S_ACT, S_ACT + 3, S_T, 1024 * i); q.append(('Z', 0))
        if H2 and w == 0:
            a("v_mov_b32 v%d, 0", T0)
            a("v_mov_b32 v%d, %d", T1, L_HF)
            a("ds_write_b32 v%d, v%d", T1, T0)
        if w == 0 and not CSD:
            a("v_mov_b32 v%d, 0x3f803f80", T0)
            a("v_lshlrev_b32 v%d, 2, v0", T1)
            a("v_and_b32 v%d, 127, v%d", T1, T1)
            a("ds_write_b32 v%d, v%d offset:%d", T1, T0, 272 * 128)
            a("v_add_u32 v%d, %d, v%d", T1, XSLOT, T1)
            a("ds_write_b32 v%d, v%d offset:%d", T1, T0, 272 * 128)
        if w == 1 and FUSE:
            make_srd(a, 76, P_WS, FLG_BYTES, WS_FLAGS)
            a("s_mul_i32 s%d, s2, 48", S_T)
            for i in range(4): a("v_mov_b32 v%d, 0", T0 + i)
            a("s_mov_b64 exec, 7")
            a("buffer_store_dwordx4 v[%d:%d], v%d, s[76:79], s%d offen sc1", T0, T3, T5, S_T); q.append(('Z', 0))
            a("s_mov_b64 exec, -1")
        elif w == 1:
            make_srd(a, S_PF if not PFD else 76, P_WS, 4096, WS_FLAGS)
            sf = S_PF if not PFD else 76
            a("s_lshl_b32 s%d, s2, 4", S_T)
            for i in range(4): a("v_mov_b32 v%d, 0", T0 + i)
            a("s_mov_b64 exec, 1")
            a("buffer_store_dwordx4 v[%d:%d], v%d, s[%d:%d], s%d offen", T0, T3, T0, sf, sf + 3, S_T); q.append(('Z', 0))
            a("s_mov_b64 exec, -1")
        a("s_mov_b32 s%d, 0xffff0000", S_K1)
        RD = ST + 50
        spins = SPINS
        if FS:
            a("v_mov_b32 v%d, 0", V_FS)
            a("v_mov_b32 v%d, %d", V_FA, L_FLG + 4 * w)
            a("v_and_b32 v%d, 3, v0", V_FR)
            a("v_lshlrev_b32 v%d, 2, v%d", V_FR, V_FR)
            a("v_add_u32 v%d, %d, v%d", V_FR, L_FLG, V_FR)
            a("ds_write_b32 v%d, v%d", V_FA, V_FS)
        V_CSRC = V_PF if w == 3 else V_WDMA[3]; V_CRD = T4; V_CST = T5
        if W2P:
            make_srd(a, S_CS, P_WO, 1024 * 2048)
            make_srd(a, S_CD, P_WS, 4608 * 2048, WS_W2P)
            a("s_lshr_b32 s%d, s2, 4", S_T)
            a("s_lshl_b32 s%d, s%d, 16", S_T, S_T)
            a("s_and_b32 s%d, s2, 15", S_CDO)
            a("s_lshl_b32 s%d, s%d, 7", S_CSO, S_CDO)
            a("s_lshl_b32 s%d, s%d, 12", S_CDO, S_CDO)
            a("s_add_u32 s%d, s%d, s%d", S_CSO, S_CSO, S_T)
            a("s_add_u32 s%d, s%d, s%d", S_CDO, S_CDO, S_T)
            a("s_add_u32 s%d, s%d, %d", S_CSO, S_CSO, [0, 4, 16, 20][w] * 2048)
            a("s_add_u32 s%d, s%d, %d", S_CDO, S_CDO, w * 256)
            a("v_lshrrev_b32 v%d, 3, v0", RD)
            a("v_lshrrev_b32 v%d, 5, v0", RD + 1)
            a("v_lshl_add_u32 v%d, v%d, 2, v%d", RD, RD + 1, RD)
            a("v_and_b32 v%d, 7, v0", RD + 1)
            a("v_lshlrev_b32 v%d, 4, v%d", RD + 1, RD + 1)
            a("v_lshl_add_u32 v%d, v%d, 11, v%d", V_CSRC, RD, RD + 1)
            a("v_bfe_u32 v%d, v0, 2, 2", RD)
            a("v_lshlrev_b32 v%d, 7, v%d", RD, RD)
            a("v_lshrrev_b32 v%d, 4, v0", RD + 1)
            a("v_lshl_add_u32 v%d, v%d, 5, v%d", RD, RD + 1, RD)
            a("v_and_b32 v%d, 3, v0", RD + 1)
            a("v_lshl_add_u32 v%d, v%d, 3, v%d", RD, RD + 1, RD)
            a("v_add_u32 v%d, %d, v%d", V_CRD, L_KV + w * 1024, RD)
        def r_job(s, area):
            post = ["s_add_u32 s%d, s%d, 0x100000" % (S_CSO, S_CSO)]
            if area == 0 and s == 0:
                post = ["s_sub_u32 s%d, s%d, 0x100000" % (S_CSO, S_CSO), "s_mov_b32 s%d, s%d" % (S_CS, P_WD), "s_mov_b32 s%d, s%d" % (S_CS + 1, P_WD + 1),
                        "s_mov_b32 s%d, 0x%x" % (S_CS + 2, 3584 * 2048)]
            return ((["s_mov_b32 m0, %d" % ((L_STG if area else L_KV) + w * 1024)],
                     ["buffer_load_dwordx4 v%d, s[%d:%d], s%d offen%s lds" % (V_CSRC, S_CS, S_CS + 3, S_CSO, " nt" if opt.get("nt_r") else "")] + post), ('R', s + 1 - area))
        def r_read(s, area):
            o = (L_STG - L_KV) if area else 0
            lds("ds_read_b64_tr_b16 v[%d:%d], v%d offset:%d" % (RD, RD + 1, V_CRD, o), ('R', s, 0))
            lds("ds_read_b64_tr_b16 v[%d:%d], v%d offset:%d" % (RD + 2, RD + 3, V_CRD, o + 512), ('R', s, 0))
        def r_store(s):
            lwait([('R', s, 0)])
            if opt.get("w2rr") and s > 3:
                a("s_sub_u32 s%d, s%d, 0x100000", S_T, S_CDO)
                a("buffer_load_dword v%d, v%d, s[%d:%d], s%d offen%s", V_PFD, V_CST, S_CD, S_CD + 3, S_T, opt["w2rr"]); q.append(('P', 0))
            a("buffer_store_dwordx4 v[%d:%d], v%d, s[%d:%d], s%d offen%s", RD, RD + 3, V_CST, S_CD, S_CD + 3, S_CDO, opt.get("w2st", " sc1")); q.append(('RS', 0))
            a("s_add_u32 s%d, s%d, 0x100000", S_CDO, S_CDO)
        a("s_lshl_b32 s%d, s%d, 3", S_T2, S_T2)
        def stat_row(b, onm, osd):
            L = []
            X = ST + 16; Y = X; Z = ST + 48
            for i in range(8):
                L.append("v_lshlrev_b32 v%d, 16, v%d" % (X + 2 * i, b + i))
                L.append("v_and_b32 v%d, s%d, v%d" % (X + 2 * i + 1, S_K1, b + i))
            def red(src, dst):
                for i in range(8): L.append("v_add_f32 v%d, v%d, v%d" % (b + i, src + 2 * i, src + 2 * i + 1))
                for i in range(4): L.append("v_add_f32 v%d, v%d, v%d" % (b + i, b + 2 * i, b + 2 * i + 1))
                L.append("v_add_f32 v%d, v%d, v%d" % (b, b, b + 1))
                L.append("v_add_f32 v%d, v%d, v%d" % (b + 2, b + 2, b + 3))
                L.append("v_add_f32 v%d, v%d, v%d" % (dst, b, b + 2))
                for m_ in ("quad_perm:[1,0,3,2]", "quad_perm:[2,3,0,1]", "row_half_mirror", "row_mirror"):
                    L.append("v_add_f32_dpp v%d, v%d, v%d %s row_mask:0xf bank_mask:0xf" % (dst, dst, dst, m_))
                for sw in ("16", "32"):
                    L.append("v_mov_b32 v%d, v%d" % (b, dst))
                    L.append("v_permlane%s_swap_b32 v%d, v%d" % (sw, dst, b))
                    L.append("v_add_f32 v%d, v%d, v%d" % (dst, dst, b))
                L.append("v_mul_f32 v%d, 0x3a800000, v%d" % (dst, dst))
            red(X, Z)
            for i in range(16): L.append("v_sub_f32 v%d, v%d, v%d" % (Y + i, X + i, Z))
            for i in range(16): L.append("v_mul_f32 v%d, v%d, v%d" % (Y + i, Y + i, Y + i))
            red(Y, Z + 1)
            L.append("v_cvt_pk_bf16_f32 v%d, v%d, v%d" % (onm, Z, Z))
            L.append("v_xor_b32 v%d, 0x80008000, v%d" % (onm, onm))
            L.append("v_cvt_pk_bf16_f32 v%d, v%d, v%d" % (Z + 1, Z + 1, Z + 1))
            L.append("v_and_b32 v%d, s%d, v%d" % (Z + 1, S_K1, Z + 1))
            L.append("v_add_f32 v%d, 0x3727c5ac, v%d" % (Z + 1, Z + 1))
            L.append("v_cvt_pk_bf16_f32 v%d, v%d, v%d" % (Z + 1, Z + 1, Z + 1))
            L.append("v_and_b32 v%d, s%d, v%d" % (Z + 1, S_K1, Z + 1))
            L.append("v_sqrt_f32 v%d, v%d" % (Z + 1, Z + 1))
            L.append("v_cvt_pk_bf16_f32 v%d, v%d, v%d" % (Z + 1, Z + 1, Z + 1))
            L.append("v_and_b32 v%d, s%d, v%d" % (osd, S_K1, Z + 1))
            return L
        SS0 = opt.get("ss0", 2)
        side = {0: [], 1: [], 2: [], 3: [], 28: ["v_mov_b32 v%d, 0" % r_ for r_ in range(ST, CST + 24) if not (W2P and not FUSE and RD <= r_ < RD + 4) and not (FS and r_ in (V_FS, V_FA, V_FR, V_FD))]}
        if W2P:
            assert S_AT < 2
            side[2] += ["v_lshrrev_b32 v%d, 4, v0" % RD, "v_lshlrev_b32 v%d, 10, v%d" % (RD, RD), "v_and_b32 v%d, 15, v0" % (RD + 1),
                        "v_lshl_add_u32 v%d, v%d, 4, v%d" % (V_CST, RD + 1, RD)]
        if CPF & 2 and w == 2: side[28].insert(0, "CPF")
        W2L2 = opt.get("w2l2", 0)
        if W2L2:
            L = ["s_lshr_b32 s%d, s2, 3" % S_K2, "s_mul_i32 s%d, s%d, 11" % (S_K2, S_K2),
                 "s_and_b32 s%d, s2, 1" % S_STO, "s_mul_i32 s%d, s%d, %d" % (S_STO, S_STO, 56 * 65536),
                 "s_bfe_u32 s%d, s2, 0x10002" % S_AB, "s_lshl_b32 s%d, s%d, 15" % (S_AB, S_AB), "s_add_u32 s%d, s%d, s%d" % (S_AB, S_AB, S_STO),
                 "v_lshlrev_b32 v%d, 7, v0" % V_PF]
            for n_ in range(w, 11, 4):
                L += ["s_add_u32 s%d, s%d, %d" % (S_STO, S_K2, n_), "s_and_b32 s%d, s%d, 3" % (S_PFOFF, S_STO), "s_lshl_b32 s%d, s%d, 13" % (S_PFOFF, S_PFOFF),
                      "s_lshr_b32 s%d, s%d, 2" % (S_STO, S_STO), "s_lshl_b32 s%d, s%d, 16" % (S_STO, S_STO),
                      "s_add_u32 s%d, s%d, s%d" % (S_PFOFF, S_PFOFF, S_STO), "s_add_u32 s%d, s%d, s%d" % (S_PFOFF, S_PFOFF, S_AB), "W2PF"]
            side.setdefault(W2L2, []).extend(L)
        if FUSE:
            side[30] = p2.setup_s() + ["s_lshl_b32 s%d, s%d, 10" % (p2.Q_FSIG, S_MT), "s_lshl_b32 s%d, s%d, 4" % (p2.Q_T, S_J),
                                       "s_add_u32 s%d, s%d, s%d" % (p2.Q_FSIG, p2.Q_FSIG, p2.Q_T), "s_add_u32 s%d, s%d, %d" % (p2.Q_FSIG, p2.Q_FSIG, FLG_ACT + wm * 512 + (4 * (1 - wn) if EP2 else 0))]
            if opt.get("pf2") is not None:
                A_, B_, C_, D_ = S_C0, S_C1, 78, p2.Q_T
                side[30] += ["s_lshr_b32 s%d, s2, 4" % A_, "s_and_b32 s%d, s%d, 7" % (A_, A_), "s_mul_i32 s%d, s%d, 7" % (A_, A_),
                             "s_bfe_u32 s%d, s2, 0x10003" % D_, "s_lshl_b32 s%d, s%d, 2" % (D_, D_), "s_add_u32 s%d, s%d, s%d" % (A_, A_, D_),
                             "s_mul_i32 s%d, s%d, 56" % (C_, p2.Q_KS), "s_add_u32 s%d, s%d, 34" % (C_, C_), "s_add_u32 s%d, s%d, s%d" % (A_, A_, C_),
                             "s_bfe_u32 s%d, s2, 0x40003" % B_, "s_lshl_b32 s%d, s%d, 4" % (D_, p2.Q_KS), "s_add_u32 s%d, s%d, s%d" % (B_, B_, D_),
                             ["s_cmp_lt_u32 s2, 128", "s_cselect_b32 s%d, s%d, s%d" % (A_, A_, B_)],
                             "s_lshl_b32 s%d, s%d, 16" % (A_, A_), "s_add_u32 s%d, s%d, %d" % (A_, A_, w * 16384), "s_add_u32 s%d, s%d, 8192" % (B_, A_),
                             "s_mul_i32 s%d, s%d, 7" % (D_, S_MT), "s_add_u32 s%d, s%d, s%d" % (C_, C_, D_), "s_add_u32 s%d, s%d, 1" % (C_, C_),
                             "s_lshl_b32 s%d, s%d, 16" % (C_, C_), "s_bfe_u32 s%d, s2, 0x20003" % D_, "s_lshl_b32 s%d, s%d, 14" % (D_, D_),
                             "s_add_u32 s%d, s%d, s%d" % (C_, C_, D_), "s_add_u32 s%d, s%d, %d" % (C_, C_, w * 4096)]
            if XE:
                XA_ = p2.SL[XE]
                side[31] = ["v_and_b32 v%d, 15, v0" % T4, "v_lshrrev_b32 v%d, 4, v0" % T5, "v_lshlrev_b32 v%d, 11, v%d" % (T4, T4), "v_lshl_add_u32 v%d, v%d, 3, v%d" % (T4, T5, T4)]
                for mf in range(4):
                    side[31] += ["s_add_u32 s%d, s%d, %d" % (p2.Q_T2, p2.Q_XROW, mf * 32768)]
                    for nf in range(2):
                        r_ = XA_ + (mf * 2 + nf) * 2
                        side[31] += [("XLD", "buffer_load_dwordx2 a[%d:%d], v%d, s[%d:%d], s%d offen offset:%d" % (r_, r_ + 1, T4, S_X, S_X + 3, p2.Q_T2, nf * 32))]
                if WST:
                    k_ = side[30].index("s_mov_b32 s%d, s%d" % (p2.Q_O, p2.P_OUT))
                    side[31] += side[30][k_:k_ + 14] + [None] * 16
                    del side[30][k_:k_ + 14]
                else: side[31] += [None] * 30
        if ST2:
            assert GA and S_AT == 1
            Z = V_SA
            side[0] += [None] * 8 + ["v_and_b32 v%d, 7, v0" % Z, "v_lshrrev_b32 v%d, 4, v0" % (Z + 1), "v_lshl_add_u32 v%d, v%d, 3, v%d" % (Z, Z + 1, Z), "v_lshlrev_b32 v%d, 4, v%d" % (Z, Z),
                        "v_bfe_u32 v%d, v0, 3, 1" % (Z + 1), "v_lshl_add_u32 v%d, v%d, 11, v%d" % (Z, Z + 1, Z)]
            side[1] += [("S", s_load(i)) for i in range(4)] + [None] * 12
            DQ, DS, Q_ = ST + 16, ST + 20, ST + 24
            L = ["WAITS"]
            for i in range(4):
                t_ = "v[%d:%d]" % (SA + 4 * i, SA + 4 * i + 3)
                L.append("v_mfma_f32_16x16x32_bf16 v[%d:%d], %s, %s, %s" % (DQ, DQ + 3, t_, t_, "v[%d:%d]" % (DQ, DQ + 3) if i else "0"))
                L.append("v_mfma_f32_16x16x32_bf16 v[%d:%d], %s, %s, %s" % (DS, DS + 3, t_, HX(0), "v[%d:%d]" % (DS, DS + 3) if i else "0"))
            L += ["s_mov_b32 vcc_lo, 0x00100001", "s_mov_b32 vcc_hi, 0x10000100", "v_lshrrev_b32 v%d, 5, v0" % T2, "v_lshlrev_b32 v%d, 3, v%d" % (T2, T2), None, None]
            for i in range(4):
                L.append("v_cndmask_b32 v%d, %s, v%d, vcc" % (Q_, "v%d" % Q_ if i else "0", DQ + i))
                if i < 3: L += ["s_lshl_b64 vcc, vcc, 1", "v_add_f32 v%d, v%d, v%d" % (DS, DS, DS + 1 + i)]
            for m_ in ("quad_perm:[1,0,3,2]", "quad_perm:[2,3,0,1]", "row_half_mirror", "row_mirror"):
                L.append("v_add_f32_dpp v%d, v%d, v%d %s row_mask:0xf bank_mask:0xf" % (Q_, Q_, Q_, m_))
            L += ["v_permlane16_swap_b32 v%d, v%d" % (DS, Q_), "v_add_f32 v%d, v%d, v%d" % (DS, DS, Q_), "v_mul_f32 v%d, 0x3a800000, v%d" % (DS, DS), "v_mov_b32 v%d, v%d" % (Q_, DS),
                  "v_permlane16_swap_b32 v%d, v%d" % (DS, Q_),
                  "v_fma_f32 v%d, -v%d, v%d, v%d" % (Q_, DS, DS, Q_), "v_cvt_pk_bf16_f32 v%d, v%d, v%d" % (T0, DS, DS), "v_max_f32 v%d, 0, v%d" % (Q_, Q_),
                  "v_xor_b32 v%d, 0x80008000, v%d" % (T0, T0),
                  "v_cvt_pk_bf16_f32 v%d, v%d, v%d" % (Q_, Q_, Q_), "v_and_b32 v%d, s%d, v%d" % (Q_, S_K1, Q_), "v_add_f32 v%d, 0x3727c5ac, v%d" % (Q_, Q_),
                  "v_cvt_pk_bf16_f32 v%d, v%d, v%d" % (Q_, Q_, Q_), "v_and_b32 v%d, s%d, v%d" % (Q_, S_K1, Q_), "v_sqrt_f32 v%d, v%d" % (Q_, Q_),
                  "v_cvt_pk_bf16_f32 v%d, v%d, v%d" % (Q_, Q_, Q_), "v_and_b32 v%d, s%d, v%d" % (T1, S_K1, Q_), "SSTORE2"]
            side[SS0] += L
        elif S_AT >= 0 and not SE: side[S_AT].append("SLOAD")
        if WO_AT >= 0: side[WO_AT].append("WOPF")
        for s_ in PF_X: side[s_].append("PFJ")
        if SE or ST2: pass
        elif SS0 < 3:
            side[SS0] += ["WAITS"] + stat_row(SA, T0, T1); side[SS0 + 1] += stat_row(SB, T2, T3) + ["SSTORE"]
        else:
            side[3] += ["WAITS"] + stat_row(SA, T0, T1) + stat_row(SB, T2, T3) + ["SSTORE"]
        def side_emit(x_):
            if x_ is None: return
            if isinstance(x_, tuple): a(x_[1]); q.append(('XL', 0) if x_[0] == "XLD" else (x_[0], 0))
            elif isinstance(x_, list):
                for y_ in x_: a(y_)
            elif x_ == "WAITS": a("s_waitcnt vmcnt(%d)", need_count([('S', 0)]))
            elif x_ == "CPF": code_pf(76, T0, V_PFD, S_T); q.append(('P', 0))
            elif x_ == "W2PF":
                a("buffer_load_dword v%d, v%d, s[%d:%d], s%d offen", V_PFD, V_PF, S_CD, S_CD + 3, S_PFOFF); q.append(('P', 0))
            elif x_ == "SLOAD": s_loads()
            elif x_ == "WOPF": wo_pf()
            elif x_ == "PFJ":
                if PFD and w < 3: emit_now([pf_job()])
            elif x_ == "SSTORE2":
                a("s_mov_b32 exec_lo, 1"); a("s_mov_b32 exec_hi, 1")
                a("buffer_store_dwordx2 v[%d:%d], v%d, s[%d:%d], s%d offen sc1", T0, T1, T2, S_ST, S_ST + 3, S_T2); q.append(('SS', 0))
                a("s_mov_b64 exec, -1")
            elif x_ == "SSTORE":
                a("s_mov_b64 exec, 1")
                a("buffer_store_dwordx4 v[%d:%d], off, s[%d:%d], s%d sc1", T0, T3, S_ST, S_ST + 3, S_T2); q.append(('SS', 0))
                a("s_mov_b64 exec, -1")
            else: a(x_)
        a("s_lshl_b32 s%d, s%d, 2", S_C1, S_MT)
        if not CSD:
            a("s_max_u32 s%d, s%d, 4", S_C0, S_C1)
            a("s_sub_u32 s%d, s%d, 4", S_C0, S_C0)
        a("s_mov_b32 s%d, 0", S_OK)

        lq = []
        def lds(instr, tag):
            if opt.get("nolds") and tag[1] > 0 and (opt["nolds"] == 1 or (opt["nolds"] == 2) == (tag[0] == 'W')): return
            a(instr); lq.append(tag)
        def lwait(tags):
            idx = [i for i, t in enumerate(lq) if t in tags]
            if not idx: return
            n = len(lq) - 1 - max(idx)
            a("s_waitcnt lgkmcnt(%d)", min(n, 15))
            del lq[:len(lq) - min(n, 15)]
        def w_reads(s, nf):
            stage = s & 3; hi = (stage >> 1) * 4; so = (stage & 1) * WSTAGE
            dst = WR(10 * s + nf)
            out = []
            for h in range(2):
                if wn == 0 and nf < 6:
                    ad = V_WRD[hi + 2 + (nf & 1)]; off = so + WQ_OFF + h * 768 + (nf >> 1) * 64
                else:
                    k = nf - 6 if wn == 0 else nf
                    slot = (k >> 1) + (0 if wn == 0 else 2); isu = k & 1
                    if slot == 6: ad = V_WRD[hi + 2 + h]; off = so + isu * WU_OFF
                    else: ad = V_WRD[hi + h]; off = so + isu * WU_OFF + slot * 32
                out.append(("ds_read_b64_tr_b16 %s, v%d offset:%d" % (dst.sub(2 * h, 2), ad, off), ('W', s, nf)))
            return out
        def x_reads(s):
            xs = (s >> 1) & 1; kk = s & 1
            out = [("ds_read_b128 %s, v%d offset:%d" % (XF(s & 1, mf), V_XR[kk], xs * XSLOT + mf * 2048), ('X', s, mf)) for mf in range(8)]
            if not CSD: out.append(("ds_read_b128 %s, v%d offset:%d" % (HX(s & 1), V_HX[kk], xs * XSLOT), ('H', s)))
            return out
        def wst_jobs(idx, srd):
            jobs = []
            for i in idx:
                if i >= len(WST): continue
                base, kb, d = p2.w_kbs(WST[i])
                assert base == p2.Q_WG
                for kk in range(2):
                    for nf in range(2):
                        pre = ["s_mov_b32 m0, %d" % (WSB[i] + w * 4096 + kk * 2048), "s_add_u32 s%d, s%d, %d" % (S_T, S_WSB, (kb + kk * d) * 65536)] if nf == 0 else []
                        jobs.append(((pre, ["buffer_load_dwordx4 v%d, s[%d:%d], s%d offen offset:%d sc1 lds" % (V_WDMA[0], srd, srd + 3, S_T, nf * 1024)]), ('WS', 0)))
            return jobs
        pend = []
        gapc = [0, 0]
        def step(s, waits=None, emit=True, hooks=None):
            last = s == NSTEP - 1
            ms = []
            for nf in range(10):
                mfs = range(8) if nf % 2 == 0 else range(7, -1, -1)
                grp = [(nf, mf) for mf in mfs]
                if CSD:
                    if s > CSD: grp.insert(4, (nf, -1))
                    elif w and nf == BAR + 3 and s + 1 <= CSD: grp.insert(4, (nf, -2))
                    elif w and nf == 2 and s == 0: grp.insert(4, (nf, -3))
                elif nf in hset and not (opt.get("cs4") and s >= 4): grp.insert(4, (nf, -1))
                ms += grp
            if s == 0 and pend0: pend.extend(pend0)
            xr = x_reads(s + 1) if not last else []
            first_of = {}
            for i, (nf, mf) in enumerate(ms): first_of.setdefault(nf, i)
            x0 = first_of[BAR] + 2 if (s & 1) else first_of[opt.get("xr_even", 2)] + 2
            xend = len(ms) - opt.get("xr_tail", 10)
            xpos = [x0 + ((xend - x0) * i) // len(xr) for i in range(len(xr))] if xr else []
            sd_ = list(side.get(s, [])) if (emit and (s < 4 or s >= NSTEP - 4)) else []
            s_hi = 66 if s == 28 else len(ms) - 2
            spos = [2 + ((s_hi - 2) * i) // len(sd_) for i in range(len(sd_))] if sd_ else []
            for i, (nf, mf) in enumerate(ms):
                post = []
                if i == first_of[nf] and nf == (FS[0] if FS else BAR) and not last:
                    tags = [('W', s + 1)]
                    if (s + 1) % 2 == 0: tags.append(('X', (s + 1) // 2))
                    n = min(63, need_count(tags))
                    assert not any(t in tags for _, t in pend), (s, tags)
                    if waits is not None and not (opt.get("xw") and s < 4):
                        if emit: n = waits[s & 3]
                        else: waits[s & 3] = min(waits.get(s & 3, 63), n)
                    if FS:
                        assert not any(t in tags for _, t in pend)
                        a("v_add_u32 v%d, 1, v%d", V_FS, V_FS)
                        lwait([('X', s, m_) for m_ in range(8)] + [('H', s)] + [('W', s - 1, n_) for n_ in range(10)])
                    if emit and s < 4: nst("b%da" % s)
                    if not opt.get("nodma") and not opt.get("nowait"): a("s_waitcnt vmcnt(%d)", n)
                    if emit and s < 4: nst("b%db" % s)
                    if FS: lds("ds_write_b32 v%d, v%d" % (V_FA, V_FS), ('F', s, 0))
                if FS and i == first_of[BAR] - FSL and not last:
                    lds("ds_read_b32 v%d, v%d" % (V_FD, V_FR), ('F', s, 1))
                if i == first_of[nf] and nf == BAR and not last:
                    if FS:
                        lwait([('F', s, 1)])
                        l1 = a.newlab("L_g1_fs"); l2 = a.newlab("L_g1_fr")
                        a("v_cmp_lt_u32 vcc, v%d, v%d", V_FD, V_FS)
                        a("s_cbranch_vccnz %s", l1)
                        a.label(l2)
                        if emit: spins.append((l1, l2))
                    elif not opt.get("nobar"): a("s_barrier")
                    if emit and s < 4: nst("b%dc" % s)
                    assert opt.get("dq") or not pend, "DMA jobs not drained"
                    if (s & 1) and (s + 3) // 2 < NSTEP // 2: pend.extend(x_jobs((s + 3) // 2))
                    if s + 3 < NSTEP and not (PG and s == 0): pend.extend(w_jobs(s + 3))
                    if WST and s == 29: pend.extend(wst_jobs([0, 1, 2], S_G))
                    if WST and s == 30: pend.extend(wst_jobs([3], S_G))
                    if PFD and (s & 3) == 0 and s < NSTEP - 4 and not (W2P and w == 3): pend.append(pf_job())
                    if W2P and (s & 3) == 0 and not (FUSE and s >= 28):
                        pend.append(r_job(s, 1))
                        if s == 0 or FUSE: pend.append(r_job(s, 0))
                    if KROT and (s & 3) == 1 and s < NSTEP - 4:
                        a("s_sub_u32 s%d, s%d, 1", S_RC, S_RC)
                        a("s_cmp_eq_u32 s%d, 0", S_RC)
                        a("s_cselect_b32 s%d, %d, 0", S_K2, 1024 * 7168)
                        a("s_cselect_b32 s%d, %d, 0", S_STO, 1024 * 6144)
                        a("s_cselect_b32 s%d, 2048, 0", S_T)
                        if not opt.get("samew"):
                            a("s_sub_u32 s%d, s%d, s%d", S_GOFF, S_GOFF, S_K2)
                            a("s_sub_u32 s%d, s%d, s%d", S_QOFF, S_QOFF, S_STO)
                        if not opt.get("samex"): a("s_sub_u32 s%d, s%d, s%d", S_XK, S_XK, S_T)
                        if not CSD: a("s_sub_u32 s%d, s%d, s%d", S_XH, S_XH, S_T)
                    gapc[0] = 0; gapc[1] = s & 1
                    if hooks and 'bar' in hooks: hooks['bar']()
                job = None
                de = DE
                g0_ = 1 + DST[w]
                if isinstance(DE, list): de = DE[0] if gapc[1] else DE[1]
                if opt.get("dma2"): de = opt.get("de2", 2)
                if s == 0 and nf < BAR: de = opt.get("pg_de", 2); g0_ = 0
                if pend and gapc[0] >= g0_ and (gapc[0] - g0_) % de == 0:
                    job = pend.pop(0)
                    for x_ in job[0][0]: a(x_)
                gapc[0] += 1
                lwait([('W', s, nf), ('X', s, mf) if mf >= 0 else ('H', s) if mf == -1 else ('D', s, mf)])
                wf = WR(10 * s + nf)
                if mf >= 0 and opt.get("m32") and (wn == 1 or opt["m32"] == 2):
                    if mf & 1:
                        b_ = (nf // 2) * 4 + mf // 2
                        t = R('v', 80 + 16 * b_, 16) if b_ < 11 else R('a', 16 * (b_ - 11), 16)
                        a("v_mfma_f32_32x32x16_bf16 %s, %s, %s, %s" % (t, wf, XF(s & 1, mf), t if s else "0"))
                elif mf >= 0:
                    t = tiles[(nf, mf)]
                    a(mm(t, wf, XF(s & 1, mf), t if s else "0", nf))
                elif CSD and mf == -1:
                    t = HACC(nf >> 1)
                    a("v_mfma_f32_16x16x32_bf16 %s, %s, %s, %s", t, HX(nf & 1), wf, "0" if (s == CSD + 1 and nf % 2 == 0) else t)
                elif CSD:
                    a("v_mfma_f32_16x16x32_bf16 %s, %s, %s, %s", DACC, HX(0), DWF, "0" if mf == -3 else DACC)
                else:
                    t = HACC(hset.index(nf))
                    a(mm(t, wf, HX(s & 1), t if s else "0", nf))
                if job:
                    for x_ in job[0][1]:
                        if opt.get("nodma") and x_.startswith("buffer_load"): continue
                        if opt.get("dma_only") and x_.startswith("buffer_load") and job[1][0] not in opt["dma_only"]: continue
                        if opt.get("dma_reg") and x_.endswith(" lds") and 4 <= s < 28 and job[1][0] in opt["dma_reg"]:
                            x_ = x_[:-4].replace("buffer_load_dwordx4 ", "buffer_load_dwordx4 v[24:27], ")
                            if opt.get("dma_x1"): x_ = x_.replace("dwordx4 v[24:27]", "dword v24")
                        a(x_)
                    q.append(job[1])
                k = i - first_of[nf]
                if k < 2:
                    s2_, nf2 = (s, nf + LA) if nf + LA < 10 else (s + 1, nf + LA - 10)
                    if s2_ < NSTEP:
                        ins, tag = w_reads(s2_, nf2)[k]
                        lds(ins, tag)
                if CSD and w and k in (3, 5):
                    st_ = None
                    if nf == BAR + 1 and s + 1 <= CSD: st_, tg = s + 1, -2
                    if nf == 0 and s == 0: st_, tg = 0, -3
                    if st_ is not None:
                        h = (k - 3) // 2
                        lds("ds_read_b64_tr_b16 %s, v%d offset:%d" % (DWF.sub(2 * h, 2), V_HX[h], (st_ & 3) * WSTAGE), ('D', s, tg))
                while xpos and xpos[0] <= i:
                    xpos.pop(0); ins, tag = xr.pop(0); lds(ins, tag)
                while spos and spos[0] <= i:
                    spos.pop(0); side_emit(sd_.pop(0))
                if W2P and (s & 3) == 3 and not (FUSE and s >= 28):
                    r0 = first_of[FS[0] if FS else BAR] + 4
                    if i == r0:
                        if last: a("s_waitcnt vmcnt(%d)", need_count([('R', s - 3)]))
                        r_read(s, 1)
                    if i == r0 + 12: r_store(s)
                    if (s == 3 or FUSE) and i == r0 + 16: r_read(s, 0)
                    if (s == 3 or FUSE) and i == r0 + 28: r_store(s)
                    if last and i == r0 + 20:
                        for r_ in range(RD, RD + 4): a("v_mov_b32 v%d, 0", r_)
                if hooks and i in hooks: hooks[i]()
                if opt.get("dv") and emit and 4 <= s < 8:
                    nd = opt["dv"]
                    for z in range(i * nd // len(ms), (i + 1) * nd // len(ms)):
                        sr = 36 + (z * 6) % 16; d_ = 20 + (z * 2) % 16
                        a(["v_pk_mul_f32 v[%d:%d], v[%d:%d], v[%d:%d]" % (d_, d_ + 1, sr, sr + 1, sr + 2, sr + 3), "v_exp_f32 v%d, v%d" % (d_, sr), "v_rcp_f32 v%d, v%d" % (d_, sr + 1),
                           "v_accvgpr_read_b32 v%d, a%d" % (d_, 148 + z % 32), "v_exp_f32 v%d, v%d" % (d_, sr + 1), "v_cvt_pk_bf16_f32 v%d, v%d, v%d" % (d_, sr, sr + 1), "v_rcp_f32 v%d, v%d" % (d_, sr + 2),
                           "v_mul_f32 v%d, v%d, v%d" % (d_, sr, sr + 1)][z % 8])

        from gapsim import cost as gcost, kind as gkind
        tq = []; sq = []; xq = []; vq = []
        GS = {"g": 0, "nl": 0, "odd": 0}
        def lneed(tags):
            idx = [i for i, t in enumerate(lq) if t in tags]
            if not idx: return None
            n = min(15, len(lq) - 1 - max(idx))
            del lq[:len(lq) - n]
            return n
        def sgroups(L):
            out = []
            for x_ in L:
                if out and x_.startswith(("s_cselect", "s_addc", "s_subb", "s_cbranch")) or x_.endswith(":"): out[-1][1].append(x_)
                else: out.append(('s', [x_]))
            return out
        def push_jobs(jobs):
            for (pre, main), tag in jobs:
                sq.extend(sgroups(pre)); sq.append(('L', main[0], tag)); sq.extend(sgroups(main[1:]))
        def ms_of(s):
            ms = []
            for nf in range(10):
                mfs = range(8) if nf % 2 == 0 else range(7, -1, -1)
                grp = [(nf, mf) for mf in mfs]
                if s > CSD: grp.insert(4, (nf, -1))
                elif DW and nf == BAR + 3 and s + 1 <= CSD: grp.insert(4, (nf, -2))
                elif DW and nf == 2 and s == 0: grp.insert(4, (nf, -3))
                ms += grp
            return ms
        def tags_of(s, nf, mf): return [('W', s, nf), ('X', s, mf) if mf >= 0 else ('H', s) if mf == -1 else ('D', s, mf)]
        DW = w != 0
        def em(x_):
            if x_.endswith(":"): a.label(x_[:-1])
            else: a(x_)
        def stepg(s, waits=None, emit=True, hooks=None):
            assert CSD and W2P and FUSE and not FS and not WST
            last = s == NSTEP - 1
            ms = ms_of(s)
            if s == 0 and pend0: push_jobs(pend0)
            xr = x_reads(s + 1) if not last else []
            first_of = {}
            for i, (nf, mf) in enumerate(ms): first_of.setdefault(nf, i)
            x0 = first_of[BAR] + 2 if (s & 1) else first_of[opt.get("xr_even", 2)] + 2
            xend = len(ms) - opt.get("xr_tail", 10)
            xpos = [x0 + ((xend - x0) * i) // len(xr) for i in range(len(xr))] if xr else []
            sd_ = list(side.get(s, [])) if (emit and (s < 4 or s >= NSTEP - 4)) else []
            s_hi = 66 if s == 28 else len(ms) - 4
            spos = [2 + ((s_hi - 2) * i) // len(sd_) for i in range(len(sd_))] if sd_ else []
            for i, (nf, mf) in enumerate(ms):
                need_ = tags_of(s, nf, mf)
                while any(t in need_ for _, t in tq):
                    print("forced read", w, s, i)
                    lds(*tq.pop(0))
                if i == first_of[BAR] and not last:
                    tags = [('W', s + 1)]
                    if (s + 1) % 2 == 0: tags.append(('X', (s + 1) // 2))
                    n = min(63, need_count(tags))
                    assert not any(it[0] == 'L' and it[2] in tags for it in sq), (s, tags)
                    if waits is not None and not (opt.get("xw") and s < 4):
                        if emit: n = waits[s & 3]
                        else: waits[s & 3] = min(waits.get(s & 3, 63), n)
                    if emit and s < 4: nst("b%da" % s)
                    m_ = lneed(need_)
                    a("s_waitcnt vmcnt(%d)%s", n, "" if m_ is None else " lgkmcnt(%d)" % m_)
                    if emit and s < 4: nst("b%db" % s)
                    a("s_barrier")
                    if emit and s < 4: nst("b%dc" % s)
                    if (s & 1) and (s + 3) // 2 < NSTEP // 2: push_jobs(x_jobs((s + 3) // 2))
                    if KROT and (s & 3) == 1 and s < NSTEP - 4:
                        k_ = [z for z, it in enumerate(sq) if it[0] == 'L'][-3] + 1
                        sq[k_:k_] = sgroups(["s_mul_i32 s%d, s%d, 3584" % (S_K2, S_TK), "s_sub_u32 s%d, s%d, s%d" % (S_GOFF, S_GOFF, S_K2),
                                             "s_mul_i32 s%d, s%d, 3072" % (S_K2, S_TK), "s_sub_u32 s%d, s%d, s%d" % (S_QOFF, S_QOFF, S_K2)])
                    if s + 3 < NSTEP and not (PG and s == 0): push_jobs(w_jobs(s + 3))
                    if PFD and (s & 3) == 0 and s < NSTEP - 4 and not (W2P and w == 3): push_jobs([pf_job()])
                    if KROT and (s & 3) == 0 and s < NSTEP - 4:
                        sq.extend(sgroups(["s_sub_u32 s%d, s%d, 1" % (S_RC, S_RC), "s_cmp_eq_u32 s%d, 0" % S_RC, "s_cselect_b32 s%d, 2048, 0" % S_TK,
                                           "s_sub_u32 s%d, s%d, s%d" % (S_XK, S_XK, S_TK)]))
                    if (s & 3) == 0 and s < 28: push_jobs([r_job(s, 1), r_job(s, 0)])
                    GS["g"] = 0; GS["nl"] = 1 + DST[w]; GS["odd"] = s & 1
                    if hooks and 'bar' in hooks:
                        k_ = [z for z, it in enumerate(sq) if it[0] == 'L'][1] + 1
                        sq[k_:k_] = sgroups(hooks['bar'])
                lwait(need_)
                wf = WR(10 * s + nf)
                if mf >= 0:
                    t = tiles[(nf, mf)]
                    a(mm(t, wf, XF(s & 1, mf), t if s else "0", nf))
                elif mf == -1:
                    t = HACC(nf >> 1)
                    a("v_mfma_f32_16x16x32_bf16 %s, %s, %s, %s", t, HX(nf & 1), wf, "0" if (s == CSD + 1 and nf % 2 == 0) else t)
                else:
                    a("v_mfma_f32_16x16x32_bf16 %s, %s, %s, %s", DACC, HX(0), DWF, "0" if mf == -3 else DACC)
                k = i - first_of[nf]
                if k == 0:
                    s2_, nf2 = (s, nf + LA) if nf + LA < 10 else (s + 1, nf + LA - 10)
                    if s2_ < NSTEP: tq.extend(w_reads(s2_, nf2))
                if DW and k == 3:
                    st_ = None
                    if nf == BAR + 1 and s + 1 <= CSD: st_, tg = s + 1, -2
                    if nf == 0 and s == 0: st_, tg = 0, -3
                    if st_ is not None:
                        for h in range(2): tq.append(("ds_read_b64_tr_b16 %s, v%d offset:%d" % (DWF.sub(2 * h, 2), V_HX[h], (st_ & 3) * WSTAGE), ('D', s, tg)))
                while xpos and xpos[0] <= i:
                    xpos.pop(0); tq.append(xr.pop(0))
                while spos and spos[0] <= i:
                    spos.pop(0); x_ = sd_.pop(0)
                    if x_ is not None: vq.append(x_)
                def r_rd(area):
                    o = (L_STG - L_KV) if area else 0
                    for h in range(2): tq.append(("ds_read_b64_tr_b16 v[%d:%d], v%d offset:%d" % (RD + 2 * h, RD + 2 * h + 1, V_CRD, o + 512 * h), ('R', s, area)))
                    xq.append((GS["g"] + opt.get("ga_rs", 12), area))
                if (s & 3) == 3 and s < 28 and i == first_of[BAR] + 4: r_rd(1)
                g = GS["g"]; GS["g"] += 1
                fin_ = i == len(ms) - 1
                if i + 1 == first_of[BAR] and not last:
                    assert not (hooks and i in hooks)
                    continue
                nxt = tags_of(s, *ms[i + 1]) if not fin_ else tags_of(s + 1, 0, 0)
                de = DE
                if isinstance(DE, list): de = DE[0] if GS["odd"] else DE[1]
                if s == 0 and nf < BAR: de = opt.get("pg_de", 2)
                hk = hooks and i in hooks
                isL = sq and sq[0][0] == 'L' and g >= GS["nl"] and not hk and not (fin_ and (s & 3) == 3)
                isX = not isL and xq and g >= xq[0][0] and not hk and not any(t[0] == 'R' for _, t in tq) and not fin_
                m_ = lneed(nxt + ([('R', s, xq[0][1])] if isX else []))
                pat = ""
                if m_ is not None: a("s_waitcnt lgkmcnt(%d)", m_); pat = "w"
                if isL:
                    it = sq.pop(0)
                    if not opt.get("nodma"): a(it[1])
                    q.append(it[2]); GS["nl"] = g + de
                    continue
                if isX:
                    _, area = xq.pop(0)
                    a("buffer_store_dwordx4 v[%d:%d], v%d, s[%d:%d], s%d offen%s", RD, RD + 3, V_CST, S_CD, S_CD + 3, S_CDO, opt.get("w2st", " sc1")); q.append(('RS', 0))
                    sq.insert(0, ('s', ["s_add_u32 s%d, s%d, 0x100000" % (S_CDO, S_CDO)]))
                    if area: r_rd(0)
                    continue
                if fin_ and (s & 3) == 3 and s < 28: pat += "sb"
                tdone = not tq
                while sq and sq[0][0] == 's':
                    c_ = pat + "s" * len([x_ for x_ in sq[0][1] if not x_.endswith(":")])
                    if not tdone:
                        if gcost(c_ + "t") == 0: pass
                        else:
                            if gcost(pat + "t") == 0: lds(*tq.pop(0)); pat += "t"
                            tdone = True; continue
                    elif gcost(c_) > 0 and pat: break
                    for x_ in sq.pop(0)[1]: em(x_)
                    pat = c_
                if not tdone and gcost(pat + "t") == 0: lds(*tq.pop(0)); pat += "t"
                while vq:
                    x_ = vq[0]
                    kd = gkind(x_) if isinstance(x_, str) and x_[0].islower() else 's' * len(x_) if isinstance(x_, list) else 'L'
                    if x_ == "WAITS": kd = 'w'
                    force = len(vq) > opt.get("ga_bl", 3) or fin_
                    if kd == 'M':
                        side_emit(vq.pop(0)); break
                    if not force and (gcost(pat + kd) > gcost(pat) or (kd in 've' and len(vq) < 3 and ('v' in pat or 'e' in pat))): break
                    side_emit(vq.pop(0)); pat += kd
                if hk: hooks[i]()
        if GA: step = stepg

        nst("k2")
        if PSPLIT == 1: pro2(); pro3()
        nst("k3")
        a("s_waitcnt vmcnt(%d)", need_count([('X', 0), ('W', 0)]))
        nst("k4")
        a("s_waitcnt lgkmcnt(0)")
        a("s_barrier")
        nst("pro")
        if PSPLIT == 2: pro2(); pro3()
        for nf in range(LA):
            for ins, tag in w_reads(0, nf): lds(ins, tag)
            if nf == 0:
                for ins, tag in x_reads(0): lds(ins, tag)
        a("s_waitcnt lgkmcnt(0)"); del lq[:]
        waits = {}
        saved = a.l; q0 = list(q); a.l = []
        for s in range(NSTEP - 4): step(s, waits, emit=False, hooks=({'bar': ["s_nop 0"] + (["s_nop 0", "s_cbranch_x"] if w == 0 else [])} if GA and s > 4 and (s & 3) == 3 else None))
        q_after = list(q); lq_after = list(lq); pend_after = list(pend); gap_after = list(gapc)
        ga_after = (list(tq), list(sq), list(xq), dict(GS))
        del tq[:]; del sq[:]; del xq[:]; GS.update({"g": 0, "nl": 0, "odd": 0})
        def ga_state(): return ([x_[0] for x_ in tq], [(it[0], it[1].replace(" nt", "") if it[0] == 'L' else it[1]) for it in sq], list(xq), dict(GS))
        a.l = saved; q[:] = q0; del lq[:]; del pend[:]; gapc[:] = [0, 0]
        head = []
        peel = True
        def signal():
            a("v_mov_b32 v%d, 1", T0)
            a("v_mov_b32 v%d, 0", T1)
            a("s_mov_b64 exec, 1")
            a("buffer_atomic_add v%d, v%d, s[%d:%d], s%d offen sc1", T0, T1, S_DBG, S_DBG + 3, S_C1); q.append(('A', 0))
            a("s_mov_b64 exec, -1")
        nit = NSTEP // 4 - 1
        if peel:
            for s in range(4):
                step(s, waits, emit=True)
                nst("s%d" % s)
            nit -= 1
        loop = a.newlab("L_g1_loop")
        a("s_mov_b32 s%d, %d", S_LOOP, nit)
        lq_ss = [(t[0], t[1] - 24) + tuple(t[2:]) for t in lq_after]
        assert lq_ss[len(lq_ss) - len(lq):] == lq, (lq_ss, lq)
        lq[:] = lq_ss
        lq_in = [(t[0], t[1] - 4) + tuple(t[2:]) for t in lq]
        pend_in = [j_[0] for j_ in pend]
        ga_in = ga_state()
        a.label(loop)
        def sig_cond():
            l_ = a.newlab("L_g1_sig")
            a("s_cmp_lg_u32 s%d, %d", S_LOOP, nit - 4 if FUSE else nit)
            a("s_cbranch_scc1 %s", l_)
            signal()
            a.label(l_)
        if GA:
            l1_ = a.newlab("L_g1_sig"); l2_ = a.newlab("L_g1_sgr")
            hb_ = ["s_sub_u32 s%d, s%d, 1" % (S_LOOP, S_LOOP)]
            if w == 0:
                hb_ += ["s_cmp_eq_u32 s%d, %d" % (S_LOOP, nit - 5), "s_cbranch_scc1 %s" % l1_, l2_ + ":"]
                SIGS.append((l1_, l2_, signal))
            for s in range(4, 8): step(s, waits, emit=True, hooks=({'bar': hb_} if s == 7 else None))
            assert ga_in == ga_state(), (ga_in, ga_state())
        else:
          for s in range(4, 8):
            step(s, waits, emit=True, hooks=({'bar': sig_cond} if (w == 0 and s == 7) else None))
        if opt.get("dv2"):
            k0 = max(k_ for k_, l_ in enumerate(a.l) if l_.strip().startswith(loop))
            B_ = a.l[k0:]; del a.l[k0:]
            gaps_ = [k_ for k_ in range(1, len(B_)) if B_[k_].strip().startswith("v_mfma") and B_[k_ - 1].strip().startswith("v_mfma")]
            nd = min(len(gaps_), 4 * opt["dv2"])
            sel = set(gaps_[(z * len(gaps_)) // nd] for z in range(nd))
            print("empty gaps", len(gaps_), "filled", len(sel))
            z = 0
            for k_, l_ in enumerate(B_):
                if k_ in sel:
                    sr = 36 + (z * 6) % 16; d_ = 20 + (z * 2) % 16
                    for x_ in [["v_pk_mul_f32 v[%d:%d], v[%d:%d], v[%d:%d]" % (d_, d_ + 1, sr, sr + 1, sr + 2, sr + 3), "v_accvgpr_read_b32 v%d, a%d" % (d_ + 2, 148 + z % 32)], ["v_exp_f32 v%d, v%d" % (d_, sr)], ["v_rcp_f32 v%d, v%d" % (d_, sr + 1)],
                               ["v_exp_f32 v%d, v%d" % (d_, sr + 1)], ["v_cvt_pk_bf16_f32 v%d, v%d, v%d" % (d_, sr, sr + 1), "v_mul_f32 v%d, v%d, v%d" % (d_ + 1, sr, sr + 1)], ["v_rcp_f32 v%d, v%d" % (d_, sr + 2)]][z % 6]: a(x_)
                    z += 1
                a.l.append(l_)
        lq_out = [(t[0], t[1] - 8) + tuple(t[2:]) for t in lq]
        strip_ = lambda P_: [[[x_.replace(" nt", "") for x_ in y_] for y_ in j_] for j_ in P_]
        assert strip_(pend_in) == strip_([j_[0] for j_ in pend]) == strip_([j_[0] for j_ in pend_after]), (pend_in, pend)
        if peel: assert lq_in == lq_out, (lq_in, lq_out)
        else:
            a("s_waitcnt lgkmcnt(0)"); del lq[:]
        if not GA: a("s_sub_u32 s%d, s%d, 1", S_LOOP, S_LOOP)
        a("s_cmp_lg_u32 s%d, 0", S_LOOP)
        a("s_cbranch_scc1 %s", loop)
        a.c("waits %s" % waits)
        q[:] = q_after; pend[:] = pend_after; gapc[:] = gap_after
        if GA:
            tq[:] = ga_after[0]; sq[:] = ga_after[1]; xq[:] = ga_after[2]; GS.update(ga_after[3])
            assert ga_in == ga_state(), (ga_in, ga_state())
        lq[:] = lq_after if peel else []
        nb = 9 if wn == 0 else 8
        def poll():
            if FUSE:
                a("v_min_u32 v%d, 7, v0", T2)
                a("v_lshlrev_b32 v%d, 2, v%d", T2, T2)
                a("buffer_load_dword v%d, v%d, s[%d:%d], 0 offen sc1", T0, T2, S_DBG, S_DBG + 3); q.append(('C', 0))
                return
            a("v_mov_b32 v%d, 0", T2)
            a("buffer_load_dword v%d, v%d, s[%d:%d], s%d offen sc1", T0, T2, S_DBG, S_DBG + 3, S_C0); q.append(('C', 0))
            a("buffer_load_dword v%d, v%d, s[%d:%d], s%d offen sc1", T1, T2, S_DBG, S_DBG + 3, S_C1); q.append(('C', 0))
        def check():
            a("s_waitcnt vmcnt(%d)", need_count([('C', 0)]))
            okval()
        def okval():
            if FUSE:
                a("v_cmp_gt_u32 vcc, 32, v%d", T0)
                a("s_cmp_eq_u64 vcc, 0")
                a("s_cselect_b32 s%d, 32, 0", S_OK)
                return
            a("v_min_u32 v%d, v%d, v%d", T0, T0, T1)
            a("s_nop 1")
            a("v_readfirstlane_b32 s%d, v%d", S_OK, T0)
        def st_loads():
            a("v_and_b32 v%d, 15, v0", T2)
            a("v_lshlrev_b32 v%d, 3, v%d", T2, T2)
            a("s_add_u32 s%d, s%d, %d", S_STO, S_M0, 128 * wm)
            a("s_lshl_b32 s%d, s%d, 3", S_STO, S_STO)
            for b in range(nb):
                bb = b - 1 if wn == 0 else b
                if bb < 0 and CSD: continue
                if bb < 0:
                    a("s_max_u32 s%d, s%d, 128", S_K2, S_STO)
                    a("s_sub_u32 s%d, s%d, 128", S_K2, S_K2)
                    a("buffer_load_dwordx2 v[%d:%d], v%d, s[%d:%d], s%d offen sc1", ST + 2 * b, ST + 2 * b + 1, T2, S_ST, S_ST + 3, S_K2)
                else:
                    a("buffer_load_dwordx2 v[%d:%d], v%d, s[%d:%d], s%d offen offset:%d sc1", ST + 2 * b, ST + 2 * b + 1, T2, S_ST, S_ST + 3, S_STO, bb * 128)
                q.append(('R', 0))
        def check_and_load():
            check(); st_loads()
        nst("s27")
        hk29 = {60: check_and_load}
        NPF = opt.get("w2pf", 0)
        if FUSE and NPF:
            def pf_set():
                a("s_lshr_b32 s%d, s2, 4", S_T)
                a("s_and_b32 s%d, s%d, 7", S_T2, S_T)
                a("s_mul_i32 s%d, s%d, 7", S_T2, S_T2)
                a("s_lshr_b32 s%d, s%d, 3", S_T, S_T)
                a("s_add_u32 s%d, s%d, 33", S_T2, S_T2)
                a("%s s%d, s%d, s%d", "s_sub_u32" if EP2 else "s_add_u32", S_T2, S_T2, S_T)
                a("s_bfe_u32 s%d, s2, 0x10003", S_T)
                a("s_lshl_b32 s%d, s%d, 2", S_T, S_T)
                a("s_add_u32 s%d, s%d, s%d", S_T2, S_T2, S_T)
                a("s_and_b32 s%d, s2, 1", S_T)
                a("s_mul_i32 s%d, s%d, 56", S_T, S_T)
                a("s_add_u32 s%d, s%d, s%d", S_T2, S_T2, S_T)
                a("s_lshl_b32 s%d, s%d, 16", S_T2, S_T2)
                a("s_add_u32 s%d, s%d, %d", S_T2, S_T2, w * 16384)
            def pf_set2():
                a("s_mov_b32 s%d, s%d", S_G, S_CD); a("s_mov_b32 s%d, s%d", S_G + 1, S_CD + 1)
                a("s_cmp_ge_u32 s%d, 32", S_OK)
                a("s_cselect_b32 s%d, s%d, 0", S_G + 2, S_CD + 2)
                a("v_lshlrev_b32 v%d, 7, v0", V_PF)
                a("s_add_u32 s%d, s%d, 8192", S_T3, S_T2)
            def pf_ld(so):
                def f():
                    a("buffer_load_dword v%d, v%d, s[%d:%d], s%d offen sc1", V_PFD, V_PF, S_G, S_G + 3, so); q.append(('P', 0))
                return f
            hk29.update({56: pf_set, 64: pf_set2, 68: pf_ld(S_T2), 72: pf_ld(S_T3)})
        HK = {28: {70: poll}, 29: hk29, 30: {}, 31: {}}
        if opt.get("early_poll"):
            HK[28] = {opt["early_poll"][0]: poll}
            HK[29] = {k_ - opt["early_poll"][1]: v_ for k_, v_ in hk29.items()}
        def wst_set():
            a("s_and_b32 s%d, s2, 1", S_WSB)
            a("s_mul_i32 s%d, s%d, %d", S_WSB, S_WSB, 56 * 65536)
            a("s_bfe_u32 s%d, s2, 0x30003", S_T)
            a("s_lshl_b32 s%d, s%d, 13", S_T, S_T)
            a("s_add_u32 s%d, s%d, s%d", S_WSB, S_WSB, S_T)
            a("s_add_u32 s%d, s%d, %d", S_WSB, S_WSB, 32 * 65536 + w * 2048)
            a("v_lshlrev_b32 v%d, 4, v0", V_WDMA[0])
        if WST:
            assert max(HK[29]) < 8 * BAR - 6 and NPF
            HK[29][8 * BAR - 4] = wst_set
        def cs_pub():
            a("v_accvgpr_read_b32 v%d, %s", T3, DACC.sub(0))
            a("v_or_b32 v%d, 1, v%d", T3, T3)
            cs_store(T3)
        def cs_loads():
            a("v_mul_u32_u24 v%d, 48, v0", T1)
            a("s_mul_i32 s%d, s%d, 1536", S_STO, S_J)
            a("s_add_u32 s%d, s%d, %d", S_STO, S_STO, CS_OFF + wn * 768)
            a("s_mov_b64 exec, 0xffff")
            for o_, n_ in ((0, 4), (4, 4), (8, 2)):
                a("buffer_load_dwordx%d v[%d:%d], v%d, s[%d:%d], s%d offen offset:%d sc1", n_, CSR + o_, CSR + o_ + n_ - 1, T1, S_ST, S_ST + 3, S_STO, 4 * o_); q.append(('R', 0))
            a("s_mov_b64 exec, -1")
        def cs_test():
            a("v_min3_u32 v%d, v%d, v%d, v%d", T0, CSR, CSR + 1, CSR + 2)
            a("v_min3_u32 v%d, v%d, v%d, v%d", T1, CSR + 3, CSR + 4, CSR + 5)
            a("v_min3_u32 v%d, v%d, v%d, v%d", T0, T0, CSR + 6, CSR + 7)
            a("v_min3_u32 v%d, v%d, v%d, v%d", T1, T1, CSR + 8, CSR + 9)
            a("v_min_u32 v%d, v%d, v%d", T0, T0, T1)
            a("v_cmp_eq_u32 vcc, 0, v%d", T0)
            a("s_and_b32 s%d, vcc_lo, 0xffff", S_T)
        if CSD:
            if w:
                if CSD <= 28: HK[28][3] = cs_pub
                else: HK[CSD - 1][8 * (BAR + 3) + 9] = cs_pub
            cl_ = opt.get("cs_ld", [31, 1])
            assert cl_[1] not in HK[cl_[0]]
            HK[cl_[0]][cl_[1]] = cs_loads
        for s_ in range(28, 32): step(s_, hooks=HK[s_])
        assert not pend and not tq and not sq and not xq and not vq
        n_after = need_count([('R', 0), ('P', 0), ('C', 0)]) if XE else 0
        assert n_after in (0, 8)
        nst("loop")
        lok = a.newlab("L_g1_ok"); lsp = a.newlab("L_g1_spin")
        if CSD:
            a("s_waitcnt vmcnt(%d)", n_after)
            cs_test()
            a("s_cselect_b32 s%d, 0, s%d", S_OK, S_OK)
        a("s_cmp_ge_u32 s%d, 32", S_OK)
        a("s_cbranch_scc1 %s", lok)
        a.label(lsp)
        a("s_sleep 4")
        poll()
        a("s_waitcnt vmcnt(0)")
        okval()
        a("s_nop 1")
        a("s_cmp_lt_u32 s%d, 32", S_OK)
        a("s_cbranch_scc1 %s", lsp)
        st_loads()
        if CSD: cs_loads()
        if WST: emit_now(wst_jobs(range(4), S_CD))
        if XE: a("s_waitcnt vmcnt(0)")
        if CSD:
            cs_test()
            a("s_cbranch_scc1 %s", lsp)
        a.label(lok)
        if opt.get("ep_twice"):
            a("s_mov_b32 s79, 0")
            EPT[0] = a.newlab("L_ept"); a.label(EPT[0])
        a("s_nop 7")
        RR = 1
        CG = 10
        V_L16 = 18; V_SGL = 19
        boff = 1 if wn == 0 else 0
        def stt(mf): return "v[%d:%d]" % (ST + 2 * (mf + boff), ST + 2 * (mf + boff) + 3)
        def SD(mf): return ST + 2 * (mf + boff) + 1
        def cst(i): return "v[%d:%d]" % (CST + 4 * i, CST + 4 * i + 3)
        if CSD: hs_ = len(a.l)
        a("v_lshrrev_b32 v%d, 4, v0", T0)
        a("v_lshlrev_b32 v%d, 4, v%d", T0, T0)
        a("v_add_u32 v%d, %d, v%d", T0, L_CS, T0)
        a("v_lshlrev_b32 v%d, 2, v0", T1)
        a("v_add_u32 v%d, %d, v%d", T1, L_CS, T1)
        a("v_lshlrev_b32 v%d, 4, v0", V_L16)
        a("s_mov_b32 s%d, 0x00010001", S_MSK); a("s_mov_b32 s%d, 0x00010001", S_MSK + 1)
        a("s_mov_b64 exec, s[%d:%d]", S_MSK, S_MSK + 1)
        for i, nf in enumerate(hset):
            if not isV(nf): a("ds_write_b128 v%d, %s offset:%d", T0, HACC(i), (wn * 10 + nf) * 64)
        a("s_mov_b64 exec, 0xffff")
        for i, nf in enumerate(hset):
            if isV(nf): a("ds_write_b32 v%d, %s offset:%d", T1, HACC(i).sub(0), (wn * 10 + nf) * 64)
        a("s_mov_b64 exec, -1")
        if w == 0:
            a("v_add_u32 v%d, %d, v%d", T2, L_KV, V_L16)
            for i in range(4): a("ds_write_b128 v%d, %s offset:%d", T2, tiles[(2 + i, 7)], i * 1024)
        a("s_waitcnt vmcnt(%d)", n_after)
        b0 = 0
        if CSD:
            del a.l[hs_:]
            a("v_lshlrev_b32 v%d, 4, v0", V_L16)
            nst("e1")
            b0 = boff
            EP0[0] = len(a.l)
        for b in range(b0, nb): a("v_rcp_f32 v%d, v%d", RR + b, ST + 2 * b + 1)
        if wn == 0:
            a("v_and_b32 v%d, 15, v0", T3)
            a("v_lshlrev_b32 v%d, 2, v%d", T3, T3)
            a("v_add_u32 v%d, %d, v%d", T3, L_RT + w * 640, T3)
            for b in range(b0, nb): a("ds_write_b32 v%d, v%d offset:%d", T3, RR + b, b * 64)
        for mf in range(8): a("v_mul_f32 v%d, %s, v%d", CG + mf, f32(-LOG2E), RR + mf + boff)
        a("s_lshl_b32 s%d, s%d, 14", S_AB, S_MT)
        if wm: a("s_add_u32 s%d, s%d, 8192", S_AB, S_AB)
        a("s_lshr_b32 s%d, s%d, 1", S_T, S_J)
        a("s_mul_i32 s%d, s%d, 7", S_T, S_T)
        a("s_add_u32 s%d, s%d, 32", S_T, S_T)
        a("s_lshl_b32 s%d, s%d, 2", S_T2, S_ODD)
        a("s_add_u32 s%d, s%d, s%d", S_T2, S_T2, S_T)
        a("s_mul_i32 s%d, s%d, %d", S_K1, S_T2, ACT_KB)
        a("s_add_u32 s%d, s%d, s%d", S_K1, S_K1, S_AB)
        a("s_add_u32 s%d, s%d, 3", S_T, S_T)
        a("s_mul_i32 s%d, s%d, %d", S_K2, S_T, ACT_KB)
        a("s_add_u32 s%d, s%d, s%d", S_K2, S_K2, S_AB)
        a("s_lshl_b32 s%d, s%d, 9", S_T, S_ODD)
        a("s_add_u32 s%d, s%d, s%d", S_K2, S_K2, S_T)
        a("s_mul_i32 s%d, s%d, %d", S_T, S_J, ACT_KB)
        a("s_add_u32 s%d, s%d, s%d", S_AB, S_AB, S_T)
        a("v_lshrrev_b32 v%d, 5, v0", T2)
        a("v_lshl_add_u32 v%d, v%d, 9, v%d", V_SGL, T2, V_L16)
        if not CSD:
            a("s_waitcnt lgkmcnt(0)")
            nst("e0")
            a("s_barrier")
            nst("e1")
            a("s_mov_b64 exec, 0xffff")
            for nf in range(10): a("ds_read_b32 v%d, v%d offset:%d", CSR + nf, T1, (wn * 10 + nf) * 64)
            a("s_mov_b64 exec, -1")
            if w == 1:
                a("v_add_u32 v%d, %d, v%d", T2, L_KV, V_L16)
                for i in range(4): a("ds_read_b128 %s, v%d offset:%d", HACC(i), T2, i * 1024)
            EP0[0] = len(a.l)
        a("s_mov_b32 s%d, 0xffff0000", S_T3)
        if not CSD: a("s_waitcnt lgkmcnt(0)")
        for nf in range(0, 10, 2):
            if CSD and CSD < 31:
                for z in range(2): a("v_accvgpr_read_b32 v%d, %s", T0 + z, HACC(nf >> 1).sub(z))
                for z in range(2): a("v_add_f32 v%d, v%d, v%d", CSR + nf + z, CSR + nf + z, T0 + z)
            for z in range(2): a("v_cvt_pk_bf16_f32 v%d, v%d, v%d", T2 + z, CSR + nf + z, CSR + nf + z)
            for z in range(2): a("v_and_b32 v%d, s%d, v%d", T2 + z, S_T3, T2 + z)
            for z in range(2): a("v_sub_f32 v%d, v%d, v%d", T2 + z, CSR + nf + z, T2 + z)
            for z in range(2): a("v_cvt_pk_bf16_f32 v%d, v%d, v%d", CSR + nf + z, CSR + nf + z, T2 + z)
        def corr(t, nf, mf, ci):
            if isV(nf): return "v_mfma_f32_16x16x32_bf16 %s, %s, %s, %s" % (t, stt(mf), cst(ci), t)
            return "v_mfma_f32_16x16x32_bf16 %s, %s, %s, %s" % (t, cst(ci), stt(mf), t)
        def fetch(t, tmp, L):
            if t.kind == 'v': return t.base
            for i in range(4): L.append("v_accvgpr_read_b32 v%d, %s" % (tmp + i, t.sub(i)))
            return tmp
        def mul4(L, d, s_, m):
            if PK:
                mb = m & ~1; sel = m & 1
                for i in (0, 2):
                    L.append("v_pk_mul_f32 v[%d:%d], v[%d:%d], v[%d:%d] op_sel:[0,%d] op_sel_hi:[1,%d]" % (d + i, d + i + 1, s_ + i, s_ + i + 1, mb, mb + 1, sel, sel))
            else:
                for i in range(4): L.append("v_mul_f32 v%d, v%d, v%d" % (d + i, s_ + i, m))
        def mul44(L, d, s_, m):
            if PK:
                for i in (0, 2):
                    L.append("v_pk_mul_f32 v[%d:%d], v[%d:%d], v[%d:%d]" % (d + i, d + i + 1, s_ + i, s_ + i + 1, m + i, m + i + 1))
            else:
                for i in range(4): L.append("v_mul_f32 v%d, v%d, v%d" % (d + i, s_ + i, m + i))
        def glu_half(g, u, mf, o):
            L = []
            mul4(L, g, g, CG + mf)
            for i in range(4): L.append("v_exp_f32 v%d, v%d" % (g + i, g + i))
            sd = SD(mf)
            if PK:
                for i in (0, 2):
                    L.append("v_pk_fma_f32 v[%d:%d], v[%d:%d], v[%d:%d], v[%d:%d] op_sel:[0,1,1] op_sel_hi:[1,1,1]" % (g + i, g + i + 1, g + i, g + i + 1, sd - 1, sd, sd - 1, sd))
            else:
                for i in range(4): L.append("v_fma_f32 v%d, v%d, v%d, v%d" % (g + i, g + i, sd, sd))
            for i in range(4): L.append("v_rcp_f32 v%d, v%d" % (g + i, g + i))
            mul44(L, u, u, g)
            return L
        def glu_group(grp, tmp, sbase, soff, vaddr):
            F = []
            (ga, ua, ma), (gb, ub, mb) = grp
            ra = fetch(ga, tmp, F); rua = fetch(ua, tmp + 4, F); rb = fetch(gb, tmp + 8, F); rub = fetch(ub, tmp + 12, F)
            L = F + zipl(glu_half(ra, rua, ma, 0), glu_half(rb, rub, mb, 0))
            L.append("s_add_u32 s%d, s%d, %d" % (S_T, sbase, soff))
            L.append("v_cvt_pk_bf16_f32 v%d, v%d, v%d" % (ra, rua, rua + 1))
            L.append("v_cvt_pk_bf16_f32 v%d, v%d, v%d" % (ra + 2, rub, rub + 1))
            L.append("v_cvt_pk_bf16_f32 v%d, v%d, v%d" % (ra + 1, rua + 2, rua + 3))
            L.append("v_cvt_pk_bf16_f32 v%d, v%d, v%d" % (ra + 3, rub + 2, rub + 3))
            L.append("v_permlane32_swap_b32 v%d, v%d" % (ra, ra + 2))
            L.append("v_permlane32_swap_b32 v%d, v%d" % (ra + 1, ra + 3))
            L.append("buffer_store_dwordx4 v[%d:%d], v%d, s[%d:%d], s%d offen%s" % (ra, ra + 3, vaddr, S_ACT, S_ACT + 3, S_T, STM))
            return L
        def run_groups(groups):
            for x_ in groups[0][0] + groups[0][1]: a(x_)
            for k, (pre, cl, vl) in enumerate(groups):
                nxt = (groups[k + 1][0] + groups[k + 1][1]) if k + 1 < len(groups) else []
                for x_ in spread(vl, nxt, 0.05, 0.6): a(x_)
        def glu_groups(pairs, tmps):
            G = []
            for (na_, nb_, sbase, kboff) in pairs:
                if nb_ is not None:
                    for mf in range(8):
                        pre = []
                        if mf == 0:
                            pre = ["v_mov_b32 v%d, v%d" % (CST + 4 * i, CSR + nf) for i, nf in enumerate((na_, na_ + 1, nb_, nb_ + 1))]
                        cl = [corr(tiles[(nf, mf)], nf, mf, i) for i, nf in enumerate((na_, na_ + 1, nb_, nb_ + 1))]
                        vl = glu_group([(tiles[(na_, mf)], tiles[(na_ + 1, mf)], mf), (tiles[(nb_, mf)], tiles[(nb_ + 1, mf)], mf)],
                                       tmps[len(G) & 1], sbase, kboff + mf * 1024, V_L16)
                        G.append((pre, cl, vl))
                else:
                    for mf in range(0, 8, 2):
                        pre = []
                        if mf == 0:
                            pre = ["v_mov_b32 v%d, v%d" % (CST + 4 * i, CSR + nf) for i, nf in enumerate((na_, na_ + 1))]
                        cl = [corr(tiles[(na_ + z, mf + y)], na_ + z, mf + y, z) for y in range(2) for z in range(2)]
                        vl = glu_group([(tiles[(na_, mf)], tiles[(na_ + 1, mf)], mf), (tiles[(na_, mf + 1)], tiles[(na_ + 1, mf + 1)], mf + 1)],
                                       tmps[len(G) & 1], sbase, kboff + mf * 1024, V_SGL)
                        G.append((pre, cl, vl))
            return G
        if wn == 1:
            run_groups(glu_groups([(0, 2, S_K1, 1 * ACT_KB), (4, 6, S_K1, 2 * ACT_KB), (8, None, S_K2, 0)], [TV, TV + 16]))
            if FUSE: (weave2 if EP2 else weave)(w)
            a("s_branch %s", fin)
            return
        if EP2:
            conv2(a, w, wm, tiles, [HACC(0), HACC(1)], [HACC(2), HACC(3)], locals())
            return
        a("v_lshrrev_b32 v%d, 4, v0", T3)
        a("v_lshlrev_b32 v%d, 4, v%d", T3, T3)
        a("v_add_u32 v%d, %d, v%d", T3, L_RT + w * 640, T3)
        RV = [CSR + 0, CSR + 0]
        prevK = [HACC(0), HACC(1)]; prevV = [HACC(2), HACC(3)]
        return_tiles = None
        conv(a, w, wm, tiles, VPB, prevK, prevV, locals())

    def conv2(a, w, wm, tiles, prevK, prevV, env):
        (corr, fetch, mul4, mul44, run_groups, glu_groups, stt, cst, SD, RR, CG, V_L16, V_SGL) = [env[k] for k in
            ("corr", "fetch", "mul4", "mul44", "run_groups", "glu_groups", "stt", "cst", "SD", "RR", "CG", "V_L16", "V_SGL")]
        RA = V_SGL
        a("v_lshrrev_b32 v%d, 4, v0", RA)
        a("v_lshlrev_b32 v%d, 4, v%d", RA, RA)
        a("v_add_u32 v%d, %d, v%d", RA, L_RT + w * 640, RA)
        def KP(b): return 80 + 4 * (b + 1)
        def QP(b): return 116 + 4 * b
        VA = [148, 166]
        FT = [184, 188, 196, 200, 204, 192]
        RVB = [10, 14]
        RQ = T3
        groups = glu_groups([(6, 8, S_K1, 0)], [TV, TV + 16])
        border = [7, 0, 1, 2, 3, 4, 5, 6] if CSD else list(range(-1, 8))
        if H2:
            a("s_lshl_b32 s%d, s%d, 16", S_STO, S_MT)
            a("s_lshl_b32 s%d, s%d, 11", S_T2, S_J)
            a("s_add_u32 s%d, s%d, %d", S_T2, S_T2, ACT_BYTES)
            a("s_add_u32 s%d, s%d, s%d", S_STO, S_STO, S_T2)
            a("v_lshlrev_b32 v%d, 3, v0", T5)
            if wm == 0:
                a("s_min_u32 s%d, s%d, 1", S_T, S_MT)
                a("s_lshl_b32 s%d, s%d, 16", S_T2, S_T)
                a("s_sub_u32 s%d, s%d, s%d", S_C1, S_STO, S_T2)
                a("s_lshl_b32 s%d, s%d, 10", S_T2, S_T)
                a("s_sub_u32 s%d, s%d, s%d", S_C0, p2.Q_FSIG, S_T2)
                a("s_add_u32 s%d, s%d, 512", S_C0, S_C0)
                HALO[0] = [("buffer_load_dwordx4 v[%d:%d], v%d, s[%d:%d], s%d offen sc1" % (KP(-1), KP(-1) + 3, V_L16, S_ACT, S_ACT + 3, S_C1), ('HL', 0))] + \
                          [("buffer_load_dwordx2 v[%d:%d], v%d, s[%d:%d], s%d offen offset:%d sc1" % (VA[f], VA[f] + 1, T5, S_ACT, S_ACT + 3, S_C1, 1024 + 512 * f), ('HL', 0)) for f in range(2)]
            else:
                HALO[0] = ["ds_read_b32 v239, v238", "ds_read_b128 v[%d:%d], v236" % (KP(-1), KP(-1) + 3)] + \
                          ["ds_read_b64 v[%d:%d], v237 offset:%d" % (VA[f], VA[f] + 1, 512 * f) for f in range(2)]
            HALO.append([KP(-1) + i for i in range(4)] + [VA[0], VA[0] + 1, VA[1], VA[1] + 1])
        elif CSD:
            a("s_lshl_b32 s%d, s%d, 1", S_T, S_MT)
            if wm: a("s_add_u32 s%d, s%d, 1", S_T, S_T)
            a("s_lshl_b32 s%d, s%d, 16", S_STO, S_T)
            a("s_lshl_b32 s%d, s%d, 11", S_T2, S_J)
            a("s_add_u32 s%d, s%d, %d", S_T2, S_T2, ACT_BYTES)
            a("s_add_u32 s%d, s%d, s%d", S_STO, S_STO, S_T2)
            a("s_min_u32 s%d, s%d, 1", S_T, S_T)
            a("s_lshl_b32 s%d, s%d, 16", S_T2, S_T)
            a("s_sub_u32 s%d, s%d, s%d", S_C1, S_STO, S_T2)
            a("s_lshl_b32 s%d, s%d, 9", S_T2, S_T)
            a("s_sub_u32 s%d, s%d, s%d", S_C0, p2.Q_FSIG, S_T2)
            a("v_lshlrev_b32 v%d, 3, v0", T5)
            HALO[0] = [("buffer_load_dwordx4 v[%d:%d], v%d, s[%d:%d], s%d offen sc1" % (KP(-1), KP(-1) + 3, V_L16, S_ACT, S_ACT + 3, S_C1), ('HL', 0))] + \
                      [("buffer_load_dwordx2 v[%d:%d], v%d, s[%d:%d], s%d offen offset:%d sc1" % (VA[f], VA[f] + 1, T5, S_ACT, S_ACT + 3, S_C1, 1024 + 512 * f), ('HL', 0)) for f in range(2)]
        for gi, b in enumerate(border):
            rvb = RVB[gi & 1]
            pre = ["ds_read_b128 v[%d:%d], v%d offset:%d" % (rvb, rvb + 3, RA, (b + 1) * 64)]
            if gi == 0: pre += ["v_mov_b32 v%d, v%d" % (CST + 4 * i, CSR + i) for i in (2, 3, 4, 5, 0, 1)]
            tl = {}
            for nf in (2, 3, 0, 1, 4, 5):
                if b < 0:
                    if nf >= 2: tl[nf] = (prevK + prevV)[nf - 2]
                else: tl[nf] = tiles[(nf, b)]
            cl = [corr(t, nf, b, nf) for nf, t in tl.items()]
            L = []; ft = list(FT)
            r_ = RR + b + 1
            AT2 = opt.get("at2", 0)
            if b >= 0 and not AT2:
                L.append("v_mul_f32 v%d, %s, v%d" % (RQ, f32(LOG2E * 32 ** -0.5), r_))
            def two(ts, mulf, dsts):
                Ls = []
                for t, d in zip(ts, dsts):
                    l_ = []
                    s_ = fetch(t, ft.pop(0), l_)
                    mulf(l_, s_)
                    l_.append("v_cvt_pk_bf16_f32 v%d, v%d, v%d" % (d, s_, s_ + 1))
                    l_.append("v_cvt_pk_bf16_f32 v%d, v%d, v%d" % (d + 1, s_ + 2, s_ + 3))
                    Ls.append(l_)
                return zipl(*Ls)
            L += two([tl[2], tl[3]], lambda l_, s_: mul4(l_, s_, s_, r_), [KP(b), KP(b) + 2])
            if b >= 0: L += two([tl[0], tl[1]], (lambda l_, s_: None) if AT2 else (lambda l_, s_: mul4(l_, s_, s_, RQ)), [QP(b), QP(b) + 2])
            if b >= 0 and AT2: L.append("v_mul_f32 v%d, %s, v%d" % (r_, f32(LOG2E * 32 ** -0.5), r_))
            L.append("s_waitcnt lgkmcnt(%d)" % (1 if gi + 1 < len(border) else 0))
            L += two([tl[4], tl[5]], lambda l_, s_: mul44(l_, s_, s_, rvb), [VA[0] + 2 * (b + 1), VA[1] + 2 * (b + 1)])
            if H2 and b == 7:
                L += ["v_add_u32 v236, %d, v%d" % (L_KV, V_L16), "v_add_u32 v237, %d, v%d" % (L_KV + 1024, T5), "v_mov_b32 v238, %d" % L_HF]
            if H2 and b == 7 and wm == 0:
                L.append("ds_write_b128 v236, v[%d:%d]" % (KP(7), KP(7) + 3))
                for f in range(2): L.append("ds_write_b64 v237, v[%d:%d] offset:%d" % (VA[f] + 16, VA[f] + 17, 512 * f))
                L.append("ds_write_b32 v238, v238")
            elif CSD and b == 7:
                L.append("buffer_store_dwordx4 v[%d:%d], v%d, s[%d:%d], s%d offen sc1" % (KP(7), KP(7) + 3, V_L16, S_ACT, S_ACT + 3, S_STO))
                for f in range(2):
                    L.append("buffer_store_dwordx2 v[%d:%d], v%d, s[%d:%d], s%d offen offset:%d sc1" % (VA[f] + 16, VA[f] + 17, T5, S_ACT, S_ACT + 3, S_STO, 1024 + 512 * f))
            groups.append((pre, cl, L))
        run_groups(groups)
        nst("e2")
        BP, BC, BPF = 224, 228, 232
        a("v_and_b32 v%d, 15, v0", T0)
        a("v_lshrrev_b32 v%d, 4, v0", T1)
        a("v_lshlrev_b32 v%d, 2, v%d", T1, T1)
        a("v_sub_u32 v%d, v%d, v%d", T0, T0, T1)
        a("v_mov_b32 v%d, %s", T3, f32(-1e30))
        a("s_mov_b32 s%d, 0x80000001", S_T3)
        a("s_brev_b32 s%d, 1", S_T2)
        for i in range(4):
            a("v_subrev_u32 v%d, %d, v%d", T1, i, T0)
            a("v_and_b32 v%d, s%d, v%d", T1, S_T3, T1)
            a("v_cmp_eq_u32 vcc, 0, v%d", T1)
            a("v_cndmask_b32 v%d, v%d, 0, vcc", BC + i, T3)
            a("v_cmp_eq_u32 vcc, s%d, v%d", S_T2, T1)
            a("v_cndmask_b32 v%d, v%d, 0, vcc", BP + i, T3)
        if wm == 0:
            a("s_cmp_eq_u32 s%d, 0", S_M0)
            a("s_cselect_b64 vcc, -1, 0")
            for i in range(4): a("v_cndmask_b32 v%d, v%d, v%d, vcc", BPF + i, BP + i, T3)
        else: BPF = BP
        if opt.get("at2"): attn_all2(a, QP, KP, VA, BP, BC, BPF, mul4, V_L16, RR)
        else: attn_all(a, [(184, 216, 10), (200, 220, 14)], QP, KP, VA, BP, BC, BPF, mul4, V_L16)
        nst("e3")
        weave2(w)
        a("s_branch %s", fin)

    def attn_all2(a, QP, KP, VPB, BP, BC, BPF, mul4, V_L16, RR):
        NS = opt["at2"]
        MK, ONE = 40, 44
        sets = [184, 204, 20, 48][:NS]
        for i, src in enumerate((BP, BP + 2, BC, BC + 2)):
            a("v_cvt_pk_bf16_f32 v%d, v%d, v%d", MK + i, src, src + 1)
        for i in range(4):
            a("v_mov_b32 v%d, 0x3f803f80", ONE + i)
            a("v_pk_ashrrev_i16 v%d, 15, v%d op_sel_hi:[0,1]", MK + i, MK + i)
        sreg = [S_T, S_T2, S_T3, S_K2]
        def attn(b, k):
            base = sets[k]
            SP, SC, P, OS, M = base, base + 4, base + 8, base + 12, base + 16
            Tm = M + 1; A_ = M + 2; B_ = M + 3
            Qb = QP(b); Kb = KP(b); Kp = KP(b - 1)
            bp = BPF if b == 0 else BP
            rq = RR + b + 1
            L = []
            if CSD and b == 0: L.append("HALOWAIT")
            L.append("v_mfma_f32_16x16x32_bf16 v[%d:%d], v[%d:%d], v[%d:%d], v[%d:%d]" % (SP, SP + 3, Kp, Kp + 3, Qb, Qb + 3, bp, bp + 3))
            L.append("NOP")
            L.append("v_mfma_f32_16x16x32_bf16 v[%d:%d], v[%d:%d], v[%d:%d], v[%d:%d]" % (SC, SC + 3, Kb, Kb + 3, Qb, Qb + 3, BC, BC + 3))
            L += ["NOP"] * opt.get("at_n1", 3)
            L.append("v_max_f32 v%d, v%d, v%d" % (A_, SP, SP + 1))
            L.append("v_max_f32 v%d, v%d, v%d" % (B_, SP + 2, SP + 3))
            L.append("v_max3_f32 v%d, v%d, v%d, v%d" % (A_, A_, SC, SC + 1))
            L.append("v_max3_f32 v%d, v%d, v%d, v%d" % (B_, B_, SC + 2, SC + 3))
            L.append("v_max_f32 v%d, v%d, v%d" % (M, A_, B_))
            L.append("v_max_f32 v%d, v%d, v%d" % (Tm, A_, B_))
            for sw in ("16", "32"):
                L.append("v_permlane%s_swap_b32 v%d, v%d" % (sw, M, Tm))
                if sw == "16":
                    L.append("v_max_f32 v%d, v%d, v%d" % (SP, M, Tm))
                    L.append("v_max_f32 v%d, v%d, v%d" % (Tm, M, Tm))
                    L.append("v_permlane32_swap_b32 v%d, v%d" % (SP, Tm))
                    L.append("v_max_f32 v%d, v%d, v%d" % (M, SP, Tm))
                    break
            L.append("v_pk_add_f32 v[%d:%d], v[%d:%d], v[%d:%d] op_sel_hi:[1,0] neg_lo:[0,1] neg_hi:[0,1]" % (A_, B_, A_, B_, M, M + 1))
            mb = rq & ~1; sel = rq & 1
            L.append("v_pk_mul_f32 v[%d:%d], v[%d:%d], v[%d:%d] op_sel:[0,%d] op_sel_hi:[1,%d]" % (A_, B_, A_, B_, mb, mb + 1, sel, sel))
            L.append("v_exp_f32 v%d, v%d" % (A_, A_))
            L.append("v_exp_f32 v%d, v%d" % (B_, B_))
            L.append("v_cvt_pk_bf16_f32 v%d, v%d, v%d" % (A_, A_, A_))
            L.append("v_cvt_pk_bf16_f32 v%d, v%d, v%d" % (B_, B_, B_))
            for i in range(4): L.append("v_bfi_b32 v%d, v%d, 0, v%d" % (P + i, MK + i, B_ if i & 1 else A_))
            L.append("NOP")
            L.append("v_mfma_f32_16x16x32_bf16 v[%d:%d], v[%d:%d], v[%d:%d], 0" % (OS, OS + 3, ONE, ONE + 3, P, P + 3))
            for f, O in enumerate((SP, SC)):
                vb = VPB[f] + 2 * b
                L.append("NOP")
                L.append("v_mfma_f32_16x16x32_bf16 v[%d:%d], v[%d:%d], v[%d:%d], 0" % (O, O + 3, vb, vb + 3, P, P + 3))
            L.append("s_add_u32 s%d, s%d, %d" % (sreg[k], S_AB, b * 1024))
            L += ["NOP"] * opt.get("at_n2", 1)
            L.append("v_rcp_f32 v%d, v%d" % (M, OS))
            L += ["NOP"] * opt.get("at_n3", 1)
            mul4(L, SP, SP, M); mul4(L, SC, SC, M)
            L.append("v_cvt_pk_bf16_f32 v%d, v%d, v%d" % (P, SP, SP + 1))
            L.append("v_cvt_pk_bf16_f32 v%d, v%d, v%d" % (P + 2, SC, SC + 1))
            L.append("v_cvt_pk_bf16_f32 v%d, v%d, v%d" % (P + 1, SP + 2, SP + 3))
            L.append("v_cvt_pk_bf16_f32 v%d, v%d, v%d" % (P + 3, SC + 2, SC + 3))
            L.append("v_permlane32_swap_b32 v%d, v%d" % (P, P + 2))
            L.append("v_permlane32_swap_b32 v%d, v%d" % (P + 1, P + 3))
            L.append("buffer_store_dwordx4 v[%d:%d], v%d, s[%d:%d], s%d offen%s" % (P, P + 3, V_L16, S_ACT, S_ACT + 3, sreg[k], STM))
            return L
        order = [1, 2, 3, 4, 5, 6, 7, 0] if CSD else list(range(8))
        n1 = len(attn(0, 0))
        streams = []
        for k in range(NS):
            streams.append(["NOP"] * (n1 * k // NS) + sum((attn(b, k) for b in order[k::NS]), []))
        for x_ in zipl(*streams):
            if x_ != "NOP": a(x_)

    def attn_all(a, sets, QP, KP, VPB, BP, BC, BPF, mul4, V_L16):
        def attn(b):
            base, P, M = sets[b & 1]
            SP, SC, O0, O1 = base, base + 4, base + 8, base + 12
            Tm = M + 1; Sm = M + 2; S2 = M + 3
            Qb = QP(b); Kb = KP(b); Kp = KP(b - 1)
            bp = BPF if b == 0 else BP
            L = []
            L.append("v_mfma_f32_16x16x32_bf16 v[%d:%d], v[%d:%d], v[%d:%d], v[%d:%d]" % (SP, SP + 3, Kp, Kp + 3, Qb, Qb + 3, bp, bp + 3))
            L.append("v_mfma_f32_16x16x32_bf16 v[%d:%d], v[%d:%d], v[%d:%d], v[%d:%d]" % (SC, SC + 3, Kb, Kb + 3, Qb, Qb + 3, BC, BC + 3))
            L += ["NOP"] * 4
            L.append("v_max3_f32 v%d, v%d, v%d, v%d" % (M, SP, SP + 1, SP + 2))
            L.append("v_max3_f32 v%d, v%d, v%d, v%d" % (Tm, SP + 3, SC, SC + 1))
            L.append("v_max3_f32 v%d, v%d, v%d, v%d" % (M, M, SC + 2, SC + 3))
            L.append("v_max_f32 v%d, v%d, v%d" % (M, M, Tm))
            for sw in ("16", "32"):
                L.append("v_mov_b32 v%d, v%d" % (Tm, M))
                L.append("v_permlane%s_swap_b32 v%d, v%d" % (sw, M, Tm))
                L.append("v_max_f32 v%d, v%d, v%d" % (M, M, Tm))
            for i in range(8): L.append("v_sub_f32 v%d, v%d, v%d" % (SP + i, SP + i, M))
            for i in range(8): L.append("v_exp_f32 v%d, v%d" % (SP + i, SP + i))
            for i in range(4): L.append("v_cvt_pk_bf16_f32 v%d, v%d, v%d" % (P + i, SP + 2 * i, SP + 2 * i + 1))
            L.append("v_add_f32 v%d, v%d, v%d" % (Sm, SP, SP + 1))
            L.append("v_add_f32 v%d, v%d, v%d" % (S2, SP + 2, SP + 3))
            for f, O in enumerate((O0, O1)):
                vb = VPB[f] + 2 * b
                L.append("v_mfma_f32_16x16x32_bf16 v[%d:%d], v[%d:%d], v[%d:%d], 0" % (O, O + 3, vb, vb + 3, P, P + 3))
            L.append("v_add_f32 v%d, v%d, v%d" % (Sm, Sm, SP + 4))
            L.append("v_add_f32 v%d, v%d, v%d" % (S2, S2, SP + 5))
            L.append("v_add_f32 v%d, v%d, v%d" % (Sm, Sm, SP + 6))
            L.append("v_add_f32 v%d, v%d, v%d" % (S2, S2, SP + 7))
            L.append("v_add_f32 v%d, v%d, v%d" % (Sm, Sm, S2))
            for sw in ("16", "32"):
                L.append("v_mov_b32 v%d, v%d" % (Tm, Sm))
                L.append("v_permlane%s_swap_b32 v%d, v%d" % (sw, Sm, Tm))
                L.append("v_add_f32 v%d, v%d, v%d" % (Sm, Sm, Tm))
            L.append("v_rcp_f32 v%d, v%d" % (Sm, Sm))
            mul4(L, O0, O0, Sm); mul4(L, O1, O1, Sm)
            st_ = S_T if b & 1 else S_T2
            L.append("s_add_u32 s%d, s%d, %d" % (st_, S_AB, b * 1024))
            L.append("v_cvt_pk_bf16_f32 v%d, v%d, v%d" % (SP, O0, O0 + 1))
            L.append("v_cvt_pk_bf16_f32 v%d, v%d, v%d" % (SP + 2, O1, O1 + 1))
            L.append("v_cvt_pk_bf16_f32 v%d, v%d, v%d" % (SP + 1, O0 + 2, O0 + 3))
            L.append("v_cvt_pk_bf16_f32 v%d, v%d, v%d" % (SP + 3, O1 + 2, O1 + 3))
            L.append("v_permlane32_swap_b32 v%d, v%d" % (SP, SP + 2))
            L.append("v_permlane32_swap_b32 v%d, v%d" % (SP + 1, SP + 3))
            L.append("buffer_store_dwordx4 v[%d:%d], v%d, s[%d:%d], s%d offen%s" % (SP, SP + 3, V_L16, S_ACT, S_ACT + 3, st_, STM))
            return L
        SAa = sum((attn(b) for b in range(0, 8, 2)), [])
        SBb = sum((attn(b) for b in range(1, 8, 2)), [])
        sh = len(attn(0)) // 2
        for x_ in zipl(SAa + ["NOP"] * sh, ["NOP"] * sh + SBb):
            if x_ != "NOP": a(x_)

    def conv(a, w, wm, tiles, VPB, prevK, prevV, env):
        (corr, fetch, mul4, mul44, run_groups, glu_groups, stt, cst, SD, RR, CG, V_L16, V_SGL) = [env[k] for k in
            ("corr", "fetch", "mul4", "mul44", "run_groups", "glu_groups", "stt", "cst", "SD", "RR", "CG", "V_L16", "V_SGL")]
        FT = 10
        RVB = [14, 74]
        a("v_mov_b32 v%d, v%d", T5, T3)
        RA = T5
        KP = CST + 0
        for i in range(6): a("v_mov_b32 v%d, v%d", CST + 4 * i, CSR + i)
        KPK = CSR
        RQ = CSR + 4
        groups = []
        for b in range(-1, 8):
            pre = ["ds_read_b128 v[%d:%d], v%d offset:%d" % (RVB[(b + 1) & 1], RVB[(b + 1) & 1] + 3, RA, (b + 1) * 64)]
            tl = {}
            for nf in range(6):
                if b < 0:
                    if nf >= 2: tl[nf] = (prevK + prevV)[nf - 2]
                else: tl[nf] = tiles[(nf, b)]
            cl = [corr(t, nf, b, nf) for nf, t in tl.items()]
            L = []
            r_ = RR + b + 1
            if b >= 0:
                L.append("v_mul_f32 v%d, %s, v%d" % (RQ, f32(LOG2E * 32 ** -0.5), r_))
            for base_nf, mreg in ((2, r_), (0, RQ)):
                if base_nf not in tl: continue
                dst = KPK if b < 0 else tl[base_nf].base
                for f in range(2):
                    s_ = fetch(tl[base_nf + f], FT, L)
                    mul4(L, s_, s_, mreg)
                    L.append("v_cvt_pk_bf16_f32 v%d, v%d, v%d" % (dst + 2 * f, s_, s_ + 1))
                    L.append("v_cvt_pk_bf16_f32 v%d, v%d, v%d" % (dst + 2 * f + 1, s_ + 2, s_ + 3))
            L.append("s_waitcnt lgkmcnt(%d)" % (1 if b < 7 else 0))
            for f in range(2):
                s_ = fetch(tl[4 + f], FT, L)
                mul44(L, s_, s_, RVB[(b + 1) & 1])
                dst = VPB[f] + 2 * (b + 1)
                L.append("v_cvt_pk_bf16_f32 v%d, v%d, v%d" % (dst, s_, s_ + 1))
                L.append("v_cvt_pk_bf16_f32 v%d, v%d, v%d" % (dst + 1, s_ + 2, s_ + 3))
            groups.append((pre, cl, L))
        for x_ in groups[0][0] + groups[0][1]: a(x_)
        for k, (pre, cl, vl) in enumerate(groups):
            if k + 1 < len(groups):
                for x_ in groups[k + 1][0]: a(x_)
                for x_ in spread(vl, groups[k + 1][1], 0.05, 0.6): a(x_)
            else:
                for x_ in vl: a(x_)
        nst("e2")
        K1 = [tiles[(3, mf)].base for mf in range(8)]
        BP, BC, BPF = K1[0], K1[1], K1[2]
        a("v_and_b32 v%d, 15, v0", T0)
        a("v_lshrrev_b32 v%d, 4, v0", T1)
        a("v_lshlrev_b32 v%d, 2, v%d", T1, T1)
        a("v_sub_u32 v%d, v%d, v%d", T0, T0, T1)
        a("v_mov_b32 v%d, %s", T3, f32(-1e30))
        a("s_mov_b32 s%d, 0x80000001", S_T3)
        a("s_brev_b32 s%d, 1", S_T2)
        for i in range(4):
            a("v_subrev_u32 v%d, %d, v%d", T1, i, T0)
            a("v_and_b32 v%d, s%d, v%d", T1, S_T3, T1)
            a("v_cmp_eq_u32 vcc, 0, v%d", T1)
            a("v_cndmask_b32 v%d, v%d, 0, vcc", BC + i, T3)
            a("v_cmp_eq_u32 vcc, s%d, v%d", S_T2, T1)
            a("v_cndmask_b32 v%d, v%d, 0, vcc", BP + i, T3)
        if wm == 0:
            a("s_cmp_eq_u32 s%d, 0", S_M0)
            a("s_cselect_b64 vcc, -1, 0")
            for i in range(4): a("v_cndmask_b32 v%d, v%d, v%d, vcc", BPF + i, BP + i, T3)
        else: BPF = BP
        sets = [(VPB[0] + 18, K1[3], K1[4]), (VPB[1] + 18, K1[5], K1[6])]
        def attn(b):
            base, P, M = sets[b & 1]
            SP, SC, O0, O1 = base, base + 4, base + 8, base + 12
            Tm = M + 1; Sm = M + 2; S2 = M + 3
            Qb = tiles[(0, b)].base; Kb = tiles[(2, b)].base; Kp = KPK if b == 0 else tiles[(2, b - 1)].base
            bp = BPF if b == 0 else BP
            L = []
            L.append("v_mfma_f32_16x16x32_bf16 v[%d:%d], v[%d:%d], v[%d:%d], v[%d:%d]" % (SP, SP + 3, Kp, Kp + 3, Qb, Qb + 3, bp, bp + 3))
            L.append("v_mfma_f32_16x16x32_bf16 v[%d:%d], v[%d:%d], v[%d:%d], v[%d:%d]" % (SC, SC + 3, Kb, Kb + 3, Qb, Qb + 3, BC, BC + 3))
            L += ["NOP"] * 4
            L.append("v_max3_f32 v%d, v%d, v%d, v%d" % (M, SP, SP + 1, SP + 2))
            L.append("v_max3_f32 v%d, v%d, v%d, v%d" % (Tm, SP + 3, SC, SC + 1))
            L.append("v_max3_f32 v%d, v%d, v%d, v%d" % (M, M, SC + 2, SC + 3))
            L.append("v_max_f32 v%d, v%d, v%d" % (M, M, Tm))
            for sw in ("16", "32"):
                L.append("v_mov_b32 v%d, v%d" % (Tm, M))
                L.append("v_permlane%s_swap_b32 v%d, v%d" % (sw, M, Tm))
                L.append("v_max_f32 v%d, v%d, v%d" % (M, M, Tm))
            for i in range(8): L.append("v_sub_f32 v%d, v%d, v%d" % (SP + i, SP + i, M))
            for i in range(8): L.append("v_exp_f32 v%d, v%d" % (SP + i, SP + i))
            for i in range(4): L.append("v_cvt_pk_bf16_f32 v%d, v%d, v%d" % (P + i, SP + 2 * i, SP + 2 * i + 1))
            L.append("v_add_f32 v%d, v%d, v%d" % (Sm, SP, SP + 1))
            L.append("v_add_f32 v%d, v%d, v%d" % (S2, SP + 2, SP + 3))
            for f, O in enumerate((O0, O1)):
                vb = VPB[f] + 2 * b
                L.append("v_mfma_f32_16x16x32_bf16 v[%d:%d], v[%d:%d], v[%d:%d], 0" % (O, O + 3, vb, vb + 3, P, P + 3))
            L.append("v_add_f32 v%d, v%d, v%d" % (Sm, Sm, SP + 4))
            L.append("v_add_f32 v%d, v%d, v%d" % (S2, S2, SP + 5))
            L.append("v_add_f32 v%d, v%d, v%d" % (Sm, Sm, SP + 6))
            L.append("v_add_f32 v%d, v%d, v%d" % (S2, S2, SP + 7))
            L.append("v_add_f32 v%d, v%d, v%d" % (Sm, Sm, S2))
            for sw in ("16", "32"):
                L.append("v_mov_b32 v%d, v%d" % (Tm, Sm))
                L.append("v_permlane%s_swap_b32 v%d, v%d" % (sw, Sm, Tm))
                L.append("v_add_f32 v%d, v%d, v%d" % (Sm, Sm, Tm))
            L.append("v_rcp_f32 v%d, v%d" % (Sm, Sm))
            mul4(L, O0, O0, Sm); mul4(L, O1, O1, Sm)
            st_ = S_T if b & 1 else S_T2
            L.append("s_add_u32 s%d, s%d, %d" % (st_, S_AB, b * 1024))
            L.append("v_cvt_pk_bf16_f32 v%d, v%d, v%d" % (SP, O0, O0 + 1))
            L.append("v_cvt_pk_bf16_f32 v%d, v%d, v%d" % (SP + 2, O1, O1 + 1))
            L.append("v_cvt_pk_bf16_f32 v%d, v%d, v%d" % (SP + 1, O0 + 2, O0 + 3))
            L.append("v_cvt_pk_bf16_f32 v%d, v%d, v%d" % (SP + 3, O1 + 2, O1 + 3))
            L.append("v_permlane32_swap_b32 v%d, v%d" % (SP, SP + 2))
            L.append("v_permlane32_swap_b32 v%d, v%d" % (SP + 1, SP + 3))
            L.append("buffer_store_dwordx4 v[%d:%d], v%d, s[%d:%d], s%d offen%s" % (SP, SP + 3, V_L16, S_ACT, S_ACT + 3, st_, STM))
            return L
        SAa = sum((attn(b) for b in range(0, 8, 2)), [])
        SBb = sum((attn(b) for b in range(1, 8, 2)), [])
        sh = len(attn(0)) // 2
        for x_ in zipl(SAa + ["NOP"] * sh, ["NOP"] * sh + SBb):
            if x_ != "NOP": a(x_)
        nst("e3")
        for mf in range(8): a("v_mul_f32 v%d, %s, v%d", CG + mf, f32(-LOG2E), RR + mf + 1)
        run_groups(glu_groups([(6, 8, S_K1, 0)], [TV, TV + 16]))
        if FUSE: weave(w)
        a("s_branch %s", fin)

    for w in range(4):
        variant(w)
        a("s_nop 7"); a("s_nop 7")
        for l1, l2 in SPINS:
            a.label(l1)
            a("ds_read_b32 v%d, v%d", V_FD, V_FR)
            a("s_waitcnt lgkmcnt(0)")
            a("v_cmp_lt_u32 vcc, v%d, v%d", V_FD, V_FS)
            a("s_cbranch_vccnz %s", l1)
            a("s_branch %s", l2)
        del SPINS[:]
        for l1, l2, f_ in SIGS:
            a.label(l1); f_(); a("s_branch %s", l2)
        del SIGS[:]
        for l1, l2, hpoll in HSPIN:
            a.label(l1)
            a("s_sleep 2")
            if H2 and w == 0:
                a("buffer_load_dword v239, off, s[%d:%d], s%d sc1", p2.Q_F, p2.Q_F + 3, S_C0)
                a("s_waitcnt vmcnt(0)")
                a("v_readfirstlane_b32 s%d, v239", S_OK)
                a("s_cmp_eq_u32 s%d, 0", S_OK)
                a("s_cbranch_scc1 %s", l1)
                for x_ in hpoll: a(x_[0])
                a("s_waitcnt vmcnt(0)")
                a("s_branch %s", l2)
                continue
            if H2:
                for x_ in hpoll: a(x_)
                a("s_waitcnt lgkmcnt(0)")
                a("v_readfirstlane_b32 s%d, v239", S_OK)
                a("s_cmp_eq_u32 s%d, 0", S_OK)
                a("s_cbranch_scc1 %s", l1)
                a("s_branch %s", l2)
                continue
            for x_ in hpoll: a(x_[0] if isinstance(x_, tuple) else x_)
            a("s_waitcnt vmcnt(0)")
            a("v_readfirstlane_b32 s%d, v%d", S_OK, TV)
            a("s_cmp_eq_u32 s%d, 0", S_OK)
            a("s_cbranch_scc1 %s", l1)
            a("s_branch %s", l2)
        del HSPIN[:]
    a.label(fin)
    nst("epi")
    if FUSE:
        lslow = a.newlab("L_p2_slow"); lback = a.newlab("L_p2_back")
        if not opt.get("wv2"):
            a("s_cmp_eq_u32 s%d, 0", p2.Q_A2 + 2)
            a("s_cbranch_scc1 %s", lslow)
        a.label(lback)
        if EP2: QENT.append([('A', s_) for s_ in range(opt.get("wv_na", 8)) for _ in range(4)])
        spins = p2.body(a, QENT, NPRE, True, lambda i: nst(["p0", "p20", "p28", "p36"][i]))
    if opt.get("prof"):
        a("s_waitcnt vmcnt(0)")
    stamp(a, opt, 4)
    stamp_store(a, opt, 5, P_WS, S_W, 1, 20)
    a.label(done)
    a("s_endpgm")
    if FUSE:
        a("s_nop 7")
        p2.spin_code(a, spins)
    if FUSE and not opt.get("wv2"):
        a.label(lslow)
        a("v_mov_b32 v%d, %d", T2, 2 if EP2 else 1)
        a("s_waitcnt vmcnt(0)")
        nst("sl1")
        a("s_mov_b64 exec, 1")
        a("buffer_store_dword v%d, off, s[%d:%d], s%d sc1", T2, p2.Q_F, p2.Q_F + 3, p2.Q_FSIG)
        a("s_mov_b64 exec, -1")
        lsl2 = a.newlab("L_p2_slow2")
        a.label(lsl2)
        if opt.get("wv_sleep"): a("s_sleep %d", opt["wv_sleep"])
        p2.poll_emit(a, 0)
        a("s_waitcnt vmcnt(0)")
        for x_ in p2.poll_test(0): a(x_)
        a("s_cbranch_scc1 %s", lsl2)
        nst("sl2")
        for s_ in range(opt.get("wv_na", 8) if EP2 else 8):
            for x_ in p2.a_job(s_): a(x_[0] if isinstance(x_, tuple) else x_)
        if not EP2: a("s_waitcnt vmcnt(%d)", 0)
        a("s_branch %s", lback)
    if FUSE:
        i0 = a.l.index(labs[3] + ":"); i1 = a.l.index(fin + ":")
        a.l = [".p2align 8", "L_code_start:"] + a.l[i0:i1] + a.l[:i0] + a.l[i1:]
    lines, added = hazard.fix(a.l)
    a0.l += lines
    a0._lab = a._lab
    return kernel_desc(name, 512, 256, 102 if FUSE else 100)
```

```python
from gen_common import *
import hazard

NSLOT = 9
FLG_ACT = 4096
FLG_BYTES = 4096 + 8192
SLOTB = [160, 176, 192, 208, 224, 240] + [16 * i for i in range(10)]

class P2:
    Q_X, Q_O, Q_P, Q_F, Q_A, Q_W, Q_A2 = 4, 8, 12, 16, 20, 64, 60
    Q_BA, Q_BC, Q_BT, Q_BP, Q_KD, Q_WG, Q_WT, Q_M0W = 32, 33, 34, 35, 36, 37, 38, 39
    Q_T, Q_T2, Q_OK = 46, 47, 48
    Q_XROW, Q_PSEND, Q_PRECV, Q_FSEND, Q_FRECV, Q_FPOLL, Q_FSIG, Q_KS, Q_MT, Q_NT = 68, 69, 70, 71, 72, 73, 74, 75, 76, 77
    P_OUT = 100
    V_L16 = 18; V_POLL = 78
    V_R = [18, 2, 3]; V_XL = 4; V_XO = 5; V_FL = 6; V_ONE = 7; V_ZERO = 8; T0, T1, T2, T3 = 9, 10, 11, 12
    XL = 20; RECV = 208

    def __init__(self, opt, S_W):
        self.opt = opt; self.S_W = S_W; self.nst = None
        self.EP2 = opt.get("ep2", 0); self.XE = opt.get("xe", 0)
        self.SL = list(SLOTB)
        if self.XE:
            self.SL = SLOTB[1:self.XE + 1] + SLOTB[:1] + SLOTB[self.XE + 1:]
            self.XL = 240
        self.AKB = opt.get("akb", 131072)
        self.amod = opt.get("p2_amod", " sc1"); self.wmod = opt.get("p2_wmod", " sc1")
    def acc(self, half, mf, nf): return R('v', 80 + half * 32 + (mf * 2 + nf) * 4, 4)
    def afrag(self, st, i): return R('v', 144 + st * 32 + i * 4, 4)
    def wfrag(self, b, kk, nf): return R('a', self.SL[b & 15] + (kk * 2 + nf) * 4, 4)

    def setup_s(self):
        p = self; L = []; AKB = p.AKB; W = p.S_W
        def e(s, *x): L.append(s % x if x else s)
        e("s_and_b32 s%d, s2, 1", p.Q_KS)
        e("s_bfe_u32 s%d, s2, 0x20001", p.Q_MT)
        e("s_lshl_b32 s%d, s%d, 2", p.Q_MT, p.Q_MT)
        e("s_lshr_b32 s%d, s2, 6", p.Q_T)
        e("s_add_u32 s%d, s%d, s%d", p.Q_MT, p.Q_MT, p.Q_T)
        e("s_bfe_u32 s%d, s2, 0x30003", p.Q_NT)
        e("s_lshl_b32 s%d, s%d, 12", p.Q_M0W, W)
        e("s_lshl_b32 s%d, s%d, 1", p.Q_T, p.Q_MT)
        e("s_add_u32 s%d, s%d, s%d", p.Q_T, p.Q_T, p.Q_KS)
        e("s_lshl_b32 s%d, s%d, 17", p.Q_XROW, p.Q_T)
        e("s_lshl_b32 s%d, s%d, 12", p.Q_T, p.Q_T)
        e("s_xor_b32 s%d, s%d, 4096", p.Q_T2, p.Q_T)
        e("s_sub_u32 s%d, s%d, s%d", p.Q_KD, p.Q_T, p.Q_T2)
        e("s_lshl_b32 s%d, s%d, 4", p.Q_BT, p.Q_KS)
        e("s_add_u32 s%d, s%d, s%d", p.Q_BT, p.Q_BT, W)
        e("s_mul_i32 s%d, s%d, %d", p.Q_BT, p.Q_BT, AKB)
        e("s_add_u32 s%d, s%d, s%d", p.Q_BT, p.Q_BT, p.Q_T2)
        e("s_mul_i32 s%d, s%d, 56", p.Q_WG, p.Q_KS)
        e("s_add_u32 s%d, s%d, 32", p.Q_WG, p.Q_WG)
        e("s_lshr_b32 s%d, s%d, 1", p.Q_BC, W)
        e("s_lshl_b32 s%d, s%d, 2", p.Q_BP, W)
        e("s_sub_u32 s%d, s%d, s%d", p.Q_BP, p.Q_BP, p.Q_BC)
        e("s_add_u32 s%d, s%d, s%d", p.Q_BP, p.Q_BP, p.Q_WG)
        e("s_mul_i32 s%d, s%d, %d", p.Q_BP, p.Q_BP, AKB)
        e("s_add_u32 s%d, s%d, s%d", p.Q_BP, p.Q_BP, p.Q_T2)
        e("s_and_b32 s%d, s%d, 1", p.Q_T2, W)
        e("s_lshl_b32 s%d, s%d, 12", p.Q_T2, p.Q_T2)
        e("s_xor_b32 s%d, s%d, s%d", p.Q_T, p.Q_T, p.Q_T2)
        e("s_lshl_b32 s%d, s%d, 2", p.Q_BA, p.Q_BC)
        e("s_add_u32 s%d, s%d, s%d", p.Q_BA, p.Q_BA, p.Q_WG)
        e("s_mul_i32 s%d, s%d, %d", p.Q_BA, p.Q_BA, AKB)
        e("s_add_u32 s%d, s%d, s%d", p.Q_BA, p.Q_BA, p.Q_T)
        e("s_mul_i32 s%d, s%d, 7", p.Q_BC, p.Q_BC)
        e("s_add_u32 s%d, s%d, s%d", p.Q_BC, p.Q_BC, p.Q_WG)
        e("s_mul_i32 s%d, s%d, %d", p.Q_BC, p.Q_BC, AKB)
        e("s_add_u32 s%d, s%d, s%d", p.Q_BC, p.Q_BC, p.Q_T)
        e("s_lshl_b32 s%d, s%d, 13", p.Q_T, p.Q_NT)
        e("s_lshl_b32 s%d, s%d, 11", p.Q_T2, W)
        e("s_add_u32 s%d, s%d, s%d", p.Q_T, p.Q_T, p.Q_T2)
        e("s_lshl_b32 s%d, s%d, 16", p.Q_WG, p.Q_WG)
        e("s_add_u32 s%d, s%d, s%d", p.Q_WG, p.Q_WG, p.Q_T)
        e("s_lshl_b32 s%d, s%d, 20", p.Q_WT, p.Q_KS)
        e("s_add_u32 s%d, s%d, s%d", p.Q_WT, p.Q_WT, p.Q_T)
        e("s_lshr_b32 s%d, s%d, 5", p.Q_T, p.Q_T)
        e("s_add_u32 s%d, s%d, s%d", p.Q_XROW, p.Q_XROW, p.Q_T)
        e("s_lshl_b32 s%d, s%d, 3", p.Q_T, p.Q_MT)
        e("s_add_u32 s%d, s%d, s%d", p.Q_T, p.Q_T, p.Q_NT)
        e("s_lshl_b32 s%d, s%d, 1", p.Q_T, p.Q_T)
        e("s_add_u32 s%d, s%d, s%d", p.Q_T, p.Q_T, p.Q_KS)
        e("s_lshl_b32 s%d, s%d, 2", p.Q_T, p.Q_T)
        e("s_add_u32 s%d, s%d, s%d", p.Q_T, p.Q_T, W)
        e("s_xor_b32 s%d, s%d, 4", p.Q_T2, p.Q_T)
        e("s_lshl_b32 s%d, s%d, 13", p.Q_PRECV, p.Q_T)
        e("s_lshl_b32 s%d, s%d, 13", p.Q_PSEND, p.Q_T2)
        e("s_lshl_b32 s%d, s%d, 2", p.Q_FRECV, p.Q_T)
        e("s_lshl_b32 s%d, s%d, 2", p.Q_FSEND, p.Q_T2)
        e("s_lshl_b32 s%d, s%d, 9", p.Q_FPOLL, p.Q_MT)
        e("s_lshl_b32 s%d, s%d, 8", p.Q_T, p.Q_KS)
        e("s_add_u32 s%d, s%d, s%d", p.Q_FPOLL, p.Q_FPOLL, p.Q_T)
        e("s_add_u32 s%d, s%d, %d", p.Q_FPOLL, p.Q_FPOLL, FLG_ACT)
        e("s_mov_b32 s%d, s%d", p.Q_O, p.P_OUT); e("s_mov_b32 s%d, s%d", p.Q_O + 1, p.P_OUT + 1)
        e("s_mov_b32 s%d, 0x%x", p.Q_O + 2, 2048 * 2048); e("s_mov_b32 s%d, 0x00020000", p.Q_O + 3)
        for d, off, nb in ((p.Q_P, WS_PART, 256 * 32768), (p.Q_F, WS_FLAGS, FLG_BYTES)):
            L.append(["s_add_u32 s%d, s%d, 0x%x" % (d, p.Q_A, off - WS_ACT2), "s_addc_u32 s%d, s%d, 0" % (d + 1, p.Q_A + 1)])
            e("s_mov_b32 s%d, 0x%x", d + 2, nb); e("s_mov_b32 s%d, 0x00020000", d + 3)
        e("s_mov_b32 s%d, s%d", p.Q_A2, p.Q_A); e("s_mov_b32 s%d, s%d", p.Q_A2 + 1, p.Q_A + 1)
        e("s_mov_b32 s%d, 0", p.Q_A2 + 2); e("s_mov_b32 s%d, 0x00020000", p.Q_A2 + 3)
        return L

    def a_job(self, s, srd=None, other=False):
        p = self; srd = p.Q_A if srd is None else srd
        if s < 8: base, kb = p.Q_BA, 7 * s + 1
        elif s < 16: base, kb = p.Q_BA, 7 * (s - 8) + (0 if p.EP2 else 2)
        elif s < 20: base, kb = p.Q_BC, 14 * (s - 16) + 3
        elif p.EP2:
            i = (s - 20) % 8
            base, kb = (p.Q_BP, 14 * i + 2) if i < 4 else (p.Q_BT, 4 * (i - 4))
        elif (s - 20) % 8 < 4: base, kb = p.Q_BT, 4 * ((s - 20) % 8)
        else: base, kb = p.Q_BP, 14 * ((s - 24) % 8)
        L = []
        if s == 28: L += ["s_add_u32 s%d, s%d, s%d" % (p.Q_BT, p.Q_BT, p.Q_KD), "s_add_u32 s%d, s%d, s%d" % (p.Q_BP, p.Q_BP, p.Q_KD)]
        if other: L += ["s_sub_u32 m0, m0, 8192", "s_sub_u32 s%d, s%d, %d" % (p.Q_T, p.Q_T, 4 * p.AKB)]
        else: L += ["s_add_u32 m0, s%d, %d" % (p.Q_M0W, (s % NSLOT) * 16384), "s_add_u32 s%d, s%d, %d" % (p.Q_T, base, kb * p.AKB)]
        for i in range(4):
            L.append(("buffer_load_dwordx4 v%d, s[%d:%d], s%d offen offset:%d%s lds" % (p.V_L16, srd, srd + 3, p.Q_T, 1024 * i, p.amod), ('A', s)))
        return L
    def w_kbs(self, b):
        if b < 8: return self.Q_WG, 7 * b + 1, 4
        if b < 16: return self.Q_WG, 7 * (b - 8) + (0 if self.EP2 else 2), 4
        if b < 20: return self.Q_WG, 14 * (b - 16) + 3, 7
        if self.EP2: return (self.Q_WG, 7 * (b - 20) + 2, 4) if b < 28 else (self.Q_WT, 2 * (b - 28), 1)
        if b < 28: return self.Q_WT, 2 * (b - 20), 1
        return self.Q_WG, 7 * (b - 28), 4
    def w_job(self, b):
        p = self; base, kb, d = p.w_kbs(b); L = []
        for kk in range(2):
            L.append("s_add_u32 s%d, s%d, %d" % (p.Q_T2, base, (kb + kk * d) * 65536))
            for nf in range(2):
                L.append(("buffer_load_dwordx4 %s, v%d, s[%d:%d], s%d offen offset:%d%s" % (p.wfrag(b, kk, nf), p.V_L16, p.Q_W, p.Q_W + 3, p.Q_T2, 1024 * nf, p.wmod), ('W', b)))
        return L
    def poll_ld(self, t):
        p = self
        return ("buffer_load_dword v%d, v%d, s[%d:%d], s%d offen offset:%d sc1" % (p.V_POLL, p.V_L16, p.Q_F, p.Q_F + 3, p.Q_FPOLL, 4 * (t & 1) if p.EP2 else 4 * t), ('PL', t))
    def poll_seq(self, t):
        if self.opt.get("p2_pl16"): return ["s_mov_b64 exec, 0xffff", self.poll_ld(t), "s_mov_b64 exec, -1"]
        return [self.poll_ld(t)]
    def poll_emit(self, a, t):
        for x in self.poll_seq(t): a(x[0] if isinstance(x, tuple) else x)
    def poll_test(self, t):
        if self.EP2: return ["v_cmp_gt_u32 vcc, %d, v%d" % (1 + (t >> 1), self.V_POLL), "s_and_b32 s%d, vcc_lo, 0xffff" % self.Q_T]
        return ["v_cmp_eq_u32 vcc, 0, v%d" % self.V_POLL, "s_and_b32 s%d, vcc_lo, 0xffff" % self.Q_T]

    def body(self, a, queues, npre, fused, stamp_fn=None):
        p = self; opt = p.opt
        qs = [list(q) for q in queues]
        def push(t):
            for q in qs: q.append(t)
        def need(tags):
            n = 63
            for q in qs:
                idx = [i for i, t in enumerate(q) if t in tags]
                if idx: n = min(n, len(q) - 1 - max(idx))
            return n
        def need1(q, tags):
            idx = [i for i, t in enumerate(q) if t in tags]
            return min(63, len(q) - 1 - max(idx)) if idx else 63
        def vwait(tags):
            if p.EP2:
                n0 = min(need1(q_, tags) for q_ in qs[:4]); n1 = need1(qs[4], tags)
                if n0 > n1 + 1:
                    l_ = a.newlab("L_p2_w")
                    a("s_cmp_lg_u32 s%d, 0", p.Q_A2 + 2)
                    a("s_cbranch_scc1 %s", l_)
                    a("s_waitcnt vmcnt(%d)", n1)
                    a.label(l_)
                    a("s_waitcnt vmcnt(%d)", n0)
                    return
            elif len(qs) == 4 and opt.get("wv2"):
                n0 = min(need1(qs[0], tags), need1(qs[1], tags)); n1 = min(need1(qs[2], tags), need1(qs[3], tags))
                if n0 > n1 + 1:
                    l_ = a.newlab("L_p2_w")
                    a("s_cmp_lt_u32 s%d, 2", p.S_W)
                    a("s_cbranch_scc1 %s", l_)
                    a("s_waitcnt vmcnt(%d)", n1)
                    a.label(l_)
                    a("s_waitcnt vmcnt(%d)", n0)
                    return
            a("s_waitcnt vmcnt(%d)", need(tags))
        lq = []
        def lwait(tags):
            idx = [i for i, t in enumerate(lq) if t in tags]
            if not idx: return
            n = len(lq) - 1 - max(idx)
            a("s_waitcnt lgkmcnt(%d)", min(n, 15))
            del lq[:len(lq) - min(n, 15)]
        spins = []
        def emit(x):
            if isinstance(x, tuple):
                if x[1][0] in opt.get("p2_skip", []): return
                a(x[0]); push(x[1])
            elif callable(x): x()
            else: a(x)
        def rd(n):
            c, u = n >> 1, n & 1
            out = []
            for i in range(8):
                off = (c % NSLOT) * 16384 + u * 8192 + i * 1024
                out.append(("ds_read_b128 %s, v%d offset:%d" % (p.afrag(u, i), p.V_R[off >> 16], off & 65535), ('L', n, i)))
            return out
        def wblocks(c): return [c] if c < 20 else [20 + 2 * ((c - 20) % 8), 21 + 2 * ((c - 20) % 8)]
        touched = set()
        def mf_list(n):
            c, u = n >> 1, n & 1
            out = []
            for i in range(8):
                for z in range(2):
                    nf = z ^ (i & 1)
                    if c < 20: t = p.acc(i >> 2, i & 3, nf); wf = p.wfrag(c, u, nf)
                    else: t = p.acc(1 if c < 28 else 0, i & 3, nf); wf = p.wfrag(wblocks(c)[u], i >> 2, nf)
                    if opt.get("p2_m32x"):
                        if z == 1: out.append(("", i)); continue
                        t = R('v', 80 + 16 * ((i & 3) if c < 20 else (2 + (i & 1)) if c < 28 else (i & 1)), 16)
                        first = t.base not in touched; touched.add(t.base)
                        out.append(("v_mfma_f32_32x32x16_bf16 %s, %s, %s, %s" % (t, wf, p.afrag(u, i), "0" if first else t), i))
                        continue
                    first = t.base not in touched; touched.add(t.base)
                    out.append(("v_mfma_f32_16x16x32_bf16 %s, %s, %s, %s" % (t, wf, p.afrag(u, i), "0" if first else t), i))
            return out
        a("v_add_u32 v%d, 65536, v%d", p.V_R[1], p.V_L16)
        a("v_add_u32 v%d, 131072, v%d", p.V_R[2], p.V_L16)
        vwait([('A', 0), ('W', 0)])
        a("s_barrier")
        if stamp_fn: stamp_fn(0)
        for ins, tag in rd(0): a(ins); lq.append(tag)
        T0, T1, T2, T3 = p.T0, p.T1, p.T2, p.T3
        misc = ["v_and_b32 v%d, 15, v0" % T0, "v_lshrrev_b32 v%d, 4, v0" % T1, "v_lshlrev_b32 v%d, 11, v%d" % (T0, T0),
                "v_lshl_add_u32 v%d, v%d, 3, v%d" % (p.V_XL, T1, T0),
                "v_and_b32 v%d, 1, v%d" % (T2, T1), "v_lshl_add_u32 v%d, v%d, 5, v%d" % (T2, T2, T0), "v_lshrrev_b32 v%d, 1, v%d" % (T3, T1),
                "v_lshl_add_u32 v%d, v%d, 4, v%d" % (p.V_XO, T3, T2), "v_mov_b32 v%d, %d" % (p.V_ONE, 2 if p.EP2 else 1), "v_mov_b32 v%d, 0" % p.V_ZERO]
        for x in misc: a(x)
        D0 = opt.get("p2_d0", 2) if fused else 0
        jobs = {c: [] for c in range(-1, 36)}
        NA0 = opt.get("wv2", 8) if fused else 8
        if p.EP2: NA0 = opt.get("wv_na", 8)
        CK = {8: 1, 16: 2, 24: 3} if p.EP2 else {8: 1, 16: 2, 20: 3}
        def check(t):
            def f():
                l1 = a.newlab("L_p2_sp"); l2 = a.newlab("L_p2_sr")
                if p.nst: p.nst("c%da" % t)
                a("s_waitcnt vmcnt(%d)", need([('PL', t)]))
                for x in p.poll_test(t): a(x)
                a("s_cbranch_scc1 %s", l1)
                a.label(l2)
                if p.nst: p.nst("c%db" % t)
                spins.append((l1, l2, t))
            return f
        dma_at = {s: max(s - 8, D0 + (s - 8) // 2, (s - NA0) // 2 - 1) for s in range(8, 36)}
        for s in range(NA0, 8): dma_at[s] = (s - NA0) // 2 - 1
        if opt.get("p2_ramp"):
            s = NA0; LAM = opt.get("p2_la", 8)
            for c in range(-1, 36):
                r_ = opt["p2_ramp"][c + 1] if c + 1 < len(opt["p2_ramp"]) else 1
                while r_ and s < 36 and s - LAM <= c:
                    dma_at[s] = c; s += 1; r_ -= 1
            assert s == 36
        nxtw = npre
        for c in range(-1, 36):
            for s in range(NA0, 36):
                if dma_at[s] == c:
                    if fused and s in CK: jobs[c].append([check(CK[s])])
                    j = p.a_job(s); k = len(j) - 4
                    jobs[c] += [j[:k + 1]] + [[x] for x in j[k + 1:]]
            nw = 0
            while c >= opt.get("p2_w0", 0) and nxtw < 36 and nxtw - 16 < c and nw < (opt["p2_wpat"][c % len(opt["p2_wpat"])] if opt.get("p2_wpat") else opt.get("p2_wps", 2)):
                j = p.w_job(nxtw); jobs[c] += [j[0:2], j[2:3], j[3:5], j[5:6]]; nxtw += 1; nw += 1
        if fused:
            for s, t in CK.items():
                c = dma_at[s] - 2
                if c >= 0: jobs[c].insert(0, p.poll_seq(t))
                else:
                    for x in p.poll_seq(t): emit(x)
            SG = opt.get("p2_sig", 2)
            def sig():
                if p.nst: p.nst("sga")
                a("s_waitcnt vmcnt(%d)", need([('AS', 0)]))
                if p.nst: p.nst("sgb")
                a("s_mov_b64 exec, 1")
                emit(("buffer_store_dword v%d, v%d, s[%d:%d], s%d offen sc1" % (p.V_ONE, p.V_ZERO, p.Q_F, p.Q_F + 3, p.Q_FSIG), ('SG', 0)))
                a("s_mov_b64 exec, -1")
            jobs[SG].insert(0, [sig])
        XLATE = opt.get("p2_xl", 0)
        XC = XLATE if XLATE else 10
        for mf in range(0 if p.XE else 4):
            jobs[XC + (mf >> 1 if XLATE else mf)].append(["s_add_u32 s%d, s%d, %d" % (p.Q_T2, p.Q_XROW, mf * 32768)] +
                                 [("buffer_load_dwordx2 v[%d:%d], v%d, s[%d:%d], s%d offen offset:%d" % (p.XL + (mf * 2 + nf) * 2, p.XL + (mf * 2 + nf) * 2 + 1, p.V_XL, p.Q_X, p.Q_X + 3, p.Q_T2, nf * 32), ('X', 0)) for nf in range(2)])
        valu = {c: [] for c in range(36)}
        XA = 33 if XLATE else 21
        valu[XA].append([lambda: a("s_waitcnt vmcnt(%d)", need([('X', 0), ('S', 0)])), "s_mov_b32 s%d, 0xffff0000" % p.Q_BA])
        for k in range(8):
            t = p.acc(0, k >> 1, k & 1); d = p.XL + 2 * k
            for h in range(2):
                if XLATE:
                    t = p.acc(1, k >> 1, k & 1)
                    valu[XA + k // 4].append(["v_lshlrev_b32 %s, 16, v%d" % (t.sub(2 * h), d + h), "v_and_b32 %s, s%d, v%d" % (t.sub(2 * h + 1), p.Q_BA, d + h)])
                    continue
                c = 21 + k // 2
                valu[c].append(["v_lshlrev_b32 v%d, 16, v%d" % (T0, d + h), "v_and_b32 v%d, s%d, v%d" % (T1, p.Q_BA, d + h)])
                valu[c].append(["v_add_f32 %s, %s, v%d" % (t.sub(2 * h), t.sub(2 * h), T0), "v_add_f32 %s, %s, v%d" % (t.sub(2 * h + 1), t.sub(2 * h + 1), T1)])
        FA = opt.get("p2_fa", 31); PA = opt.get("p2_pa", 33); RA = opt.get("p2_ra", 34)
        pre0 = {c: [] for c in range(36)}
        for k in range(8):
            t = p.acc(1, k >> 1, k & 1)
            pre0[28].append([("buffer_store_dwordx4 %s, v%d, s[%d:%d], s%d offen offset:%d sc1" % (t, p.V_L16, p.Q_P, p.Q_P + 3, p.Q_PSEND, (k & 3) * 1024), ('S', 0))]
                            + (["s_add_u32 s%d, s%d, 4096" % (p.Q_PSEND, p.Q_PSEND)] if k == 3 else []))
        def flag():
            a("s_waitcnt vmcnt(%d)", need([('S', 0)]))
            emit(("buffer_store_dword v%d, v%d, s[%d:%d], s%d offen sc1" % (p.V_ONE, p.V_ZERO, p.Q_F, p.Q_F + 3, p.Q_FSEND), ('F', 0)))
        jobs[FA].insert(0, [flag])
        jobs[PA].append([("buffer_load_dword v%d, v%d, s[%d:%d], s%d offen sc1" % (p.V_FL, p.V_ZERO, p.Q_F, p.Q_F + 3, p.Q_FRECV), ('FL', 0))])
        def rloads():
            return [("buffer_load_dwordx4 v[%d:%d], v%d, s[%d:%d], s%d offen offset:%d sc1" % (p.RECV + 4 * k, p.RECV + 4 * k + 3, p.V_L16, p.Q_P, p.Q_P + 3, p.Q_PRECV if k < 4 else p.Q_T2, (k & 3) * 1024), ('R', 0)) for k in range(8)]
        jobs[RA].append([lambda: a("s_waitcnt vmcnt(%d)", need([('FL', 0)])), "v_readfirstlane_b32 s%d, v%d" % (p.Q_OK, p.V_FL), "s_add_u32 s%d, s%d, 4096" % (p.Q_T2, p.Q_PRECV)])
        jobs[RA] += [[x] for x in rloads()]
        if opt.get("p2_ga"):
            from gapsim import cost as gcost
            LW = opt.get("p2_lw", 1)
            sq = []; tq = []; vq = []
            def push_items(items):
                for it in items:
                    if any(isinstance(x, str) and "exec" in x for x in it) or any(callable(x) for x in it):
                        k_ = len(it)
                        while isinstance(it[k_ - 1], str) and it[k_ - 1].startswith("s_") and "exec" not in it[k_ - 1]: k_ -= 1
                        sq.append(('L', it[:k_])); it = it[k_:]
                    for x in it:
                        sq.append(('L', [x]) if isinstance(x, tuple) else ('s', [x]) if x.startswith("s_") else ('L', [x]))
            def lneed(tags):
                idx = [i for i, t in enumerate(lq) if t in tags]
                if not idx: return None
                n_ = min(15, len(lq) - 1 - max(idx))
                del lq[:len(lq) - n_]
                return n_
            def ltag(n, i):
                lw = LW if n else 1
                return ('L', n, min(7, i // lw * lw + lw - 1))
            push_items(jobs[-1])
            g = 0; nl = 1; de = 2
            for n in range(72):
                c, u = n >> 1, n & 1
                ms = mf_list(n)
                if u == 0:
                    if n + 1 < 72: tq.extend(rd(n + 1))
                    if pre0[c]:
                        rest = list(sq); del sq[:]
                        k_ = 0
                        while k_ < len(rest) and rest[k_][0] == 'L': k_ += 1
                        sq.extend(rest[:k_]); push_items(pre0[c]); sq.extend(rest[k_:]); de = 2
                    for it in valu[c]:
                        if any(callable(x) for x in it): push_items([it]); sq.append(('v', c))
                    if c != XA:
                        assert not any(it[0] == 'v' for it in sq)
                        vq.extend(x for it in valu[c] for x in it)
                for k, (m, i) in enumerate(ms):
                    assert not any(t == ('L', n, i) for _, t in tq)
                    lwait([ltag(n, i)])
                    a(m)
                    g += 1
                    nxt = [ltag(n, ms[k + 1][1])] if k < 15 else [ltag(n + 1, 0)]
                    if k == 0 and u == 1:
                        if c < 35:
                            tags = [('A', c + 1)] + [('W', b) for b in wblocks(c + 1)]
                            assert not any(isinstance(x, tuple) and x[1] in tags for it in sq if it[0] == 'L' for x in it[1]), c
                            vwait(tags)
                            m_ = lneed(nxt)
                            if m_ is not None: a.l[-1] += " lgkmcnt(%d)" % m_
                            a("s_barrier")
                        push_items(jobs[c])
                        nL = sum(1 for it in sq if it[0] == 'L')
                        de = 4 if 3 + (nL - 1) * 4 <= (31 if c < 35 else 15) else 2
                        g = 0; nl = 3
                        if n + 1 < 72: tq.extend(rd(n + 1))
                        if c < 35: continue
                    while sq and sq[0][0] == 'v':
                        vq.extend(x for it in valu[sq.pop(0)[1]] if not any(callable(y) for y in it) for x in it)
                    pat = ""
                    m_ = lneed(nxt)
                    if m_ is not None: a("s_waitcnt lgkmcnt(%d)", m_); pat = "w"
                    tgap = tq and (k % 2 == 0 or len(tq) > (15 - k) // 2)
                    if not tgap and sq and sq[0][0] == 'L' and g >= nl and k % 2:
                        for x in sq.pop(0)[1]: emit(x)
                        nl = g + de
                        continue
                    tdone = not tgap
                    rv = "v" if vq else ""
                    while sq and sq[0][0] == 's':
                        if not tdone:
                            if gcost(pat + "st") > 0:
                                ins, tag = tq.pop(0); a(ins); lq.append(tag); pat += "t"; tdone = True
                                continue
                        elif gcost(pat + "s") > 0: break
                        emit(sq.pop(0)[1][0]); pat += "s"
                    if not tdone:
                        ins, tag = tq.pop(0); a(ins); lq.append(tag); pat += "t"
                    nv = 0
                    while vq and gcost(pat + "v") == 0 and nv < opt.get("p2_nv", 1):
                        a(vq.pop(0)); pat += "v"; nv += 1
                assert not tq
                if c == 27 and u == 1: assert not vq, len(vq)
                if stamp_fn and n in (39, 55): stamp_fn(1 if n == 39 else 2)
                if p.nst and u == 1: p.nst("q%d" % (c + 1))
            assert not sq and not vq
        pend = list(jobs[-1]); gap = 0; step_ = 1
        JG = opt.get("p2_jg", 2)
        if opt.get("p2_ga"): pend = []
        for n in range(0 if opt.get("p2_ga") else 72):
            c, u = n >> 1, n & 1
            ms = mf_list(n)
            nr = rd(n + 1) if n + 1 < 72 else []
            side = list(pre0[c]) if u == 0 else []
            vs = valu[c][u * 8:(u + 1) * 8] if len(valu[c]) <= 16 else None
            for k, (m, i) in enumerate(ms):
                LW = opt.get("p2_lw", 1) if n else 1
                lwait([('L', n, min(7, i // LW * LW + LW - 1))])
                if m: a(m)
                if k == 0 and u == 1:
                    if c < 35:
                        vwait([('A', c + 1)] + [('W', b) for b in wblocks(c + 1)])
                        if not opt.get("p2_nobar"): a("s_barrier")
                    assert not pend, (c, pend)
                    pend = list(jobs[c]); gap = 0
                    span = 30 if c < 35 else 14
                    step_ = max(1, min(JG + 1, span // max(1, len(pend))))
                    if opt.get("p2_even"):
                        step_ = 1
                        for st in (4, 2):
                            if 2 + (len(pend) - 1) * st <= span + 1: step_ = st; break
                        if step_ == 4 and opt["p2_even"] > 1 and pend:
                            np_ = []
                            for it in pend:
                                k_ = 0
                                while k_ < len(it) - 1 and isinstance(it[k_], str) and it[k_].startswith("s_add"): k_ += 1
                                np_ += [it[:k_], it[k_:]]
                            for x in np_.pop(0): emit(x)
                            pend = np_; step_ = 2
                if k % 2 == 0 and nr:
                    ins, tag = nr.pop(0)
                    if not opt.get("p2_nolds"): a(ins); lq.append(tag)
                elif side and k >= 1:
                    for x in side.pop(0): emit(x)
                elif vs:
                    for x in vs.pop(0): emit(x)
                if pend:
                    gap += 1
                    if gap >= 2 and (gap - 2) % step_ == 0:
                        for x in pend.pop(0): emit(x)
            assert not side and not vs
            if stamp_fn and n in (39, 55): stamp_fn(1 if n == 39 else 2)
            if p.nst and u == 1: p.nst("q%d" % (c + 1))
        assert not pend
        if stamp_fn: stamp_fn(3)
        if XLATE:
            a("s_nop 4")
            for k in range(8):
                t = p.acc(0, k >> 1, k & 1); x_ = p.acc(1, k >> 1, k & 1)
                for h in (0, 2): a("v_pk_add_f32 %s, %s, %s", t.sub(h, 2), t.sub(h, 2), x_.sub(h, 2))
        lok = a.newlab("L_p2_ok"); lsp = a.newlab("L_p2_spin")
        a("s_cmp_lg_u32 s%d, 0", p.Q_OK)
        a("s_cbranch_scc1 %s", lok)
        a.label(lsp)
        a("s_sleep 2")
        a("buffer_load_dword v%d, v%d, s[%d:%d], s%d offen sc1", p.V_FL, p.V_ZERO, p.Q_F, p.Q_F + 3, p.Q_FRECV)
        a("s_waitcnt vmcnt(0)")
        a("v_readfirstlane_b32 s%d, v%d", p.Q_OK, p.V_FL)
        a("s_nop 1")
        a("s_cmp_eq_u32 s%d, 0", p.Q_OK)
        a("s_cbranch_scc1 %s", lsp)
        for x in rloads(): a(x[0])
        a.label(lok)
        a("s_nop 4")
        for mf in range(4):
            pk = p.XL + mf * 4
            a("s_waitcnt vmcnt(%d)", 6 - mf)
            for nf in range(2):
                t = p.acc(0, mf, nf); rb = p.RECV + (mf * 2 + nf) * 4
                a("v_pk_add_f32 v[%d:%d], v[%d:%d], v[%d:%d]", t.base, t.base + 1, t.base, t.base + 1, rb, rb + 1)
                a("v_pk_add_f32 v[%d:%d], v[%d:%d], v[%d:%d]", t.base + 2, t.base + 3, t.base + 2, t.base + 3, rb + 2, rb + 3)
                a("v_cvt_pk_bf16_f32 v%d, v%d, v%d", pk + 2 * nf, t.base, t.base + 1)
                a("v_cvt_pk_bf16_f32 v%d, v%d, v%d", pk + 2 * nf + 1, t.base + 2, t.base + 3)
            a("s_add_u32 s%d, s%d, %d", p.Q_T, p.Q_XROW, mf * 32768)
            a("v_permlane16_swap_b32 v%d, v%d", pk, pk + 2)
            a("v_permlane16_swap_b32 v%d, v%d", pk + 1, pk + 3)
            a("buffer_store_dwordx4 v[%d:%d], v%d, s[%d:%d], s%d offen%s", pk, pk + 3, p.V_XO, p.Q_O, p.Q_O + 3, p.Q_T, opt.get("p2_omod", ""))
        return spins
    def spin_code(self, a, spins):
        for l1, l2, t in spins:
            a.label(l1)
            a("s_sleep 2")
            self.poll_emit(a, t)
            a("s_waitcnt vmcnt(0)")
            for x in self.poll_test(t): a(x)
            a("s_cbranch_scc1 %s", l1)
            a("s_branch %s", l2)

P2_LDS = NSLOT * 16384

def gen_p2k(a0, name="g2_kernel", opt=None):
    a = A(); a._lab = a0._lab + 5000
    S_W = 43
    p = P2(opt, S_W)
    kernel_header(a, name)
    done = a.newlab("L_p2_done")
    a("s_cmp_ge_u32 s2, 256")
    a("s_cbranch_scc1 %s", done)
    stamp(a, opt, 0)
    a("s_load_dwordx2 s[24:25], s[0:1], 0")
    a("s_load_dwordx2 s[100:101], s[0:1], 56")
    a("s_load_dwordx2 s[26:27], s[0:1], 72")
    a("v_lshrrev_b32 v1, 6, v0")
    a("v_and_b32 v0, 63, v0")
    a("v_readfirstlane_b32 s%d, v1", S_W)
    a("v_lshlrev_b32 v%d, 4, v0", p.V_L16)
    a("s_waitcnt lgkmcnt(0)")
    make_srd(a, p.Q_X, 24, 2048 * 2048)
    make_srd(a, p.Q_A, 26, 144 * p.AKB, WS_ACT2)
    make_srd(a, p.Q_W, 26, 4608 * 2048, WS_W2P)
    for x in p.setup_s():
        for y in (x if isinstance(x, list) else [x]): a(y)
    q = []
    NPRE = opt.get("p2_npre", 6)
    for s in range(8):
        for x in p.a_job(s) + (p.w_job(s) if s < NPRE else []):
            if isinstance(x, tuple): a(x[0]); q.append(x[1])
            else: a(x)
    def sf(i):
        if opt.get("p2_stp"):
            if i: stamp(a, opt, i)
        elif i != 2: stamp(a, opt, {0: 1, 1: 2, 3: 3}[i])
    spins = p.body(a, [q], NPRE, False, sf)
    if opt.get("prof"): a("s_waitcnt vmcnt(0)")
    stamp(a, opt, 4)
    stamp_store(a, opt, 5, 26, S_W, 2, 20)
    a.label(done)
    a("s_endpgm")
    lines, added = hazard.fix(a.l)
    a0.l += lines
    a0._lab = a._lab
    return kernel_desc(name, 512, 256, 102)
```
